```python
import torch

def _softmax(x, axis=-1):
    return torch.softmax(x, dim=axis)

def _gelu(x):
    return torch.nn.functional.gelu(x, approximate='tanh')

def _silu(x):
    return torch.nn.functional.silu(x)

def _sigmoid(x):
    return torch.sigmoid(x)

def _layernorm(x, axis=-1, eps=1e-05):
    m = x.mean(dim=axis, keepdim=True)
    v = x.var(dim=axis, keepdim=True, unbiased=False)
    return (x - m) / torch.sqrt(v + eps)

def _scatter_add(tgt, idx, src, axis=0):
    return tgt.clone().index_add_(axis, idx, src)

def _segment_sum(src, seg, n):
    out = torch.zeros((n,) + src.shape[1:], dtype=src.dtype)
    return out.index_add_(0, seg, src)

def _pad(x, pw):
    flat = tuple((v for pair in reversed(pw) for v in pair))
    return torch.nn.functional.pad(x, flat)
kernel_name = 'adaLN_cond__gqa_block_cached__dense_activation_relu__prompt'

def setup_inputs():

    _w = lambda a: (lambda t: t.to(torch.bfloat16) if t.is_floating_point() else t)(torch.as_tensor(a))

    def _A_setup():
        B, Sq, D = (1, 2048, 448)
        Hq, Hkv, Sk, Dh = (16, 8, 2048, 256)
        assert Hq % Hkv == 0, (Hq, Hkv)
        return {'x': _w((lambda *s: torch.randn(*s, dtype=torch.bfloat16) * 0.1)(B, Sq, D)), 'k_cache': _w((lambda *s: torch.randn(*s, dtype=torch.bfloat16) * 0.8)(B, Hkv, Sk, Dh)), 'v_cache': _w((lambda *s: torch.randn(*s, dtype=torch.bfloat16) * 1.6)(B, Hkv, Sk, Dh)), 'wq': _w((lambda *s: torch.randn(*s, dtype=torch.bfloat16) * 0.8)(D, Hq * Dh) * D ** (-0.5)), 'wo': _w((lambda *s: torch.randn(*s, dtype=torch.bfloat16) * 1.6)(Hq * Dh, D) * (Hq * Dh) ** (-0.5))}
    _A_in = _A_setup()

    def _B_setup():
        B, S, D, Dff = (1, 2048, 448, 1792)
        return {'x': _w((lambda *s: torch.randn(*s, dtype=torch.bfloat16) * 0.1)(B, S, D)), 'w1': _w((lambda *s: torch.randn(*s, dtype=torch.bfloat16) * 0.2)(D, Dff)), 'w2': _w((lambda *s: torch.randn(*s, dtype=torch.bfloat16) * 0.2)(Dff, D))}
    _B_in = _B_setup()
    return {'A_x': _A_in['x'], 'A_k_cache': _A_in['k_cache'], 'A_v_cache': _A_in['v_cache'], 'A_wq': _A_in['wq'], 'A_wo': _A_in['wo'], 'B_x': _B_in['x'], 'B_w1': _B_in['w1'], 'B_w2': _B_in['w2'], 'c': _w((lambda *s: torch.randn(*s, dtype=torch.bfloat16) * 0.8)(1, 448) * 8.0), 'w_mod': _w((lambda *s: torch.randn(*s, dtype=torch.bfloat16) * 0.8)(448, 6 * 448) * 448 ** (-0.5) * 8.0)}

def reference(A_x, A_k_cache, A_v_cache, A_wq, A_wo, B_x, B_w1, B_w2, c, w_mod):

    def _A_ref(x, k_cache, v_cache, wq, wo):
        B, Sq, D = x.shape
        Hq, Dh = (16, 256)
        Hkv = k_cache.shape[1]
        rep = Hq // Hkv
        q = (lambda x, *d: x.permute(*d))((x @ wq).reshape(B, Sq, Hq, Dh), 0, 2, 1, 3)
        k = (lambda x, n, axis: torch.repeat_interleave(x, n, dim=axis))(k_cache, rep, axis=1)
        v = (lambda x, n, axis: torch.repeat_interleave(x, n, dim=axis))(v_cache, rep, axis=1)
        scores = torch.einsum('bhqd,bhkd->bhqk', q, k) * Dh ** (-0.5)
        p = _softmax(scores, axis=-1)
        o = torch.einsum('bhqk,bhkd->bhqd', p, v)
        return (lambda x, *d: x.permute(*d))(o, 0, 2, 1, 3).reshape(B, Sq, Hq * Dh) @ wo

    def _B_ref(x, w1, w2):
        h = torch.einsum('bsd,df->bsf', x, w1)
        zero = torch.zeros_like(h)
        h = torch.maximum(h, zero)
        return torch.einsum('bsf,fd->bsd', h, w2)
    x = A_x
    mod = (_silu(c) @ w_mod).reshape(c.shape[0], 6, 1, -1)
    sa, ca, ga, sb, cb, gb = (mod[:, 0].clone(), mod[:, 1].clone(), mod[:, 2].clone(), mod[:, 3].clone(), mod[:, 4].clone(), mod[:, 5].clone())
    h = _layernorm(x, axis=-1) * (1 + ca) + sa
    x = x + ga * _A_ref(h, A_k_cache, A_v_cache, A_wq, A_wo)
    h = _layernorm(x, axis=-1) * (1 + cb) + sb
    x = x + gb * _B_ref(h, B_w1, B_w2)
    return x
```

```python
import re

class Asm:
    def __init__(self):
        self.lines = []
        self.uid = 0
    def e(self, s):
        self.lines.append("    " + s)
    def c(self, s):
        self.lines.append("    ; " + s)
    def label(self, name):
        self.lines.append(name + ":")
    def newlabel(self, base="L"):
        self.uid += 1
        return f"{base}_{self.uid}"
    def raw(self, s):
        self.lines.append(s)
    def text(self):
        return "\n".join(self.lines) + "\n"

def v(i, n=1):
    return f"v{i}" if n == 1 else f"v[{i}:{i+n-1}]"
def a(i, n=1):
    return f"a{i}" if n == 1 else f"a[{i}:{i+n-1}]"
def s(i, n=1):
    return f"s{i}" if n == 1 else f"s[{i}:{i+n-1}]"

def srd(A, sd, base_lo, base_hi, nbytes):
    A.e(f"s_mov_b32 s{sd}, {base_lo}")
    A.e(f"s_and_b32 s{sd+1}, {base_hi}, 0xffff")
    A.e(f"s_mov_b32 s{sd+2}, {nbytes}")
    A.e(f"s_mov_b32 s{sd+3}, 0x00020000")

def kernel_begin(A, name):
    A.raw(f".globl {name}")
    A.raw(".p2align 8")
    A.raw(f".type {name},@function")
    A.raw(f"{name}:")

def descriptor(name, vgpr, sgpr=102, accum=256):
    return f""".amdhsa_kernel {name}
  .amdhsa_next_free_vgpr {vgpr}
  .amdhsa_next_free_sgpr {sgpr}
  .amdhsa_accum_offset {accum}
  .amdhsa_group_segment_fixed_size 0
  .amdhsa_kernarg_size 104
  .amdhsa_user_sgpr_count 2
  .amdhsa_user_sgpr_kernarg_segment_ptr 1
  .amdhsa_system_sgpr_workgroup_id_x 1
.end_amdhsa_kernel
"""
```

```python
from asmlib import *
from layout import *
import struct

def f2u(x):
    return struct.unpack("<I", struct.pack("<f", x))[0]

def gen_k0(A):
    name = "k0_mod_kernel"
    kernel_begin(A, name)
    A.e(f"s_cmp_ge_u32 s2, {K0_GRID}")
    A.e("s_cbranch_scc1 K0_END")
    A.e("s_load_dwordx2 s[4:5], s[0:1], 96")
    A.e("s_cmp_ge_u32 s2, 42")
    A.e("s_cbranch_scc1 K0_Y")
    A.e("s_load_dwordx4 s[8:11], s[0:1], 64")
    A.e("v_and_b32 v3, 7, v0")
    A.e("v_lshrrev_b32 v4, 3, v0")
    A.e("v_lshlrev_b32 v2, 1, v4")
    A.e("s_movk_i32 s6, 5376")
    A.e("v_mul_lo_u32 v1, v4, s6")
    A.e("v_lshl_add_u32 v1, v3, 4, v1")
    A.e("s_lshl_b32 s7, s2, 7")
    A.e("v_add_u32 v1, s7, v1")
    A.e("s_waitcnt lgkmcnt(0)")
    srd(A, 12, "s8", "s9", 896)
    srd(A, 16, "s10", "s11", 448*5376)
    for st in range(14):
        A.e(f"buffer_load_ushort v{72+st}, v2, s[12:15], 0 offen offset:{64*st}")
    for st in range(14):
        A.e(f"s_mov_b32 s20, {st*32*5376}")
        A.e(f"buffer_load_dwordx4 {v(16+4*st,4)}, v1, s[16:19], s20 offen")
    for r in range(8):
        A.e(f"v_mov_b32 v{88+r}, 0")
    A.e("s_mov_b32 s21, 0xbfb8aa3b")
    A.e("s_waitcnt vmcnt(14)")
    for st in range(14):
        x = 72+st
        A.e(f"v_lshlrev_b32 v{x}, 16, v{x}")
        A.e(f"v_mul_f32 v5, s21, v{x}")
        A.e(f"v_exp_f32 v5, v5")
        A.e("s_nop 0")
        A.e(f"v_add_f32 v5, 1.0, v5")
        A.e(f"v_rcp_f32 v5, v5")
        A.e("s_nop 0")
        A.e(f"v_mul_f32 v5, v5, v{x}")
        A.e(f"v_cvt_pk_bf16_f32 v5, v5, v5")
        A.e(f"v_lshlrev_b32 v{x}, 16, v5")
    for st in range(14):
        A.e(f"s_waitcnt vmcnt({13-st})")
        for d in range(4):
            w = 16+4*st+d
            A.e(f"v_lshlrev_b32 v5, 16, v{w}")
            A.e(f"v_and_b32 v6, 0xffff0000, v{w}")
            A.e(f"v_fmac_f32 v{88+2*d}, v5, v{72+st}")
            A.e(f"v_fmac_f32 v{88+2*d+1}, v6, v{72+st}")
    A.e("v_lshlrev_b32 v7, 8, v4")
    A.e("v_lshl_add_u32 v7, v3, 5, v7")
    A.e("ds_write_b128 v7, v[88:91]")
    A.e("ds_write_b128 v7, v[92:95] offset:16")
    A.e("s_waitcnt lgkmcnt(0)")
    A.e("s_barrier")
    A.e("v_cmp_gt_u32 vcc, 64, v0")
    A.e("s_and_saveexec_b64 s[22:23], vcc")
    A.e("s_cbranch_execz K0_END")
    A.e("v_lshlrev_b32 v7, 2, v0")
    for r in range(32):
        A.e(f"ds_read_b32 v{16+r}, v7 offset:{256*r}")
    A.e("s_waitcnt lgkmcnt(0)")
    for r in range(1, 32):
        A.e(f"v_add_f32 v16, v16, v{16+r}")
    A.e("v_cvt_pk_bf16_f32 v16, v16, v16")
    A.e("v_lshlrev_b32 v16, 16, v16")
    A.e("s_mul_i32 s24, s2, 9363")
    A.e("s_lshr_b32 s24, s24, 16")
    A.e("s_mov_b32 s25, 0")
    A.e("s_cmp_eq_u32 s24, 1")
    A.e("s_cselect_b32 s25, 1.0, s25")
    A.e("s_cmp_eq_u32 s24, 4")
    A.e("s_cselect_b32 s25, 1.0, s25")
    A.e("v_add_f32 v16, s25, v16")
    A.e("v_cvt_pk_bf16_f32 v16, v16, v16")
    A.e("v_lshlrev_b32 v16, 16, v16")
    A.e(f"s_mov_b32 s26, {f2u(CS):#x}")
    A.e("s_cmp_le_u32 s24, 1")
    A.e("s_cselect_b32 s26, s26, 1.0")
    A.e("v_mul_f32 v16, s26, v16")
    srd(A, 12, "s4", "s5", MOD_BYTES)
    A.e("s_lshl_b32 s7, s2, 8")
    A.e("v_add_u32 v7, s7, v7")
    A.e("buffer_store_dword v16, v7, s[12:15], 0 offen")
    A.e("s_endpgm")
    A.label("K0_Y")
    A.e("s_load_dwordx2 s[8:9], s[0:1], 0")
    A.e("s_sub_u32 s6, s2, 42")
    A.e("v_and_b32 v2, 63, v0")
    A.e("v_lshrrev_b32 v3, 6, v0")
    A.e("v_and_b32 v4, 31, v0")
    A.e("v_bfe_u32 v5, v0, 5, 1")
    A.e("s_lshl_b32 s7, s6, 5")
    A.e("v_add_u32 v6, s7, v4")
    A.e("s_movk_i32 s10, 896")
    A.e("v_mul_lo_u32 v1, v6, s10")
    A.e("v_lshl_add_u32 v1, v5, 3, v1")
    A.e("s_movk_i32 s10, 224")
    A.e("v_mul_lo_u32 v7, v3, s10")
    A.e("v_add_u32 v1, v1, v7")
    A.e("s_waitcnt lgkmcnt(0)")
    srd(A, 12, "s8", "s9", X_BYTES)
    for st in range(7):
        for u in range(2):
            A.e(f"buffer_load_dwordx2 {v(16+4*st+2*u,2)}, v1, s[12:15], 0 offen offset:{32*st+16*u}")
    A.e(f"s_add_u32 s8, s4, {Y_OFF}")
    A.e("s_addc_u32 s9, s5, 0")
    srd(A, 16, "s8", "s9", Y_BYTES)
    A.e("s_waitcnt vmcnt(0)")
    for r in range(28):
        A.e(f"v_lshlrev_b32 v{48+2*r}, 16, v{16+r}")
        A.e(f"v_and_b32 v{48+2*r+1}, 0xffff0000, v{16+r}")
    A.e("v_add_f32 v8, v48, v49")
    for r in range(2, 56):
        A.e(f"v_add_f32 v8, v8, v{48+r}")
    A.e("v_lshlrev_b32 v9, 2, v0")
    A.e("v_lshlrev_b32 v10, 2, v4")
    A.e("ds_write_b32 v9, v8")
    A.e("s_waitcnt lgkmcnt(0)")
    A.e("s_barrier")
    for k in range(8):
        A.e(f"ds_read_b32 v{16+k}, v10 offset:{128*k}")
    A.e("s_waitcnt lgkmcnt(0)")
    for k in range(1, 8):
        A.e(f"v_add_f32 v16, v16, v{16+k}")
    A.e(f"v_mul_f32 v16, {f2u(1.0/448):#x}, v16")
    for r in range(56):
        A.e(f"v_sub_f32 v{48+r}, v{48+r}, v16")
    A.e("v_mul_f32 v8, v48, v48")
    for r in range(1, 56):
        A.e(f"v_fmac_f32 v8, v{48+r}, v{48+r}")
    A.e("ds_write_b32 v9, v8 offset:1024")
    A.e("s_waitcnt lgkmcnt(0)")
    A.e("s_barrier")
    for k in range(8):
        A.e(f"ds_read_b32 v{16+k}, v10 offset:{1024+128*k}")
    A.e("s_waitcnt lgkmcnt(0)")
    for k in range(1, 8):
        A.e(f"v_add_f32 v16, v16, v{16+k}")
    A.e(f"v_mul_f32 v16, {f2u(1.0/448):#x}, v16")
    A.e(f"v_add_f32 v16, {f2u(1e-5):#x}, v16")
    A.e("v_rsq_f32 v16, v16")
    A.e("s_nop 0")
    for r in range(56):
        A.e(f"v_mul_f32 v{48+r}, v{48+r}, v16")
    for r in range(28):
        A.e(f"v_cvt_pk_bf16_f32 v{16+r}, v{48+2*r}, v{48+2*r+1}")
    A.e("s_mul_i32 s7, s6, 28672")
    A.e("s_movk_i32 s10, 7168")
    A.e("v_mul_lo_u32 v7, v3, s10")
    A.e("v_lshl_add_u32 v7, v2, 4, v7")
    for st in range(7):
        A.e(f"s_add_u32 s11, s7, {1024*st}")
        A.e(f"buffer_store_dwordx4 {v(16+4*st,4)}, v7, s[16:19], s11 offen")
    A.label("K0_END")
    A.e("s_endpgm")
    return name
```

```python
from asmlib import *
from layout import *
import struct

def f2u(x):
    return struct.unpack("<I", struct.pack("<f", x))[0]

KPIECE = 1040
KSLOT = 16*KPIECE
VBASE = 4*KSLOT
VSLOT = 16384
MODL = VBASE + 4*VSLOT
K1_LDS = MODL + 4096

O0 = 128
S_ = [96, 112]
NEGM = 80
P_ = [64, 72]
T_ = 56
L_ = [62, 63]
H1 = 16
VKR = [2, 3]
VVR = [4, 5]
VWR = [6, 7]
VKD = [8, 9, 10, 11]
VVD = [12, 13]
AQ = 0
NRING = 8
AK = 64
AV = 96
SRD_K, SRD_V, SRD_WQ, SRD_Y, SRD_M = 8, 12, 16, 20, 24
S_W, S_KOFF, S_M0K, S_M0V, S_CNT, S_THR = 28, 29, 30, 31, 32, 33

THR_LOG2 = 90
OPT = dict(bias=0, no_reads=False, no_sm=False, no_dma=False, order='alt', no_mfma=False, fake16=False)

class Lgkm:
    def __init__(self, A, pending=None):
        self.A = A
        self.q = list(pending) if pending else []
    def issue(self, tag):
        self.q.append(tag)
    def need(self, tags):
        idx = -1
        for i, t in enumerate(self.q):
            if t in tags:
                idx = i
        if idx < 0:
            return None
        n = len(self.q) - 1 - idx
        self.q = self.q[idx+1:]
        assert n <= 15, n
        return f"s_waitcnt lgkmcnt({n})"

def vread(slot, db, ks, u, ring, bases):
    dst = AV + 4*ring + 2*u
    off = slot*VSLOT + ks*8192 + u*4096 + (db >> 1)*256
    return f"ds_read_b64_tr_b16 {a(dst,2)}, v{bases[db & 1]} offset:{off}"

def kread(slot, ks, ring):
    dst = AK + 4*ring
    off = slot*KSLOT + ks*32
    return f"ds_read_b128 {a(dst,4)}, v{VKR[(ks >> 2) & 1]} offset:{off}"

def mfma(d, A_, B_, C_):
    return f"v_mfma_f32_32x32x16_bf16 {d}, {A_}, {B_}, {C_}"

def softmax_ops(Sr, Pw, Lold, Lnew):
    ops = []
    def pairtail(j):
        t0, t1 = T_ + 2*(j & 1), T_ + 2*(j & 1) + 1
        src = Lold if j == 0 else Lnew
        return [(1, f"v_add_f32 v{Lnew}, v{src}, v{t0}"),
                (1, f"v_add_f32 v{Lnew}, v{Lnew}, v{t1}"),
                (1, f"v_cvt_pk_bf16_f32 v{Pw+j}, v{t0}, v{t1}")]
    for j in range(8):
        t0, t1 = T_ + 2*(j & 1), T_ + 2*(j & 1) + 1
        ops.append((2, f"v_exp_f32 v{t0}, v{Sr+2*j}"))
        ops.append((2, f"v_exp_f32 v{t1}, v{Sr+2*j+1}"))
        if j > 0:
            ops += pairtail(j-1)
    ops += pairtail(7)
    return ops

def distribute(ops, lo, hi, ngaps=32):
    gaps = [[] for _ in range(ngaps)]
    total = sum(c for c, _ in ops)
    n = hi - lo + 1
    acc = 0.0
    for c, t in ops:
        g = lo + min(n-1, int((acc + c*0.5) * n / total))
        gaps[g].append(t)
        acc += c
    return gaps

LEAD = 6

def pos_op(p):
    if OPT['order'] == 'alt':
        if p % 2 == 0:
            n = p >> 1
            return ('pv', n >> 1, n & 1, n)
        return ('qk', p >> 1, 0, p >> 1)
    elif OPT['order'] == 'grp':
        if p < 16:
            return ('pv', p >> 1, p & 1, p)
        return ('qk', p-16, 0, p-16)
    elif OPT['order'] == 'grp4':
        blk, r = p >> 3, p & 7
        if r < 4:
            n = blk*4 + r
            return ('pv', n >> 1, n & 1, n)
        n = blk*4 + r - 4
        return ('qk', n, 0, n)
    raise ValueError

def reads_for_pos(ph, p, do_pv, do_qk, nxt_do_pv, nxt_do_qk):
    if p >= 32:
        ph2, p2, pv, qk = (ph+1) % 4, p-32, nxt_do_pv, nxt_do_qk
    else:
        ph2, p2, pv, qk = ph, p, do_pv, do_qk
    op = pos_op(p2)
    if op[0] == 'pv':
        if not pv: return []
        _, db, ks, n = op
        return [((p2, u), vread(ph2, db, ks, u, n % NRING, VVR)) for u in range(2)]
    else:
        if not qk: return []
        _, ks, _, n = op
        return [((p2, 0), kread((ph2+2) % 4, ks, n % NRING))]

def iteration(A, ph, tag, do_qk=True, do_sm=True, dma_k=True, dma_v=True,
              nxt_pv=True, nxt_qk=True, vmwait=8, barrier=True):
    Sw, Sr = S_[ph % 2], S_[(ph+1) % 2]
    Pr, Pw = P_[ph % 2], P_[(ph+1) % 2]
    Lold, Lnew = L_[ph % 2], L_[(ph+1) % 2]
    pend = []
    for p in range(LEAD):
        pend += [t for t, _ in reads_for_pos(ph, p, True, do_qk, True, True)]
    lg = Lgkm(A, pend)
    gaps = [[] for _ in range(32)]
    if barrier:
        gaps[0] += [f"s_waitcnt vmcnt({vmwait})", "s_barrier"]
    if OPT['no_dma']: dma_k = dma_v = False
    if OPT['no_sm']: do_sm = False
    if dma_k:
        gaps[1].append(f"s_add_u32 m0, s{S_M0K}, {((ph+1) % 4)*KSLOT}")
        for n in range(4):
            gaps[2+4*n].append(f"buffer_load_dwordx4 v{VKD[n]}, s[{SRD_K}:{SRD_K+3}], s{S_KOFF} offen offset:{n*KPIECE} lds")
    if dma_v:
        gaps[17].append(f"s_add_u32 m0, s{S_M0V}, {((ph+3) % 4)*VSLOT}")
        for n in range(4):
            gaps[18+4*n].append(f"buffer_load_dwordx4 v{VVD[n & 1]}, s[{SRD_V}:{SRD_V+3}], s{S_KOFF} offen offset:{n*1024} lds")
    gaps[31].append(f"s_add_u32 s{S_KOFF}, s{S_KOFF}, 16384")
    if do_sm:
        sm = distribute(softmax_ops(Sr, Pw, Lold, Lnew), 4, 29)
        for g in range(32):
            gaps[g] += sm[g]
        gaps[30].append(f"v_cmp_lt_f32 vcc, s{S_THR}, v{Lnew}")
    for p in range(32):
        if p % 2 == 0:
            w = lg.need({(p, 0), (p, 1), (p+1, 0), (p+1, 1)})
            if w and not OPT['no_reads']: A.e(w)
        op = pos_op(p)
        if OPT['no_mfma']:
            pass
        elif OPT['fake16']:
            if op[0] == 'pv':
                _, db, ks, n = op
                for hh in range(2):
                    acc = v(O0+16*db+8*ks+4*hh, 4)
                    A.e(f"v_mfma_f32_16x16x32_bf16 {acc}, {a(AV+4*(n % NRING),4)}, {v(Pr+4*hh,4)}, {acc}")
            elif do_qk:
                _, ks, _, n = op
                for hh in range(2):
                    acc = v(Sw+8*(ks & 1)+4*hh, 4)
                    c_ = v(NEGM+4*hh, 4) if ks < 2 else acc
                    A.e(f"v_mfma_f32_16x16x32_bf16 {acc}, {a(AK+4*(n % NRING),4)}, {a(AQ+8*(ks>>1)+4*hh,4)}, {c_}")
        elif op[0] == 'pv':
            _, db, ks, n = op
            acc = v(O0+16*db, 16)
            A.e(mfma(acc, a(AV+4*(n % NRING), 4), v(Pr+4*ks, 4), acc))
        elif do_qk:
            _, ks, _, n = op
            A.e(mfma(v(Sw, 16), a(AK+4*(n % NRING), 4), a(AQ+4*ks, 4), v(NEGM, 16) if ks == 0 else v(Sw, 16)))
        for t, txt in reads_for_pos(ph, p+LEAD, True, do_qk, nxt_pv, nxt_qk):
            if not OPT['no_reads']: A.e(txt)
            lg.issue((t[0] + (32 if p+LEAD >= 32 else 0), t[1]))
        for txt in gaps[p]:
            A.e(txt)
    if do_sm:
        A.e(f"s_cbranch_vccnz RARE_{tag}")
        A.label(f"CONT_{tag}")

def rare_path(A, ph, tag, do_qk=True):
    Sn, Sr = S_[ph % 2], S_[(ph+1) % 2]
    Pw = P_[(ph+1) % 2]
    Lold, Lnew = L_[ph % 2], L_[(ph+1) % 2]
    t0, t1, t2, t3 = T_, T_+1, T_+2, T_+3
    A.label(f"RARE_{tag}")
    A.e("s_nop 15")
    A.e("s_nop 15")
    A.e(f"v_max3_f32 v{t0}, v{Sr}, v{Sr+1}, v{Sr+2}")
    for j in range(3, 15, 2):
        A.e(f"v_max3_f32 v{t0}, v{t0}, v{Sr+j}, v{Sr+j+1}")
    A.e(f"v_max_f32 v{t0}, v{t0}, v{Sr+15}")
    A.e(f"v_mov_b32 v{t1}, v{t0}")
    A.e(f"v_mov_b32 v{t2}, v{Lold}")
    A.e(f"v_mov_b32 v{t3}, v{Lold}")
    A.e("s_nop 1")
    A.e(f"v_permlane32_swap_b32 v{t0}, v{t1}")
    A.e(f"v_permlane32_swap_b32 v{t2}, v{t3}")
    A.e("s_nop 1")
    A.e(f"v_max_f32 v{t0}, v{t0}, v{t1}")
    A.e(f"v_add_f32 v{t2}, v{t2}, v{t3}")
    A.e(f"v_log_f32 v{t2}, v{t2}")
    A.e("s_nop 0")
    A.e(f"v_max_f32 v{t0}, v{t0}, v{t2}")
    if OPT['bias']:
        A.e(f"v_add_f32 v{t0}, {f2u(float(OPT['bias'])):#x}, v{t0}")
    A.e(f"v_max_f32 v{t0}, 0, v{t0}")
    A.e(f"v_sub_f32 v{t3}, 0, v{t0}")
    A.e(f"v_exp_f32 v{t3}, v{t3}")
    A.e("s_nop 0")
    for r in range(128):
        A.e(f"v_mul_f32 v{O0+r}, v{O0+r}, v{t3}")
    A.e(f"v_mul_f32 v{Lold}, v{Lold}, v{t3}")
    for r in range(16):
        A.e(f"v_sub_f32 v{NEGM+r}, v{NEGM+r}, v{t0}")
    if do_qk:
        for r in range(16):
            A.e(f"v_sub_f32 v{Sn+r}, v{Sn+r}, v{t0}")
    for r in range(16):
        A.e(f"v_sub_f32 v{Sr+r}, v{Sr+r}, v{t0}")
    for j in range(8):
        A.e(f"v_exp_f32 v{t1}, v{Sr+2*j}")
        A.e(f"v_exp_f32 v{t2}, v{Sr+2*j+1}")
        A.e("s_nop 0")
        A.e(f"v_add_f32 v{Lnew}, v{Lold if j == 0 else Lnew}, v{t1}")
        A.e(f"v_add_f32 v{Lnew}, v{Lnew}, v{t2}")
        A.e(f"v_cvt_pk_bf16_f32 v{Pw+j}, v{t1}, v{t2}")
    A.e("s_nop 1")
    A.e(f"s_branch CONT_{tag}")

def gen_k1(A, dbg=None):
    name = "k1_attn_kernel"
    kernel_begin(A, name)
    stamps = []
    def stamp(real=False):
        if dbg != "time": return
        if real: return
        for r in (False, True):
            i = len(stamps)
            stamps.append(i)
            A.e(f"{'s_memrealtime' if r else 's_memtime'} s[{64+2*i}:{65+2*i}]")
    A.e("s_cmp_ge_u32 s2, 256")
    A.e("s_cbranch_scc1 K1_END")
    stamp(); stamp(True)
    A.e("s_load_dwordx4 s[36:39], s[0:1], 8")
    A.e("s_load_dwordx2 s[40:41], s[0:1], 24")
    A.e("s_load_dwordx2 s[42:43], s[0:1], 96")
    A.e("v_and_b32 v1, 63, v0")
    A.e("v_lshrrev_b32 v14, 6, v0")
    A.e("s_nop 0")
    A.e(f"v_readfirstlane_b32 s{S_W}, v14")
    A.e("s_and_b32 s44, s2, 7")
    A.e("s_lshr_b32 s45, s2, 3")
    A.e("s_and_b32 s46, s45, 1")
    A.e("s_lshl_b32 s47, s44, 1")
    A.e("s_add_u32 s46, s46, s47")
    A.e("s_lshr_b32 s45, s45, 1")
    A.e("s_lshl_b32 s45, s45, 2")
    A.e(f"s_add_u32 s45, s45, s{S_W}")
    A.e("v_lshrrev_b32 v14, 5, v1")
    A.e("v_and_b32 v15, 31, v1")
    A.e("v_lshlrev_b32 v12, 3, v14")
    A.e("v_xor_b32 v15, v15, v12")
    A.e("v_lshlrev_b32 v15, 4, v15")
    A.e("v_lshl_add_u32 v15, v14, 9, v15")
    A.e(f"s_lshl_b32 s48, s{S_W}, 12")
    A.e("s_add_u32 s49, s48, 64")
    A.e(f"v_add_u32 v{VKD[0]}, s49, v15")
    for n in range(1, 4):
        A.e(f"v_subrev_u32 v{VKD[n]}, {16*n}, v{VKD[0]}")
    A.e("v_lshrrev_b32 v14, 3, v1")
    A.e("v_bfe_u32 v15, v1, 2, 1")
    A.e("v_and_b32 v12, 3, v1")
    A.e("v_lshlrev_b32 v12, 4, v12")
    A.e(f"s_lshl_b32 s49, s{S_W}, 16")
    for n in range(4):
        A.e(f"v_xor_b32 v13, {n & 1}, v14")
        A.e(f"v_lshl_add_u32 v13, v13, 6, v12")
        A.e(f"v_lshl_add_u32 v13, v15, 13, v13")
        A.e(f"s_add_u32 s50, s49, {2*n*8192 - n*1024}")
        A.e(f"v_add_u32 v{2+n}, s50, v13")
    def tr_bases(dst, swap, ta=13, tb=14, tc=15):
        A.e(f"v_lshrrev_b32 v{tb}, 5, v1")
        A.e(f"v_lshlrev_b32 v{ta}, 11, v{tb}")
        A.e(f"v_bfe_u32 v{tb}, v1, 3, 1")
        A.e(f"v_lshl_add_u32 v{ta}, v{tb}, 10, v{ta}")
        A.e(f"v_bfe_u32 v{tc}, v1, 2, 1")
        A.e(f"v_lshl_add_u32 v{ta}, v{tc}, 6, v{ta}")
        A.e(f"v_bfe_u32 v{tc}, v1, 4, 1")
        A.e(f"v_lshl_add_u32 v{ta}, v{tc}, 5, v{ta}")
        if swap:
            A.e(f"v_and_b32 v{tc}, 1, v1")
            A.e(f"v_lshl_add_u32 v{ta}, v{tc}, 4, v{ta}")
            A.e(f"v_bfe_u32 v{tc}, v1, 1, 1")
            A.e(f"v_lshl_add_u32 v{ta}, v{tc}, 3, v{ta}")
        else:
            A.e(f"v_and_b32 v{tc}, 3, v1")
            A.e(f"v_lshl_add_u32 v{ta}, v{tc}, 3, v{ta}")
        A.e(f"v_add_u32 v{ta}, {VBASE}, v{ta}")
        A.e(f"v_lshl_add_u32 v{dst[0]}, v{tb}, 7, v{ta}")
        A.e(f"v_xor_b32 v{tb}, 1, v{tb}")
        A.e(f"v_lshl_add_u32 v{dst[1]}, v{tb}, 7, v{ta}")
    tr_bases(VWR, True)
    A.e("v_lshlrev_b32 v12, 4, v1")
    A.e("s_waitcnt lgkmcnt(0)")
    A.e("s_lshl_b32 s50, s44, 20")
    A.e("s_add_u32 s36, s36, s50")
    A.e("s_addc_u32 s37, s37, 0")
    A.e("s_sub_u32 s52, s36, 64")
    A.e("s_subb_u32 s53, s37, 0")
    srd(A, SRD_K, "s52", "s53", 1048576+64)
    A.e("s_add_u32 s38, s38, s50")
    A.e("s_addc_u32 s39, s39, 0")
    A.e("s_sub_u32 s52, s38, 32768")
    A.e("s_subb_u32 s53, s39, 0")
    srd(A, SRD_V, "s52", "s53", 1048576+32768)
    A.e("s_lshl_b32 s50, s46, 9")
    A.e("s_add_u32 s40, s40, s50")
    A.e("s_addc_u32 s41, s41, 0")
    A.e(f"s_sub_u32 s51, {448*8192}, s50")
    srd(A, SRD_WQ, "s40", "s41", "s51")
    A.e("s_mul_i32 s50, s45, 28672")
    A.e(f"s_add_u32 s50, s50, {Y_OFF}")
    A.e("s_add_u32 s52, s42, s50")
    A.e("s_addc_u32 s53, s43, 0")
    srd(A, SRD_Y, "s52", "s53", 28672)
    srd(A, SRD_M, "s42", "s43", 3584)
    for ks in range(28):
        if ks % 4 == 0:
            A.e(f"s_mov_b32 s50, {ks*1024}")
        A.e(f"buffer_load_dwordx4 {v(H1+4*ks,4)}, v12, s[{SRD_Y}:{SRD_Y+3}], s50 offen offset:{(ks%4)*1024}")
    A.e(f"s_lshl_b32 s50, s{S_W}, 10")
    A.e(f"s_add_u32 m0, s50, {MODL}")
    A.e("s_nop 0")
    A.e(f"buffer_load_dwordx4 v12, s[{SRD_M}:{SRD_M+3}], s50 offen lds")
    A.e(f"s_add_u32 s{S_M0V}, s48, {VBASE}")
    A.e(f"s_mul_i32 s{S_M0K}, s{S_W}, {4*KPIECE}")
    def wq_dma(ch):
        out = [f"s_add_u32 m0, s{S_M0V}, {(ch % 4)*VSLOT}", f"s_mov_b32 s50, {ch*32*8192}"]
        for n in range(4):
            out.append(f"buffer_load_dwordx4 v{2+n}, s[{SRD_WQ}:{SRD_WQ+3}], s50 offen offset:{n*1024} lds")
        return out
    for ch in range(3):
        for t in wq_dma(ch): A.e(t)
    def k_dma(blk):
        out = [f"s_add_u32 m0, s{S_M0K}, {(blk % 4)*KSLOT}", f"s_mov_b32 s50, {blk*16384}"]
        for n in range(4):
            out.append(f"buffer_load_dwordx4 v{VKD[n]}, s[{SRD_K}:{SRD_K+3}], s50 offen offset:{n*KPIECE} lds")
        return out
    for blk in range(4):
        for t in k_dma(blk): A.e(t)
    A.e("s_waitcnt vmcnt(28)")
    A.e("s_barrier")
    stamp()
    A.e("v_lshrrev_b32 v14, 5, v1")
    A.e("v_lshlrev_b32 v14, 4, v14")
    A.e(f"v_add_u32 v14, {MODL}, v14")
    TG = 128
    def mod_reads(ks):
        b = TG + 16*(ks & 1)
        return [f"ds_read_b128 {v(b,4)}, v14 offset:{1792+ks*64}",
                f"ds_read_b128 {v(b+4,4)}, v14 offset:{1792+ks*64+32}",
                f"ds_read_b128 {v(b+8,4)}, v14 offset:{ks*64}",
                f"ds_read_b128 {v(b+12,4)}, v14 offset:{ks*64+32}"]
    for t in mod_reads(0): A.e(t)
    TU = 160
    for ks in range(28):
        if ks+1 < 28:
            for t in mod_reads(ks+1): A.e(t)
            A.e("s_waitcnt lgkmcnt(4)")
        else:
            A.e("s_waitcnt lgkmcnt(0)")
        b = TG + 16*(ks & 1)
        for d in range(4):
            r = H1+4*ks+d
            A.e(f"v_lshlrev_b32 v{TU+2*d}, 16, v{r}")
            A.e(f"v_and_b32 v{TU+2*d+1}, 0xffff0000, v{r}")
        for d in range(4):
            A.e(f"v_pk_fma_f32 {v(TU+2*d,2)}, {v(TU+2*d,2)}, {v(b+2*d,2)}, {v(b+8+2*d,2)}")
        for d in range(4):
            A.e(f"v_cvt_pk_bf16_f32 v{H1+4*ks+d}, v{TU+2*d}, v{TU+2*d+1}")
    QL = 4
    def q_reads(ch, p):
        if p >= 16:
            ch, p = ch+1, p-16
            if ch >= 14: return []
        db, ks = p >> 1, p & 1
        ring = p % NRING
        return [((ch, p, u), vread(ch % 4, db, ks, u, ring, VWR)) for u in range(2)]
    stamp()
    A.e("s_waitcnt vmcnt(24)")
    A.e("s_barrier")
    lg = Lgkm(A)
    for p in range(QL):
        for t, txt in q_reads(0, p):
            A.e(txt); lg.issue(t)
    for ch in range(14):
        gaps = [[] for _ in range(16)]
        if ch == 0: vm = 20
        elif ch == 1: vm = 20
        elif ch <= 11: vm = 4
        else: vm = 0
        if ch < 13:
            gaps[0] += [f"s_waitcnt vmcnt({vm})", "s_barrier"]
        if ch+3 < 14:
            d = wq_dma(ch+3)
            gaps[1] += d[:2]
            for n in range(4):
                gaps[2+3*n].append(d[2+n])
        for p in range(16):
            w = lg.need({(ch, p, 0), (ch, p, 1)})
            if w: A.e(w)
            db, ks = p >> 1, p & 1
            acc = v(O0+16*db, 16)
            first = (ch == 0 and ks == 0)
            A.e(mfma(acc, a(AV+4*(p % NRING), 4), v(H1+4*(2*ch+ks), 4), "0" if first else acc))
            for t, txt in q_reads(ch, p+QL):
                A.e(txt); lg.issue(t)
            for txt in gaps[p]: A.e(txt)
    A.e("s_barrier")
    stamp()
    A.e("v_lshrrev_b32 v14, 3, v1")
    A.e("v_bfe_u32 v15, v1, 2, 1")
    A.e("v_and_b32 v2, 3, v1")
    A.e("v_lshlrev_b32 v2, 4, v2")
    A.e("v_lshl_add_u32 v2, v15, 9, v2")
    A.e("v_add_u32 v2, s48, v2")
    A.e(f"v_lshl_add_u32 v{VVD[0]}, v14, 6, v2")
    A.e("v_xor_b32 v14, 1, v14")
    A.e(f"v_lshl_add_u32 v{VVD[1]}, v14, 6, v2")
    def v_dma(blk):
        out = [f"s_add_u32 m0, s{S_M0V}, {(blk % 4)*VSLOT}", f"s_mov_b32 s50, {blk*16384+32768}"]
        for n in range(4):
            out.append(f"buffer_load_dwordx4 v{VVD[n & 1]}, s[{SRD_V}:{SRD_V+3}], s50 offen offset:{n*1024} lds")
        return out
    for blk in range(2):
        for t in v_dma(blk): A.e(t)
    A.e("v_bfe_u32 v14, v1, 1, 4")
    A.e(f"v_mul_u32_u24 v14, {KPIECE}, v14")
    A.e("v_and_b32 v15, 1, v1")
    A.e("v_lshl_add_u32 v14, v15, 9, v14")
    A.e("v_lshrrev_b32 v2, 5, v1")
    A.e("v_lshl_add_u32 v14, v2, 4, v14")
    A.e("v_lshlrev_b32 v15, 7, v15")
    A.e(f"v_add_u32 v{VKR[0]}, v14, v15")
    A.e(f"v_sub_u32 v{VKR[1]}, v14, v15")
    tr_bases(VVR, False, 16, 17, 18)
    A.e("s_nop 7")
    for db in range(8):
        for r in range(8):
            A.e(f"v_cvt_pk_bf16_f32 v{T_+(r & 3)}, v{O0+16*db+2*r}, v{O0+16*db+2*r+1}")
            A.e(f"v_accvgpr_write_b32 a{AQ+8*db+r}, v{T_+(r & 3)}")
    if dbg == "q":
        A.e("s_lshl_b32 s50, s45, 18")
        A.e("s_lshl_b32 s51, s46, 14")
        A.e("s_add_u32 s50, s50, s51")
        A.e(f"s_add_u32 s50, s50, {OF_OFF}")
        A.e("s_add_u32 s52, s42, s50")
        A.e("s_addc_u32 s53, s43, 0")
        srd(A, SRD_Y, "s52", "s53", 16384)
        A.e("v_lshlrev_b32 v12, 4, v1")
        A.e("s_nop 4")
        for ks in range(16):
            if ks % 4 == 0:
                A.e(f"s_mov_b32 s50, {ks*1024}")
            A.e(f"buffer_store_dwordx4 {a(AQ+4*ks,4)}, v12, s[{SRD_Y}:{SRD_Y+3}], s50 offen offset:{(ks%4)*1024}")
        A.e("s_waitcnt vmcnt(0)")
        A.e("s_endpgm")
    lg = Lgkm(A)
    seq = [(b, ks) for b in range(2) for ks in range(16)]
    KL = 4
    A.e("s_nop 1")
    for i in range(KL):
        b, ks = seq[i]
        A.e(kread(b, ks, i % NRING)); lg.issue(i)
    zero = [f"v_mov_b32 v{O0+r}, 0" for r in range(128)]
    for i, (b, ks) in enumerate(seq):
        w = lg.need({i})
        if w: A.e(w)
        A.e(mfma(v(S_[b], 16), a(AK+4*(i % NRING), 4), a(AQ+4*ks, 4), "0" if ks == 0 else v(S_[b], 16)))
        if i+KL < 32:
            b2, ks2 = seq[i+KL]
            A.e(kread(b2, ks2, (i+KL) % NRING)); lg.issue(i+KL)
        for t in zero[4*i:4*i+4]: A.e(t)
    A.e("s_barrier")
    for t in v_dma(2): A.e(t)
    for t in k_dma(4): A.e(t)
    A.e(f"s_mov_b32 s{S_KOFF}, {5*16384}")
    A.e(f"s_mov_b32 s{S_THR}, {f2u(2.0**(THR_LOG2-OPT['bias'])):#x}")
    A.e("s_nop 7")
    t0, t1 = T_, T_+1
    A.e(f"v_max3_f32 v{t0}, v{S_[0]}, v{S_[0]+1}, v{S_[0]+2}")
    allS = [S_[0]+j for j in range(3, 16)] + [S_[1]+j for j in range(16)]
    for j in range(0, len(allS)-1, 2):
        A.e(f"v_max3_f32 v{t0}, v{t0}, v{allS[j]}, v{allS[j+1]}")
    A.e(f"v_max_f32 v{t0}, v{t0}, v{allS[-1]}")
    A.e(f"v_mov_b32 v{t1}, v{t0}")
    A.e("s_nop 1")
    A.e(f"v_permlane32_swap_b32 v{t0}, v{t1}")
    A.e("s_nop 1")
    A.e(f"v_max_f32 v{t0}, v{t0}, v{t1}")
    if OPT['bias']:
        A.e(f"v_add_f32 v{t0}, {f2u(float(OPT['bias'])):#x}, v{t0}")
    for r in range(16):
        A.e(f"v_sub_f32 v{NEGM+r}, 0, v{t0}")
    for b in range(2):
        for r in range(16):
            A.e(f"v_sub_f32 v{S_[b]+r}, v{S_[b]+r}, v{t0}")
    A.e(f"v_mov_b32 v{L_[1]}, 0")
    for c, t in softmax_ops(S_[0], P_[0], L_[1], L_[0]):
        A.e(t)
    A.e("s_waitcnt vmcnt(8)")
    A.e("s_barrier")
    for p in range(LEAD):
        for t, txt in reads_for_pos(0, p, True, True, True, True):
            A.e(txt)
    if dbg == "time":
        stamp()
        A.e("s_waitcnt lgkmcnt(0)")
        for p in range(LEAD):
            for t, txt in reads_for_pos(0, p, True, True, True, True):
                A.e(txt)
    A.e(f"s_mov_b32 s{S_CNT}, 15")
    A.raw(".p2align 6")
    A.label("K1_LOOP")
    for ph in range(4):
        iteration(A, ph, f"M{ph}")
    A.e(f"s_sub_u32 s{S_CNT}, s{S_CNT}, 1")
    A.e(f"s_cmp_lg_u32 s{S_CNT}, 0")
    A.e("s_cbranch_scc1 K1_LOOP")
    if dbg == "time":
        stamp()
        A.e("s_waitcnt lgkmcnt(0)")
    iteration(A, 0, "T0", dma_k=False, dma_v=True, vmwait=8)
    iteration(A, 1, "T1", dma_k=False, dma_v=False, vmwait=4, nxt_qk=False)
    iteration(A, 2, "T2", do_qk=False, dma_k=False, dma_v=False, vmwait=0, nxt_qk=False)
    iteration(A, 3, "T3", do_qk=False, do_sm=False, dma_k=False, dma_v=False, nxt_pv=False, nxt_qk=False, barrier=False)
    stamp()
    Lf = L_[1]
    A.e(f"v_mov_b32 v{t0}, v{Lf}")
    A.e(f"v_mov_b32 v{t1}, v{Lf}")
    A.e("s_lshl_b32 s50, s45, 18")
    A.e("s_lshl_b32 s51, s46, 14")
    A.e(f"v_permlane32_swap_b32 v{t0}, v{t1}")
    A.e("s_add_u32 s50, s50, s51")
    A.e(f"s_add_u32 s50, s50, {OF_OFF}")
    A.e(f"v_add_f32 v{t0}, v{t0}, v{t1}")
    A.e(f"v_rcp_f32 v{t0}, v{t0}")
    A.e("s_add_u32 s52, s42, s50")
    A.e("s_addc_u32 s53, s43, 0")
    srd(A, SRD_Y, "s52", "s53", 16384)
    A.e("v_lshlrev_b32 v12, 4, v1")
    A.e("s_nop 7")
    for fr in range(16):
        base = O0 + 8*fr
        for r in range(8):
            A.e(f"v_mul_f32 v{base+r}, v{base+r}, v{t0}")
        dst = S_[0] + 4*(fr % 8)
        for r in range(4):
            A.e(f"v_cvt_pk_bf16_f32 v{dst+r}, v{base+2*r}, v{base+2*r+1}")
        if fr % 4 == 0:
            A.e(f"s_mov_b32 s50, {fr*1024}")
        A.e(f"buffer_store_dwordx4 {v(dst,4)}, v12, s[{SRD_Y}:{SRD_Y+3}], s50 offen offset:{(fr%4)*1024}")
        if fr == 7:
            A.e("s_waitcnt vmcnt(4)")
    if dbg == "time":
        A.e("s_waitcnt vmcnt(0)")
        stamp(); stamp(True)
        A.e("s_load_dwordx2 s[52:53], s[0:1], 88")
        A.e("s_waitcnt lgkmcnt(0)")
        if OPT.get('dbg0'):
            A.e("s_sub_u32 s52, s52, 512")
            A.e("s_subb_u32 s53, s53, 0")
        srd(A, SRD_M, "s52", "s53", 256)
        for i in range(len(stamps)):
            A.e(f"v_writelane_b32 v20, s{64+2*i}, {i}")
        A.e(f"s_cmp_eq_u32 s2, 9")
        A.e("s_cbranch_scc0 K1_END")
        A.e(f"s_cmp_eq_u32 s{S_W}, 0")
        A.e("s_cbranch_scc0 K1_END")
        A.e("v_lshlrev_b32 v21, 2, v1")
        A.e(f"v_cmp_gt_u32 vcc, {len(stamps)}, v1")
        A.e("s_and_saveexec_b64 s[54:55], vcc")
        A.e(f"buffer_store_dword v20, v21, s[{SRD_M}:{SRD_M+3}], 0 offen")
    A.label("K1_END")
    A.e("s_endpgm")
    if not OPT['no_sm']:
        for ph in range(4):
            rare_path(A, ph, f"M{ph}")
        rare_path(A, 0, "T0")
        rare_path(A, 1, "T1")
        rare_path(A, 2, "T2", do_qk=False)
    return name
```

```python
from asmlib import *
from layout import *
from k1 import Lgkm, mfma, f2u

def gen_gemm64(A, kind):
    if kind == 'k2':
        name, NK, WARG, BOFF, BBYTES, WROWS = "k2_oproj_kernel", 256, 32, OF_OFF, OF_BYTES, 4096
    else:
        name, NK, WARG, BOFF, BBYTES, WROWS = "k4_mlp2_kernel", 112, 56, HF_OFF, HF_BYTES, 1792
    P = kind.upper()
    NS = NK // 4
    RS = 896
    D = 6
    R = 8
    RB = 8
    ACC = 64
    BR = 128
    AR = 192
    XR = 224
    GA = 232
    kernel_begin(A, name)
    A.e("s_cmp_ge_u32 s2, 224")
    A.e(f"s_cbranch_scc1 {P}_END")
    A.e(f"s_load_dwordx2 s[36:37], s[0:1], {WARG}")
    A.e("s_load_dwordx2 s[38:39], s[0:1], 96")
    A.e(f"s_load_dwordx2 s[40:41], s[0:1], {0 if kind == 'k2' else 80}")
    A.e("v_and_b32 v1, 63, v0")
    A.e("v_lshrrev_b32 v2, 6, v0")
    A.e("s_nop 0")
    A.e("v_readfirstlane_b32 s28, v2")
    A.e("s_and_b32 s29, s2, 31")
    A.e("s_lshr_b32 s30, s2, 5")
    A.e("v_lshrrev_b32 v2, 5, v1")
    A.e("v_bfe_u32 v3, v1, 2, 2")
    A.e("v_lshl_add_u32 v2, v2, 2, v3")
    A.e(f"v_mul_u32_u24 v4, {RS}, v2")
    A.e("v_bfe_u32 v3, v1, 4, 1")
    A.e("v_lshl_add_u32 v4, v3, 6, v4")
    A.e("v_and_b32 v3, 3, v1")
    A.e("v_lshl_add_u32 v4, v3, 4, v4")
    A.e(f"v_add_u32 v5, {8*RS-1024}, v4")
    A.e("v_lshlrev_b32 v6, 4, v1")
    A.e("v_add_u32 v7, %d, v6" % (NK*1024))
    A.e("v_lshrrev_b32 v2, 5, v1")
    A.e("v_lshlrev_b32 v8, 9, v2")
    A.e("v_bfe_u32 v3, v1, 2, 2")
    A.e("v_lshl_add_u32 v8, v3, 6, v8")
    A.e("v_bfe_u32 v3, v1, 4, 1")
    A.e("v_lshl_add_u32 v8, v3, 5, v8")
    A.e("v_and_b32 v3, 3, v1")
    A.e("v_lshl_add_u32 v8, v3, 3, v8")
    A.e(f"s_mul_i32 s31, s28, {R*2048}")
    A.e("v_add_u32 v8, s31, v8")
    A.e("s_waitcnt lgkmcnt(0)")
    A.e("s_lshl_b32 s33, s30, 7")
    A.e("s_add_u32 s36, s36, s33")
    A.e("s_addc_u32 s37, s37, 0")
    A.e(f"s_sub_u32 s34, {WROWS*RS}, s33")
    srd(A, 8, "s36", "s37", "s34")
    A.e(f"s_mul_i32 s33, s29, {2*NK*1024}")
    A.e(f"s_mul_i32 s34, s28, {NS*1024}")
    A.e("s_add_u32 s33, s33, s34")
    A.e(f"s_add_u32 s33, s33, {BOFF}")
    A.e("s_add_u32 s42, s38, s33")
    A.e("s_addc_u32 s43, s39, 0")
    srd(A, 12, "s42", "s43", (NK+NS)*1024)
    A.e(f"s_mul_i32 s32, s28, {NS*16*RS}")
    def vm(st):
        o = [f"s_add_u32 m0, s31, {(st % R)*2048}",
             f"s_add_u32 s35, s32, {st*16*RS}",
             f"buffer_load_dwordx4 v4, s[8:11], s35 offen lds",
             f"buffer_load_dwordx4 v5, s[8:11], s35 offen offset:1024 lds",
             f"s_mov_b32 s44, {(st//4)*4096}",
             f"buffer_load_dwordx4 {v(BR+8*(st % RB),4)}, v6, s[12:15], s44 offen offset:{(st%4)*1024}",
             f"buffer_load_dwordx4 {v(BR+8*(st % RB)+4,4)}, v7, s[12:15], s44 offen offset:{(st%4)*1024}"]
        return o
    A.e("s_and_b32 s45, s28, 1")
    A.e("s_lshr_b32 s46, s28, 1")
    A.e("s_lshl_b32 s47, s29, 1")
    A.e("s_add_u32 s47, s47, s46")
    A.e("s_lshl_b32 s48, s30, 1")
    A.e("s_add_u32 s48, s48, s45")
    sec = 2 if kind == 'k2' else 5
    srd(A, 16, "s38", "s39", MOD_BYTES)
    A.e("v_lshrrev_b32 v2, 5, v1")
    A.e("v_lshlrev_b32 v9, 4, v2")
    A.e("s_lshl_b32 s49, s48, 7")
    A.e(f"s_add_u32 s49, s49, {sec*1792}")
    for aa in range(4):
        A.e(f"buffer_load_dwordx4 {v(GA+4*aa,4)}, v9, s[16:19], s49 offen offset:{32*aa}")
    if kind == 'k2':
        srd(A, 20, "s40", "s41", X_BYTES)
        A.e("v_and_b32 v3, 31, v1")
        A.e(f"v_mul_u32_u24 v10, 896, v3")
        A.e("v_lshl_add_u32 v10, v2, 3, v10")
        A.e(f"s_mul_i32 s50, s47, {32*896}")
        A.e("s_lshl_b32 s51, s48, 6")
        A.e("s_add_u32 s50, s50, s51")
        for aa in range(4):
            A.e(f"buffer_load_dwordx2 {v(XR+2*aa,2)}, v10, s[20:23], s50 offen offset:{16*aa}")
        npre = 8
    else:
        A.e(f"s_add_u32 s42, s38, {X1_OFF}")
        A.e("s_addc_u32 s43, s39, 0")
        srd(A, 20, "s42", "s43", X1_BYTES)
        A.e(f"s_mul_i32 s50, s47, {28*1024}")
        A.e("s_lshl_b32 s51, s48, 11")
        A.e("s_add_u32 s50, s50, s51")
        for hf in range(2):
            A.e(f"buffer_load_dwordx4 {v(XR+4*hf,4)}, v6, s[20:23], s50 offen offset:{1024*hf}")
        npre = 6
    for st in range(D):
        for t in vm(st): A.e(t)
    def tr(st):
        o = []
        for cb in range(2):
            for u in range(2):
                o.append(f"ds_read_b64_tr_b16 {v(AR+8*(st & 1)+4*cb+2*u,2)}, v8 offset:{(st % R)*2048+u*1024+cb*256}")
        return o
    A.e(f"s_waitcnt vmcnt({4*(D-1)})")
    for t in tr(0): A.e(t)
    for st in range(NS):
        if st+1 < NS:
            issued = min(NS, st+D)
            A.e(f"s_waitcnt vmcnt({4*(issued-(st+2))})")
            for t in tr(st+1): A.e(t)
        vmo = vm(st+D) if st+D < NS else []
        A.e(f"s_waitcnt lgkmcnt({4 if st+1 < NS else 0})")
        k = 0
        for cb in range(2):
            for rb in range(2):
                acc = v(ACC+16*(2*cb+rb), 16)
                A.e(mfma(acc, v(AR+8*(st & 1)+4*cb, 4), v(BR+8*(st % RB)+4*rb, 4), "0" if st == 0 else acc))
                for t in vmo[2*k:2*k+2]: A.e(t)
                k += 1
    A.e("s_nop 15")
    A.e("s_barrier")
    A.e("s_lshl_b32 s33, s28, 12")
    A.e("v_add_u32 v11, s33, v6")
    for b in range(4):
        ai = 2*(b & 1) + (b >> 1)
        for q4 in range(4):
            A.e(f"ds_write_b128 v11, {v(ACC+16*ai+4*q4,4)} offset:{b*16384+q4*1024}")
    A.e("s_waitcnt lgkmcnt(0)")
    A.e("s_barrier")
    A.e("s_lshl_b32 s33, s28, 14")
    A.e("v_add_u32 v11, s33, v6")
    for src in range(4):
        for q4 in range(4):
            A.e(f"ds_read_b128 {v(ACC+16*src+4*q4,4)}, v11 offset:{src*4096+q4*1024}")
    A.e("s_waitcnt lgkmcnt(0)")
    for r in range(16):
        A.e(f"v_add_f32 v{ACC+r}, v{ACC+r}, v{ACC+16+r}")
        A.e(f"v_add_f32 v{ACC+32+r}, v{ACC+32+r}, v{ACC+48+r}")
    for r in range(16):
        A.e(f"v_add_f32 v{ACC+r}, v{ACC+r}, v{ACC+32+r}")
    for d in range(8):
        A.e(f"v_lshlrev_b32 v{BR+2*d}, 16, v{XR+d}")
        A.e(f"v_and_b32 v{BR+2*d+1}, 0xffff0000, v{XR+d}")
    for r in range(16):
        A.e(f"v_fma_f32 v{ACC+r}, v{ACC+r}, v{GA+r}, v{BR+r}")
    for d in range(8):
        A.e(f"v_cvt_pk_bf16_f32 v{AR+d}, v{ACC+2*d}, v{ACC+2*d+1}")
    if kind == 'k2':
        A.e(f"s_add_u32 s42, s38, {X1_OFF}")
        A.e("s_addc_u32 s43, s39, 0")
        srd(A, 20, "s42", "s43", X1_BYTES)
        A.e(f"s_mul_i32 s50, s47, {28*1024}")
        A.e("s_lshl_b32 s51, s48, 11")
        A.e("s_add_u32 s50, s50, s51")
        for hf in range(2):
            A.e(f"buffer_store_dwordx4 {v(AR+4*hf,4)}, v6, s[20:23], s50 offen offset:{1024*hf}")
        for d in range(8):
            A.e(f"v_lshlrev_b32 v{BR+2*d}, 16, v{AR+d}")
            A.e(f"v_and_b32 v{BR+2*d+1}, 0xffff0000, v{AR+d}")
        A.e(f"v_add_f32 v12, v{BR}, v{BR+1}")
        for r in range(2, 16):
            A.e(f"v_add_f32 v12, v12, v{BR+r}")
        A.e("v_mov_b32 v13, v12")
        A.e("s_nop 1")
        A.e("v_permlane32_swap_b32 v12, v13")
        A.e("s_nop 1")
        A.e("v_add_f32 v12, v12, v13")
        A.e(f"v_mul_f32 v12, {f2u(1/32.):#x}, v12")
        for r in range(16):
            A.e(f"v_sub_f32 v{BR+r}, v{BR+r}, v12")
        A.e(f"v_mul_f32 v13, v{BR}, v{BR}")
        for r in range(1, 16):
            A.e(f"v_fmac_f32 v13, v{BR+r}, v{BR+r}")
        A.e("v_mov_b32 v14, v13")
        A.e("s_nop 1")
        A.e("v_permlane32_swap_b32 v13, v14")
        A.e("s_nop 1")
        A.e("v_add_f32 v13, v13, v14")
        A.e(f"s_add_u32 s42, s38, {ST_OFF}")
        A.e("s_addc_u32 s43, s39, 0")
        srd(A, 24, "s42", "s43", ST_BYTES)
        A.e("v_and_b32 v3, 31, v1")
        A.e("v_mul_u32_u24 v10, 112, v3")
        A.e("v_lshrrev_b32 v2, 5, v1")
        A.e("v_lshl_add_u32 v10, v2, 30, v10")
        A.e(f"s_mul_i32 s50, s47, {32*112}")
        A.e("s_lshl_b32 s51, s48, 3")
        A.e("s_add_u32 s50, s50, s51")
        A.e("buffer_store_dwordx2 v[12:13], v10, s[24:27], s50 offen")
    else:
        srd(A, 20, "s40", "s41", X_BYTES)
        A.e("v_and_b32 v3, 31, v1")
        A.e("v_lshrrev_b32 v2, 5, v1")
        A.e(f"v_mul_u32_u24 v10, 896, v3")
        A.e("v_lshl_add_u32 v10, v2, 3, v10")
        A.e(f"s_mul_i32 s50, s47, {32*896}")
        A.e("s_lshl_b32 s51, s48, 6")
        A.e("s_add_u32 s50, s50, s51")
        for aa in range(4):
            A.e(f"buffer_store_dwordx2 {v(AR+2*aa,2)}, v10, s[20:23], s50 offen offset:{16*aa}")
    A.label(f"{P}_END")
    A.e("s_endpgm")
    return name, 65536

def gen_k3(A):
    name = "k3_mlp1_kernel"
    H2 = 16
    ACC = 128
    AR = 192
    TG = 224
    MODL = 114688
    kernel_begin(A, name)
    A.e("s_cmp_ge_u32 s2, 224")
    A.e("s_cbranch_scc1 K3_END")
    A.e("s_load_dwordx2 s[36:37], s[0:1], 48")
    A.e("s_load_dwordx2 s[38:39], s[0:1], 96")
    A.e("v_and_b32 v1, 63, v0")
    A.e("v_lshrrev_b32 v2, 6, v0")
    A.e("s_nop 0")
    A.e("v_readfirstlane_b32 s28, v2")
    A.e("s_and_b32 s29, s2, 15")
    A.e("s_lshr_b32 s30, s2, 4")
    A.e("s_lshl_b32 s47, s29, 2")
    A.e("s_add_u32 s47, s47, s28")
    A.e("v_bfe_u32 v3, v1, 2, 2")
    A.e("v_mul_u32_u24 v4, 3584, v3")
    A.e("v_lshrrev_b32 v3, 4, v1")
    A.e("v_lshl_add_u32 v4, v3, 6, v4")
    A.e("v_and_b32 v3, 3, v1")
    A.e("v_lshl_add_u32 v4, v3, 4, v4")
    A.e("v_lshlrev_b32 v6, 4, v1")
    A.e("v_lshrrev_b32 v2, 5, v1")
    A.e("v_lshlrev_b32 v8, 10, v2")
    A.e("v_bfe_u32 v3, v1, 2, 2")
    A.e("v_lshl_add_u32 v8, v3, 6, v8")
    A.e("v_bfe_u32 v3, v1, 4, 1")
    A.e("v_lshl_add_u32 v8, v3, 5, v8")
    A.e("v_and_b32 v3, 3, v1")
    A.e("v_lshl_add_u32 v8, v3, 3, v8")
    A.e("v_add_u32 v9, 0x10000, v8")
    A.e("s_waitcnt lgkmcnt(0)")
    A.e("s_lshl_b32 s33, s30, 8")
    A.e("s_add_u32 s36, s36, s33")
    A.e("s_addc_u32 s37, s37, 0")
    A.e(f"s_sub_u32 s34, {448*3584}, s33")
    srd(A, 8, "s36", "s37", "s34")
    A.e(f"s_mul_i32 s33, s47, {28*1024}")
    A.e(f"s_add_u32 s33, s33, {X1_OFF}")
    A.e("s_add_u32 s42, s38, s33")
    A.e("s_addc_u32 s43, s39, 0")
    srd(A, 12, "s42", "s43", 28*1024)
    A.e(f"s_add_u32 s42, s38, {ST_OFF}")
    A.e("s_addc_u32 s43, s39, 0")
    srd(A, 16, "s42", "s43", ST_BYTES)
    A.e(f"s_add_u32 s42, s38, {3*1792}")
    A.e("s_addc_u32 s43, s39, 0")
    srd(A, 20, "s42", "s43", 3584)
    A.e("v_and_b32 v3, 31, v1")
    A.e("v_mul_u32_u24 v10, 112, v3")
    A.e("v_mul_u32_u24 v11, 56, v2")
    A.e("v_add_u32 v10, v10, v11")
    A.e(f"s_mul_i32 s50, s47, {32*112}")
    for i in range(7):
        A.e(f"buffer_load_dwordx2 {v(ACC+2*i,2)}, v10, s[16:19], s50 offen offset:{8*i}")
    A.e("s_lshl_b32 s50, s28, 10")
    A.e(f"s_add_u32 m0, s50, {MODL}")
    A.e("s_nop 0")
    A.e("buffer_load_dwordx4 v6, s[20:23], s50 offen lds")
    for ks in range(28):
        if ks % 4 == 0:
            A.e(f"s_mov_b32 s50, {ks*1024}")
        A.e(f"buffer_load_dwordx4 {v(H2+4*ks,4)}, v6, s[12:15], s50 offen offset:{(ks%4)*1024}")
    A.e(f"s_lshl_b32 s51, s28, 10")
    A.e(f"s_mul_i32 s52, s28, {4*3584}")
    for j in range(28):
        A.e(f"s_add_u32 m0, s51, {j*4096}")
        A.e(f"s_add_u32 s50, s52, {j*16*3584}")
        A.e(f"buffer_load_dwordx4 v4, s[8:11], s50 offen lds")
    A.e("s_waitcnt vmcnt(57)")
    A.e(f"v_add_f32 v12, v{ACC}, v{ACC+2}")
    for i in range(2, 7):
        A.e(f"v_add_f32 v12, v12, v{ACC+2*i}")
    A.e("v_mov_b32 v13, v12")
    A.e("s_nop 1")
    A.e("v_permlane32_swap_b32 v12, v13")
    A.e("s_nop 1")
    A.e("v_add_f32 v12, v12, v13")
    A.e(f"v_mul_f32 v12, {f2u(1/14.):#x}, v12")
    A.e("v_mov_b32 v13, 0")
    for i in range(7):
        A.e(f"v_sub_f32 v14, v{ACC+2*i}, v12")
        A.e(f"v_mul_f32 v14, v14, v14")
        A.e(f"v_fma_f32 v14, v14, 4.0, 0")
        A.e(f"v_fma_f32 v13, v14, 4.0, v13")
        A.e(f"v_fma_f32 v13, v14, 4.0, v13")
        A.e(f"v_add_f32 v13, v13, v{ACC+2*i+1}")
    A.e("v_mov_b32 v14, v13")
    A.e("s_nop 1")
    A.e("v_permlane32_swap_b32 v13, v14")
    A.e("s_nop 1")
    A.e("v_add_f32 v13, v13, v14")
    A.e(f"v_mul_f32 v13, {f2u(1/448.):#x}, v13")
    A.e(f"v_add_f32 v13, {f2u(1e-5):#x}, v13")
    A.e("v_rsq_f32 v12+0, v13".replace("v12+0", "v14"))
    A.e("s_nop 0")
    A.e("v_mov_b32 v15, v14")
    A.e("v_mul_f32 v12, v12, v14")
    A.e("v_sub_f32 v12, 0, v12")
    A.e("v_mov_b32 v13, v12")
    A.e("s_waitcnt vmcnt(28)")
    A.e("s_barrier")
    A.e("v_lshrrev_b32 v2, 5, v1")
    A.e("v_lshlrev_b32 v10, 4, v2")
    A.e(f"v_add_u32 v10, {MODL}, v10")
    def mod_reads(ks):
        b = TG + 16*(ks & 1)
        return [f"ds_read_b128 {v(b,4)}, v10 offset:{1792+ks*64}",
                f"ds_read_b128 {v(b+4,4)}, v10 offset:{1792+ks*64+32}",
                f"ds_read_b128 {v(b+8,4)}, v10 offset:{ks*64}",
                f"ds_read_b128 {v(b+12,4)}, v10 offset:{ks*64+32}"]
    for t in mod_reads(0): A.e(t)
    TU = AR
    for ks in range(28):
        if ks+1 < 28:
            for t in mod_reads(ks+1): A.e(t)
            A.e("s_waitcnt lgkmcnt(4)")
        else:
            A.e("s_waitcnt lgkmcnt(0)")
        b = TG + 16*(ks & 1)
        for d in range(4):
            r = H2+4*ks+d
            A.e(f"v_lshlrev_b32 v{TU+2*d}, 16, v{r}")
            A.e(f"v_and_b32 v{TU+2*d+1}, 0xffff0000, v{r}")
        for d in range(4):
            A.e(f"v_pk_fma_f32 {v(TU+2*d,2)}, {v(TU+2*d,2)}, v[14:15], v[12:13]")
        for d in range(4):
            A.e(f"v_pk_fma_f32 {v(TU+2*d,2)}, {v(TU+2*d,2)}, {v(b+2*d,2)}, {v(b+8+2*d,2)}")
        for d in range(4):
            A.e(f"v_cvt_pk_bf16_f32 v{H2+4*ks+d}, v{TU+2*d}, v{TU+2*d+1}")
    A.e("s_waitcnt vmcnt(0)")
    A.e("s_barrier")
    seq = [(ks, fb) for ks in range(28) for fb in range(4)]
    def rd(i):
        ks, fb = seq[i]
        off = ks*4096 + fb*256
        o = []
        for u in range(2):
            oo = off + u*2048
            base = "v8" if oo < 65536 else "v9"
            o.append(f"ds_read_b64_tr_b16 {v(AR+4*(i % 8)+2*u,2)}, {base} offset:{oo % 65536}")
        return o
    lg = Lgkm(A)
    L = 5
    for i in range(L):
        for t in rd(i): A.e(t); lg.issue(i)
    for i, (ks, fb) in enumerate(seq):
        w = lg.need({i})
        if w: A.e(w)
        acc = v(ACC+16*fb, 16)
        A.e(mfma(acc, v(AR+4*(i % 8), 4), v(H2+4*ks, 4), "0" if ks == 0 else acc))
        if i+L < len(seq):
            for t in rd(i+L): A.e(t); lg.issue(i+L)
    A.e("s_nop 15")
    A.e(f"s_mul_i32 s33, s47, {112*1024}")
    A.e("s_lshl_b32 s34, s30, 13")
    A.e("s_add_u32 s33, s33, s34")
    A.e(f"s_add_u32 s33, s33, {HF_OFF}")
    A.e("s_add_u32 s42, s38, s33")
    A.e("s_addc_u32 s43, s39, 0")
    srd(A, 12, "s42", "s43", 8192)
    for fr in range(8):
        dst = H2 + 4*fr
        for r in range(4):
            A.e(f"v_cvt_pk_bf16_f32 v{dst+r}, v{ACC+8*fr+2*r}, v{ACC+8*fr+2*r+1}")
        for r in range(4):
            A.e(f"v_pk_max_i16 v{dst+r}, v{dst+r}, 0")
        if fr % 4 == 0:
            A.e(f"s_mov_b32 s50, {fr*1024}")
        A.e(f"buffer_store_dwordx4 {v(dst,4)}, v6, s[12:15], s50 offen offset:{(fr%4)*1024}")
    A.label("K3_END")
    A.e("s_endpgm")
    return name, MODL + 4096
```

```python
import math
CS = math.log2(math.e) / 16.0
MOD_OFF = 0
MOD_BYTES = 6*448*4
Y_OFF = 16384
Y_BYTES = 64*28*1024
X_BYTES = 2048*448*2
OF_OFF = 2*1024*1024
OF_BYTES = 64*256*1024
X1_OFF = 18*1024*1024
X1_BYTES = 64*28*1024
ST_OFF = 20*1024*1024
ST_BYTES = 2048*14*2*4
HF_OFF = 21*1024*1024
HF_BYTES = 64*112*1024
K0_GRID = 106
```

```python
import sys
from asmlib import *
from layout import *
import k0, k1, k24

HEADER = open('adaLN_cond__gqa_block_cached__dense_activation_relu__prompt.s.ref').read().split("; Override launch")[0]

def build(dbg=None, kernels=("k0","k1","k2","k3","k4")):
    A = Asm()
    launches = []
    descs = []
    body = Asm()
    if "k0" in kernels:
        n = k0.gen_k0(body); launches.append((n, K0_GRID, 256, 8192)); descs.append(descriptor(n, 104, 32, 104))
    if "k1" in kernels:
        n = k1.gen_k1(body, dbg); launches.append((n, 256, 256, k1.K1_LDS)); descs.append(descriptor(n, 384, 100, 256))
    if "k2" in kernels:
        n, lds = k24.gen_gemm64(body, 'k2'); launches.append((n, 224, 256, lds)); descs.append(descriptor(n, 256, 64, 256))
    if "k3" in kernels:
        n, lds = k24.gen_k3(body); launches.append((n, 224, 256, lds)); descs.append(descriptor(n, 256, 64, 256))
    if "k4" in kernels:
        n, lds = k24.gen_gemm64(body, 'k4'); launches.append((n, 224, 256, lds)); descs.append(descriptor(n, 256, 64, 256))
    out = HEADER
    for n, g, b, lds in launches:
        out += f"; @launch kernel={n} grid=({g},1,1) block=({b},1,1) lds={lds}\n"
    out += '.amdgcn_target "amdgcn-amd-amdhsa--gfx950"\n.text\n'
    out += body.text()
    out += '.section .rodata,"a"\n.p2align 6\n'
    out += "\n.p2align 6\n".join(descs)
    return out

if __name__ == "__main__":
    dbg = sys.argv[2] if len(sys.argv) > 2 and sys.argv[2] != "none" else None
    for kv in sys.argv[3:]:
        k_, v_ = kv.split("=")
        k1.OPT[k_] = eval(v_)
    open(sys.argv[1], "w").write(build(dbg))
```

```python
from asmlib import *
from layout import *
import struct

def f2u(x):
    return struct.unpack("<I", struct.pack("<f", x))[0]

PREFETCH = False
def gen_k0(A):
    name = "k0_mod_kernel"
    kernel_begin(A, name)
    A.e(f"s_cmp_ge_u32 s2, {K0_GRID}")
    A.e("s_cbranch_scc1 K0_END")
    if PREFETCH:
        A.e("s_cmp_ge_u32 s2, 106")
        A.e("s_cbranch_scc1 K0_PF")
    A.e("s_load_dwordx2 s[4:5], s[0:1], 96")
    A.e("s_cmp_ge_u32 s2, 42")
    A.e("s_cbranch_scc1 K0_Y")
    A.e("s_load_dwordx4 s[8:11], s[0:1], 64")
    A.e("v_and_b32 v3, 7, v0")
    A.e("v_lshrrev_b32 v4, 3, v0")
    A.e("v_lshlrev_b32 v2, 1, v4")
    A.e("s_movk_i32 s6, 5376")
    A.e("v_mul_lo_u32 v1, v4, s6")
    A.e("v_lshl_add_u32 v1, v3, 4, v1")
    A.e("s_lshl_b32 s7, s2, 7")
    A.e("v_add_u32 v1, s7, v1")
    A.e("s_waitcnt lgkmcnt(0)")
    srd(A, 12, "s8", "s9", 896)
    srd(A, 16, "s10", "s11", 448*5376)
    for st in range(14):
        A.e(f"buffer_load_ushort v{72+st}, v2, s[12:15], 0 offen offset:{64*st}")
    for st in range(14):
        A.e(f"s_mov_b32 s20, {st*32*5376}")
        A.e(f"buffer_load_dwordx4 {v(16+4*st,4)}, v1, s[16:19], s20 offen")
    for r in range(8):
        A.e(f"v_mov_b32 v{88+r}, 0")
    A.e("s_mov_b32 s21, 0xbfb8aa3b")
    A.e("s_waitcnt vmcnt(14)")
    for st in range(14):
        x = 72+st
        A.e(f"v_lshlrev_b32 v{x}, 16, v{x}")
        A.e(f"v_mul_f32 v5, s21, v{x}")
        A.e(f"v_exp_f32 v5, v5")
        A.e("s_nop 0")
        A.e(f"v_add_f32 v5, 1.0, v5")
        A.e(f"v_rcp_f32 v5, v5")
        A.e("s_nop 0")
        A.e(f"v_mul_f32 v5, v5, v{x}")
        A.e(f"v_cvt_pk_bf16_f32 v5, v5, v5")
        A.e(f"v_lshlrev_b32 v{x}, 16, v5")
    for st in range(14):
        A.e(f"s_waitcnt vmcnt({13-st})")
        for d in range(4):
            w = 16+4*st+d
            A.e(f"v_lshlrev_b32 v5, 16, v{w}")
            A.e(f"v_and_b32 v6, 0xffff0000, v{w}")
            A.e(f"v_fmac_f32 v{88+2*d}, v5, v{72+st}")
            A.e(f"v_fmac_f32 v{88+2*d+1}, v6, v{72+st}")
    A.e("v_lshlrev_b32 v7, 8, v4")
    A.e("v_lshl_add_u32 v7, v3, 5, v7")
    A.e("ds_write_b128 v7, v[88:91]")
    A.e("ds_write_b128 v7, v[92:95] offset:16")
    A.e("s_waitcnt lgkmcnt(0)")
    A.e("s_barrier")
    A.e("v_cmp_gt_u32 vcc, 64, v0")
    A.e("s_and_saveexec_b64 s[22:23], vcc")
    A.e("s_cbranch_execz K0_END")
    A.e("v_lshlrev_b32 v7, 2, v0")
    for r in range(32):
        A.e(f"ds_read_b32 v{16+r}, v7 offset:{256*r}")
    A.e("s_waitcnt lgkmcnt(0)")
    for r in range(1, 32):
        A.e(f"v_add_f32 v16, v16, v{16+r}")
    A.e("v_cvt_pk_bf16_f32 v16, v16, v16")
    A.e("v_lshlrev_b32 v16, 16, v16")
    A.e("s_mul_i32 s24, s2, 9363")
    A.e("s_lshr_b32 s24, s24, 16")
    A.e("s_mov_b32 s25, 0")
    A.e("s_cmp_eq_u32 s24, 1")
    A.e("s_cselect_b32 s25, 1.0, s25")
    A.e("s_cmp_eq_u32 s24, 4")
    A.e("s_cselect_b32 s25, 1.0, s25")
    A.e("v_add_f32 v16, s25, v16")
    A.e("v_cvt_pk_bf16_f32 v16, v16, v16")
    A.e("v_lshlrev_b32 v16, 16, v16")
    A.e(f"s_mov_b32 s26, {f2u(CS):#x}")
    A.e("s_cmp_le_u32 s24, 1")
    A.e("s_cselect_b32 s26, s26, 1.0")
    A.e("v_mul_f32 v16, s26, v16")
    srd(A, 12, "s4", "s5", MOD_BYTES)
    A.e("s_lshl_b32 s7, s2, 8")
    A.e("v_add_u32 v7, s7, v7")
    A.e("buffer_store_dword v16, v7, s[12:15], 0 offen")
    A.e("s_endpgm")
    A.label("K0_Y")
    A.e("s_load_dwordx2 s[8:9], s[0:1], 0")
    A.e("s_sub_u32 s6, s2, 42")
    A.e("v_and_b32 v2, 63, v0")
    A.e("v_lshrrev_b32 v3, 6, v0")
    A.e("v_and_b32 v4, 31, v0")
    A.e("v_bfe_u32 v5, v0, 5, 1")
    A.e("s_lshl_b32 s7, s6, 5")
    A.e("v_add_u32 v6, s7, v4")
    A.e("s_movk_i32 s10, 896")
    A.e("v_mul_lo_u32 v1, v6, s10")
    A.e("v_lshl_add_u32 v1, v5, 3, v1")
    A.e("s_movk_i32 s10, 224")
    A.e("v_mul_lo_u32 v7, v3, s10")
    A.e("v_add_u32 v1, v1, v7")
    A.e("s_waitcnt lgkmcnt(0)")
    srd(A, 12, "s8", "s9", X_BYTES)
    for st in range(7):
        for u in range(2):
            A.e(f"buffer_load_dwordx2 {v(16+4*st+2*u,2)}, v1, s[12:15], 0 offen offset:{32*st+16*u}")
    A.e(f"s_add_u32 s8, s4, {Y_OFF}")
    A.e("s_addc_u32 s9, s5, 0")
    srd(A, 16, "s8", "s9", Y_BYTES)
    A.e("s_waitcnt vmcnt(0)")
    for r in range(28):
        A.e(f"v_lshlrev_b32 v{48+2*r}, 16, v{16+r}")
        A.e(f"v_and_b32 v{48+2*r+1}, 0xffff0000, v{16+r}")
    A.e("v_add_f32 v8, v48, v49")
    for r in range(2, 56):
        A.e(f"v_add_f32 v8, v8, v{48+r}")
    A.e("v_lshlrev_b32 v9, 2, v0")
    A.e("v_lshlrev_b32 v10, 2, v4")
    A.e("ds_write_b32 v9, v8")
    A.e("s_waitcnt lgkmcnt(0)")
    A.e("s_barrier")
    for k in range(8):
        A.e(f"ds_read_b32 v{16+k}, v10 offset:{128*k}")
    A.e("s_waitcnt lgkmcnt(0)")
    for k in range(1, 8):
        A.e(f"v_add_f32 v16, v16, v{16+k}")
    A.e(f"v_mul_f32 v16, {f2u(1.0/448):#x}, v16")
    for r in range(56):
        A.e(f"v_sub_f32 v{48+r}, v{48+r}, v16")
    A.e("v_mul_f32 v8, v48, v48")
    for r in range(1, 56):
        A.e(f"v_fmac_f32 v8, v{48+r}, v{48+r}")
    A.e("ds_write_b32 v9, v8 offset:1024")
    A.e("s_waitcnt lgkmcnt(0)")
    A.e("s_barrier")
    for k in range(8):
        A.e(f"ds_read_b32 v{16+k}, v10 offset:{1024+128*k}")
    A.e("s_waitcnt lgkmcnt(0)")
    for k in range(1, 8):
        A.e(f"v_add_f32 v16, v16, v{16+k}")
    A.e(f"v_mul_f32 v16, {f2u(1.0/448):#x}, v16")
    A.e(f"v_add_f32 v16, {f2u(1e-5):#x}, v16")
    A.e("v_rsq_f32 v16, v16")
    A.e("s_nop 0")
    for r in range(56):
        A.e(f"v_mul_f32 v{48+r}, v{48+r}, v16")
    for r in range(28):
        A.e(f"v_cvt_pk_bf16_f32 v{16+r}, v{48+2*r}, v{48+2*r+1}")
    A.e("s_mul_i32 s7, s6, 28672")
    A.e("s_movk_i32 s10, 7168")
    A.e("v_mul_lo_u32 v7, v3, s10")
    A.e("v_lshl_add_u32 v7, v2, 4, v7")
    for st in range(7):
        A.e(f"s_add_u32 s11, s7, {1024*st}")
        A.e(f"buffer_store_dwordx4 {v(16+4*st,4)}, v7, s[16:19], s11 offen")
    A.label("K0_END")
    A.e("s_endpgm")
    if PREFETCH:
        A.label("K0_PF")
        A.e("s_getpc_b64 s[8:9]")
        A.label("K0_PC")
        A.e("s_sub_u32 s6, s2, 106")
        A.e("s_lshr_b32 s6, s6, 3")
        A.e("s_lshl_b32 s6, s6, 14")
        A.e("v_lshlrev_b32 v1, 4, v0")
        A.e("v_add_u32 v1, s6, v1")
        A.e("s_mov_b32 s10, CODE_END - K0_PC")
        A.e("s_mov_b32 s11, 0x00020000")
        A.e("s_and_b32 s9, s9, 0xffff")
        for i in range(4):
            A.e(f"s_mov_b32 s12, {i*4096}")
            A.e(f"buffer_load_dwordx4 v[{4+4*i}:{7+4*i}], v1, s[8:11], s12 offen")
        A.e("s_waitcnt vmcnt(0)")
        A.e("s_endpgm")
    return name
```

```python
import sys
from asmlib import *
from layout import *
import k0, k1, k24

HEADER = open('adaLN_cond__gqa_block_cached__dense_activation_relu__prompt.s.ref').read().split("; Override launch")[0]

def build(dbg=None, kernels=("k0","k1","k2","k3","k4")):
    A = Asm()
    launches = []
    descs = []
    body = Asm()
    if "k0" in kernels:
        n = k0.gen_k0(body); launches.append((n, k0.K0_GRID, 256, 8192)); descs.append(descriptor(n, 104, 32, 104))
    if "k1" in kernels:
        n = k1.gen_k1(body, dbg); launches.append((n, 256, 256, k1.K1_LDS)); descs.append(descriptor(n, 384, 100, 256))
    if "k2" in kernels:
        n, lds = k24.gen_gemm64(body, 'k2'); launches.append((n, 224, 256, lds)); descs.append(descriptor(n, 256, 64, 256))
    if "k3" in kernels:
        n, lds = k24.gen_k3(body); launches.append((n, 224, 256, lds)); descs.append(descriptor(n, 256, 64, 256))
    if "k4" in kernels:
        n, lds = k24.gen_gemm64(body, 'k4'); launches.append((n, 224, 256, lds)); descs.append(descriptor(n, 256, 64, 256))
    out = HEADER
    for n, g, b, lds in launches:
        out += f"; @launch kernel={n} grid=({g},1,1) block=({b},1,1) lds={lds}\n"
    out += '.amdgcn_target "amdgcn-amd-amdhsa--gfx950"\n.text\n'
    out += body.text()
    out += 'CODE_END:\n    s_endpgm\n'
    out += '.section .rodata,"a"\n.p2align 6\n'
    out += "\n.p2align 6\n".join(descs)
    return out

if __name__ == "__main__":
    dbg = sys.argv[2] if len(sys.argv) > 2 and sys.argv[2] != "none" else None
    for kv in sys.argv[3:]:
        k_, v_ = kv.split("=")
        if k_ == 'pf':
            k0.PREFETCH = True; k0.K0_GRID = 138
            continue
        k1.OPT[k_] = eval(v_)
    open(sys.argv[1], "w").write(build(dbg))
```

```python
import re

class Asm:
    def __init__(self):
        self.lines = []
        self.uid = 0
    def e(self, s):
        self.lines.append("    " + s)
    def c(self, s):
        self.lines.append("    ; " + s)
    def label(self, name):
        self.lines.append(name + ":")
    def newlabel(self, base="L"):
        self.uid += 1
        return f"{base}_{self.uid}"
    def raw(self, s):
        self.lines.append(s)
    def text(self):
        return "\n".join(self.lines) + "\n"

def v(i, n=1):
    return f"v{i}" if n == 1 else f"v[{i}:{i+n-1}]"
def a(i, n=1):
    return f"a{i}" if n == 1 else f"a[{i}:{i+n-1}]"
def s(i, n=1):
    return f"s{i}" if n == 1 else f"s[{i}:{i+n-1}]"

def srd(A, sd, base_lo, base_hi, nbytes):
    A.e(f"s_mov_b32 s{sd}, {base_lo}")
    A.e(f"s_and_b32 s{sd+1}, {base_hi}, 0xffff")
    A.e(f"s_mov_b32 s{sd+2}, {nbytes}")
    A.e(f"s_mov_b32 s{sd+3}, 0x00020000")

def kernel_begin(A, name):
    A.raw(f".globl {name}")
    A.raw(".p2align 8")
    A.raw(f".type {name},@function")
    A.raw(f"{name}:")

def descriptor(name, vgpr, sgpr=102, accum=256):
    return f""".amdhsa_kernel {name}
  .amdhsa_next_free_vgpr {vgpr}
  .amdhsa_next_free_sgpr {sgpr}
  .amdhsa_accum_offset {accum}
  .amdhsa_group_segment_fixed_size 0
  .amdhsa_kernarg_size 104
  .amdhsa_user_sgpr_count 2
  .amdhsa_user_sgpr_kernarg_segment_ptr 1
  .amdhsa_system_sgpr_workgroup_id_x 1
.end_amdhsa_kernel
"""


class Stamps:
    def __init__(self, A, enable, wg=9, wave_sgpr=28, lane_v=1):
        self.A, self.en, self.n, self.wg, self.ws, self.lv = A, enable, 0, wg, wave_sgpr, lane_v
    def stamp(self):
        if not self.en: return
        for r in (False, True):
            self.A.e(f"{'s_memrealtime' if r else 's_memtime'} s[{64+2*self.n}:{65+2*self.n}]")
            self.n += 1
    def finish(self, endlabel, vtmp=20):
        if not self.en: return
        A = self.A
        A.e("s_waitcnt vmcnt(0)")
        self.stamp()
        A.e("s_load_dwordx2 s[52:53], s[0:1], 88")
        A.e("s_waitcnt lgkmcnt(0)")
        srd(A, 56, "s52", "s53", 256)
        for i in range(self.n):
            A.e(f"v_writelane_b32 v{vtmp}, s{64+2*i}, {i}")
        A.e(f"s_cmp_eq_u32 s2, {self.wg}")
        A.e(f"s_cbranch_scc0 {endlabel}")
        A.e(f"s_cmp_eq_u32 s{self.ws}, 0")
        A.e(f"s_cbranch_scc0 {endlabel}")
        A.e(f"v_lshlrev_b32 v{vtmp+1}, 2, v{self.lv}")
        A.e(f"v_cmp_gt_u32 vcc, {self.n}, v{self.lv}")
        A.e("s_and_saveexec_b64 s[54:55], vcc")
        A.e(f"buffer_store_dword v{vtmp}, v{vtmp+1}, s[56:59], 0 offen")
```

```python
from asmlib import *
from layout import *
import struct

def f2u(x):
    return struct.unpack("<I", struct.pack("<f", x))[0]

PREFETCH = False
PFW = False
def gen_k0(A):
    name = "k0_mod_kernel"
    kernel_begin(A, name)
    A.e(f"s_cmp_ge_u32 s2, {K0_GRID}")
    A.e("s_cbranch_scc1 K0_END")
    if PREFETCH:
        A.e("s_cmp_ge_u32 s2, 106")
        A.e("s_cbranch_scc1 K0_PF")
    if PFW:
        A.e("s_cmp_ge_u32 s2, 112")
        A.e("s_cbranch_scc1 K0_PFW")
        A.e("s_cmp_ge_u32 s2, 106")
        A.e("s_cbranch_scc1 K0_END")
    A.e("s_load_dwordx2 s[4:5], s[0:1], 96")
    A.e("s_cmp_ge_u32 s2, 42")
    A.e("s_cbranch_scc1 K0_Y")
    A.e("s_load_dwordx4 s[8:11], s[0:1], 64")
    A.e("v_and_b32 v3, 7, v0")
    A.e("v_lshrrev_b32 v4, 3, v0")
    A.e("v_lshlrev_b32 v2, 1, v4")
    A.e("s_movk_i32 s6, 5376")
    A.e("v_mul_lo_u32 v1, v4, s6")
    A.e("v_lshl_add_u32 v1, v3, 4, v1")
    A.e("s_lshl_b32 s7, s2, 7")
    A.e("v_add_u32 v1, s7, v1")
    A.e("s_waitcnt lgkmcnt(0)")
    srd(A, 12, "s8", "s9", 896)
    srd(A, 16, "s10", "s11", 448*5376)
    for st in range(14):
        A.e(f"buffer_load_ushort v{72+st}, v2, s[12:15], 0 offen offset:{64*st}")
    for st in range(14):
        A.e(f"s_mov_b32 s20, {st*32*5376}")
        A.e(f"buffer_load_dwordx4 {v(16+4*st,4)}, v1, s[16:19], s20 offen")
    for r in range(8):
        A.e(f"v_mov_b32 v{88+r}, 0")
    A.e("s_mov_b32 s21, 0xbfb8aa3b")
    A.e("s_waitcnt vmcnt(14)")
    for st in range(14):
        x = 72+st
        A.e(f"v_lshlrev_b32 v{x}, 16, v{x}")
        A.e(f"v_mul_f32 v5, s21, v{x}")
        A.e(f"v_exp_f32 v5, v5")
        A.e("s_nop 0")
        A.e(f"v_add_f32 v5, 1.0, v5")
        A.e(f"v_rcp_f32 v5, v5")
        A.e("s_nop 0")
        A.e(f"v_mul_f32 v5, v5, v{x}")
        A.e(f"v_cvt_pk_bf16_f32 v5, v5, v5")
        A.e(f"v_lshlrev_b32 v{x}, 16, v5")
    for st in range(14):
        A.e(f"s_waitcnt vmcnt({13-st})")
        for d in range(4):
            w = 16+4*st+d
            A.e(f"v_lshlrev_b32 v5, 16, v{w}")
            A.e(f"v_and_b32 v6, 0xffff0000, v{w}")
            A.e(f"v_fmac_f32 v{88+2*d}, v5, v{72+st}")
            A.e(f"v_fmac_f32 v{88+2*d+1}, v6, v{72+st}")
    A.e("v_lshlrev_b32 v7, 8, v4")
    A.e("v_lshl_add_u32 v7, v3, 5, v7")
    A.e("ds_write_b128 v7, v[88:91]")
    A.e("ds_write_b128 v7, v[92:95] offset:16")
    A.e("s_waitcnt lgkmcnt(0)")
    A.e("s_barrier")
    A.e("v_cmp_gt_u32 vcc, 64, v0")
    A.e("s_and_saveexec_b64 s[22:23], vcc")
    A.e("s_cbranch_execz K0_END")
    A.e("v_lshlrev_b32 v7, 2, v0")
    for r in range(32):
        A.e(f"ds_read_b32 v{16+r}, v7 offset:{256*r}")
    A.e("s_waitcnt lgkmcnt(0)")
    for r in range(1, 32):
        A.e(f"v_add_f32 v16, v16, v{16+r}")
    A.e("v_cvt_pk_bf16_f32 v16, v16, v16")
    A.e("v_lshlrev_b32 v16, 16, v16")
    A.e("s_mul_i32 s24, s2, 9363")
    A.e("s_lshr_b32 s24, s24, 16")
    A.e("s_mov_b32 s25, 0")
    A.e("s_cmp_eq_u32 s24, 1")
    A.e("s_cselect_b32 s25, 1.0, s25")
    A.e("s_cmp_eq_u32 s24, 4")
    A.e("s_cselect_b32 s25, 1.0, s25")
    A.e("v_add_f32 v16, s25, v16")
    A.e("v_cvt_pk_bf16_f32 v16, v16, v16")
    A.e("v_lshlrev_b32 v16, 16, v16")
    A.e(f"s_mov_b32 s26, {f2u(CS):#x}")
    A.e("s_cmp_le_u32 s24, 1")
    A.e("s_cselect_b32 s26, s26, 1.0")
    A.e("v_mul_f32 v16, s26, v16")
    srd(A, 12, "s4", "s5", MOD_BYTES)
    A.e("s_lshl_b32 s7, s2, 8")
    A.e("v_add_u32 v7, s7, v7")
    A.e("buffer_store_dword v16, v7, s[12:15], 0 offen")
    A.e("s_endpgm")
    A.label("K0_Y")
    A.e("s_load_dwordx2 s[8:9], s[0:1], 0")
    A.e("s_sub_u32 s6, s2, 42")
    A.e("v_and_b32 v2, 63, v0")
    A.e("v_lshrrev_b32 v3, 6, v0")
    A.e("v_and_b32 v4, 31, v0")
    A.e("v_bfe_u32 v5, v0, 5, 1")
    A.e("s_lshl_b32 s7, s6, 5")
    A.e("v_add_u32 v6, s7, v4")
    A.e("s_movk_i32 s10, 896")
    A.e("v_mul_lo_u32 v1, v6, s10")
    A.e("v_lshl_add_u32 v1, v5, 3, v1")
    A.e("s_movk_i32 s10, 224")
    A.e("v_mul_lo_u32 v7, v3, s10")
    A.e("v_add_u32 v1, v1, v7")
    A.e("s_waitcnt lgkmcnt(0)")
    srd(A, 12, "s8", "s9", X_BYTES)
    for st in range(7):
        for u in range(2):
            A.e(f"buffer_load_dwordx2 {v(16+4*st+2*u,2)}, v1, s[12:15], 0 offen offset:{32*st+16*u}")
    A.e(f"s_add_u32 s8, s4, {Y_OFF}")
    A.e("s_addc_u32 s9, s5, 0")
    srd(A, 16, "s8", "s9", Y_BYTES)
    A.e(f"s_add_u32 s8, s4, {XF_OFF}")
    A.e("s_addc_u32 s9, s5, 0")
    srd(A, 20, "s8", "s9", XF_BYTES)
    A.e("s_mul_i32 s7, s6, 28672")
    A.e("s_movk_i32 s10, 7168")
    A.e("v_mul_lo_u32 v11, v3, s10")
    A.e("v_lshl_add_u32 v11, v2, 4, v11")
    A.e("s_waitcnt vmcnt(0)")
    for st in range(7):
        A.e(f"s_add_u32 s11, s7, {1024*st}")
        A.e(f"buffer_store_dwordx4 {v(16+4*st,4)}, v11, s[20:23], s11 offen")
    for r in range(28):
        A.e(f"v_lshlrev_b32 v{48+2*r}, 16, v{16+r}")
        A.e(f"v_and_b32 v{48+2*r+1}, 0xffff0000, v{16+r}")
    A.e("v_add_f32 v8, v48, v49")
    for r in range(2, 56):
        A.e(f"v_add_f32 v8, v8, v{48+r}")
    A.e("v_lshlrev_b32 v9, 2, v0")
    A.e("v_lshlrev_b32 v10, 2, v4")
    A.e("ds_write_b32 v9, v8")
    A.e("s_waitcnt lgkmcnt(0)")
    A.e("s_barrier")
    for k in range(8):
        A.e(f"ds_read_b32 v{16+k}, v10 offset:{128*k}")
    A.e("s_waitcnt lgkmcnt(0)")
    for k in range(1, 8):
        A.e(f"v_add_f32 v16, v16, v{16+k}")
    A.e(f"v_mul_f32 v16, {f2u(1.0/448):#x}, v16")
    for r in range(56):
        A.e(f"v_sub_f32 v{48+r}, v{48+r}, v16")
    A.e("v_mul_f32 v8, v48, v48")
    for r in range(1, 56):
        A.e(f"v_fmac_f32 v8, v{48+r}, v{48+r}")
    A.e("ds_write_b32 v9, v8 offset:1024")
    A.e("s_waitcnt lgkmcnt(0)")
    A.e("s_barrier")
    for k in range(8):
        A.e(f"ds_read_b32 v{16+k}, v10 offset:{1024+128*k}")
    A.e("s_waitcnt lgkmcnt(0)")
    for k in range(1, 8):
        A.e(f"v_add_f32 v16, v16, v{16+k}")
    A.e(f"v_mul_f32 v16, {f2u(1.0/448):#x}, v16")
    A.e(f"v_add_f32 v16, {f2u(1e-5):#x}, v16")
    A.e("v_rsq_f32 v16, v16")
    A.e("s_nop 0")
    for r in range(56):
        A.e(f"v_mul_f32 v{48+r}, v{48+r}, v16")
    for r in range(28):
        A.e(f"v_cvt_pk_bf16_f32 v{16+r}, v{48+2*r}, v{48+2*r+1}")
    A.e("s_mul_i32 s7, s6, 28672")
    A.e("s_movk_i32 s10, 7168")
    A.e("v_mul_lo_u32 v7, v3, s10")
    A.e("v_lshl_add_u32 v7, v2, 4, v7")
    for st in range(7):
        A.e(f"s_add_u32 s11, s7, {1024*st}")
        A.e(f"buffer_store_dwordx4 {v(16+4*st,4)}, v7, s[16:19], s11 offen")
    A.label("K0_END")
    A.e("s_endpgm")
    if PREFETCH:
        A.label("K0_PF")
        A.e("s_getpc_b64 s[8:9]")
        A.label("K0_PC")
        A.e("s_sub_u32 s6, s2, 106")
        A.e("s_lshr_b32 s6, s6, 3")
        A.e("s_lshl_b32 s6, s6, 14")
        A.e("v_lshlrev_b32 v1, 4, v0")
        A.e("v_add_u32 v1, s6, v1")
        A.e("s_mov_b32 s10, CODE_END - K0_PC")
        A.e("s_mov_b32 s11, 0x00020000")
        A.e("s_and_b32 s9, s9, 0xffff")
        for i in range(4):
            A.e(f"s_mov_b32 s12, {i*4096}")
            A.e(f"buffer_load_dwordx4 v[{4+4*i}:{7+4*i}], v1, s[8:11], s12 offen")
        A.e("s_waitcnt vmcnt(0)")
        A.e("s_endpgm")
    if PFW:
        A.label("K0_PFW")
        A.e("s_load_dwordx4 s[8:11], s[0:1], 8")
        A.e("s_load_dwordx2 s[12:13], s[0:1], 24")
        A.e("s_and_b32 s6, s2, 7")
        A.e("s_sub_u32 s7, s2, 112")
        A.e("s_lshr_b32 s7, s7, 3")
        A.e("v_and_b32 v1, 63, v0")
        A.e("v_lshrrev_b32 v2, 6, v0")
        A.e("v_lshrrev_b32 v3, 3, v1")
        A.e("v_lshl_add_u32 v3, v2, 4, v3")
        A.e("s_mul_i32 s14, s7, 56")
        A.e("v_add_u32 v3, s14, v3")
        A.e("v_lshlrev_b32 v3, 13, v3")
        A.e("v_and_b32 v4, 7, v1")
        A.e("v_lshl_add_u32 v3, v4, 7, v3")
        A.e("s_lshl_b32 s15, s6, 10")
        A.e("v_add_u32 v3, s15, v3")
        A.e("v_lshlrev_b32 v5, 7, v0")
        A.e("s_waitcnt lgkmcnt(0)")
        srd(A, 16, "s12", "s13", 448*8192)
        A.e("buffer_load_dword v6, v3, s[16:19], 0 offen")
        A.e("s_mov_b32 s20, 65536")
        A.e("buffer_load_dword v7, v3, s[16:19], s20 offen")
        A.e("s_cmp_lt_u32 s7, 4")
        A.e("s_cselect_b32 s8, s8, s10")
        A.e("s_cselect_b32 s9, s9, s11")
        A.e("s_and_b32 s21, s7, 3")
        A.e("s_lshl_b32 s21, s21, 14")
        A.e("s_lshl_b32 s22, s6, 20")
        A.e("s_add_u32 s21, s21, s22")
        A.e("s_add_u32 s8, s8, s21")
        A.e("s_addc_u32 s9, s9, 0")
        srd(A, 16, "s8", "s9", 16384)
        A.e("buffer_load_dword v8, v5, s[16:19], 0 offen")
        A.e("s_waitcnt vmcnt(0)")
        A.e("s_endpgm")
    return name
```

```python
from asmlib import *
from layout import *
import struct

def f2u(x):
    return struct.unpack("<I", struct.pack("<f", x))[0]

KPIECE = 1040
KSLOT = 16*KPIECE
VBASE = 4*KSLOT
VSLOT = 16384
MODL = VBASE + 4*VSLOT
K1_LDS = MODL + 4096

O0 = 128
S_ = [96, 112]
NEGM = 80
P_ = [64, 72]
T_ = 56
L_ = [62, 63]
H1 = 16
VKR = [2, 3]
VVR = [4, 5]
VWR = [6, 7]
VKD = [8, 9, 10, 11]
VVD = [12, 13]
AQ = 0
NRING = 8
AK = 64
AV = 96
SRD_K, SRD_V, SRD_WQ, SRD_Y, SRD_M = 8, 12, 16, 20, 24
S_W, S_KOFF, S_M0K, S_M0V, S_CNT, S_THR = 28, 29, 30, 31, 32, 33

THR_LOG2 = 146
OPT = dict(bias=0, no_reads=False, no_sm=False, no_dma=False, order='alt', no_mfma=False, fake16=False)

class Lgkm:
    def __init__(self, A, pending=None):
        self.A = A
        self.q = list(pending) if pending else []
    def issue(self, tag):
        self.q.append(tag)
    def need(self, tags):
        idx = -1
        for i, t in enumerate(self.q):
            if t in tags:
                idx = i
        if idx < 0:
            return None
        n = len(self.q) - 1 - idx
        self.q = self.q[idx+1:]
        assert n <= 15, n
        return f"s_waitcnt lgkmcnt({n})"

def vread(slot, db, ks, u, ring, bases):
    dst = AV + 4*ring + 2*u
    off = slot*VSLOT + ks*8192 + u*4096 + (db >> 1)*256
    return f"ds_read_b64_tr_b16 {a(dst,2)}, v{bases[db & 1]} offset:{off}"

def kread(slot, ks, ring):
    dst = AK + 4*ring
    off = slot*KSLOT + ks*32
    return f"ds_read_b128 {a(dst,4)}, v{VKR[(ks >> 2) & 1]} offset:{off}"

def mfma(d, A_, B_, C_):
    return f"v_mfma_f32_32x32x16_bf16 {d}, {A_}, {B_}, {C_}"

def softmax_ops(Sr, Pw, Lold, Lnew):
    ops = []
    def pairtail(j):
        t0, t1 = T_ + 2*(j & 1), T_ + 2*(j & 1) + 1
        src = Lold if j == 0 else Lnew
        return [(1, f"v_add_f32 v{Lnew}, v{src}, v{t0}"),
                (1, f"v_add_f32 v{Lnew}, v{Lnew}, v{t1}"),
                (1, f"v_cvt_pk_bf16_f32 v{Pw+j}, v{t0}, v{t1}")]
    for j in range(8):
        t0, t1 = T_ + 2*(j & 1), T_ + 2*(j & 1) + 1
        ops.append((2, f"v_exp_f32 v{t0}, v{Sr+2*j}"))
        ops.append((2, f"v_exp_f32 v{t1}, v{Sr+2*j+1}"))
        if j > 0:
            ops += pairtail(j-1)
    ops += pairtail(7)
    return ops

def distribute(ops, lo, hi, ngaps=32):
    gaps = [[] for _ in range(ngaps)]
    total = sum(c for c, _ in ops)
    n = hi - lo + 1
    acc = 0.0
    for c, t in ops:
        g = lo + min(n-1, int((acc + c*0.5) * n / total))
        gaps[g].append(t)
        acc += c
    return gaps

LEAD = 6

def pos_op(p):
    if OPT['order'] == 'alt':
        if p % 2 == 0:
            n = p >> 1
            return ('pv', n >> 1, n & 1, n)
        return ('qk', p >> 1, 0, p >> 1)
    elif OPT['order'] == 'grp':
        if p < 16:
            return ('pv', p >> 1, p & 1, p)
        return ('qk', p-16, 0, p-16)
    elif OPT['order'] == 'grp4':
        blk, r = p >> 3, p & 7
        if r < 4:
            n = blk*4 + r
            return ('pv', n >> 1, n & 1, n)
        n = blk*4 + r - 4
        return ('qk', n, 0, n)
    raise ValueError

def reads_for_pos(ph, p, do_pv, do_qk, nxt_do_pv, nxt_do_qk):
    if p >= 32:
        ph2, p2, pv, qk = (ph+1) % 4, p-32, nxt_do_pv, nxt_do_qk
    else:
        ph2, p2, pv, qk = ph, p, do_pv, do_qk
    op = pos_op(p2)
    if op[0] == 'pv':
        if not pv: return []
        _, db, ks, n = op
        return [((p2, u), vread(ph2, db, ks, u, n % NRING, VVR)) for u in range(2)]
    else:
        if not qk: return []
        _, ks, _, n = op
        return [((p2, 0), kread((ph2+2) % 4, ks, n % NRING))]

def iteration(A, ph, tag, do_qk=True, do_sm=True, dma_k=True, dma_v=True,
              nxt_pv=True, nxt_qk=True, vmwait=8, barrier=True, extra=None):
    Sw, Sr = S_[ph % 2], S_[(ph+1) % 2]
    Pr, Pw = P_[ph % 2], P_[(ph+1) % 2]
    Lold, Lnew = L_[ph % 2], L_[(ph+1) % 2]
    pend = []
    for p in range(LEAD):
        pend += [t for t, _ in reads_for_pos(ph, p, True, do_qk, True, True)]
    lg = Lgkm(A, pend)
    gaps = [[] for _ in range(32)]
    if barrier:
        gaps[0] += [f"s_waitcnt vmcnt({vmwait})", "s_barrier"]
    if OPT['no_dma']: dma_k = dma_v = False
    if OPT['no_sm']: do_sm = False
    if dma_k:
        gaps[1].append(f"s_add_u32 m0, s{S_M0K}, {((ph+1) % 4)*KSLOT}")
        for n in range(4):
            gaps[2+4*n].append(f"buffer_load_dwordx4 v{VKD[n]}, s[{SRD_K}:{SRD_K+3}], s{S_KOFF} offen offset:{n*KPIECE} lds")
    if dma_v:
        gaps[17].append(f"s_add_u32 m0, s{S_M0V}, {((ph+3) % 4)*VSLOT}")
        for n in range(4):
            gaps[18+4*n].append(f"buffer_load_dwordx4 v{VVD[n & 1]}, s[{SRD_V}:{SRD_V+3}], s{S_KOFF} offen offset:{n*1024} lds")
    gaps[31].append(f"s_add_u32 s{S_KOFF}, s{S_KOFF}, 16384")
    if extra:
        for g_, l_ in extra.items(): gaps[g_] += l_
    if do_sm:
        sm = distribute(softmax_ops(Sr, Pw, Lold, Lnew), 4, 29)
        for g in range(32):
            gaps[g] += sm[g]
        gaps[30].append(f"v_cmp_lt_f32 vcc, s{S_THR}, v{Lnew}")
    for p in range(32):
        if p % 2 == 0:
            w = lg.need({(p, 0), (p, 1), (p+1, 0), (p+1, 1)})
            if w and not OPT['no_reads']: A.e(w)
        op = pos_op(p)
        F = []
        for t, txt in reads_for_pos(ph, p+LEAD, True, do_qk, nxt_pv, nxt_qk):
            if not OPT['no_reads']: F.append(txt)
            lg.issue((t[0] + (32 if p+LEAD >= 32 else 0), t[1]))
        F += gaps[p]
        M = []
        if OPT['no_mfma']:
            pass
        elif OPT['fake16']:
            if op[0] == 'pv':
                _, db, ks, n = op
                for hh in range(2):
                    acc = v(O0+16*db+8*ks+4*hh, 4)
                    M.append(f"v_mfma_f32_16x16x32_bf16 {acc}, {a(AV+4*(n % NRING),4)}, {v(Pr+4*hh,4)}, {acc}")
            elif do_qk:
                _, ks, _, n = op
                for hh in range(2):
                    acc = v(Sw+8*(ks & 1)+4*hh, 4)
                    c_ = v(NEGM+4*hh, 4) if ks < 2 else acc
                    M.append(f"v_mfma_f32_16x16x32_bf16 {acc}, {a(AK+4*(n % NRING),4)}, {a(AQ+8*(ks>>1)+4*hh,4)}, {c_}")
        elif op[0] == 'pv':
            _, db, ks, n = op
            acc = v(O0+16*db, 16)
            M.append(mfma(acc, a(AV+4*(n % NRING), 4), v(Pr+4*ks, 4), acc))
        elif do_qk:
            _, ks, _, n = op
            M.append(mfma(v(Sw, 16), a(AK+4*(n % NRING), 4), a(AQ+4*ks, 4), v(NEGM, 16) if ks == 0 else v(Sw, 16)))
        if len(M) == 2:
            h = len(F)//2
            A.e(M[0])
            for txt in F[:h]: A.e(txt)
            A.e(M[1])
            for txt in F[h:]: A.e(txt)
        else:
            for m in M: A.e(m)
            for txt in F: A.e(txt)
    if do_sm:
        A.e(f"s_cbranch_vccnz RARE_{tag}")
        A.label(f"CONT_{tag}")

def rare_path(A, ph, tag, do_qk=True):
    Sn, Sr = S_[ph % 2], S_[(ph+1) % 2]
    Pw = P_[(ph+1) % 2]
    Lold, Lnew = L_[ph % 2], L_[(ph+1) % 2]
    t0, t1, t2, t3 = T_, T_+1, T_+2, T_+3
    A.label(f"RARE_{tag}")
    A.e("s_nop 15")
    A.e("s_nop 15")
    A.e(f"v_max3_f32 v{t0}, v{Sr}, v{Sr+1}, v{Sr+2}")
    for j in range(3, 15, 2):
        A.e(f"v_max3_f32 v{t0}, v{t0}, v{Sr+j}, v{Sr+j+1}")
    A.e(f"v_max_f32 v{t0}, v{t0}, v{Sr+15}")
    A.e(f"v_mov_b32 v{t1}, v{t0}")
    A.e(f"v_mov_b32 v{t2}, v{Lold}")
    A.e(f"v_mov_b32 v{t3}, v{Lold}")
    A.e("s_nop 1")
    A.e(f"v_permlane32_swap_b32 v{t0}, v{t1}")
    A.e(f"v_permlane32_swap_b32 v{t2}, v{t3}")
    A.e("s_nop 1")
    A.e(f"v_max_f32 v{t0}, v{t0}, v{t1}")
    A.e(f"v_add_f32 v{t2}, v{t2}, v{t3}")
    A.e(f"v_log_f32 v{t2}, v{t2}")
    A.e("s_nop 0")
    A.e(f"v_max_f32 v{t0}, v{t0}, v{t2}")
    if OPT['bias']:
        A.e(f"v_add_f32 v{t0}, {f2u(float(OPT['bias'])):#x}, v{t0}")
    A.e(f"v_max_f32 v{t0}, 0, v{t0}")
    A.e(f"v_sub_f32 v{t3}, 0, v{t0}")
    A.e(f"v_exp_f32 v{t3}, v{t3}")
    A.e("s_nop 0")
    for r in range(128):
        A.e(f"v_mul_f32 v{O0+r}, v{O0+r}, v{t3}")
    A.e(f"v_mul_f32 v{Lold}, v{Lold}, v{t3}")
    for r in range(16):
        A.e(f"v_sub_f32 v{NEGM+r}, v{NEGM+r}, v{t0}")
    if do_qk:
        for r in range(16):
            A.e(f"v_sub_f32 v{Sn+r}, v{Sn+r}, v{t0}")
    for r in range(16):
        A.e(f"v_sub_f32 v{Sr+r}, v{Sr+r}, v{t0}")
    for j in range(8):
        A.e(f"v_exp_f32 v{t1}, v{Sr+2*j}")
        A.e(f"v_exp_f32 v{t2}, v{Sr+2*j+1}")
        A.e("s_nop 0")
        A.e(f"v_add_f32 v{Lnew}, v{Lold if j == 0 else Lnew}, v{t1}")
        A.e(f"v_add_f32 v{Lnew}, v{Lnew}, v{t2}")
        A.e(f"v_cvt_pk_bf16_f32 v{Pw+j}, v{t1}, v{t2}")
    A.e("s_nop 1")
    A.e(f"s_branch CONT_{tag}")

def gen_k1(A, dbg=None):
    name = "k1_attn_kernel"
    kernel_begin(A, name)
    stamps = []
    def stamp(real=False):
        if dbg != "time": return
        if real: return
        for r in (False, True):
            i = len(stamps)
            stamps.append(i)
            A.e(f"{'s_memrealtime' if r else 's_memtime'} s[{64+2*i}:{65+2*i}]")
    A.e("s_cmp_ge_u32 s2, 256")
    A.e("s_cbranch_scc1 K1_END")
    stamp(); stamp(True)
    A.e("s_load_dwordx4 s[36:39], s[0:1], 8")
    A.e("s_load_dwordx2 s[40:41], s[0:1], 24")
    A.e("s_load_dwordx2 s[42:43], s[0:1], 96")
    A.e("v_and_b32 v1, 63, v0")
    A.e("v_lshrrev_b32 v14, 6, v0")
    A.e("s_nop 0")
    A.e(f"v_readfirstlane_b32 s{S_W}, v14")
    A.e("s_and_b32 s44, s2, 7")
    A.e("s_lshr_b32 s45, s2, 3")
    A.e("s_and_b32 s46, s45, 1")
    A.e("s_lshl_b32 s47, s44, 1")
    A.e("s_add_u32 s46, s46, s47")
    A.e("s_lshr_b32 s45, s45, 1")
    A.e("s_lshl_b32 s45, s45, 2")
    A.e(f"s_add_u32 s45, s45, s{S_W}")
    A.e("v_lshrrev_b32 v14, 5, v1")
    A.e("v_and_b32 v15, 31, v1")
    A.e("v_lshlrev_b32 v12, 3, v14")
    A.e("v_xor_b32 v15, v15, v12")
    A.e("v_lshlrev_b32 v15, 4, v15")
    A.e("v_lshl_add_u32 v15, v14, 9, v15")
    A.e(f"s_lshl_b32 s48, s{S_W}, 12")
    A.e("s_add_u32 s49, s48, 64")
    A.e(f"v_add_u32 v{VKD[0]}, s49, v15")
    for n in range(1, 4):
        A.e(f"v_subrev_u32 v{VKD[n]}, {16*n}, v{VKD[0]}")
    A.e("v_bfe_u32 v14, v1, 2, 1")
    A.e("v_bfe_u32 v15, v1, 3, 1")
    A.e("v_and_b32 v12, 3, v1")
    A.e("v_lshlrev_b32 v12, 4, v12")
    A.e("v_lshrrev_b32 v13, 4, v1")
    A.e("v_lshl_add_u32 v12, v13, 7, v12")
    A.e(f"s_lshl_b32 s49, s{S_W}, 16")
    for n in range(4):
        A.e(f"v_xor_b32 v13, {n & 1}, v14")
        A.e(f"v_lshl_add_u32 v13, v13, 6, v12")
        A.e(f"v_lshl_add_u32 v13, v15, 13, v13")
        A.e(f"s_add_u32 s50, s49, {2*n*8192 - n*1024}")
        A.e(f"v_add_u32 v{2+n}, s50, v13")
    def tr_bases(dst, swap, ta=13, tb=14, tc=15):
        A.e(f"v_lshrrev_b32 v{tb}, 5, v1")
        A.e(f"v_lshlrev_b32 v{ta}, 11, v{tb}")
        A.e(f"v_bfe_u32 v{tb}, v1, 3, 1")
        A.e(f"v_lshl_add_u32 v{ta}, v{tb}, 10, v{ta}")
        A.e(f"v_bfe_u32 v{tc}, v1, 2, 1")
        A.e(f"v_lshl_add_u32 v{ta}, v{tc}, 7, v{ta}")
        A.e(f"v_bfe_u32 v{tc}, v1, 4, 1")
        A.e(f"v_lshl_add_u32 v{ta}, v{tc}, 5, v{ta}")
        if swap:
            A.e(f"v_and_b32 v{tc}, 1, v1")
            A.e(f"v_lshl_add_u32 v{ta}, v{tc}, 4, v{ta}")
            A.e(f"v_bfe_u32 v{tc}, v1, 1, 1")
            A.e(f"v_lshl_add_u32 v{ta}, v{tc}, 3, v{ta}")
        else:
            A.e(f"v_and_b32 v{tc}, 3, v1")
            A.e(f"v_lshl_add_u32 v{ta}, v{tc}, 3, v{ta}")
        A.e(f"v_add_u32 v{ta}, {VBASE}, v{ta}")
        A.e(f"v_lshl_add_u32 v{dst[0]}, v{tb}, 6, v{ta}")
        A.e(f"v_xor_b32 v{tb}, 1, v{tb}")
        A.e(f"v_lshl_add_u32 v{dst[1]}, v{tb}, 6, v{ta}")
    tr_bases(VWR, True)
    A.e("v_lshlrev_b32 v12, 4, v1")
    A.e("s_waitcnt lgkmcnt(0)")
    A.e("s_lshl_b32 s50, s44, 20")
    A.e("s_add_u32 s36, s36, s50")
    A.e("s_addc_u32 s37, s37, 0")
    A.e("s_sub_u32 s52, s36, 64")
    A.e("s_subb_u32 s53, s37, 0")
    srd(A, SRD_K, "s52", "s53", 1048576+64)
    A.e("s_add_u32 s38, s38, s50")
    A.e("s_addc_u32 s39, s39, 0")
    A.e("s_sub_u32 s52, s38, 32768")
    A.e("s_subb_u32 s53, s39, 0")
    srd(A, SRD_V, "s52", "s53", 1048576+32768)
    A.e("s_lshl_b32 s50, s46, 9")
    A.e("s_add_u32 s40, s40, s50")
    A.e("s_addc_u32 s41, s41, 0")
    A.e(f"s_sub_u32 s51, {448*8192}, s50")
    srd(A, SRD_WQ, "s40", "s41", "s51")
    A.e("s_mul_i32 s50, s45, 28672")
    A.e(f"s_add_u32 s50, s50, {Y_OFF}")
    A.e("s_add_u32 s52, s42, s50")
    A.e("s_addc_u32 s53, s43, 0")
    srd(A, SRD_Y, "s52", "s53", 28672)
    srd(A, SRD_M, "s42", "s43", 3584)
    for ks in range(28):
        if ks % 4 == 0:
            A.e(f"s_mov_b32 s50, {ks*1024}")
        A.e(f"buffer_load_dwordx4 {v(H1+4*ks,4)}, v12, s[{SRD_Y}:{SRD_Y+3}], s50 offen offset:{(ks%4)*1024}")
    A.e(f"s_lshl_b32 s50, s{S_W}, 10")
    A.e(f"s_add_u32 m0, s50, {MODL}")
    A.e("s_nop 0")
    A.e(f"buffer_load_dwordx4 v12, s[{SRD_M}:{SRD_M+3}], s50 offen lds")
    A.e(f"s_add_u32 s{S_M0V}, s48, {VBASE}")
    A.e(f"s_mul_i32 s{S_M0K}, s{S_W}, {4*KPIECE}")
    def wq_dma(ch):
        out = [f"s_add_u32 m0, s{S_M0V}, {(ch % 4)*VSLOT}", f"s_mov_b32 s50, {ch*32*8192}"]
        for n in range(4):
            out.append(f"buffer_load_dwordx4 v{2+n}, s[{SRD_WQ}:{SRD_WQ+3}], s50 offen offset:{n*1024} lds")
        return out
    for ch in range(3):
        for t in wq_dma(ch): A.e(t)
    def k_dma(blk):
        out = [f"s_add_u32 m0, s{S_M0K}, {(blk % 4)*KSLOT}", f"s_mov_b32 s50, {blk*16384}"]
        for n in range(4):
            out.append(f"buffer_load_dwordx4 v{VKD[n]}, s[{SRD_K}:{SRD_K+3}], s50 offen offset:{n*KPIECE} lds")
        return out
    for blk in range(4):
        for t in k_dma(blk): A.e(t)
    A.e("s_waitcnt vmcnt(28)")
    A.e("s_barrier")
    stamp()
    A.e("v_lshrrev_b32 v14, 5, v1")
    A.e("v_lshlrev_b32 v14, 4, v14")
    A.e(f"v_add_u32 v14, {MODL}, v14")
    TG = 128
    def mod_reads(ks):
        b = TG + 16*(ks & 1)
        return [f"ds_read_b128 {v(b,4)}, v14 offset:{1792+ks*64}",
                f"ds_read_b128 {v(b+4,4)}, v14 offset:{1792+ks*64+32}",
                f"ds_read_b128 {v(b+8,4)}, v14 offset:{ks*64}",
                f"ds_read_b128 {v(b+12,4)}, v14 offset:{ks*64+32}"]
    for t in mod_reads(0): A.e(t)
    TU = 160
    for ks in range(28):
        if ks+1 < 28:
            for t in mod_reads(ks+1): A.e(t)
            A.e("s_waitcnt lgkmcnt(4)")
        else:
            A.e("s_waitcnt lgkmcnt(0)")
        b = TG + 16*(ks & 1)
        for d in range(4):
            r = H1+4*ks+d
            A.e(f"v_lshlrev_b32 v{TU+2*d}, 16, v{r}")
            A.e(f"v_and_b32 v{TU+2*d+1}, 0xffff0000, v{r}")
        for d in range(4):
            A.e(f"v_pk_fma_f32 {v(TU+2*d,2)}, {v(TU+2*d,2)}, {v(b+2*d,2)}, {v(b+8+2*d,2)}")
        for d in range(4):
            A.e(f"v_cvt_pk_bf16_f32 v{H1+4*ks+d}, v{TU+2*d}, v{TU+2*d+1}")
    QL = 4
    def q_reads(ch, p):
        if p >= 16:
            ch, p = ch+1, p-16
            if ch >= 14: return []
        db, ks = p >> 1, p & 1
        ring = p % NRING
        return [((ch, p, u), vread(ch % 4, db, ks, u, ring, VWR)) for u in range(2)]
    stamp()
    A.e("s_waitcnt vmcnt(24)")
    A.e("s_barrier")
    lg = Lgkm(A)
    for p in range(QL):
        for t, txt in q_reads(0, p):
            A.e(txt); lg.issue(t)
    for ch in range(14):
        gaps = [[] for _ in range(16)]
        if ch == 0: vm = 20
        elif ch == 1: vm = 20
        elif ch <= 11: vm = 4
        else: vm = 0
        if ch < 13:
            gaps[0] += [f"s_waitcnt vmcnt({vm})", "s_barrier"]
        if ch+3 < 14:
            d = wq_dma(ch+3)
            gaps[1] += d[:2]
            for n in range(4):
                gaps[2+3*n].append(d[2+n])
        for p in range(16):
            w = lg.need({(ch, p, 0), (ch, p, 1)})
            if w: A.e(w)
            db, ks = p >> 1, p & 1
            acc = v(O0+16*db, 16)
            first = (ch == 0 and ks == 0)
            A.e(mfma(acc, a(AV+4*(p % NRING), 4), v(H1+4*(2*ch+ks), 4), "0" if first else acc))
            for t, txt in q_reads(ch, p+QL):
                A.e(txt); lg.issue(t)
            for txt in gaps[p]: A.e(txt)
    A.e("s_barrier")
    stamp()
    A.e("v_bfe_u32 v14, v1, 2, 1")
    A.e("v_bfe_u32 v15, v1, 3, 1")
    A.e("v_and_b32 v2, 3, v1")
    A.e("v_lshlrev_b32 v2, 4, v2")
    A.e("v_lshl_add_u32 v2, v15, 9, v2")
    A.e("v_lshrrev_b32 v15, 4, v1")
    A.e("v_lshl_add_u32 v2, v15, 7, v2")
    A.e("v_add_u32 v2, s48, v2")
    A.e(f"v_lshl_add_u32 v{VVD[0]}, v14, 6, v2")
    A.e("v_xor_b32 v14, 1, v14")
    A.e(f"v_lshl_add_u32 v{VVD[1]}, v14, 6, v2")
    def v_dma(blk):
        out = [f"s_add_u32 m0, s{S_M0V}, {(blk % 4)*VSLOT}", f"s_mov_b32 s50, {blk*16384+32768}"]
        for n in range(4):
            out.append(f"buffer_load_dwordx4 v{VVD[n & 1]}, s[{SRD_V}:{SRD_V+3}], s50 offen offset:{n*1024} lds")
        return out
    for blk in range(2):
        for t in v_dma(blk): A.e(t)
    A.e("v_bfe_u32 v14, v1, 1, 4")
    A.e(f"v_mul_u32_u24 v14, {KPIECE}, v14")
    A.e("v_and_b32 v15, 1, v1")
    A.e("v_lshl_add_u32 v14, v15, 9, v14")
    A.e("v_lshrrev_b32 v2, 5, v1")
    A.e("v_lshl_add_u32 v14, v2, 4, v14")
    A.e("v_lshlrev_b32 v15, 7, v15")
    A.e(f"v_add_u32 v{VKR[0]}, v14, v15")
    A.e(f"v_sub_u32 v{VKR[1]}, v14, v15")
    tr_bases(VVR, False, 16, 17, 18)
    A.e("s_nop 7")
    for db in range(8):
        for r in range(8):
            A.e(f"v_cvt_pk_bf16_f32 v{T_+(r & 3)}, v{O0+16*db+2*r}, v{O0+16*db+2*r+1}")
            A.e(f"v_accvgpr_write_b32 a{AQ+8*db+r}, v{T_+(r & 3)}")
    if dbg == "q":
        A.e("s_lshl_b32 s50, s45, 18")
        A.e("s_lshl_b32 s51, s46, 14")
        A.e("s_add_u32 s50, s50, s51")
        A.e(f"s_add_u32 s50, s50, {OF_OFF}")
        A.e("s_add_u32 s52, s42, s50")
        A.e("s_addc_u32 s53, s43, 0")
        srd(A, SRD_Y, "s52", "s53", 16384)
        A.e("v_lshlrev_b32 v12, 4, v1")
        A.e("s_nop 4")
        for ks in range(16):
            if ks % 4 == 0:
                A.e(f"s_mov_b32 s50, {ks*1024}")
            A.e(f"buffer_store_dwordx4 {a(AQ+4*ks,4)}, v12, s[{SRD_Y}:{SRD_Y+3}], s50 offen offset:{(ks%4)*1024}")
        A.e("s_waitcnt vmcnt(0)")
        A.e("s_endpgm")
    lg = Lgkm(A)
    seq = [(b, ks) for b in range(2) for ks in range(16)]
    KL = 4
    A.e("s_nop 1")
    for i in range(KL):
        b, ks = seq[i]
        A.e(kread(b, ks, i % NRING)); lg.issue(i)
    zero = [f"v_mov_b32 v{O0+r}, 0" for r in range(128)]
    for i, (b, ks) in enumerate(seq):
        w = lg.need({i})
        if w: A.e(w)
        A.e(mfma(v(S_[b], 16), a(AK+4*(i % NRING), 4), a(AQ+4*ks, 4), "0" if ks == 0 else v(S_[b], 16)))
        if i+KL < 32:
            b2, ks2 = seq[i+KL]
            A.e(kread(b2, ks2, (i+KL) % NRING)); lg.issue(i+KL)
        for t in zero[4*i:4*i+4]: A.e(t)
    A.e("s_barrier")
    for t in v_dma(2): A.e(t)
    for t in k_dma(4): A.e(t)
    A.e(f"s_mov_b32 s{S_KOFF}, {5*16384}")
    A.e(f"s_mov_b32 s{S_THR}, {f2u(2.0**(OPT.get('thr', THR_LOG2)-OPT['bias'])):#x}")
    A.e("s_nop 7")
    t0, t1 = T_, T_+1
    A.e(f"v_max3_f32 v{t0}, v{S_[0]}, v{S_[0]+1}, v{S_[0]+2}")
    allS = [S_[0]+j for j in range(3, 16)] + [S_[1]+j for j in range(16)]
    for j in range(0, len(allS)-1, 2):
        A.e(f"v_max3_f32 v{t0}, v{t0}, v{allS[j]}, v{allS[j+1]}")
    A.e(f"v_max_f32 v{t0}, v{t0}, v{allS[-1]}")
    A.e(f"v_mov_b32 v{t1}, v{t0}")
    A.e("s_nop 1")
    A.e(f"v_permlane32_swap_b32 v{t0}, v{t1}")
    A.e("s_nop 1")
    A.e(f"v_max_f32 v{t0}, v{t0}, v{t1}")
    if OPT['bias']:
        A.e(f"v_add_f32 v{t0}, {f2u(float(OPT['bias'])):#x}, v{t0}")
    for r in range(16):
        A.e(f"v_sub_f32 v{NEGM+r}, 0, v{t0}")
    for b in range(2):
        for r in range(16):
            A.e(f"v_sub_f32 v{S_[b]+r}, v{S_[b]+r}, v{t0}")
    A.e(f"v_mov_b32 v{L_[1]}, 0")
    for c, t in softmax_ops(S_[0], P_[0], L_[1], L_[0]):
        A.e(t)
    A.e("s_waitcnt vmcnt(8)")
    A.e("s_barrier")
    for p in range(LEAD):
        for t, txt in reads_for_pos(0, p, True, True, True, True):
            A.e(txt)
    if dbg == "time":
        stamp()
        A.e("s_waitcnt lgkmcnt(0)")
        for p in range(LEAD):
            for t, txt in reads_for_pos(0, p, True, True, True, True):
                A.e(txt)
    A.e(f"s_mov_b32 s{S_CNT}, 15")
    A.raw(".p2align 6")
    A.label("K1_LOOP")
    for ph in range(4):
        iteration(A, ph, f"M{ph}")
    A.e(f"s_sub_u32 s{S_CNT}, s{S_CNT}, 1")
    A.e(f"s_cmp_lg_u32 s{S_CNT}, 0")
    A.e("s_cbranch_scc1 K1_LOOP")
    if dbg == "time":
        stamp()
        A.e("s_waitcnt lgkmcnt(0)")
    iteration(A, 0, "T0", dma_k=False, dma_v=True, vmwait=8)
    iteration(A, 1, "T1", dma_k=False, dma_v=False, vmwait=4, nxt_qk=False)
    iteration(A, 2, "T2", do_qk=False, dma_k=False, dma_v=False, vmwait=0, nxt_qk=False)
    iteration(A, 3, "T3", do_qk=False, do_sm=False, dma_k=False, dma_v=False, nxt_pv=False, nxt_qk=False, barrier=False)
    stamp()
    Lf = L_[1]
    A.e(f"v_mov_b32 v{t0}, v{Lf}")
    A.e(f"v_mov_b32 v{t1}, v{Lf}")
    A.e("s_lshl_b32 s50, s45, 18")
    A.e("s_lshl_b32 s51, s46, 14")
    A.e(f"v_permlane32_swap_b32 v{t0}, v{t1}")
    A.e("s_add_u32 s50, s50, s51")
    A.e(f"s_add_u32 s50, s50, {OF_OFF}")
    A.e(f"v_add_f32 v{t0}, v{t0}, v{t1}")
    A.e(f"v_rcp_f32 v{t0}, v{t0}")
    A.e("s_add_u32 s52, s42, s50")
    A.e("s_addc_u32 s53, s43, 0")
    srd(A, SRD_Y, "s52", "s53", 16384)
    A.e("v_lshlrev_b32 v12, 4, v1")
    A.e("s_nop 7")
    for fr in range(16):
        base = O0 + 8*fr
        for r in range(8):
            A.e(f"v_mul_f32 v{base+r}, v{base+r}, v{t0}")
        dst = S_[0] + 4*(fr % 8)
        for r in range(4):
            A.e(f"v_cvt_pk_bf16_f32 v{dst+r}, v{base+2*r}, v{base+2*r+1}")
        if fr % 4 == 0:
            A.e(f"s_mov_b32 s50, {fr*1024}")
        A.e(f"buffer_store_dwordx4 {v(dst,4)}, v12, s[{SRD_Y}:{SRD_Y+3}], s50 offen offset:{(fr%4)*1024}")
        if fr == 7:
            A.e("s_waitcnt vmcnt(4)")
    if dbg == "time":
        A.e("s_waitcnt vmcnt(0)")
        stamp(); stamp(True)
        A.e("s_load_dwordx2 s[52:53], s[0:1], 88")
        A.e("s_waitcnt lgkmcnt(0)")
        if OPT.get('dbg0'):
            A.e("s_sub_u32 s52, s52, 512")
            A.e("s_subb_u32 s53, s53, 0")
        srd(A, SRD_M, "s52", "s53", 256)
        for i in range(len(stamps)):
            A.e(f"v_writelane_b32 v20, s{64+2*i}, {i}")
        A.e(f"s_cmp_eq_u32 s2, 9")
        A.e("s_cbranch_scc0 K1_END")
        A.e(f"s_cmp_eq_u32 s{S_W}, 0")
        A.e("s_cbranch_scc0 K1_END")
        A.e("v_lshlrev_b32 v21, 2, v1")
        A.e(f"v_cmp_gt_u32 vcc, {len(stamps)}, v1")
        A.e("s_and_saveexec_b64 s[54:55], vcc")
        A.e(f"buffer_store_dword v20, v21, s[{SRD_M}:{SRD_M+3}], 0 offen")
    A.label("K1_END")
    A.e("s_endpgm")
    if not OPT['no_sm']:
        for ph in range(4):
            rare_path(A, ph, f"M{ph}")
        rare_path(A, 0, "T0")
        rare_path(A, 1, "T1")
        rare_path(A, 2, "T2", do_qk=False)
    return name
```

```python
from asmlib import *
from layout import *
import k1
from k1 import (Lgkm, mfma, f2u, KPIECE, KSLOT, VBASE, VSLOT, MODL, O0, S_, NEGM, P_, T_, L_,
                VKR, VVR, VKD, VVD, AQ, NRING, AK, AV, SRD_K, SRD_V, SRD_WQ, SRD_Y, SRD_M,
                S_W, S_KOFF, S_M0K, S_M0V, S_CNT, S_THR, THR_LOG2, OPT, LEAD,
                kread, softmax_ops, iteration, rare_path, reads_for_pos, distribute)

K1_LDS = 163840
SRD_WO = 16
WSLOT = [0, 28672, 132096, 66560, 95232]

class Vm:
    def __init__(self): self.q = []
    def issue(self, tag): self.q.append(tag)
    def need(self, tags):
        idx = -1
        for i, t in enumerate(self.q):
            if t in tags: idx = i
        if idx < 0: return None
        n = len(self.q) - 1 - idx
        self.q = self.q[idx+1:]
        assert n <= 63
        return f"s_waitcnt vmcnt({n})"

def gen_k1(A, dbg=None):
    name = "k1_attn_kernel"
    kernel_begin(A, name)
    ST = Stamps(A, dbg == "time", wg=9, wave_sgpr=S_W)
    A.e("s_cmp_ge_u32 s2, 256")
    A.e("s_cbranch_scc1 K1_END")
    ST.stamp()
    A.e("s_load_dwordx4 s[36:39], s[0:1], 8")
    A.e("s_load_dwordx4 s[40:43], s[0:1], 24")
    A.e("s_load_dwordx2 s[60:61], s[0:1], 96")
    A.e("v_and_b32 v1, 63, v0")
    A.e("v_lshrrev_b32 v14, 6, v0")
    A.e("s_nop 0")
    A.e(f"v_readfirstlane_b32 s{S_W}, v14")
    A.e("s_and_b32 s44, s2, 7")
    A.e("s_lshr_b32 s45, s2, 3")
    A.e("s_lshl_b32 s45, s45, 1")
    A.e(f"s_and_b32 s46, s{S_W}, 1")
    A.e("s_add_u32 s45, s45, s46")
    A.e(f"s_lshr_b32 s47, s{S_W}, 1")
    A.e("v_bfe_u32 v14, v1, 2, 1")
    A.e("v_bfe_u32 v15, v1, 3, 1")
    A.e("v_and_b32 v12, 3, v1")
    A.e("v_lshlrev_b32 v12, 4, v12")
    A.e("v_lshrrev_b32 v13, 4, v1")
    A.e("v_lshl_add_u32 v12, v13, 7, v12")
    for n in range(4):
        A.e(f"v_xor_b32 v13, {n & 1}, v14")
        A.e(f"v_lshl_add_u32 v13, v13, 6, v12")
        A.e(f"v_lshl_add_u32 v13, v15, 13, v13")
        A.e(f"v_add_u32 v{2+n}, {2*n*8192 - n*1024}, v13")
    def tr_bases(dst, swap, add, ta, tb, tc):
        A.e(f"v_lshrrev_b32 v{tb}, 5, v1")
        A.e(f"v_lshlrev_b32 v{ta}, 11, v{tb}")
        A.e(f"v_bfe_u32 v{tb}, v1, 3, 1")
        A.e(f"v_lshl_add_u32 v{ta}, v{tb}, 10, v{ta}")
        A.e(f"v_bfe_u32 v{tc}, v1, 2, 1")
        A.e(f"v_lshl_add_u32 v{ta}, v{tc}, 7, v{ta}")
        A.e(f"v_bfe_u32 v{tc}, v1, 4, 1")
        A.e(f"v_lshl_add_u32 v{ta}, v{tc}, 5, v{ta}")
        if swap:
            A.e(f"v_and_b32 v{tc}, 1, v1")
            A.e(f"v_lshl_add_u32 v{ta}, v{tc}, 4, v{ta}")
            A.e(f"v_bfe_u32 v{tc}, v1, 1, 1")
            A.e(f"v_lshl_add_u32 v{ta}, v{tc}, 3, v{ta}")
        else:
            A.e(f"v_and_b32 v{tc}, 3, v1")
            A.e(f"v_lshl_add_u32 v{ta}, v{tc}, 3, v{ta}")
        A.e(f"v_add_u32 v{ta}, {add}, v{ta}")
        A.e(f"v_lshl_add_u32 v{dst[0]}, v{tb}, 6, v{ta}")
        A.e(f"v_xor_b32 v{tb}, 1, v{tb}")
        A.e(f"v_lshl_add_u32 v{dst[1]}, v{tb}, 6, v{ta}")
    A.e("s_lshl_b32 s48, s47, 14")
    tr_bases([6, 7], True, "s48", 13, 14, 15)
    A.e("v_add_u32 v8, 0x10000, v6")
    A.e("v_add_u32 v9, 0x10000, v7")
    WQR = [[6, 7], [8, 9]]
    A.e("v_lshlrev_b32 v12, 4, v1")
    A.e("v_lshrrev_b32 v13, 5, v1")
    A.e("v_lshlrev_b32 v13, 4, v13")
    A.e(f"v_add_u32 v13, {MODL}, v13")
    A.e(f"s_lshl_b32 s49, s46, 17")
    A.e("s_lshl_b32 s50, s47, 9")
    A.e("s_add_u32 s49, s49, s50")
    A.e(f"s_lshl_b32 s48, s{S_W}, 13")
    A.e("s_waitcnt lgkmcnt(0)")
    A.e("s_lshl_b32 s50, s44, 20")
    A.e("s_add_u32 s36, s36, s50")
    A.e("s_addc_u32 s37, s37, 0")
    A.e("s_sub_u32 s52, s36, 64")
    A.e("s_subb_u32 s53, s37, 0")
    srd(A, SRD_K, "s52", "s53", 1048576+64)
    A.e("s_add_u32 s38, s38, s50")
    A.e("s_addc_u32 s39, s39, 0")
    A.e("s_sub_u32 s52, s38, 32768")
    A.e("s_subb_u32 s53, s39, 0")
    srd(A, SRD_V, "s52", "s53", 1048576+32768)
    A.e("s_lshl_b32 s50, s44, 10")
    A.e("s_add_u32 s40, s40, s50")
    A.e("s_addc_u32 s41, s41, 0")
    A.e(f"s_sub_u32 s51, {448*8192}, s50")
    srd(A, SRD_WQ, "s40", "s41", "s51")
    A.e("s_mul_i32 s50, s45, 28672")
    A.e(f"s_add_u32 s50, s50, {Y_OFF}")
    A.e("s_add_u32 s52, s60, s50")
    A.e("s_addc_u32 s53, s61, 0")
    srd(A, SRD_Y, "s52", "s53", 28672)
    srd(A, SRD_M, "s60", "s61", 3584)
    YR = 16
    TG = 64
    TU = 96
    def yreg(f): return YR + 4*(f % 12)
    vm = Vm()
    def y_load(f):
        vm.issue(('y', f))
        return [f"s_mov_b32 s50, {(f//4)*4096}",
                f"buffer_load_dwordx4 {v(yreg(f),4)}, v12, s[{SRD_Y}:{SRD_Y+3}], s50 offen offset:{(f%4)*1024}"]
    def wslot(s): return (s+2) % 4
    def wq_dma(s):
        out = []
        for grp in range(2):
            out.append(f"s_add_u32 m0, s48, {wslot(s)*32768 + grp*4096}")
            out.append(f"s_add_u32 s50, s49, {s*262144 + grp*65536}")
            for n in range(4):
                out.append(f"buffer_load_dwordx4 v{2+n}, s[{SRD_WQ}:{SRD_WQ+3}], s50 offen offset:{n*1024} lds")
                vm.issue(('wq', s))
        return out
    for f in range(4):
        for t in y_load(f): A.e(t)
    A.e(f"s_lshl_b32 s50, s{S_W}, 10")
    A.e(f"s_add_u32 m0, s50, {MODL}")
    A.e("s_nop 0")
    A.e(f"buffer_load_dwordx4 v12, s[{SRD_M}:{SRD_M+3}], s50 offen lds")
    vm.issue('mod')
    for t in wq_dma(0): A.e(t)
    for s_ in (1, 2):
        for f in (2*s_+2, 2*s_+3):
            for t in y_load(f): A.e(t)
        for t in wq_dma(s_): A.e(t)
    lg = Lgkm(A)
    def ln_ops(f):
        b = TG + 16*(f & 1)
        rd = [(('m', f, 0), f"ds_read_b128 {v(b,4)}, v13 offset:{1792+f*64}"),
              (('m', f, 1), f"ds_read_b128 {v(b+4,4)}, v13 offset:{1792+f*64+32}"),
              (('m', f, 2), f"ds_read_b128 {v(b+8,4)}, v13 offset:{f*64}"),
              (('m', f, 3), f"ds_read_b128 {v(b+12,4)}, v13 offset:{f*64+32}")]
        tu = TU + 8*(f & 1)
        va = []
        for d in range(4):
            r = yreg(f)+d
            va.append(f"v_lshlrev_b32 v{tu+2*d}, 16, v{r}")
            va.append(f"v_and_b32 v{tu+2*d+1}, 0xffff0000, v{r}")
        vb = []
        for d in range(4):
            vb.append(f"v_pk_fma_f32 {v(tu+2*d,2)}, {v(tu+2*d,2)}, {v(b+2*d,2)}, {v(b+8+2*d,2)}")
        for d in range(4):
            vb.append(f"v_cvt_pk_bf16_f32 v{yreg(f)+d}, v{tu+2*d}, v{tu+2*d+1}")
        return rd, va, vb
    w = vm.need({('y', 0), ('y', 1), 'mod', ('wq', 0)})
    A.e(w)
    A.e("s_barrier")
    ST.stamp()
    for f in (0, 1):
        rd, va, vb = ln_ops(f)
        for t, txt in rd: A.e(txt); lg.issue(t)
        for txt in va: A.e(txt)
        A.e(lg.need({('m', f, 3)}))
        for txt in vb: A.e(txt)
    QL = 4
    def q_reads(s, p):
        if p >= 16:
            s, p = s+1, p-16
            if s >= 14: return []
        db, ks = p >> 1, p & 1
        sl = wslot(s)
        o = []
        for u in range(2):
            off = (sl & 1)*32768 + ks*8192 + u*4096 + (db >> 1)*256
            o.append((('q', s, p, u), f"ds_read_b64_tr_b16 {a(AV+4*(p % NRING)+2*u,2)}, v{WQR[sl >> 1][db & 1]} offset:{off}"))
        return o
    for p in range(QL):
        for t, txt in q_reads(0, p):
            A.e(txt); lg.issue(t)
    def k_dma(blk):
        out = [f"s_add_u32 m0, s{S_M0K}, {(blk % 4)*KSLOT}", f"s_mov_b32 s50, {blk*16384}"]
        for n in range(4):
            out.append(f"buffer_load_dwordx4 v{VKD2[n]}, s[{SRD_K}:{SRD_K+3}], s50 offen offset:{n*KPIECE} lds")
            vm.issue(('k', blk))
        return out
    def v_dma(blk):
        out = [f"s_add_u32 m0, s{S_M0V}, {(blk % 4)*VSLOT}", f"s_mov_b32 s50, {blk*16384+32768}"]
        for n in range(4):
            out.append(f"buffer_load_dwordx4 v{VVD2[n & 1]}, s[{SRD_V}:{SRD_V+3}], s50 offen offset:{n*1024} lds")
            vm.issue(('v', blk))
        return out
    VKD2 = [112, 113, 114, 115]
    VVD2 = [116, 117]
    def kv_addr_setup():
        o = []
        e = o.append
        e("v_lshrrev_b32 v118, 5, v1")
        e("v_and_b32 v119, 31, v1")
        e("v_lshlrev_b32 v117, 3, v118")
        e("v_xor_b32 v119, v119, v117")
        e("v_lshlrev_b32 v119, 4, v119")
        e("v_lshl_add_u32 v119, v118, 9, v119")
        e(f"s_lshl_b32 s51, s{S_W}, 12")
        e("s_add_u32 s54, s51, 64")
        e(f"v_add_u32 v{VKD2[0]}, s54, v119")
        for n in range(1, 4):
            e(f"v_subrev_u32 v{VKD2[n]}, {16*n}, v{VKD2[0]}")
        e("v_bfe_u32 v118, v1, 2, 1")
        e("v_bfe_u32 v119, v1, 3, 1")
        e("v_and_b32 v117, 3, v1")
        e("v_lshlrev_b32 v117, 4, v117")
        e("v_lshl_add_u32 v117, v119, 9, v117")
        e("v_lshrrev_b32 v119, 4, v1")
        e("v_lshl_add_u32 v117, v119, 7, v117")
        e("v_add_u32 v117, s51, v117")
        e(f"v_lshl_add_u32 v{VVD2[0]}, v118, 6, v117")
        e("v_xor_b32 v118, 1, v118")
        e(f"v_lshl_add_u32 v{VVD2[1]}, v118, 6, v117")
        e(f"s_add_u32 s{S_M0V}, s51, {VBASE}")
        e(f"s_mul_i32 s{S_M0K}, s{S_W}, {4*KPIECE}")
        return o
    for t in kv_addr_setup(): A.e(t)
    for s_ in range(14):
        gaps = [[] for _ in range(16)]
        needs = set()
        if s_+1 < 14: needs |= {('wq', s_+1), ('y', 2*s_+2), ('y', 2*s_+3)}
        w = vm.need(needs) if needs else None
        if s_ < 13 or True:
            gaps[0] += ([w] if w else []) + ["s_barrier"]
        fill = []
        for f in (2*s_+8, 2*s_+9):
            if f < 28: fill += y_load(f)
        if s_+3 < 14: fill += wq_dma(s_+3)
        if s_ == 12:
            for blk in (0, 1, 2): fill += k_dma(blk)
        if s_ == 13:
            fill += k_dma(3) + v_dma(0)
        n = len(fill)
        for i, t in enumerate(fill):
            gaps[1 + (i*14)//max(n, 1)].append(t)
        lnseq = []
        if s_+1 < 14:
            r0, a0, b0 = ln_ops(2*s_+2)
            r1, a1, b1 = ln_ops(2*s_+3)
            lnseq = [('rd', r0), ('v', a0), ('rd', r1), ('need', 2*s_+2), ('v', b0), ('v', a1), ('need', 2*s_+3), ('v', b1)]
        items = []
        for kind, x in lnseq:
            if kind == 'rd':
                for t, txt in x: items.append(('rd', t, txt))
            elif kind == 'v':
                for txt in x: items.append(('v', None, txt))
            else:
                items.append(('need', x, None))
        lgaps = [[] for _ in range(16)]
        for i, it in enumerate(items):
            lgaps[1 + (i*14)//max(len(items), 1)].append(it)
        for p in range(16):
            w2 = lg.need({('q', s_, p, 0), ('q', s_, p, 1)})
            if w2: A.e(w2)
            db, ks = p >> 1, p & 1
            acc = v(O0+16*db, 16)
            first = (s_ == 0 and ks == 0)
            A.e(mfma(acc, a(AV+4*(p % NRING), 4), v(yreg(2*s_+ks), 4), "0" if first else acc))
            for t, txt in q_reads(s_, p+QL):
                A.e(txt); lg.issue(t)
            for txt in gaps[p]: A.e(txt)
            for kind, t, txt in lgaps[p]:
                if kind == 'rd':
                    A.e(txt); lg.issue(t)
                elif kind == 'v':
                    A.e(txt)
                else:
                    w3 = lg.need({('m', t, 3)})
                    if w3: A.e(w3)
    ST.stamp()
    A.e("s_barrier")
    for t in v_dma(1): A.e(t)
    for n in range(4): A.e(f"v_mov_b32 v{VKD[n]}, v{VKD2[n]}")
    for n in range(2): A.e(f"v_mov_b32 v{VVD[n]}, v{VVD2[n]}")
    A.e("v_bfe_u32 v14, v1, 1, 4")
    A.e(f"v_mul_u32_u24 v14, {KPIECE}, v14")
    A.e("v_and_b32 v15, 1, v1")
    A.e("v_lshl_add_u32 v14, v15, 9, v14")
    A.e("v_lshrrev_b32 v2, 5, v1")
    A.e("v_lshl_add_u32 v14, v2, 4, v14")
    A.e("v_lshlrev_b32 v15, 7, v15")
    A.e(f"v_add_u32 v{VKR[0]}, v14, v15")
    A.e(f"v_sub_u32 v{VKR[1]}, v14, v15")
    tr_bases(VVR, False, VBASE, 16, 17, 18)
    for db in range(8):
        for r in range(8):
            A.e(f"v_cvt_pk_bf16_f32 v{T_+(r & 3)}, v{O0+16*db+2*r}, v{O0+16*db+2*r+1}")
            A.e(f"v_accvgpr_write_b32 a{AQ+8*db+r}, v{T_+(r & 3)}")
    A.e(vm.need({('k', 0), ('k', 1)}))
    A.e("s_barrier")
    lg = Lgkm(A)
    seq = [(b, ks) for b in range(2) for ks in range(16)]
    KL = 4
    for i in range(KL):
        b, ks = seq[i]
        A.e(kread(b, ks, i % NRING)); lg.issue(i)
    zero = [f"v_mov_b32 v{O0+r}, 0" for r in range(128)]
    for i, (b, ks) in enumerate(seq):
        w = lg.need({i})
        if w: A.e(w)
        A.e(mfma(v(S_[b], 16), a(AK+4*(i % NRING), 4), a(AQ+4*ks, 4), "0" if ks == 0 else v(S_[b], 16)))
        if i+KL < 32:
            b2, ks2 = seq[i+KL]
            A.e(kread(b2, ks2, (i+KL) % NRING)); lg.issue(i+KL)
        for t in zero[4*i:4*i+4]: A.e(t)
    A.e("s_barrier")
    VKD2[:] = VKD; VVD2[:] = VVD
    for t in v_dma(2): A.e(t)
    for t in k_dma(4): A.e(t)
    A.e(f"s_mov_b32 s{S_KOFF}, {5*16384}")
    A.e(f"s_mov_b32 s{S_THR}, {f2u(2.0**(THR_LOG2-OPT['bias'])):#x}")
    A.e("s_nop 7")
    t0, t1 = T_, T_+1
    A.e(f"v_max3_f32 v{t0}, v{S_[0]}, v{S_[0]+1}, v{S_[0]+2}")
    allS = [S_[0]+j for j in range(3, 16)] + [S_[1]+j for j in range(16)]
    for j in range(0, len(allS)-1, 2):
        A.e(f"v_max3_f32 v{t0}, v{t0}, v{allS[j]}, v{allS[j+1]}")
    A.e(f"v_max_f32 v{t0}, v{t0}, v{allS[-1]}")
    A.e(f"v_mov_b32 v{t1}, v{t0}")
    A.e("s_nop 1")
    A.e(f"v_permlane32_swap_b32 v{t0}, v{t1}")
    A.e("s_nop 1")
    A.e(f"v_max_f32 v{t0}, v{t0}, v{t1}")
    if OPT['bias']:
        A.e(f"v_add_f32 v{t0}, {f2u(float(OPT['bias'])):#x}, v{t0}")
    for r in range(16):
        A.e(f"v_sub_f32 v{NEGM+r}, 0, v{t0}")
    for b in range(2):
        for r in range(16):
            A.e(f"v_sub_f32 v{S_[b]+r}, v{S_[b]+r}, v{t0}")
    A.e(f"v_mov_b32 v{L_[1]}, 0")
    for c, t in softmax_ops(S_[0], P_[0], L_[1], L_[0]):
        A.e(t)
    A.e("s_waitcnt vmcnt(8)")
    A.e("s_barrier")
    ST.stamp()
    if dbg == "time": A.e("s_waitcnt lgkmcnt(0)")
    for p in range(LEAD):
        for t, txt in reads_for_pos(0, p, True, True, True, True):
            A.e(txt)
    A.e(f"s_mov_b32 s{S_CNT}, 15")
    A.raw(".p2align 6")
    A.label("K1_LOOP")
    if OPT.get('pfwo', 1):
        A.e(f"s_cmp_lg_u32 s{S_CNT}, 4")
        A.e("s_cbranch_scc1 K1_NOPF")
        A.e(f"s_mul_i32 s50, s44, {512*896}")
        A.e("s_add_u32 s56, s42, s50")
        A.e("s_addc_u32 s57, s43, 0")
        A.e("s_and_b32 s57, s57, 0xffff")
        A.e(f"s_mov_b32 s58, {512*896}")
        A.e("s_mov_b32 s59, 0x00020000")
        A.e("s_lshr_b32 s50, s2, 3")
        A.e("s_mul_i32 s50, s50, 14336")
        A.e("v_lshlrev_b32 v14, 7, v0")
        A.e("v_min_u32 v14, 14208, v14")
        A.e("buffer_load_dword v15, v14, s[56:59], s50 offen")
        A.label("K1_NOPF")
    for ph in range(4):
        iteration(A, ph, f"M{ph}")
    A.e(f"s_sub_u32 s{S_CNT}, s{S_CNT}, 1")
    A.e(f"s_cmp_lg_u32 s{S_CNT}, 0")
    A.e("s_cbranch_scc1 K1_LOOP")
    if dbg == "time":
        ST.stamp()
    A.e(f"s_mul_i32 s50, s44, {512*896}")
    A.e("s_add_u32 s42, s42, s50")
    A.e("s_addc_u32 s43, s43, 0")
    srd(A, SRD_WO, "s42", "s43", 512*896)
    GOFF = 34
    for n in range(7):
        A.e(f"s_mul_i32 s50, s{S_W}, 7")
        A.e(f"s_add_u32 s50, s50, {n}")
        A.e("s_cmp_ge_u32 s50, 14")
        A.e("s_cselect_b32 s51, 14, 0")
        A.e(f"s_cselect_b32 s52, {16*896}, 0")
        A.e("s_sub_u32 s50, s50, s51")
        A.e("s_and_b32 s51, s50, 1")
        A.e(f"s_mul_i32 s51, s51, {8*896}")
        A.e("s_lshr_b32 s50, s50, 1")
        A.e("s_lshl_b32 s50, s50, 7")
        A.e("s_add_u32 s50, s50, s51")
        A.e(f"s_add_u32 s{GOFF+n}, s50, s52")
    A.e(f"s_mul_i32 s41, s{S_W}, 7168")
    A.e("v_lshrrev_b32 v16, 3, v1")
    A.e("v_mul_u32_u24 v14, 896, v16")
    A.e("v_bfe_u32 v16, v1, 4, 1")
    A.e("v_bfe_u32 v17, v1, 2, 1")
    A.e("v_xor_b32 v16, v16, v17")
    A.e("v_lshl_add_u32 v14, v16, 6, v14")
    A.e("v_and_b32 v16, 3, v1")
    A.e("v_lshl_add_u32 v14, v16, 4, v14")
    vme = Vm()
    def wo_dma(t):
        out = []
        for n in range(7):
            out.append(f"s_add_u32 m0, s41, {WSLOT[t % 5] + n*1024}")
            out.append(f"s_add_u32 s50, s{GOFF+n}, {t*32*896}")
            out.append(f"buffer_load_dwordx4 v14, s[{SRD_WO}:{SRD_WO+3}], s50 offen lds")
            vme.issue(('wo', t))
        return out
    def spread(lst, lo, hi):
        d = {}
        trip = [lst[i:i+3] for i in range(0, len(lst), 3)]
        for i, tr3 in enumerate(trip):
            g = lo + (i*(hi-lo+1))//len(trip)
            d.setdefault(g, []).extend(tr3)
        return d
    iteration(A, 0, "T0", dma_k=False, dma_v=True, vmwait=8)
    iteration(A, 1, "T1", dma_k=False, dma_v=False, vmwait=4, nxt_qk=False)
    iteration(A, 2, "T2", do_qk=False, dma_k=False, dma_v=False, vmwait=0, nxt_qk=False,
              extra=spread(wo_dma(0) + wo_dma(1)[:12], 1, 30))
    vme.q = [('wo', 0)]*7 + [('wo', 1)]*4
    rest1 = []
    for n in range(4, 7):
        rest1 += [f"s_add_u32 m0, s41, {WSLOT[1] + n*1024}", f"s_add_u32 s50, s{GOFF+n}, {32*896}",
                  f"buffer_load_dwordx4 v14, s[{SRD_WO}:{SRD_WO+3}], s50 offen lds"]
        vme.issue(('wo', 1))
    iteration(A, 3, "T3", do_qk=False, do_sm=False, dma_k=False, dma_v=False, nxt_pv=False, nxt_qk=False, barrier=False,
              extra=spread(rest1 + wo_dma(2), 1, 30))
    ST.stamp()
    Lf = L_[1]
    OP = 64
    A.e(f"v_mov_b32 v{t0}, v{Lf}")
    A.e(f"v_mov_b32 v{t1}, v{Lf}")
    A.e("s_nop 1")
    A.e(f"v_permlane32_swap_b32 v{t0}, v{t1}")
    A.e("s_nop 1")
    A.e(f"v_add_f32 v{t0}, v{t0}, v{t1}")
    A.e(f"v_rcp_f32 v{t0}, v{t0}")
    A.e("s_lshl_b32 s50, s46, 1")
    A.e("s_add_u32 s50, s50, s47")
    A.e("s_lshl_b32 s50, s50, 14")
    A.e(f"s_add_u32 s50, s50, {VBASE}")
    A.e("v_lshlrev_b32 v12, 4, v1")
    A.e("v_add_u32 v15, s50, v12")
    A.e("s_barrier")
    for fr in range(16):
        base = O0 + 8*fr
        for r in range(8):
            A.e(f"v_mul_f32 v{base+r}, v{base+r}, v{t0}")
        for r in range(4):
            A.e(f"v_cvt_pk_bf16_f32 v{OP+4*fr+r}, v{base+2*r}, v{base+2*r+1}")
        A.e(f"ds_write_b128 v15, {v(OP+4*fr,4)} offset:{fr*1024}")
    A.e("s_waitcnt lgkmcnt(0)")
    A.e("s_barrier")
    A.e("s_lshl_b32 s50, s46, 15")
    A.e(f"s_add_u32 s50, s50, {VBASE}")
    A.e("v_add_u32 v15, s50, v12")
    for kk in range(32):
        A.e(f"ds_read_b128 {a(4*kk,4)}, v15 offset:{kk*1024}")
    A.e("v_lshrrev_b32 v16, 5, v1")
    A.e("v_lshlrev_b32 v17, 9, v16")
    A.e("v_bfe_u32 v16, v1, 2, 2")
    A.e("v_lshl_add_u32 v17, v16, 7, v17")
    A.e("v_bfe_u32 v16, v1, 4, 1")
    A.e("v_lshl_add_u32 v17, v16, 5, v17")
    A.e("v_and_b32 v16, 3, v1")
    A.e("v_lshl_add_u32 v17, v16, 3, v17")
    A.e("v_bfe_u32 v16, v1, 3, 1")
    A.e("v_xor_b32 v18, s47, v16")
    A.e("v_lshl_add_u32 v2, v18, 6, v17")
    A.e("v_xor_b32 v18, 1, v18")
    A.e("v_lshl_add_u32 v3, v18, 6, v17")
    A.e(f"s_mul_i32 s50, s47, {3*2048}")
    A.e(f"s_mul_i32 s51, s47, {4*2048}")
    A.e("v_add_u32 v2, s50, v2")
    A.e("v_add_u32 v3, s51, v3")
    A.e(f"v_add_u32 v4, {WSLOT[2]}, v2")
    A.e(f"v_add_u32 v5, {WSLOT[2]}, v3")
    A.e(f"v_add_u32 v6, {WSLOT[3]}, v2")
    A.e(f"v_add_u32 v7, {WSLOT[3]}, v3")
    A.e("s_waitcnt lgkmcnt(0)")
    A.e("s_barrier")
    for t in wo_dma(3) + wo_dma(4): A.e(t)
    def wbase(slot, c):
        e = c & 1
        if slot in (0, 1): return (2+e, WSLOT[slot])
        if slot == 2: return (4+e, 0)
        return (6+e, WSLOT[slot]-WSLOT[3])
    ARG = AV
    ARG = 128
    def o_reads(t, p):
        if p >= 14:
            t, p = t+1, p-14
            if t >= 16: return []
        ksl, c = p // 7, p % 7
        b, off = wbase(t % 5, c)
        o = []
        for u in range(2):
            o.append((('o', t, p, u), f"ds_read_b64_tr_b16 {a(ARG+4*((14*t+p) % NRING)+2*u,2)}, v{b} offset:{off + ksl*14336 + (c >> 1)*2048 + u*1024}"))
        return o
    lg = Lgkm(A)
    OL = 4
    A.e(vme.need({('wo', 0)}))
    A.e("s_barrier")
    for p in range(OL):
        for t_, txt in o_reads(0, p): A.e(txt); lg.issue(t_)
    ACC = O0
    for t in range(16):
        gaps = [[] for _ in range(14)]
        if t+1 < 16:
            w = vme.need({('wo', t+1)})
            gaps[0] += ([w] if w else []) + ["s_barrier"]
        if t >= 1 and t+4 < 16:
            d = wo_dma(t+4)
            sp = spread(d, 1, 12)
            for g_, l_ in sp.items(): gaps[g_] += l_
        for p in range(14):
            w2 = lg.need({('o', t, p, 0), ('o', t, p, 1)})
            if w2: A.e(w2)
            ksl, c = p // 7, p % 7
            acc = v(ACC+16*c, 16)
            first = (t == 0 and ksl == 0)
            A.e(mfma(acc, a(ARG+4*((14*t+p) % NRING), 4), a(4*(2*t+ksl), 4), "0" if first else acc))
            for t_, txt in o_reads(t, p+OL): A.e(txt); lg.issue(t_)
            for txt in gaps[p]: A.e(txt)
    ST.stamp()
    A.e("s_lshl_b32 s50, s44, 6")
    A.e("s_add_u32 s50, s50, s45")
    A.e("s_mul_i32 s50, s50, 28672")
    A.e(f"s_mul_i32 s51, s47, {14*1024}")
    A.e("s_add_u32 s50, s50, s51")
    A.e(f"s_add_u32 s50, s50, {PART_OFF}")
    A.e("s_add_u32 s52, s60, s50")
    A.e("s_addc_u32 s53, s61, 0")
    srd(A, SRD_Y, "s52", "s53", 14*1024)
    A.e("s_nop 7")
    for fr in range(14):
        dst = OP + 4*(fr % 16)
        for r in range(4):
            A.e(f"v_cvt_pk_bf16_f32 v{dst+r}, v{ACC+8*fr+2*r}, v{ACC+8*fr+2*r+1}")
        if fr % 4 == 0:
            A.e(f"s_mov_b32 s50, {fr*1024}")
        A.e(f"buffer_store_dwordx4 {v(dst,4)}, v12, s[{SRD_Y}:{SRD_Y+3}], s50 offen offset:{(fr%4)*1024}")
    ST.finish("K1_END")
    A.label("K1_END")
    A.e("s_endpgm")
    if not OPT['no_sm']:
        for ph in range(4):
            rare_path(A, ph, f"M{ph}")
        rare_path(A, 0, "T0")
        rare_path(A, 1, "T1")
        rare_path(A, 2, "T2", do_qk=False)
    return name
```

```python
from asmlib import *
from layout import *
from k1 import Lgkm, mfma, f2u

DBG = False
GD = 10
NEW = False
PFW2 = True
def gen_gemm64(A, kind):
    if kind == 'k2':
        name, NK, WARG, BOFF, BBYTES, WROWS = "k2_oproj_kernel", 256, 32, OF_OFF, OF_BYTES, 4096
    else:
        name, NK, WARG, BOFF, BBYTES, WROWS = "k4_mlp2_kernel", 112, 56, HF_OFF, HF_BYTES, 1792
    P = kind.upper()
    NS = NK // 4
    RS = 896
    D = GD
    R = 16
    RB = 16
    ACC = 16
    BR = 128
    AR = 80
    XR = 96
    GA = 104
    kernel_begin(A, name)
    A.e("s_cmp_ge_u32 s2, 224")
    A.e(f"s_cbranch_scc1 {P}_END")
    ST = Stamps(A, DBG)
    ST.stamp()
    A.e(f"s_load_dwordx2 s[36:37], s[0:1], {WARG}")
    A.e("s_load_dwordx2 s[38:39], s[0:1], 96")
    A.e(f"s_load_dwordx2 s[40:41], s[0:1], {0 if kind == 'k2' else 80}")
    A.e("v_and_b32 v1, 63, v0")
    A.e("v_lshrrev_b32 v2, 6, v0")
    A.e("s_nop 0")
    A.e("v_readfirstlane_b32 s28, v2")
    if NEW:
        A.e("s_and_b32 s29, s2, 7")
        A.e("s_lshr_b32 s30, s2, 3")
        A.e("s_lshl_b32 s29, s29, 2")
        A.e("s_and_b32 s31, s30, 3")
        A.e("s_add_u32 s29, s29, s31")
        A.e("s_lshr_b32 s30, s30, 2")
    else:
        A.e("s_and_b32 s29, s2, 31")
        A.e("s_lshr_b32 s30, s2, 5")
    A.e("v_lshrrev_b32 v2, 3, v1")
    A.e(f"v_mul_u32_u24 v4, {RS}, v2")
    A.e("v_bfe_u32 v3, v1, 4, 1")
    A.e("v_bfe_u32 v2, v1, 2, 1")
    A.e("v_xor_b32 v3, v3, v2")
    A.e("v_lshl_add_u32 v4, v3, 6, v4")
    A.e("v_and_b32 v3, 3, v1")
    A.e("v_lshl_add_u32 v4, v3, 4, v4")
    A.e(f"v_add_u32 v5, {8*RS-1024}, v4")
    A.e("v_lshlrev_b32 v6, 4, v1")
    A.e("v_add_u32 v7, %d, v6" % (NK*1024))
    A.e("v_lshrrev_b32 v2, 5, v1")
    A.e("v_lshlrev_b32 v8, 9, v2")
    A.e("v_bfe_u32 v3, v1, 2, 2")
    A.e("v_lshl_add_u32 v8, v3, 7, v8")
    A.e("v_bfe_u32 v3, v1, 4, 1")
    A.e("v_lshl_add_u32 v8, v3, 5, v8")
    A.e("v_and_b32 v3, 3, v1")
    A.e("v_lshl_add_u32 v8, v3, 3, v8")
    A.e(f"s_mul_i32 s31, s28, {R*2048}")
    A.e("v_add_u32 v8, s31, v8")
    A.e("v_bfe_u32 v3, v1, 3, 1")
    A.e("v_xor_b32 v2, 1, v3")
    A.e("v_lshl_add_u32 v15, v2, 6, v8")
    A.e("v_lshl_add_u32 v8, v3, 6, v8")
    A.e("s_waitcnt lgkmcnt(0)")
    A.e("s_lshl_b32 s33, s30, 7")
    A.e("s_add_u32 s36, s36, s33")
    A.e("s_addc_u32 s37, s37, 0")
    A.e(f"s_sub_u32 s34, {WROWS*RS}, s33")
    srd(A, 8, "s36", "s37", "s34")
    A.e(f"s_mul_i32 s33, s29, {2*NK*1024}")
    A.e(f"s_mul_i32 s34, s28, {NS*1024}")
    A.e("s_add_u32 s33, s33, s34")
    A.e(f"s_add_u32 s33, s33, {BOFF}")
    A.e("s_add_u32 s42, s38, s33")
    A.e("s_addc_u32 s43, s39, 0")
    srd(A, 12, "s42", "s43", (NK+NS)*1024)
    A.e(f"s_mul_i32 s32, s28, {NS*16*RS}")
    def vm(st):
        o = [f"s_add_u32 m0, s31, {(st % R)*2048}",
             f"s_add_u32 s35, s32, {st*16*RS}",
             f"buffer_load_dwordx4 v4, s[8:11], s35 offen lds",
             f"buffer_load_dwordx4 v5, s[8:11], s35 offen offset:1024 lds",
             f"s_mov_b32 s44, {(st//4)*4096}",
             f"buffer_load_dwordx4 {v(BR+8*(st % RB),4)}, v6, s[12:15], s44 offen offset:{(st%4)*1024}",
             f"buffer_load_dwordx4 {v(BR+8*(st % RB)+4,4)}, v7, s[12:15], s44 offen offset:{(st%4)*1024}"]
        return o
    A.e("s_and_b32 s45, s28, 1")
    A.e("s_lshr_b32 s46, s28, 1")
    A.e("s_lshl_b32 s47, s29, 1")
    A.e("s_add_u32 s47, s47, s46")
    A.e("s_lshl_b32 s48, s30, 1")
    A.e("s_add_u32 s48, s48, s45")
    sec = 2 if kind == 'k2' else 5
    srd(A, 16, "s38", "s39", MOD_BYTES)
    A.e("v_lshrrev_b32 v2, 5, v1")
    A.e("v_lshlrev_b32 v9, 4, v2")
    A.e("s_lshl_b32 s49, s48, 7")
    A.e(f"s_add_u32 s49, s49, {sec*1792}")
    for aa in range(4):
        A.e(f"buffer_load_dwordx4 {v(GA+4*aa,4)}, v9, s[16:19], s49 offen offset:{32*aa}")
    if kind == 'k2':
        srd(A, 20, "s40", "s41", X_BYTES)
        A.e("v_and_b32 v3, 31, v1")
        A.e(f"v_mul_u32_u24 v10, 896, v3")
        A.e("v_lshl_add_u32 v10, v2, 3, v10")
        A.e(f"s_mul_i32 s50, s47, {32*896}")
        A.e("s_lshl_b32 s51, s48, 6")
        A.e("s_add_u32 s50, s50, s51")
        for aa in range(4):
            A.e(f"buffer_load_dwordx2 {v(XR+2*aa,2)}, v10, s[20:23], s50 offen offset:{16*aa}")
        npre = 8
    else:
        A.e(f"s_add_u32 s42, s38, {X1_OFF}")
        A.e("s_addc_u32 s43, s39, 0")
        srd(A, 20, "s42", "s43", X1_BYTES)
        A.e(f"s_mul_i32 s50, s47, {28*1024}")
        A.e("s_lshl_b32 s51, s48, 11")
        A.e("s_add_u32 s50, s50, s51")
        for hf in range(2):
            A.e(f"buffer_load_dwordx4 {v(XR+4*hf,4)}, v6, s[20:23], s50 offen offset:{1024*hf}")
        npre = 6
    for st in range(D):
        for t in vm(st): A.e(t)
    def tr(st):
        o = []
        for cb in range(2):
            for u in range(2):
                o.append(f"ds_read_b64_tr_b16 {v(AR+8*(st & 1)+4*cb+2*u,2)}, {'v15' if cb else 'v8'} offset:{(st % R)*2048+u*1024}")
        return o
    ST.stamp()
    A.e(f"s_waitcnt vmcnt({4*(D-1)})")
    ST.stamp()
    for t in tr(0): A.e(t)
    for st in range(NS):
        if st+1 < NS:
            issued = min(NS, st+D)
            A.e(f"s_waitcnt vmcnt({4*(issued-(st+2))})")
            for t in tr(st+1): A.e(t)
        vmo = vm(st+D) if st+D < NS else []
        A.e(f"s_waitcnt lgkmcnt({4 if st+1 < NS else 0})")
        k = 0
        for cb in range(2):
            for rb in range(2):
                acc = v(ACC+16*(2*cb+rb), 16)
                A.e(mfma(acc, v(AR+8*(st & 1)+4*cb, 4), v(BR+8*(st % RB)+4*rb, 4), "0" if st == 0 else acc))
                for t in vmo[2*k:2*k+2]: A.e(t)
                k += 1
    ST.stamp()
    A.e("s_nop 15")
    A.e("s_barrier")
    A.e("s_lshl_b32 s33, s28, 12")
    A.e("v_add_u32 v11, s33, v6")
    for b in range(4):
        ai = 2*(b & 1) + (b >> 1)
        for q4 in range(4):
            A.e(f"ds_write_b128 v11, {v(ACC+16*ai+4*q4,4)} offset:{b*16384+q4*1024}")
    A.e("s_waitcnt lgkmcnt(0)")
    A.e("s_barrier")
    A.e("s_lshl_b32 s33, s28, 14")
    A.e("v_add_u32 v11, s33, v6")
    for src in range(4):
        for q4 in range(4):
            A.e(f"ds_read_b128 {v(ACC+16*src+4*q4,4)}, v11 offset:{src*4096+q4*1024}")
    A.e("s_waitcnt lgkmcnt(0)")
    for r in range(16):
        A.e(f"v_add_f32 v{ACC+r}, v{ACC+r}, v{ACC+16+r}")
        A.e(f"v_add_f32 v{ACC+32+r}, v{ACC+32+r}, v{ACC+48+r}")
    for r in range(16):
        A.e(f"v_add_f32 v{ACC+r}, v{ACC+r}, v{ACC+32+r}")
    for d in range(8):
        A.e(f"v_lshlrev_b32 v{BR+2*d}, 16, v{XR+d}")
        A.e(f"v_and_b32 v{BR+2*d+1}, 0xffff0000, v{XR+d}")
    for r in range(16):
        A.e(f"v_fma_f32 v{ACC+r}, v{ACC+r}, v{GA+r}, v{BR+r}")
    for d in range(8):
        A.e(f"v_cvt_pk_bf16_f32 v{AR+d}, v{ACC+2*d}, v{ACC+2*d+1}")
    if kind == 'k2':
        A.e(f"s_add_u32 s42, s38, {X1_OFF}")
        A.e("s_addc_u32 s43, s39, 0")
        srd(A, 20, "s42", "s43", X1_BYTES)
        A.e(f"s_mul_i32 s50, s47, {28*1024}")
        A.e("s_lshl_b32 s51, s48, 11")
        A.e("s_add_u32 s50, s50, s51")
        for hf in range(2):
            A.e(f"buffer_store_dwordx4 {v(AR+4*hf,4)}, v6, s[20:23], s50 offen offset:{1024*hf}")
        for d in range(8):
            A.e(f"v_lshlrev_b32 v{BR+2*d}, 16, v{AR+d}")
            A.e(f"v_and_b32 v{BR+2*d+1}, 0xffff0000, v{AR+d}")
        A.e(f"v_add_f32 v12, v{BR}, v{BR+1}")
        for r in range(2, 16):
            A.e(f"v_add_f32 v12, v12, v{BR+r}")
        A.e("v_mov_b32 v13, v12")
        A.e("s_nop 1")
        A.e("v_permlane32_swap_b32 v12, v13")
        A.e("s_nop 1")
        A.e("v_add_f32 v12, v12, v13")
        A.e(f"v_mul_f32 v12, {f2u(1/32.):#x}, v12")
        for r in range(16):
            A.e(f"v_sub_f32 v{BR+r}, v{BR+r}, v12")
        A.e(f"v_mul_f32 v13, v{BR}, v{BR}")
        for r in range(1, 16):
            A.e(f"v_fmac_f32 v13, v{BR+r}, v{BR+r}")
        A.e("v_mov_b32 v14, v13")
        A.e("s_nop 1")
        A.e("v_permlane32_swap_b32 v13, v14")
        A.e("s_nop 1")
        A.e("v_add_f32 v13, v13, v14")
        A.e(f"s_add_u32 s42, s38, {ST_OFF}")
        A.e("s_addc_u32 s43, s39, 0")
        srd(A, 24, "s42", "s43", ST_BYTES)
        A.e("v_and_b32 v3, 31, v1")
        A.e("v_mul_u32_u24 v10, 112, v3")
        A.e("v_lshrrev_b32 v2, 5, v1")
        A.e("v_lshl_add_u32 v10, v2, 30, v10")
        A.e(f"s_mul_i32 s50, s47, {32*112}")
        A.e("s_lshl_b32 s51, s48, 3")
        A.e("s_add_u32 s50, s50, s51")
        A.e("buffer_store_dwordx2 v[12:13], v10, s[24:27], s50 offen")
    else:
        srd(A, 20, "s40", "s41", X_BYTES)
        A.e("v_and_b32 v3, 31, v1")
        A.e("v_lshrrev_b32 v2, 5, v1")
        A.e(f"v_mul_u32_u24 v10, 896, v3")
        A.e("v_lshl_add_u32 v10, v2, 3, v10")
        A.e(f"s_mul_i32 s50, s47, {32*896}")
        A.e("s_lshl_b32 s51, s48, 6")
        A.e("s_add_u32 s50, s50, s51")
        for aa in range(4):
            A.e(f"buffer_store_dwordx2 {v(AR+2*aa,2)}, v10, s[20:23], s50 offen offset:{16*aa}")
    ST.finish(f"{P}_END")
    A.label(f"{P}_END")
    A.e("s_endpgm")
    return name, 4*R*2048

def gen_k3(A):
    name = "k3_mlp1_kernel"
    H2 = 16
    ACC = 128
    AR = 192
    TG = 224
    MODL = 114688
    kernel_begin(A, name)
    A.e("s_cmp_ge_u32 s2, 224")
    A.e("s_cbranch_scc1 K3_END")
    ST = Stamps(A, DBG)
    ST.stamp()
    A.e("s_load_dwordx2 s[36:37], s[0:1], 48")
    A.e("s_load_dwordx2 s[38:39], s[0:1], 96")
    A.e("v_and_b32 v1, 63, v0")
    A.e("v_lshrrev_b32 v2, 6, v0")
    A.e("s_nop 0")
    A.e("v_readfirstlane_b32 s28, v2")
    if NEW:
        A.e("s_and_b32 s29, s2, 7")
        A.e("s_lshr_b32 s30, s2, 3")
        A.e("s_lshl_b32 s29, s29, 1")
        A.e("s_and_b32 s31, s30, 1")
        A.e("s_add_u32 s29, s29, s31")
        A.e("s_lshr_b32 s30, s30, 1")
    else:
        A.e("s_and_b32 s29, s2, 15")
        A.e("s_lshr_b32 s30, s2, 4")
    A.e("s_lshl_b32 s47, s29, 2")
    A.e("s_add_u32 s47, s47, s28")
    A.e("v_bfe_u32 v3, v1, 3, 2")
    A.e("v_mul_u32_u24 v4, 3584, v3")
    A.e("v_lshrrev_b32 v3, 5, v1")
    A.e("v_lshl_add_u32 v4, v3, 7, v4")
    A.e("v_bfe_u32 v3, v1, 4, 1")
    A.e("v_bfe_u32 v2, v1, 2, 1")
    A.e("v_xor_b32 v3, v3, v2")
    A.e("v_lshl_add_u32 v4, v3, 6, v4")
    A.e("v_and_b32 v3, 3, v1")
    A.e("v_lshl_add_u32 v4, v3, 4, v4")
    A.e("v_lshlrev_b32 v6, 4, v1")
    A.e("v_lshrrev_b32 v2, 5, v1")
    A.e("v_lshlrev_b32 v8, 10, v2")
    A.e("v_bfe_u32 v3, v1, 2, 2")
    A.e("v_lshl_add_u32 v8, v3, 7, v8")
    A.e("v_bfe_u32 v3, v1, 4, 1")
    A.e("v_lshl_add_u32 v8, v3, 5, v8")
    A.e("v_and_b32 v3, 3, v1")
    A.e("v_lshl_add_u32 v8, v3, 3, v8")
    A.e("v_bfe_u32 v3, v1, 3, 1")
    A.e("v_xor_b32 v5, 1, v3")
    A.e("v_lshl_add_u32 v7, v5, 6, v8")
    A.e("v_lshl_add_u32 v8, v3, 6, v8")
    A.e("v_add_u32 v9, 0x10000, v8")
    A.e("v_add_u32 v5, 0x10000, v7")
    A.e("s_waitcnt lgkmcnt(0)")
    A.e("s_lshl_b32 s33, s30, 8")
    A.e("s_add_u32 s36, s36, s33")
    A.e("s_addc_u32 s37, s37, 0")
    A.e(f"s_sub_u32 s34, {448*3584}, s33")
    srd(A, 8, "s36", "s37", "s34")
    A.e(f"s_mul_i32 s33, s47, {28*1024}")
    A.e(f"s_add_u32 s33, s33, {X1_OFF}")
    A.e("s_add_u32 s42, s38, s33")
    A.e("s_addc_u32 s43, s39, 0")
    srd(A, 12, "s42", "s43", 28*1024)
    A.e(f"s_add_u32 s42, s38, {ST_OFF}")
    A.e("s_addc_u32 s43, s39, 0")
    srd(A, 16, "s42", "s43", ST_BYTES)
    A.e(f"s_add_u32 s42, s38, {3*1792}")
    A.e("s_addc_u32 s43, s39, 0")
    srd(A, 20, "s42", "s43", 3584)
    A.e("v_and_b32 v3, 31, v1")
    A.e("v_mul_u32_u24 v10, 112, v3")
    A.e("v_mul_u32_u24 v11, 56, v2")
    A.e("v_add_u32 v10, v10, v11")
    A.e(f"s_mul_i32 s50, s47, {32*112}")
    for i in range(7):
        A.e(f"buffer_load_dwordx2 {v(ACC+2*i,2)}, v10, s[16:19], s50 offen offset:{8*i}")
    A.e("s_lshl_b32 s50, s28, 10")
    A.e(f"s_add_u32 m0, s50, {MODL}")
    A.e("s_nop 0")
    A.e("buffer_load_dwordx4 v6, s[20:23], s50 offen lds")
    for ks in range(28):
        if ks % 4 == 0:
            A.e(f"s_mov_b32 s50, {ks*1024}")
        A.e(f"buffer_load_dwordx4 {v(H2+4*ks,4)}, v6, s[12:15], s50 offen offset:{(ks%4)*1024}")
    A.e(f"s_lshl_b32 s51, s28, 10")
    A.e(f"s_mul_i32 s52, s28, {4*3584}")
    for j in range(28):
        A.e(f"s_add_u32 m0, s51, {j*4096}")
        A.e(f"s_add_u32 s50, s52, {j*16*3584}")
        A.e(f"buffer_load_dwordx4 v4, s[8:11], s50 offen lds")
    ST.stamp()
    A.e("s_waitcnt vmcnt(57)")
    ST.stamp()
    A.e(f"v_add_f32 v12, v{ACC}, v{ACC+2}")
    for i in range(2, 7):
        A.e(f"v_add_f32 v12, v12, v{ACC+2*i}")
    A.e("v_mov_b32 v13, v12")
    A.e("s_nop 1")
    A.e("v_permlane32_swap_b32 v12, v13")
    A.e("s_nop 1")
    A.e("v_add_f32 v12, v12, v13")
    A.e(f"v_mul_f32 v12, {f2u(1/14.):#x}, v12")
    A.e("v_mov_b32 v13, 0")
    for i in range(7):
        A.e(f"v_sub_f32 v14, v{ACC+2*i}, v12")
        A.e(f"v_mul_f32 v14, v14, v14")
        A.e(f"v_fma_f32 v14, v14, 4.0, 0")
        A.e(f"v_fma_f32 v13, v14, 4.0, v13")
        A.e(f"v_fma_f32 v13, v14, 4.0, v13")
        A.e(f"v_add_f32 v13, v13, v{ACC+2*i+1}")
    A.e("v_mov_b32 v14, v13")
    A.e("s_nop 1")
    A.e("v_permlane32_swap_b32 v13, v14")
    A.e("s_nop 1")
    A.e("v_add_f32 v13, v13, v14")
    A.e(f"v_mul_f32 v13, {f2u(1/448.):#x}, v13")
    A.e(f"v_add_f32 v13, {f2u(1e-5):#x}, v13")
    A.e("v_rsq_f32 v12+0, v13".replace("v12+0", "v14"))
    A.e("s_nop 0")
    A.e("v_mov_b32 v15, v14")
    A.e("v_mul_f32 v12, v12, v14")
    A.e("v_sub_f32 v12, 0, v12")
    A.e("v_mov_b32 v13, v12")
    A.e("s_waitcnt vmcnt(28)")
    A.e("s_barrier")
    ST.stamp()
    A.e("v_lshrrev_b32 v2, 5, v1")
    A.e("v_lshlrev_b32 v10, 4, v2")
    A.e(f"v_add_u32 v10, {MODL}, v10")
    def mod_reads(ks):
        b = TG + 16*(ks & 1)
        return [f"ds_read_b128 {v(b,4)}, v10 offset:{1792+ks*64}",
                f"ds_read_b128 {v(b+4,4)}, v10 offset:{1792+ks*64+32}",
                f"ds_read_b128 {v(b+8,4)}, v10 offset:{ks*64}",
                f"ds_read_b128 {v(b+12,4)}, v10 offset:{ks*64+32}"]
    for t in mod_reads(0): A.e(t)
    TU = AR
    for ks in range(28):
        if ks+1 < 28:
            for t in mod_reads(ks+1): A.e(t)
            A.e("s_waitcnt lgkmcnt(4)")
        else:
            A.e("s_waitcnt lgkmcnt(0)")
        b = TG + 16*(ks & 1)
        for d in range(4):
            r = H2+4*ks+d
            A.e(f"v_lshlrev_b32 v{TU+2*d}, 16, v{r}")
            A.e(f"v_and_b32 v{TU+2*d+1}, 0xffff0000, v{r}")
        for d in range(4):
            A.e(f"v_pk_fma_f32 {v(TU+2*d,2)}, {v(TU+2*d,2)}, v[14:15], v[12:13]")
        for d in range(4):
            A.e(f"v_pk_fma_f32 {v(TU+2*d,2)}, {v(TU+2*d,2)}, {v(b+2*d,2)}, {v(b+8+2*d,2)}")
        for d in range(4):
            A.e(f"v_cvt_pk_bf16_f32 v{H2+4*ks+d}, v{TU+2*d}, v{TU+2*d+1}")
    ST.stamp()
    A.e("s_waitcnt vmcnt(0)")
    A.e("s_barrier")
    ST.stamp()
    seq = [(ks, fb) for ks in range(28) for fb in range(4)]
    def rd(i):
        ks, fb = seq[i]
        off = ks*4096 + (fb >> 1)*512
        o = []
        for u in range(2):
            oo = off + u*2048
            base = (("v8", "v7") if oo < 65536 else ("v9", "v5"))[fb & 1]
            o.append(f"ds_read_b64_tr_b16 {v(AR+4*(i % 8)+2*u,2)}, {base} offset:{oo % 65536}")
        return o
    lg = Lgkm(A)
    L = 5
    for i in range(L):
        for t in rd(i): A.e(t); lg.issue(i)
    for i, (ks, fb) in enumerate(seq):
        w = lg.need({i})
        if w: A.e(w)
        acc = v(ACC+16*fb, 16)
        A.e(mfma(acc, v(AR+4*(i % 8), 4), v(H2+4*ks, 4), "0" if ks == 0 else acc))
        if i+L < len(seq):
            for t in rd(i+L): A.e(t); lg.issue(i+L)
    A.e("s_nop 15")
    ST.stamp()
    A.e(f"s_mul_i32 s33, s47, {112*1024}")
    A.e("s_lshl_b32 s34, s30, 13")
    A.e("s_add_u32 s33, s33, s34")
    A.e(f"s_add_u32 s33, s33, {HF_OFF}")
    A.e("s_add_u32 s42, s38, s33")
    A.e("s_addc_u32 s43, s39, 0")
    srd(A, 12, "s42", "s43", 8192)
    for fr in range(8):
        dst = H2 + 4*fr
        for r in range(4):
            A.e(f"v_cvt_pk_bf16_f32 v{dst+r}, v{ACC+8*fr+2*r}, v{ACC+8*fr+2*r+1}")
        for r in range(4):
            A.e(f"v_pk_max_i16 v{dst+r}, v{dst+r}, 0")
        if fr % 4 == 0:
            A.e(f"s_mov_b32 s50, {fr*1024}")
        A.e(f"buffer_store_dwordx4 {v(dst,4)}, v6, s[12:15], s50 offen offset:{(fr%4)*1024}")
    ST.finish("K3_END", 12)
    A.label("K3_END")
    A.e("s_endpgm")
    return name, MODL + 4096

def gen_k3n(A):
    name = "k3_mlp1_kernel"
    H2 = 16
    ACC = 128
    AR = 192
    kernel_begin(A, name)
    A.e("s_cmp_ge_u32 s2, 224")
    A.e("s_cbranch_scc1 K3_END")
    ST = Stamps(A, DBG)
    ST.stamp()
    A.e("s_load_dwordx2 s[40:41], s[0:1], 56")
    A.e("s_load_dwordx2 s[36:37], s[0:1], 48")
    A.e("s_load_dwordx2 s[38:39], s[0:1], 96")
    A.e("v_and_b32 v1, 63, v0")
    A.e("v_lshrrev_b32 v2, 6, v0")
    A.e("s_nop 0")
    A.e("v_readfirstlane_b32 s28, v2")
    A.e("s_and_b32 s29, s2, 7")
    A.e("s_lshr_b32 s30, s2, 3")
    A.e("s_lshl_b32 s29, s29, 1")
    A.e("s_and_b32 s31, s30, 1")
    A.e("s_add_u32 s29, s29, s31")
    A.e("s_lshr_b32 s30, s30, 1")
    A.e("s_lshl_b32 s47, s29, 2")
    A.e("s_add_u32 s47, s47, s28")
    A.e("v_bfe_u32 v3, v1, 3, 2")
    A.e("v_mul_u32_u24 v4, 3584, v3")
    A.e("v_lshrrev_b32 v3, 5, v1")
    A.e("v_lshl_add_u32 v4, v3, 7, v4")
    A.e("v_bfe_u32 v3, v1, 4, 1")
    A.e("v_bfe_u32 v2, v1, 2, 1")
    A.e("v_xor_b32 v3, v3, v2")
    A.e("v_lshl_add_u32 v4, v3, 6, v4")
    A.e("v_and_b32 v3, 3, v1")
    A.e("v_lshl_add_u32 v4, v3, 4, v4")
    A.e("v_lshlrev_b32 v6, 4, v1")
    A.e("v_lshrrev_b32 v2, 5, v1")
    A.e("v_lshlrev_b32 v8, 10, v2")
    A.e("v_bfe_u32 v3, v1, 2, 2")
    A.e("v_lshl_add_u32 v8, v3, 7, v8")
    A.e("v_bfe_u32 v3, v1, 4, 1")
    A.e("v_lshl_add_u32 v8, v3, 5, v8")
    A.e("v_and_b32 v3, 3, v1")
    A.e("v_lshl_add_u32 v8, v3, 3, v8")
    A.e("v_bfe_u32 v3, v1, 3, 1")
    A.e("v_xor_b32 v5, 1, v3")
    A.e("v_lshl_add_u32 v7, v5, 6, v8")
    A.e("v_lshl_add_u32 v8, v3, 6, v8")
    A.e("v_add_u32 v9, 0x10000, v8")
    A.e("v_add_u32 v5, 0x10000, v7")
    A.e("s_waitcnt lgkmcnt(0)")
    A.e("s_lshl_b32 s33, s30, 8")
    A.e("s_add_u32 s36, s36, s33")
    A.e("s_addc_u32 s37, s37, 0")
    A.e(f"s_sub_u32 s34, {448*3584}, s33")
    srd(A, 8, "s36", "s37", "s34")
    A.e(f"s_mul_i32 s33, s47, {28*1024}")
    A.e(f"s_add_u32 s33, s33, {H2_OFF}")
    A.e("s_add_u32 s42, s38, s33")
    A.e("s_addc_u32 s43, s39, 0")
    srd(A, 12, "s42", "s43", 28*1024)
    from k1b import Vm
    vm = Vm()
    A.e(f"s_lshl_b32 s51, s28, 10")
    A.e(f"s_mul_i32 s52, s28, {4*3584}")
    for c in range(7):
        for j in range(4*c, 4*c+4):
            A.e(f"s_add_u32 m0, s51, {j*4096}")
            A.e(f"s_add_u32 s50, s52, {j*16*3584}")
            A.e(f"buffer_load_dwordx4 v4, s[8:11], s50 offen lds"); vm.issue(('w', c))
        A.e(f"s_mov_b32 s50, {c*4096}")
        for j in range(4):
            A.e(f"buffer_load_dwordx4 {v(H2+4*(4*c+j),4)}, v6, s[12:15], s50 offen offset:{j*1024}"); vm.issue(('h', c))
    if PFW2:
        srd(A, 16, "s40", "s41", 1792*896)
        A.e("s_lshr_b32 s33, s2, 3")
        A.e("s_mul_i32 s33, s33, 57344")
        A.e("v_lshlrev_b32 v10, 7, v0")
        A.e("buffer_load_dword v11, v10, s[16:19], s33 offen"); vm.issue('pf')
        A.e("v_add_u32 v10, 32768, v10")
        A.e("v_min_u32 v10, 57216, v10")
        A.e("buffer_load_dword v12, v10, s[16:19], s33 offen"); vm.issue('pf')
    ST.stamp()
    seq = [(ks, fb) for ks in range(28) for fb in range(4)]
    def rd(i):
        ks, fb = seq[i]
        off = ks*4096 + (fb >> 1)*512
        o = []
        for u in range(2):
            oo = off + u*2048
            base = (("v8", "v7") if oo < 65536 else ("v9", "v5"))[fb & 1]
            o.append(f"ds_read_b64_tr_b16 {v(AR+4*(i % 8)+2*u,2)}, {base} offset:{oo % 65536}")
        return o
    lg = Lgkm(A)
    L = 5
    A.e(vm.need({('w', 0), ('h', 0)}))
    A.e("s_barrier")
    ST.stamp()
    for i in range(L):
        for t in rd(i): A.e(t); lg.issue(i)
    for i, (ks, fb) in enumerate(seq):
        w = lg.need({i})
        if w: A.e(w)
        acc = v(ACC+16*fb, 16)
        A.e(mfma(acc, v(AR+4*(i % 8), 4), v(H2+4*ks, 4), "0" if ks == 0 else acc))
        if i % 16 == 10 and i//16+1 < 7:
            c = i//16+1
            A.e(vm.need({('w', c), ('h', c)}))
            A.e("s_barrier")
        if i+L < len(seq):
            for t in rd(i+L): A.e(t); lg.issue(i+L)
    A.e("s_nop 15")
    ST.stamp()
    A.e(f"s_mul_i32 s33, s47, {112*1024}")
    A.e("s_lshl_b32 s34, s30, 13")
    A.e("s_add_u32 s33, s33, s34")
    A.e(f"s_add_u32 s33, s33, {HF_OFF}")
    A.e("s_add_u32 s42, s38, s33")
    A.e("s_addc_u32 s43, s39, 0")
    srd(A, 12, "s42", "s43", 8192)
    for fr in range(8):
        dst = H2 + 4*fr
        for r in range(4):
            A.e(f"v_cvt_pk_bf16_f32 v{dst+r}, v{ACC+8*fr+2*r}, v{ACC+8*fr+2*r+1}")
        for r in range(4):
            A.e(f"v_pk_max_i16 v{dst+r}, v{dst+r}, 0")
        if fr % 4 == 0:
            A.e(f"s_mov_b32 s50, {fr*1024}")
        A.e(f"buffer_store_dwordx4 {v(dst,4)}, v6, s[12:15], s50 offen offset:{(fr%4)*1024}")
    ST.finish("K3_END", 12)
    A.label("K3_END")
    A.e("s_endpgm")
    return name, 114688
```

```python
from asmlib import *
from layout import *
from k1 import f2u
DBG = False
PF = True

def gen_k2r(A):
    name = "k2_reduce_kernel"
    kernel_begin(A, name)
    A.e("s_cmp_ge_u32 s2, 256")
    A.e("s_cbranch_scc1 K2R_END")
    A.e("s_load_dwordx2 s[38:39], s[0:1], 96")
    A.e("s_load_dwordx2 s[40:41], s[0:1], 48")
    A.e("s_and_b32 s29, s2, 7")
    A.e("s_lshr_b32 s30, s2, 3")
    A.e("s_lshl_b32 s29, s29, 3")
    A.e("s_lshr_b32 s31, s30, 2")
    A.e("s_add_u32 s29, s29, s31")
    A.e("s_and_b32 s30, s30, 3")
    A.e("v_and_b32 v2, 7, v0")
    A.e("v_bfe_u32 v3, v0, 3, 1")
    A.e("v_lshrrev_b32 v4, 4, v0")
    A.e("v_lshlrev_b32 v5, 10, v4")
    A.e("v_lshl_add_u32 v5, v3, 9, v5")
    A.e("v_lshl_add_u32 v5, v2, 4, v5")
    A.e("s_lshl_b32 s31, s30, 7")
    A.e("v_add_u32 v5, s31, v5")
    A.e("v_lshlrev_b32 v6, 6, v4")
    A.e("v_lshl_add_u32 v6, v3, 4, v6")
    A.e("s_waitcnt lgkmcnt(0)")
    A.e(f"s_add_u32 s42, s38, {PART_OFF}")
    A.e("s_addc_u32 s43, s39, 0")
    srd(A, 8, "s42", "s43", PART_BYTES)
    A.e(f"s_add_u32 s42, s38, {XF_OFF}")
    A.e("s_addc_u32 s43, s39, 0")
    srd(A, 12, "s42", "s43", XF_BYTES)
    srd(A, 16, "s38", "s39", MOD_BYTES)
    A.e("s_mul_i32 s32, s29, 28672")
    for g in range(8):
        A.e(f"s_add_u32 s33, s32, {g*64*28672}")
        A.e(f"buffer_load_dwordx4 {v(16+4*g,4)}, v5, s[8:11], s33 offen")
    A.e(f"buffer_load_dwordx4 v[48:51], v5, s[12:15], s32 offen")
    for i, sec in enumerate((2, 4, 3)):
        A.e(f"s_mov_b32 s33, {sec*1792}")
        A.e(f"buffer_load_dwordx4 {v(52+8*i,4)}, v6, s[16:19], s33 offen")
        A.e(f"buffer_load_dwordx4 {v(56+8*i,4)}, v6, s[16:19], s33 offen offset:32")
    if PF:
        srd(A, 28, "s40", "s41", 448*3584)
        A.e("s_lshr_b32 s33, s2, 3")
        A.e("s_mul_i32 s33, s33, 50176")
        A.e("v_lshlrev_b32 v11, 7, v0")
        A.e("v_min_u32 v11, 50048, v11")
        A.e("buffer_load_dword v12, v11, s[28:31], s33 offen")
    A.e(f"s_add_u32 s42, s38, {X1_OFF}")
    A.e("s_addc_u32 s43, s39, 0")
    srd(A, 20, "s42", "s43", X1_BYTES)
    A.e(f"s_add_u32 s42, s38, {H2_OFF}")
    A.e("s_addc_u32 s43, s39, 0")
    srd(A, 24, "s42", "s43", H2_BYTES)
    for g in range(8):
        A.e(f"s_waitcnt vmcnt({14-g+(1 if PF else 0)})")
        for d in range(4):
            r = 16+4*g+d
            if g == 0:
                A.e(f"v_lshlrev_b32 v{80+2*d}, 16, v{r}")
                A.e(f"v_and_b32 v{81+2*d}, 0xffff0000, v{r}")
            else:
                A.e(f"v_lshlrev_b32 v{88+2*d}, 16, v{r}")
                A.e(f"v_and_b32 v{89+2*d}, 0xffff0000, v{r}")
        if g > 0:
            for d in range(4):
                A.e(f"v_pk_add_f32 {v(80+2*d,2)}, {v(80+2*d,2)}, {v(88+2*d,2)}")
    A.e(f"s_waitcnt vmcnt({5 if PF else 4})")
    for d in range(4):
        A.e(f"v_lshlrev_b32 v{88+2*d}, 16, v{48+d}")
        A.e(f"v_and_b32 v{89+2*d}, 0xffff0000, v{48+d}")
    for d in range(4):
        A.e(f"v_pk_fma_f32 {v(80+2*d,2)}, {v(80+2*d,2)}, {v(52+2*d,2)}, {v(88+2*d,2)}")
    for d in range(4):
        A.e(f"v_cvt_pk_bf16_f32 v{16+d}, v{80+2*d}, v{81+2*d}")
    A.e("buffer_store_dwordx4 v[16:19], v5, s[20:23], s32 offen")
    for d in range(4):
        A.e(f"v_lshlrev_b32 v{80+2*d}, 16, v{16+d}")
        A.e(f"v_and_b32 v{81+2*d}, 0xffff0000, v{16+d}")
    A.e("v_lshrrev_b32 v9, 6, v0")
    A.e("v_lshlrev_b32 v7, 5, v2")
    A.e("v_lshl_add_u32 v8, v9, 2, v7")
    A.e("v_and_b32 v10, 63, v0")
    def rowsum(off):
        A.e("s_nop 1")
        A.e("v_add_f32_dpp v20, v20, v20 row_ror:8 row_mask:0xf bank_mask:0xf")
        A.e("s_nop 0")
        A.e("ds_swizzle_b32 v21, v20 offset:0x401F")
        A.e("s_waitcnt lgkmcnt(0)")
        A.e("v_add_f32 v20, v20, v21")
        A.e("v_mov_b32 v21, v20")
        A.e("s_nop 1")
        A.e("v_permlane32_swap_b32 v20, v21")
        A.e("s_nop 1")
        A.e("v_add_f32 v20, v20, v21")
        A.e("v_cmp_gt_u32 vcc, 8, v10")
        A.e("s_and_saveexec_b64 s[44:45], vcc")
        A.e(f"ds_write_b32 v8, v20 offset:{off}")
        A.e("s_mov_b64 exec, s[44:45]")
        A.e("s_waitcnt lgkmcnt(0)")
        A.e("s_barrier")
        A.e(f"ds_read_b128 v[24:27], v7 offset:{off}")
        A.e(f"ds_read_b128 v[28:31], v7 offset:{off+16}")
        A.e("s_waitcnt lgkmcnt(0)")
        A.e("v_add_f32 v24, v24, v25")
        A.e("v_add_f32 v26, v26, v27")
        A.e("v_add_f32 v28, v28, v29")
        A.e("v_add_f32 v24, v24, v26")
        A.e("v_add_f32 v28, v28, v30")
        A.e("v_add_f32 v20, v24, v28")
    A.e("v_add_f32 v20, v80, v81")
    for r in range(2, 8):
        A.e(f"v_add_f32 v20, v20, v{80+r}")
    rowsum(0)
    A.e(f"v_mul_f32 v22, {f2u(1/448.):#x}, v20")
    for r in range(8):
        A.e(f"v_sub_f32 v{80+r}, v{80+r}, v22")
    A.e("v_mul_f32 v20, v80, v80")
    for r in range(1, 8):
        A.e(f"v_fmac_f32 v20, v{80+r}, v{80+r}")
    rowsum(256)
    A.e(f"v_mul_f32 v20, {f2u(1/448.):#x}, v20")
    A.e(f"v_add_f32 v20, {f2u(1e-5):#x}, v20")
    A.e("v_rsq_f32 v20, v20")
    A.e(f"s_waitcnt vmcnt({2 if PF else 1})")
    A.e("v_mov_b32 v21, v20")
    for d in range(4):
        A.e(f"v_pk_mul_f32 {v(80+2*d,2)}, {v(80+2*d,2)}, v[20:21]")
    for d in range(4):
        A.e(f"v_pk_fma_f32 {v(80+2*d,2)}, {v(80+2*d,2)}, {v(60+2*d,2)}, {v(68+2*d,2)}")
    for d in range(4):
        A.e(f"v_cvt_pk_bf16_f32 v{16+d}, v{80+2*d}, v{81+2*d}")
    A.e("buffer_store_dwordx4 v[16:19], v5, s[24:27], s32 offen")
    A.label("K2R_END")
    A.e("s_endpgm")
    return name, 1024
```

```python
import math
CS = math.log2(math.e) / 16.0
MOD_OFF = 0
MOD_BYTES = 6*448*4
Y_OFF = 16384
Y_BYTES = 64*28*1024
X_BYTES = 2048*448*2
OF_OFF = 2*1024*1024
OF_BYTES = 64*256*1024
X1_OFF = 18*1024*1024
X1_BYTES = 64*28*1024
ST_OFF = 20*1024*1024
ST_BYTES = 2048*14*2*4
HF_OFF = 21*1024*1024
HF_BYTES = 64*112*1024
K0_GRID = 106
XF_OFF = 30*1024*1024
XF_BYTES = 64*28*1024
PART_OFF = 32*1024*1024
PART_BYTES = 8*64*28*1024
H2_OFF = 48*1024*1024
H2_BYTES = 64*28*1024
```

```python
import sys
from asmlib import *
from layout import *
import k0, k1, k24, k1b, k2r

HEADER = open('adaLN_cond__gqa_block_cached__dense_activation_relu__prompt.s.ref').read().split("; Override launch")[0]

def build(dbg=None):
    launches = []; descs = []
    body = Asm()
    k24.NEW = True
    n = k0.gen_k0(body); launches.append((n, k0.K0_GRID, 256, 8192)); descs.append(descriptor(n, 104, 32, 104))
    n = k1b.gen_k1(body, dbg); launches.append((n, 256, 256, k1b.K1_LDS)); descs.append(descriptor(n, 512, 100, 256))
    n, lds = k2r.gen_k2r(body); launches.append((n, 256, 448, lds)); descs.append(descriptor(n, 96, 64, 96))
    n, lds = k24.gen_k3n(body); launches.append((n, 224, 256, lds)); descs.append(descriptor(n, 256, 100, 256))
    n, lds = k24.gen_gemm64(body, 'k4'); launches.append((n, 224, 256, lds)); descs.append(descriptor(n, 256, 100, 256))
    out = HEADER
    for n, g, b, lds in launches:
        out += f"; @launch kernel={n} grid=({g},1,1) block=({b},1,1) lds={lds}\n"
    out += '.amdgcn_target "amdgcn-amd-amdhsa--gfx950"\n.text\n'
    out += body.text()
    out += 'CODE_END:\n    s_endpgm\n'
    out += '.section .rodata,"a"\n.p2align 6\n'
    out += "\n.p2align 6\n".join(descs)
    return out

if __name__ == "__main__":
    dbg = sys.argv[2] if len(sys.argv) > 2 and sys.argv[2] != "none" else None
    k1.OPT['bias'] = 86
    k0.PFW = True; k0.K0_GRID = 176
    for kv in sys.argv[3:]:
        k_, v_ = kv.split("=")
        if k_ == 'nopf':
            k0.PFW = False; k0.K0_GRID = 106; k2r.PF = False; k24.PFW2 = False; k1.OPT['pfwo'] = 0
            continue
        if k_ == 'gd': k24.GD = int(v_); continue
        if k_ == 'dbg24': k24.DBG = True; continue
        if k_ == 'pf': k0.PREFETCH = True; k0.K0_GRID = 138; continue
        k1.OPT[k_] = eval(v_)
    open(sys.argv[1], "w").write(build(dbg))
```

```python
from asmlib import *
from layout import *
import struct

def f2u(x):
    return struct.unpack("<I", struct.pack("<f", x))[0]

PREFETCH = False
PFW = False
def gen_k0(A):
    name = "k0_mod_kernel"
    kernel_begin(A, name)
    A.e(f"s_cmp_ge_u32 s2, {K0_GRID}")
    A.e("s_cbranch_scc1 K0_END")
    if PREFETCH:
        A.e("s_cmp_ge_u32 s2, 106")
        A.e("s_cbranch_scc1 K0_PF")
    if PFW:
        A.e("s_cmp_ge_u32 s2, 112")
        A.e("s_cbranch_scc1 K0_PFW")
        A.e("s_cmp_ge_u32 s2, 106")
        A.e("s_cbranch_scc1 K0_END")
    A.e("s_load_dwordx2 s[4:5], s[0:1], 96")
    A.e("s_cmp_ge_u32 s2, 42")
    A.e("s_cbranch_scc1 K0_Y")
    A.e("s_load_dwordx4 s[8:11], s[0:1], 64")
    A.e("v_and_b32 v3, 7, v0")
    A.e("v_lshrrev_b32 v4, 3, v0")
    A.e("v_lshlrev_b32 v2, 1, v4")
    A.e("s_movk_i32 s6, 5376")
    A.e("v_mul_lo_u32 v1, v4, s6")
    A.e("v_lshl_add_u32 v1, v3, 4, v1")
    A.e("s_lshl_b32 s7, s2, 7")
    A.e("v_add_u32 v1, s7, v1")
    A.e("s_waitcnt lgkmcnt(0)")
    srd(A, 12, "s8", "s9", 896)
    srd(A, 16, "s10", "s11", 448*5376)
    for st in range(14):
        A.e(f"buffer_load_ushort v{72+st}, v2, s[12:15], 0 offen offset:{64*st}")
    for st in range(14):
        A.e(f"s_mov_b32 s20, {st*32*5376}")
        A.e(f"buffer_load_dwordx4 {v(16+4*st,4)}, v1, s[16:19], s20 offen")
    for r in range(8):
        A.e(f"v_mov_b32 v{88+r}, 0")
    A.e("s_mov_b32 s21, 0xbfb8aa3b")
    A.e("s_waitcnt vmcnt(14)")
    for st in range(14):
        x = 72+st
        A.e(f"v_lshlrev_b32 v{x}, 16, v{x}")
        A.e(f"v_mul_f32 v5, s21, v{x}")
        A.e(f"v_exp_f32 v5, v5")
        A.e("s_nop 0")
        A.e(f"v_add_f32 v5, 1.0, v5")
        A.e(f"v_rcp_f32 v5, v5")
        A.e("s_nop 0")
        A.e(f"v_mul_f32 v5, v5, v{x}")
        A.e(f"v_cvt_pk_bf16_f32 v5, v5, v5")
        A.e(f"v_lshlrev_b32 v{x}, 16, v5")
    for st in range(14):
        A.e(f"s_waitcnt vmcnt({13-st})")
        for d in range(4):
            w = 16+4*st+d
            A.e(f"v_lshlrev_b32 v5, 16, v{w}")
            A.e(f"v_and_b32 v6, 0xffff0000, v{w}")
            A.e(f"v_fmac_f32 v{88+2*d}, v5, v{72+st}")
            A.e(f"v_fmac_f32 v{88+2*d+1}, v6, v{72+st}")
    A.e("v_lshlrev_b32 v7, 8, v4")
    A.e("v_lshl_add_u32 v7, v3, 5, v7")
    A.e("ds_write_b128 v7, v[88:91]")
    A.e("ds_write_b128 v7, v[92:95] offset:16")
    A.e("s_waitcnt lgkmcnt(0)")
    A.e("s_barrier")
    A.e("v_cmp_gt_u32 vcc, 64, v0")
    A.e("s_and_saveexec_b64 s[22:23], vcc")
    A.e("s_cbranch_execz K0_END")
    A.e("v_lshlrev_b32 v7, 2, v0")
    for r in range(32):
        A.e(f"ds_read_b32 v{16+r}, v7 offset:{256*r}")
    A.e("s_waitcnt lgkmcnt(0)")
    for r in range(1, 32):
        A.e(f"v_add_f32 v16, v16, v{16+r}")
    A.e("v_cvt_pk_bf16_f32 v16, v16, v16")
    A.e("v_lshlrev_b32 v16, 16, v16")
    A.e("s_mul_i32 s24, s2, 9363")
    A.e("s_lshr_b32 s24, s24, 16")
    A.e("s_mov_b32 s25, 0")
    A.e("s_cmp_eq_u32 s24, 1")
    A.e("s_cselect_b32 s25, 1.0, s25")
    A.e("s_cmp_eq_u32 s24, 4")
    A.e("s_cselect_b32 s25, 1.0, s25")
    A.e("v_add_f32 v16, s25, v16")
    A.e("v_cvt_pk_bf16_f32 v16, v16, v16")
    A.e("v_lshlrev_b32 v16, 16, v16")
    A.e(f"s_mov_b32 s26, {f2u(CS):#x}")
    A.e("s_cmp_le_u32 s24, 1")
    A.e("s_cselect_b32 s26, s26, 1.0")
    A.e("v_mul_f32 v16, s26, v16")
    srd(A, 12, "s4", "s5", MOD_BYTES)
    A.e("s_lshl_b32 s7, s2, 8")
    A.e("v_add_u32 v7, s7, v7")
    A.e("buffer_store_dword v16, v7, s[12:15], 0 offen")
    A.e("s_endpgm")
    A.label("K0_Y")
    A.e("s_load_dwordx2 s[8:9], s[0:1], 0")
    A.e("s_sub_u32 s6, s2, 42")
    A.e("v_and_b32 v2, 63, v0")
    A.e("v_lshrrev_b32 v3, 6, v0")
    A.e("v_and_b32 v4, 31, v0")
    A.e("v_bfe_u32 v5, v0, 5, 1")
    A.e("s_lshl_b32 s7, s6, 5")
    A.e("v_add_u32 v6, s7, v4")
    A.e("s_movk_i32 s10, 896")
    A.e("v_mul_lo_u32 v1, v6, s10")
    A.e("v_lshl_add_u32 v1, v5, 3, v1")
    A.e("s_movk_i32 s10, 224")
    A.e("v_mul_lo_u32 v7, v3, s10")
    A.e("v_add_u32 v1, v1, v7")
    A.e("s_waitcnt lgkmcnt(0)")
    srd(A, 12, "s8", "s9", X_BYTES)
    for st in range(7):
        for u in range(2):
            A.e(f"buffer_load_dwordx2 {v(16+4*st+2*u,2)}, v1, s[12:15], 0 offen offset:{32*st+16*u}")
    A.e(f"s_add_u32 s8, s4, {Y_OFF}")
    A.e("s_addc_u32 s9, s5, 0")
    srd(A, 16, "s8", "s9", Y_BYTES)
    A.e(f"s_add_u32 s8, s4, {XF_OFF}")
    A.e("s_addc_u32 s9, s5, 0")
    srd(A, 20, "s8", "s9", XF_BYTES)
    A.e("s_mul_i32 s7, s6, 28672")
    A.e("s_movk_i32 s10, 7168")
    A.e("v_mul_lo_u32 v11, v3, s10")
    A.e("v_lshl_add_u32 v11, v2, 4, v11")
    A.e("s_waitcnt vmcnt(0)")
    for st in range(7):
        A.e(f"s_add_u32 s11, s7, {1024*st}")
        A.e(f"buffer_store_dwordx4 {v(16+4*st,4)}, v11, s[20:23], s11 offen")
    for r in range(28):
        A.e(f"v_lshlrev_b32 v{48+2*r}, 16, v{16+r}")
        A.e(f"v_and_b32 v{48+2*r+1}, 0xffff0000, v{16+r}")
    A.e("v_add_f32 v8, v48, v49")
    for r in range(2, 56):
        A.e(f"v_add_f32 v8, v8, v{48+r}")
    A.e("v_lshlrev_b32 v9, 2, v0")
    A.e("v_lshlrev_b32 v10, 2, v4")
    A.e("ds_write_b32 v9, v8")
    A.e("s_waitcnt lgkmcnt(0)")
    A.e("s_barrier")
    for k in range(8):
        A.e(f"ds_read_b32 v{16+k}, v10 offset:{128*k}")
    A.e("s_waitcnt lgkmcnt(0)")
    for k in range(1, 8):
        A.e(f"v_add_f32 v16, v16, v{16+k}")
    A.e(f"v_mul_f32 v16, {f2u(1.0/448):#x}, v16")
    for r in range(56):
        A.e(f"v_sub_f32 v{48+r}, v{48+r}, v16")
    A.e("v_mul_f32 v8, v48, v48")
    for r in range(1, 56):
        A.e(f"v_fmac_f32 v8, v{48+r}, v{48+r}")
    A.e("ds_write_b32 v9, v8 offset:1024")
    A.e("s_waitcnt lgkmcnt(0)")
    A.e("s_barrier")
    for k in range(8):
        A.e(f"ds_read_b32 v{16+k}, v10 offset:{1024+128*k}")
    A.e("s_waitcnt lgkmcnt(0)")
    for k in range(1, 8):
        A.e(f"v_add_f32 v16, v16, v{16+k}")
    A.e(f"v_mul_f32 v16, {f2u(1.0/448):#x}, v16")
    A.e(f"v_add_f32 v16, {f2u(1e-5):#x}, v16")
    A.e("v_rsq_f32 v16, v16")
    A.e("s_nop 0")
    for r in range(56):
        A.e(f"v_mul_f32 v{48+r}, v{48+r}, v16")
    for r in range(28):
        A.e(f"v_cvt_pk_bf16_f32 v{16+r}, v{48+2*r}, v{48+2*r+1}")
    A.e("s_mul_i32 s7, s6, 28672")
    A.e("s_movk_i32 s10, 7168")
    A.e("v_mul_lo_u32 v7, v3, s10")
    A.e("v_lshl_add_u32 v7, v2, 4, v7")
    for st in range(7):
        A.e(f"s_add_u32 s11, s7, {1024*st}")
        A.e(f"buffer_store_dwordx4 {v(16+4*st,4)}, v7, s[16:19], s11 offen")
    A.label("K0_END")
    A.e("s_endpgm")
    if PREFETCH:
        A.label("K0_PF")
        A.e("s_getpc_b64 s[8:9]")
        A.label("K0_PC")
        A.e("s_sub_u32 s6, s2, 106")
        A.e("s_lshr_b32 s6, s6, 3")
        A.e("s_lshl_b32 s6, s6, 14")
        A.e("v_lshlrev_b32 v1, 4, v0")
        A.e("v_add_u32 v1, s6, v1")
        A.e("s_mov_b32 s10, CODE_END - K0_PC")
        A.e("s_mov_b32 s11, 0x00020000")
        A.e("s_and_b32 s9, s9, 0xffff")
        for i in range(4):
            A.e(f"s_mov_b32 s12, {i*4096}")
            A.e(f"buffer_load_dwordx4 v[{4+4*i}:{7+4*i}], v1, s[8:11], s12 offen")
        A.e("s_waitcnt vmcnt(0)")
        A.e("s_endpgm")
    if PFW:
        A.label("K0_PFW")
        A.e("s_load_dwordx4 s[8:11], s[0:1], 8")
        A.e("s_load_dwordx2 s[12:13], s[0:1], 24")
        A.e("s_and_b32 s6, s2, 7")
        A.e("s_sub_u32 s7, s2, 112")
        A.e("s_lshr_b32 s7, s7, 3")
        A.e("v_and_b32 v1, 63, v0")
        A.e("v_lshrrev_b32 v2, 6, v0")
        A.e("v_lshrrev_b32 v3, 3, v1")
        A.e("v_lshl_add_u32 v3, v2, 4, v3")
        A.e("s_mul_i32 s14, s7, 56")
        A.e("v_add_u32 v3, s14, v3")
        A.e("v_lshlrev_b32 v3, 13, v3")
        A.e("v_and_b32 v4, 7, v1")
        A.e("v_lshl_add_u32 v3, v4, 7, v3")
        A.e("s_lshl_b32 s15, s6, 10")
        A.e("v_add_u32 v3, s15, v3")
        A.e("v_lshlrev_b32 v5, 7, v0")
        A.e("v_min_u32 v5, 24448, v5")
        A.e("s_waitcnt lgkmcnt(0)")
        srd(A, 16, "s12", "s13", 448*8192)
        A.e("buffer_load_dword v6, v3, s[16:19], 0 offen")
        A.e("s_mov_b32 s20, 65536")
        A.e("buffer_load_dword v7, v3, s[16:19], s20 offen")
        A.e("s_mul_i32 s21, s7, 24576")
        A.e("s_lshl_b32 s22, s6, 20")
        A.e("s_add_u32 s21, s21, s22")
        srd(A, 24, "s8", "s9", 8*1048576)
        A.e("buffer_load_dword v8, v5, s[24:27], s21 offen")
        srd(A, 28, "s10", "s11", 8*1048576)
        A.e("buffer_load_dword v9, v5, s[28:31], s21 offen")
        A.e("s_waitcnt vmcnt(0)")
        A.e("s_endpgm")
    return name
```

```python
from asmlib import *
from layout import *
import k1
from k1 import (Lgkm, mfma, f2u, KPIECE, KSLOT, VBASE, VSLOT, MODL, O0, S_, NEGM, P_, T_, L_,
                VKR, VVR, VKD, VVD, AQ, NRING, AK, AV, SRD_K, SRD_V, SRD_WQ, SRD_Y, SRD_M,
                S_W, S_KOFF, S_M0K, S_M0V, S_CNT, S_THR, THR_LOG2, OPT, LEAD,
                kread, softmax_ops, iteration, rare_path, reads_for_pos, distribute)

K1_LDS = 163840
SRD_WO = 16
WSLOT = [0, 28672, 132096, 66560, 95232]

class Vm:
    def __init__(self): self.q = []
    def issue(self, tag): self.q.append(tag)
    def need(self, tags):
        idx = -1
        for i, t in enumerate(self.q):
            if t in tags: idx = i
        if idx < 0: return None
        n = len(self.q) - 1 - idx
        self.q = self.q[idx+1:]
        assert n <= 63
        return f"s_waitcnt vmcnt({n})"

def gen_k1(A, dbg=None):
    name = "k1_attn_kernel"
    kernel_begin(A, name)
    ST = Stamps(A, dbg == "time", wg=9, wave_sgpr=S_W)
    A.e("s_cmp_ge_u32 s2, 256")
    A.e("s_cbranch_scc1 K1_END")
    ST.stamp()
    A.e("s_load_dwordx4 s[36:39], s[0:1], 8")
    A.e("s_load_dwordx4 s[40:43], s[0:1], 24")
    A.e("s_load_dwordx2 s[60:61], s[0:1], 96")
    A.e("v_and_b32 v1, 63, v0")
    A.e("v_lshrrev_b32 v14, 6, v0")
    A.e("s_nop 0")
    A.e(f"v_readfirstlane_b32 s{S_W}, v14")
    A.e("s_and_b32 s44, s2, 7")
    A.e("s_lshr_b32 s45, s2, 3")
    A.e("s_lshl_b32 s45, s45, 1")
    A.e(f"s_and_b32 s46, s{S_W}, 1")
    A.e("s_add_u32 s45, s45, s46")
    A.e(f"s_lshr_b32 s47, s{S_W}, 1")
    A.e("v_bfe_u32 v14, v1, 2, 1")
    A.e("v_bfe_u32 v15, v1, 3, 1")
    A.e("v_and_b32 v12, 3, v1")
    A.e("v_lshlrev_b32 v12, 4, v12")
    A.e("v_lshrrev_b32 v13, 4, v1")
    A.e("v_lshl_add_u32 v12, v13, 7, v12")
    for n in range(4):
        A.e(f"v_xor_b32 v13, {n & 1}, v14")
        A.e(f"v_lshl_add_u32 v13, v13, 6, v12")
        A.e(f"v_lshl_add_u32 v13, v15, 13, v13")
        A.e(f"v_add_u32 v{2+n}, {2*n*8192 - n*1024}, v13")
    def tr_bases(dst, swap, add, ta, tb, tc):
        A.e(f"v_lshrrev_b32 v{tb}, 5, v1")
        A.e(f"v_lshlrev_b32 v{ta}, 11, v{tb}")
        A.e(f"v_bfe_u32 v{tb}, v1, 3, 1")
        A.e(f"v_lshl_add_u32 v{ta}, v{tb}, 10, v{ta}")
        A.e(f"v_bfe_u32 v{tc}, v1, 2, 1")
        A.e(f"v_lshl_add_u32 v{ta}, v{tc}, 7, v{ta}")
        A.e(f"v_bfe_u32 v{tc}, v1, 4, 1")
        A.e(f"v_lshl_add_u32 v{ta}, v{tc}, 5, v{ta}")
        if swap:
            A.e(f"v_and_b32 v{tc}, 1, v1")
            A.e(f"v_lshl_add_u32 v{ta}, v{tc}, 4, v{ta}")
            A.e(f"v_bfe_u32 v{tc}, v1, 1, 1")
            A.e(f"v_lshl_add_u32 v{ta}, v{tc}, 3, v{ta}")
        else:
            A.e(f"v_and_b32 v{tc}, 3, v1")
            A.e(f"v_lshl_add_u32 v{ta}, v{tc}, 3, v{ta}")
        A.e(f"v_add_u32 v{ta}, {add}, v{ta}")
        A.e(f"v_lshl_add_u32 v{dst[0]}, v{tb}, 6, v{ta}")
        A.e(f"v_xor_b32 v{tb}, 1, v{tb}")
        A.e(f"v_lshl_add_u32 v{dst[1]}, v{tb}, 6, v{ta}")
    A.e("s_lshl_b32 s48, s47, 14")
    tr_bases([6, 7], True, "s48", 13, 14, 15)
    A.e("v_add_u32 v8, 0x10000, v6")
    A.e("v_add_u32 v9, 0x10000, v7")
    WQR = [[6, 7], [8, 9]]
    A.e("v_lshlrev_b32 v12, 4, v1")
    A.e("v_lshrrev_b32 v13, 5, v1")
    A.e("v_lshlrev_b32 v13, 4, v13")
    A.e(f"v_add_u32 v13, {MODL}, v13")
    A.e(f"s_lshl_b32 s49, s46, 17")
    A.e("s_lshl_b32 s50, s47, 9")
    A.e("s_add_u32 s49, s49, s50")
    A.e(f"s_lshl_b32 s48, s{S_W}, 13")
    A.e("s_waitcnt lgkmcnt(0)")
    A.e("s_lshl_b32 s50, s44, 20")
    A.e("s_add_u32 s36, s36, s50")
    A.e("s_addc_u32 s37, s37, 0")
    A.e("s_sub_u32 s52, s36, 64")
    A.e("s_subb_u32 s53, s37, 0")
    srd(A, SRD_K, "s52", "s53", 1048576+64)
    A.e("s_add_u32 s38, s38, s50")
    A.e("s_addc_u32 s39, s39, 0")
    A.e("s_sub_u32 s52, s38, 32768")
    A.e("s_subb_u32 s53, s39, 0")
    srd(A, SRD_V, "s52", "s53", 1048576+32768)
    A.e("s_lshl_b32 s50, s44, 10")
    A.e("s_add_u32 s40, s40, s50")
    A.e("s_addc_u32 s41, s41, 0")
    A.e(f"s_sub_u32 s51, {448*8192}, s50")
    srd(A, SRD_WQ, "s40", "s41", "s51")
    A.e("s_mul_i32 s50, s45, 28672")
    A.e(f"s_add_u32 s50, s50, {Y_OFF}")
    A.e("s_add_u32 s52, s60, s50")
    A.e("s_addc_u32 s53, s61, 0")
    srd(A, SRD_Y, "s52", "s53", 28672)
    srd(A, SRD_M, "s60", "s61", 3584)
    YR = 16
    TG = 64
    TU = 96
    def yreg(f): return YR + 4*(f % 12)
    vm = Vm()
    def y_load(f):
        vm.issue(('y', f))
        return [f"s_mov_b32 s50, {(f//4)*4096}",
                f"buffer_load_dwordx4 {v(yreg(f),4)}, v12, s[{SRD_Y}:{SRD_Y+3}], s50 offen offset:{(f%4)*1024}"]
    def wslot(s): return (s+2) % 4
    def wq_dma(s):
        out = []
        for grp in range(2):
            out.append(f"s_add_u32 m0, s48, {wslot(s)*32768 + grp*4096}")
            out.append(f"s_add_u32 s50, s49, {s*262144 + grp*65536}")
            for n in range(4):
                out.append(f"buffer_load_dwordx4 v{2+n}, s[{SRD_WQ}:{SRD_WQ+3}], s50 offen offset:{n*1024} lds")
                vm.issue(('wq', s))
        return out
    for f in range(4):
        for t in y_load(f): A.e(t)
    A.e(f"s_lshl_b32 s50, s{S_W}, 10")
    A.e(f"s_add_u32 m0, s50, {MODL}")
    A.e("s_nop 0")
    A.e(f"buffer_load_dwordx4 v12, s[{SRD_M}:{SRD_M+3}], s50 offen lds")
    vm.issue('mod')
    for t in wq_dma(0): A.e(t)
    for s_ in (1, 2):
        for f in (2*s_+2, 2*s_+3):
            for t in y_load(f): A.e(t)
        for t in wq_dma(s_): A.e(t)
    lg = Lgkm(A)
    def ln_ops(f):
        b = TG + 16*(f & 1)
        rd = [(('m', f, 0), f"ds_read_b128 {v(b,4)}, v13 offset:{1792+f*64}"),
              (('m', f, 1), f"ds_read_b128 {v(b+4,4)}, v13 offset:{1792+f*64+32}"),
              (('m', f, 2), f"ds_read_b128 {v(b+8,4)}, v13 offset:{f*64}"),
              (('m', f, 3), f"ds_read_b128 {v(b+12,4)}, v13 offset:{f*64+32}")]
        tu = TU + 8*(f & 1)
        va = []
        for d in range(4):
            r = yreg(f)+d
            va.append(f"v_lshlrev_b32 v{tu+2*d}, 16, v{r}")
            va.append(f"v_and_b32 v{tu+2*d+1}, 0xffff0000, v{r}")
        vb = []
        for d in range(4):
            vb.append(f"v_pk_fma_f32 {v(tu+2*d,2)}, {v(tu+2*d,2)}, {v(b+2*d,2)}, {v(b+8+2*d,2)}")
        for d in range(4):
            vb.append(f"v_cvt_pk_bf16_f32 v{yreg(f)+d}, v{tu+2*d}, v{tu+2*d+1}")
        return rd, va, vb
    w = vm.need({('y', 0), ('y', 1), 'mod', ('wq', 0)})
    A.e(w)
    A.e("s_barrier")
    ST.stamp()
    for f in (0, 1):
        rd, va, vb = ln_ops(f)
        for t, txt in rd: A.e(txt); lg.issue(t)
        for txt in va: A.e(txt)
        A.e(lg.need({('m', f, 3)}))
        for txt in vb: A.e(txt)
    QL = 4
    def q_reads(s, p):
        if p >= 16:
            s, p = s+1, p-16
            if s >= 14: return []
        db, ks = p >> 1, p & 1
        sl = wslot(s)
        o = []
        for u in range(2):
            off = (sl & 1)*32768 + ks*8192 + u*4096 + (db >> 1)*256
            o.append((('q', s, p, u), f"ds_read_b64_tr_b16 {a(AV+4*(p % NRING)+2*u,2)}, v{WQR[sl >> 1][db & 1]} offset:{off}"))
        return o
    for p in range(QL):
        for t, txt in q_reads(0, p):
            A.e(txt); lg.issue(t)
    def k_dma(blk):
        out = [f"s_add_u32 m0, s{S_M0K}, {(blk % 4)*KSLOT}", f"s_mov_b32 s50, {blk*16384}"]
        for n in range(4):
            out.append(f"buffer_load_dwordx4 v{VKD2[n]}, s[{SRD_K}:{SRD_K+3}], s50 offen offset:{n*KPIECE} lds")
            vm.issue(('k', blk))
        return out
    def v_dma(blk):
        out = [f"s_add_u32 m0, s{S_M0V}, {(blk % 4)*VSLOT}", f"s_mov_b32 s50, {blk*16384+32768}"]
        for n in range(4):
            out.append(f"buffer_load_dwordx4 v{VVD2[n & 1]}, s[{SRD_V}:{SRD_V+3}], s50 offen offset:{n*1024} lds")
            vm.issue(('v', blk))
        return out
    VKD2 = [112, 113, 114, 115]
    VVD2 = [116, 117]
    def kv_addr_setup():
        o = []
        e = o.append
        e("v_lshrrev_b32 v118, 5, v1")
        e("v_and_b32 v119, 31, v1")
        e("v_lshlrev_b32 v117, 3, v118")
        e("v_xor_b32 v119, v119, v117")
        e("v_lshlrev_b32 v119, 4, v119")
        e("v_lshl_add_u32 v119, v118, 9, v119")
        e(f"s_lshl_b32 s51, s{S_W}, 12")
        e("s_add_u32 s54, s51, 64")
        e(f"v_add_u32 v{VKD2[0]}, s54, v119")
        for n in range(1, 4):
            e(f"v_subrev_u32 v{VKD2[n]}, {16*n}, v{VKD2[0]}")
        e("v_bfe_u32 v118, v1, 2, 1")
        e("v_bfe_u32 v119, v1, 3, 1")
        e("v_and_b32 v117, 3, v1")
        e("v_lshlrev_b32 v117, 4, v117")
        e("v_lshl_add_u32 v117, v119, 9, v117")
        e("v_lshrrev_b32 v119, 4, v1")
        e("v_lshl_add_u32 v117, v119, 7, v117")
        e("v_add_u32 v117, s51, v117")
        e(f"v_lshl_add_u32 v{VVD2[0]}, v118, 6, v117")
        e("v_xor_b32 v118, 1, v118")
        e(f"v_lshl_add_u32 v{VVD2[1]}, v118, 6, v117")
        e(f"s_add_u32 s{S_M0V}, s51, {VBASE}")
        e(f"s_mul_i32 s{S_M0K}, s{S_W}, {4*KPIECE}")
        return o
    for t in kv_addr_setup(): A.e(t)
    for s_ in range(14):
        gaps = [[] for _ in range(16)]
        needs = set()
        if s_+1 < 14: needs |= {('wq', s_+1), ('y', 2*s_+2), ('y', 2*s_+3)}
        w = vm.need(needs) if needs else None
        if s_ < 13 or True:
            gaps[0] += ([w] if w else []) + ["s_barrier"]
        fill = []
        for f in (2*s_+8, 2*s_+9):
            if f < 28: fill += y_load(f)
        if s_+3 < 14: fill += wq_dma(s_+3)
        if s_ == 12:
            for blk in (0, 1, 2): fill += k_dma(blk)
        if s_ == 13:
            fill += k_dma(3) + v_dma(0)
        n = len(fill)
        for i, t in enumerate(fill):
            gaps[1 + (i*14)//max(n, 1)].append(t)
        lnseq = []
        if s_+1 < 14:
            r0, a0, b0 = ln_ops(2*s_+2)
            r1, a1, b1 = ln_ops(2*s_+3)
            lnseq = [('rd', r0), ('v', a0), ('rd', r1), ('need', 2*s_+2), ('v', b0), ('v', a1), ('need', 2*s_+3), ('v', b1)]
        items = []
        for kind, x in lnseq:
            if kind == 'rd':
                for t, txt in x: items.append(('rd', t, txt))
            elif kind == 'v':
                for txt in x: items.append(('v', None, txt))
            else:
                items.append(('need', x, None))
        lgaps = [[] for _ in range(16)]
        for i, it in enumerate(items):
            lgaps[1 + (i*14)//max(len(items), 1)].append(it)
        for p in range(16):
            w2 = lg.need({('q', s_, p, 0), ('q', s_, p, 1)})
            if w2: A.e(w2)
            db, ks = p >> 1, p & 1
            acc = v(O0+16*db, 16)
            first = (s_ == 0 and ks == 0)
            A.e(mfma(acc, a(AV+4*(p % NRING), 4), v(yreg(2*s_+ks), 4), "0" if first else acc))
            for t, txt in q_reads(s_, p+QL):
                A.e(txt); lg.issue(t)
            for txt in gaps[p]: A.e(txt)
            for kind, t, txt in lgaps[p]:
                if kind == 'rd':
                    A.e(txt); lg.issue(t)
                elif kind == 'v':
                    A.e(txt)
                else:
                    w3 = lg.need({('m', t, 3)})
                    if w3: A.e(w3)
    ST.stamp()
    A.e("s_barrier")
    for t in v_dma(1): A.e(t)
    for n in range(4): A.e(f"v_mov_b32 v{VKD[n]}, v{VKD2[n]}")
    for n in range(2): A.e(f"v_mov_b32 v{VVD[n]}, v{VVD2[n]}")
    A.e("v_bfe_u32 v14, v1, 1, 4")
    A.e(f"v_mul_u32_u24 v14, {KPIECE}, v14")
    A.e("v_and_b32 v15, 1, v1")
    A.e("v_lshl_add_u32 v14, v15, 9, v14")
    A.e("v_lshrrev_b32 v2, 5, v1")
    A.e("v_lshl_add_u32 v14, v2, 4, v14")
    A.e("v_lshlrev_b32 v15, 7, v15")
    A.e(f"v_add_u32 v{VKR[0]}, v14, v15")
    A.e(f"v_sub_u32 v{VKR[1]}, v14, v15")
    tr_bases(VVR, False, VBASE, 16, 17, 18)
    for db in range(8):
        for r in range(8):
            A.e(f"v_cvt_pk_bf16_f32 v{T_+(r & 3)}, v{O0+16*db+2*r}, v{O0+16*db+2*r+1}")
            A.e(f"v_accvgpr_write_b32 a{AQ+8*db+r}, v{T_+(r & 3)}")
    A.e(vm.need({('k', 0), ('k', 1)}))
    A.e("s_barrier")
    lg = Lgkm(A)
    seq = [(b, ks) for b in range(2) for ks in range(16)]
    KL = 4
    for i in range(KL):
        b, ks = seq[i]
        A.e(kread(b, ks, i % NRING)); lg.issue(i)
    zero = [f"v_mov_b32 v{O0+r}, 0" for r in range(128)]
    for i, (b, ks) in enumerate(seq):
        w = lg.need({i})
        if w: A.e(w)
        A.e(mfma(v(S_[b], 16), a(AK+4*(i % NRING), 4), a(AQ+4*ks, 4), "0" if ks == 0 else v(S_[b], 16)))
        if i+KL < 32:
            b2, ks2 = seq[i+KL]
            A.e(kread(b2, ks2, (i+KL) % NRING)); lg.issue(i+KL)
        for t in zero[4*i:4*i+4]: A.e(t)
    A.e("s_barrier")
    VKD2[:] = VKD; VVD2[:] = VVD
    for t in v_dma(2): A.e(t)
    for t in k_dma(4): A.e(t)
    A.e(f"s_mov_b32 s{S_KOFF}, {5*16384}")
    A.e(f"s_mov_b32 s{S_THR}, {f2u(2.0**(THR_LOG2-OPT['bias'])):#x}")
    A.e("s_nop 7")
    t0, t1 = T_, T_+1
    A.e(f"v_max3_f32 v{t0}, v{S_[0]}, v{S_[0]+1}, v{S_[0]+2}")
    allS = [S_[0]+j for j in range(3, 16)] + [S_[1]+j for j in range(16)]
    for j in range(0, len(allS)-1, 2):
        A.e(f"v_max3_f32 v{t0}, v{t0}, v{allS[j]}, v{allS[j+1]}")
    A.e(f"v_max_f32 v{t0}, v{t0}, v{allS[-1]}")
    A.e(f"v_mov_b32 v{t1}, v{t0}")
    A.e("s_nop 1")
    A.e(f"v_permlane32_swap_b32 v{t0}, v{t1}")
    A.e("s_nop 1")
    A.e(f"v_max_f32 v{t0}, v{t0}, v{t1}")
    if OPT['bias']:
        A.e(f"v_add_f32 v{t0}, {f2u(float(OPT['bias'])):#x}, v{t0}")
    for r in range(16):
        A.e(f"v_sub_f32 v{NEGM+r}, 0, v{t0}")
    for b in range(2):
        for r in range(16):
            A.e(f"v_sub_f32 v{S_[b]+r}, v{S_[b]+r}, v{t0}")
    A.e(f"v_mov_b32 v{L_[1]}, 0")
    for c, t in softmax_ops(S_[0], P_[0], L_[1], L_[0]):
        A.e(t)
    A.e("s_waitcnt vmcnt(8)")
    A.e("s_barrier")
    ST.stamp()
    if dbg == "time": A.e("s_waitcnt lgkmcnt(0)")
    for p in range(LEAD):
        for t, txt in reads_for_pos(0, p, True, True, True, True):
            A.e(txt)
    if OPT.get('pfkv', 1):
        A.e(f"s_cmp_lt_u32 s{S_W}, 2")
        A.e("s_cselect_b32 s96, s36, s38")
        A.e("s_cselect_b32 s97, s37, s39")
        A.e("s_and_b32 s97, s97, 0xffff")
        A.e("s_mov_b32 s98, 1048576")
        A.e("s_mov_b32 s99, 0x00020000")
        A.e("v_and_b32 v19, 7, v1")
        A.e("v_lshlrev_b32 v19, 7, v19")
        A.e("s_lshr_b32 s50, s2, 3")
        A.e("s_lshl_b32 s50, s50, 11")
        A.e("s_lshl_b32 s51, s46, 10")
        A.e("s_add_u32 s50, s50, s51")
        A.e("v_add_u32 v19, s50, v19")
    if OPT.get('pfmall', 1):
        A.e("s_load_dwordx4 s[52:55], s[0:1], 48")
        A.e("s_waitcnt lgkmcnt(0)")
        A.e("s_cmp_lt_u32 s46, 1")
        A.e("s_cselect_b32 s56, s52, s54")
        A.e("s_cselect_b32 s57, s53, s55")
        A.e("s_and_b32 s57, s57, 0xffff")
        A.e(f"s_mov_b32 s58, {448*3584}")
        A.e("s_mov_b32 s59, 0x00020000")
        A.e("s_mul_i32 s50, s2, 6272")
        A.e("v_lshlrev_b32 v20, 7, v1")
        A.e("v_min_u32 v20, 6144, v20")
        A.e(f"s_cmp_lt_u32 s{S_W}, 2")
        A.e("s_cbranch_scc0 K1_NOMALL")
        A.e("buffer_load_dword v21, v20, s[56:59], s50 offen")
        A.label("K1_NOMALL")
    A.e(f"s_mov_b32 s{S_CNT}, 15")
    A.raw(".p2align 6")
    A.label("K1_LOOP")
    if OPT.get('pfkv', 1):
        A.e(f"s_add_u32 s50, s{S_KOFF}, {7*16384}")
        A.e("buffer_load_dword v22, v19, s[96:99], s50 offen")
    if OPT.get('pfwo', 1):
        A.e(f"s_cmp_lg_u32 s{S_CNT}, 4")
        A.e("s_cbranch_scc1 K1_NOPF")
        A.e(f"s_mul_i32 s50, s44, {512*896}")
        A.e("s_add_u32 s56, s42, s50")
        A.e("s_addc_u32 s57, s43, 0")
        A.e("s_and_b32 s57, s57, 0xffff")
        A.e(f"s_mov_b32 s58, {512*896}")
        A.e("s_mov_b32 s59, 0x00020000")
        A.e("s_lshr_b32 s50, s2, 3")
        A.e("s_mul_i32 s50, s50, 14336")
        A.e("v_lshlrev_b32 v14, 7, v0")
        A.e("v_min_u32 v14, 14208, v14")
        A.e("buffer_load_dword v15, v14, s[56:59], s50 offen")
        A.label("K1_NOPF")
    for ph in range(4):
        iteration(A, ph, f"M{ph}")
    A.e(f"s_sub_u32 s{S_CNT}, s{S_CNT}, 1")
    A.e(f"s_cmp_lg_u32 s{S_CNT}, 0")
    A.e("s_cbranch_scc1 K1_LOOP")
    if dbg == "time":
        ST.stamp()
    A.e(f"s_mul_i32 s50, s44, {512*896}")
    A.e("s_add_u32 s42, s42, s50")
    A.e("s_addc_u32 s43, s43, 0")
    srd(A, SRD_WO, "s42", "s43", 512*896)
    GOFF = 34
    for n in range(7):
        A.e(f"s_mul_i32 s50, s{S_W}, 7")
        A.e(f"s_add_u32 s50, s50, {n}")
        A.e("s_cmp_ge_u32 s50, 14")
        A.e("s_cselect_b32 s51, 14, 0")
        A.e(f"s_cselect_b32 s52, {16*896}, 0")
        A.e("s_sub_u32 s50, s50, s51")
        A.e("s_and_b32 s51, s50, 1")
        A.e(f"s_mul_i32 s51, s51, {8*896}")
        A.e("s_lshr_b32 s50, s50, 1")
        A.e("s_lshl_b32 s50, s50, 7")
        A.e("s_add_u32 s50, s50, s51")
        A.e(f"s_add_u32 s{GOFF+n}, s50, s52")
    A.e(f"s_mul_i32 s41, s{S_W}, 7168")
    A.e("v_lshrrev_b32 v16, 3, v1")
    A.e("v_mul_u32_u24 v14, 896, v16")
    A.e("v_bfe_u32 v16, v1, 4, 1")
    A.e("v_bfe_u32 v17, v1, 2, 1")
    A.e("v_xor_b32 v16, v16, v17")
    A.e("v_lshl_add_u32 v14, v16, 6, v14")
    A.e("v_and_b32 v16, 3, v1")
    A.e("v_lshl_add_u32 v14, v16, 4, v14")
    vme = Vm()
    def wo_dma(t):
        out = []
        for n in range(7):
            out.append(f"s_add_u32 m0, s41, {WSLOT[t % 5] + n*1024}")
            out.append(f"s_add_u32 s50, s{GOFF+n}, {t*32*896}")
            out.append(f"buffer_load_dwordx4 v14, s[{SRD_WO}:{SRD_WO+3}], s50 offen lds")
            vme.issue(('wo', t))
        return out
    def spread(lst, lo, hi):
        d = {}
        trip = [lst[i:i+3] for i in range(0, len(lst), 3)]
        for i, tr3 in enumerate(trip):
            g = lo + (i*(hi-lo+1))//len(trip)
            d.setdefault(g, []).extend(tr3)
        return d
    iteration(A, 0, "T0", dma_k=False, dma_v=True, vmwait=8)
    iteration(A, 1, "T1", dma_k=False, dma_v=False, vmwait=4, nxt_qk=False)
    iteration(A, 2, "T2", do_qk=False, dma_k=False, dma_v=False, vmwait=0, nxt_qk=False,
              extra=spread(wo_dma(0) + wo_dma(1)[:12], 1, 30))
    vme.q = [('wo', 0)]*7 + [('wo', 1)]*4
    rest1 = []
    for n in range(4, 7):
        rest1 += [f"s_add_u32 m0, s41, {WSLOT[1] + n*1024}", f"s_add_u32 s50, s{GOFF+n}, {32*896}",
                  f"buffer_load_dwordx4 v14, s[{SRD_WO}:{SRD_WO+3}], s50 offen lds"]
        vme.issue(('wo', 1))
    iteration(A, 3, "T3", do_qk=False, do_sm=False, dma_k=False, dma_v=False, nxt_pv=False, nxt_qk=False, barrier=False,
              extra=spread(rest1 + wo_dma(2), 1, 30))
    ST.stamp()
    Lf = L_[1]
    OP = 64
    A.e(f"v_mov_b32 v{t0}, v{Lf}")
    A.e(f"v_mov_b32 v{t1}, v{Lf}")
    A.e("s_nop 1")
    A.e(f"v_permlane32_swap_b32 v{t0}, v{t1}")
    A.e("s_nop 1")
    A.e(f"v_add_f32 v{t0}, v{t0}, v{t1}")
    A.e(f"v_rcp_f32 v{t0}, v{t0}")
    A.e("s_lshl_b32 s50, s46, 1")
    A.e("s_add_u32 s50, s50, s47")
    A.e("s_lshl_b32 s50, s50, 14")
    A.e(f"s_add_u32 s50, s50, {VBASE}")
    A.e("v_lshlrev_b32 v12, 4, v1")
    A.e("v_add_u32 v15, s50, v12")
    A.e("s_barrier")
    for fr in range(16):
        base = O0 + 8*fr
        for r in range(8):
            A.e(f"v_mul_f32 v{base+r}, v{base+r}, v{t0}")
        for r in range(4):
            A.e(f"v_cvt_pk_bf16_f32 v{OP+4*fr+r}, v{base+2*r}, v{base+2*r+1}")
        A.e(f"ds_write_b128 v15, {v(OP+4*fr,4)} offset:{fr*1024}")
    A.e("s_waitcnt lgkmcnt(0)")
    A.e("s_barrier")
    A.e("s_lshl_b32 s50, s46, 15")
    A.e(f"s_add_u32 s50, s50, {VBASE}")
    A.e("v_add_u32 v15, s50, v12")
    for kk in range(32):
        A.e(f"ds_read_b128 {a(4*kk,4)}, v15 offset:{kk*1024}")
    A.e("v_lshrrev_b32 v16, 5, v1")
    A.e("v_lshlrev_b32 v17, 9, v16")
    A.e("v_bfe_u32 v16, v1, 2, 2")
    A.e("v_lshl_add_u32 v17, v16, 7, v17")
    A.e("v_bfe_u32 v16, v1, 4, 1")
    A.e("v_lshl_add_u32 v17, v16, 5, v17")
    A.e("v_and_b32 v16, 3, v1")
    A.e("v_lshl_add_u32 v17, v16, 3, v17")
    A.e("v_bfe_u32 v16, v1, 3, 1")
    A.e("v_xor_b32 v18, s47, v16")
    A.e("v_lshl_add_u32 v2, v18, 6, v17")
    A.e("v_xor_b32 v18, 1, v18")
    A.e("v_lshl_add_u32 v3, v18, 6, v17")
    A.e(f"s_mul_i32 s50, s47, {3*2048}")
    A.e(f"s_mul_i32 s51, s47, {4*2048}")
    A.e("v_add_u32 v2, s50, v2")
    A.e("v_add_u32 v3, s51, v3")
    A.e(f"v_add_u32 v4, {WSLOT[2]}, v2")
    A.e(f"v_add_u32 v5, {WSLOT[2]}, v3")
    A.e(f"v_add_u32 v6, {WSLOT[3]}, v2")
    A.e(f"v_add_u32 v7, {WSLOT[3]}, v3")
    A.e("s_waitcnt lgkmcnt(0)")
    A.e("s_barrier")
    for t in wo_dma(3) + wo_dma(4): A.e(t)
    def wbase(slot, c):
        e = c & 1
        if slot in (0, 1): return (2+e, WSLOT[slot])
        if slot == 2: return (4+e, 0)
        return (6+e, WSLOT[slot]-WSLOT[3])
    ARG = AV
    ARG = 128
    def o_reads(t, p):
        if p >= 14:
            t, p = t+1, p-14
            if t >= 16: return []
        ksl, c = p // 7, p % 7
        b, off = wbase(t % 5, c)
        o = []
        for u in range(2):
            o.append((('o', t, p, u), f"ds_read_b64_tr_b16 {a(ARG+4*((14*t+p) % NRING)+2*u,2)}, v{b} offset:{off + ksl*14336 + (c >> 1)*2048 + u*1024}"))
        return o
    lg = Lgkm(A)
    OL = 4
    A.e(vme.need({('wo', 0)}))
    A.e("s_barrier")
    for p in range(OL):
        for t_, txt in o_reads(0, p): A.e(txt); lg.issue(t_)
    ACC = O0
    for t in range(16):
        gaps = [[] for _ in range(14)]
        if t+1 < 16:
            w = vme.need({('wo', t+1)})
            gaps[0] += ([w] if w else []) + ["s_barrier"]
        if t >= 1 and t+4 < 16:
            d = wo_dma(t+4)
            sp = spread(d, 1, 12)
            for g_, l_ in sp.items(): gaps[g_] += l_
        for p in range(14):
            w2 = lg.need({('o', t, p, 0), ('o', t, p, 1)})
            if w2: A.e(w2)
            ksl, c = p // 7, p % 7
            acc = v(ACC+16*c, 16)
            first = (t == 0 and ksl == 0)
            A.e(mfma(acc, a(ARG+4*((14*t+p) % NRING), 4), a(4*(2*t+ksl), 4), "0" if first else acc))
            for t_, txt in o_reads(t, p+OL): A.e(txt); lg.issue(t_)
            for txt in gaps[p]: A.e(txt)
    ST.stamp()
    A.e("s_lshl_b32 s50, s44, 6")
    A.e("s_add_u32 s50, s50, s45")
    A.e("s_mul_i32 s50, s50, 28672")
    A.e(f"s_mul_i32 s51, s47, {14*1024}")
    A.e("s_add_u32 s50, s50, s51")
    A.e(f"s_add_u32 s50, s50, {PART_OFF}")
    A.e("s_add_u32 s52, s60, s50")
    A.e("s_addc_u32 s53, s61, 0")
    srd(A, SRD_Y, "s52", "s53", 14*1024)
    A.e("s_nop 7")
    for fr in range(14):
        dst = OP + 4*(fr % 16)
        for r in range(4):
            A.e(f"v_cvt_pk_bf16_f32 v{dst+r}, v{ACC+8*fr+2*r}, v{ACC+8*fr+2*r+1}")
        if fr % 4 == 0:
            A.e(f"s_mov_b32 s50, {fr*1024}")
        A.e(f"buffer_store_dwordx4 {v(dst,4)}, v12, s[{SRD_Y}:{SRD_Y+3}], s50 offen offset:{(fr%4)*1024}")
    ST.finish("K1_END")
    A.label("K1_END")
    A.e("s_endpgm")
    if not OPT['no_sm']:
        for ph in range(4):
            rare_path(A, ph, f"M{ph}")
        rare_path(A, 0, "T0")
        rare_path(A, 1, "T1")
        rare_path(A, 2, "T2", do_qk=False)
    return name
```

```python
from asmlib import *
from layout import *
import struct

def f2u(x):
    return struct.unpack("<I", struct.pack("<f", x))[0]

PREFETCH = False
PFW = False
PFCODE = True
def gen_k0(A):
    name = "k0_mod_kernel"
    kernel_begin(A, name)
    A.e(f"s_cmp_ge_u32 s2, {K0_GRID}")
    A.e("s_cbranch_scc1 K0_END")
    if PREFETCH:
        A.e("s_cmp_ge_u32 s2, 106")
        A.e("s_cbranch_scc1 K0_PF")
    if PFW:
        A.e("s_cmp_ge_u32 s2, 112")
        A.e("s_cbranch_scc1 K0_PFW")
        A.e("s_cmp_ge_u32 s2, 106")
        A.e("s_cbranch_scc1 K0_END")
    A.e("s_load_dwordx2 s[4:5], s[0:1], 96")
    A.e("s_cmp_ge_u32 s2, 42")
    A.e("s_cbranch_scc1 K0_Y")
    A.e("s_load_dwordx4 s[8:11], s[0:1], 64")
    A.e("v_and_b32 v3, 7, v0")
    A.e("v_lshrrev_b32 v4, 3, v0")
    A.e("v_lshlrev_b32 v2, 1, v4")
    A.e("s_movk_i32 s6, 5376")
    A.e("v_mul_lo_u32 v1, v4, s6")
    A.e("v_lshl_add_u32 v1, v3, 4, v1")
    A.e("s_lshl_b32 s7, s2, 7")
    A.e("v_add_u32 v1, s7, v1")
    A.e("s_waitcnt lgkmcnt(0)")
    srd(A, 12, "s8", "s9", 896)
    srd(A, 16, "s10", "s11", 448*5376)
    for st in range(14):
        A.e(f"buffer_load_ushort v{72+st}, v2, s[12:15], 0 offen offset:{64*st}")
    for st in range(14):
        A.e(f"s_mov_b32 s20, {st*32*5376}")
        A.e(f"buffer_load_dwordx4 {v(16+4*st,4)}, v1, s[16:19], s20 offen")
    for r in range(8):
        A.e(f"v_mov_b32 v{88+r}, 0")
    A.e("s_mov_b32 s21, 0xbfb8aa3b")
    A.e("s_waitcnt vmcnt(14)")
    for st in range(14):
        x = 72+st
        A.e(f"v_lshlrev_b32 v{x}, 16, v{x}")
        A.e(f"v_mul_f32 v5, s21, v{x}")
        A.e(f"v_exp_f32 v5, v5")
        A.e("s_nop 0")
        A.e(f"v_add_f32 v5, 1.0, v5")
        A.e(f"v_rcp_f32 v5, v5")
        A.e("s_nop 0")
        A.e(f"v_mul_f32 v5, v5, v{x}")
        A.e(f"v_cvt_pk_bf16_f32 v5, v5, v5")
        A.e(f"v_lshlrev_b32 v{x}, 16, v5")
    for st in range(14):
        A.e(f"s_waitcnt vmcnt({13-st})")
        for d in range(4):
            w = 16+4*st+d
            A.e(f"v_lshlrev_b32 v5, 16, v{w}")
            A.e(f"v_and_b32 v6, 0xffff0000, v{w}")
            A.e(f"v_fmac_f32 v{88+2*d}, v5, v{72+st}")
            A.e(f"v_fmac_f32 v{88+2*d+1}, v6, v{72+st}")
    A.e("v_lshlrev_b32 v7, 8, v4")
    A.e("v_lshl_add_u32 v7, v3, 5, v7")
    A.e("ds_write_b128 v7, v[88:91]")
    A.e("ds_write_b128 v7, v[92:95] offset:16")
    A.e("s_waitcnt lgkmcnt(0)")
    A.e("s_barrier")
    A.e("v_cmp_gt_u32 vcc, 64, v0")
    A.e("s_and_saveexec_b64 s[22:23], vcc")
    A.e("s_cbranch_execz K0_END")
    A.e("v_lshlrev_b32 v7, 2, v0")
    for r in range(32):
        A.e(f"ds_read_b32 v{16+r}, v7 offset:{256*r}")
    A.e("s_waitcnt lgkmcnt(0)")
    for r in range(1, 32):
        A.e(f"v_add_f32 v16, v16, v{16+r}")
    A.e("v_cvt_pk_bf16_f32 v16, v16, v16")
    A.e("v_lshlrev_b32 v16, 16, v16")
    A.e("s_mul_i32 s24, s2, 9363")
    A.e("s_lshr_b32 s24, s24, 16")
    A.e("s_mov_b32 s25, 0")
    A.e("s_cmp_eq_u32 s24, 1")
    A.e("s_cselect_b32 s25, 1.0, s25")
    A.e("s_cmp_eq_u32 s24, 4")
    A.e("s_cselect_b32 s25, 1.0, s25")
    A.e("v_add_f32 v16, s25, v16")
    A.e("v_cvt_pk_bf16_f32 v16, v16, v16")
    A.e("v_lshlrev_b32 v16, 16, v16")
    A.e(f"s_mov_b32 s26, {f2u(CS):#x}")
    A.e("s_cmp_le_u32 s24, 1")
    A.e("s_cselect_b32 s26, s26, 1.0")
    A.e("v_mul_f32 v16, s26, v16")
    srd(A, 12, "s4", "s5", MOD_BYTES)
    A.e("s_lshl_b32 s7, s2, 8")
    A.e("v_add_u32 v7, s7, v7")
    A.e("buffer_store_dword v16, v7, s[12:15], 0 offen")
    A.e("s_endpgm")
    A.label("K0_Y")
    A.e("s_load_dwordx2 s[8:9], s[0:1], 0")
    A.e("s_sub_u32 s6, s2, 42")
    A.e("v_and_b32 v2, 63, v0")
    A.e("v_lshrrev_b32 v3, 6, v0")
    A.e("v_and_b32 v4, 31, v0")
    A.e("v_bfe_u32 v5, v0, 5, 1")
    A.e("s_lshl_b32 s7, s6, 5")
    A.e("v_add_u32 v6, s7, v4")
    A.e("s_movk_i32 s10, 896")
    A.e("v_mul_lo_u32 v1, v6, s10")
    A.e("v_lshl_add_u32 v1, v5, 3, v1")
    A.e("s_movk_i32 s10, 224")
    A.e("v_mul_lo_u32 v7, v3, s10")
    A.e("v_add_u32 v1, v1, v7")
    A.e("s_waitcnt lgkmcnt(0)")
    srd(A, 12, "s8", "s9", X_BYTES)
    for st in range(7):
        for u in range(2):
            A.e(f"buffer_load_dwordx2 {v(16+4*st+2*u,2)}, v1, s[12:15], 0 offen offset:{32*st+16*u}")
    A.e(f"s_add_u32 s8, s4, {Y_OFF}")
    A.e("s_addc_u32 s9, s5, 0")
    srd(A, 16, "s8", "s9", Y_BYTES)
    A.e(f"s_add_u32 s8, s4, {XF_OFF}")
    A.e("s_addc_u32 s9, s5, 0")
    srd(A, 20, "s8", "s9", XF_BYTES)
    A.e("s_mul_i32 s7, s6, 28672")
    A.e("s_movk_i32 s10, 7168")
    A.e("v_mul_lo_u32 v11, v3, s10")
    A.e("v_lshl_add_u32 v11, v2, 4, v11")
    A.e("s_waitcnt vmcnt(0)")
    for st in range(7):
        A.e(f"s_add_u32 s11, s7, {1024*st}")
        A.e(f"buffer_store_dwordx4 {v(16+4*st,4)}, v11, s[20:23], s11 offen")
    for r in range(28):
        A.e(f"v_lshlrev_b32 v{48+2*r}, 16, v{16+r}")
        A.e(f"v_and_b32 v{48+2*r+1}, 0xffff0000, v{16+r}")
    A.e("v_add_f32 v8, v48, v49")
    for r in range(2, 56):
        A.e(f"v_add_f32 v8, v8, v{48+r}")
    A.e("v_lshlrev_b32 v9, 2, v0")
    A.e("v_lshlrev_b32 v10, 2, v4")
    A.e("ds_write_b32 v9, v8")
    A.e("s_waitcnt lgkmcnt(0)")
    A.e("s_barrier")
    for k in range(8):
        A.e(f"ds_read_b32 v{16+k}, v10 offset:{128*k}")
    A.e("s_waitcnt lgkmcnt(0)")
    for k in range(1, 8):
        A.e(f"v_add_f32 v16, v16, v{16+k}")
    A.e(f"v_mul_f32 v16, {f2u(1.0/448):#x}, v16")
    for r in range(56):
        A.e(f"v_sub_f32 v{48+r}, v{48+r}, v16")
    A.e("v_mul_f32 v8, v48, v48")
    for r in range(1, 56):
        A.e(f"v_fmac_f32 v8, v{48+r}, v{48+r}")
    A.e("ds_write_b32 v9, v8 offset:1024")
    A.e("s_waitcnt lgkmcnt(0)")
    A.e("s_barrier")
    for k in range(8):
        A.e(f"ds_read_b32 v{16+k}, v10 offset:{1024+128*k}")
    A.e("s_waitcnt lgkmcnt(0)")
    for k in range(1, 8):
        A.e(f"v_add_f32 v16, v16, v{16+k}")
    A.e(f"v_mul_f32 v16, {f2u(1.0/448):#x}, v16")
    A.e(f"v_add_f32 v16, {f2u(1e-5):#x}, v16")
    A.e("v_rsq_f32 v16, v16")
    A.e("s_nop 0")
    for r in range(56):
        A.e(f"v_mul_f32 v{48+r}, v{48+r}, v16")
    for r in range(28):
        A.e(f"v_cvt_pk_bf16_f32 v{16+r}, v{48+2*r}, v{48+2*r+1}")
    A.e("s_mul_i32 s7, s6, 28672")
    A.e("s_movk_i32 s10, 7168")
    A.e("v_mul_lo_u32 v7, v3, s10")
    A.e("v_lshl_add_u32 v7, v2, 4, v7")
    for st in range(7):
        A.e(f"s_add_u32 s11, s7, {1024*st}")
        A.e(f"buffer_store_dwordx4 {v(16+4*st,4)}, v7, s[16:19], s11 offen")
    A.label("K0_END")
    A.e("s_endpgm")
    if PREFETCH:
        A.label("K0_PF")
        A.e("s_getpc_b64 s[8:9]")
        A.label("K0_PC")
        A.e("s_sub_u32 s6, s2, 106")
        A.e("s_lshr_b32 s6, s6, 3")
        A.e("s_lshl_b32 s6, s6, 14")
        A.e("v_lshlrev_b32 v1, 4, v0")
        A.e("v_add_u32 v1, s6, v1")
        A.e("s_mov_b32 s10, CODE_END - K0_PC")
        A.e("s_mov_b32 s11, 0x00020000")
        A.e("s_and_b32 s9, s9, 0xffff")
        for i in range(4):
            A.e(f"s_mov_b32 s12, {i*4096}")
            A.e(f"buffer_load_dwordx4 v[{4+4*i}:{7+4*i}], v1, s[8:11], s12 offen")
        A.e("s_waitcnt vmcnt(0)")
        A.e("s_endpgm")
    if PFW:
        A.label("K0_PFW")
        A.e("s_load_dwordx4 s[8:11], s[0:1], 8")
        A.e("s_load_dwordx2 s[12:13], s[0:1], 24")
        A.e("s_and_b32 s6, s2, 7")
        A.e("s_sub_u32 s7, s2, 112")
        A.e("s_lshr_b32 s7, s7, 3")
        A.e("v_and_b32 v1, 63, v0")
        A.e("v_lshrrev_b32 v2, 6, v0")
        A.e("v_lshrrev_b32 v3, 3, v1")
        A.e("v_lshl_add_u32 v3, v2, 4, v3")
        A.e("s_mul_i32 s14, s7, 56")
        A.e("v_add_u32 v3, s14, v3")
        A.e("v_lshlrev_b32 v3, 13, v3")
        A.e("v_and_b32 v4, 7, v1")
        A.e("v_lshl_add_u32 v3, v4, 7, v3")
        A.e("s_lshl_b32 s15, s6, 10")
        A.e("v_add_u32 v3, s15, v3")
        A.e("v_lshlrev_b32 v5, 7, v0")
        A.e("v_min_u32 v5, 24448, v5")
        A.e("s_waitcnt lgkmcnt(0)")
        srd(A, 16, "s12", "s13", 448*8192)
        A.e("buffer_load_dword v6, v3, s[16:19], 0 offen")
        A.e("s_mov_b32 s20, 65536")
        A.e("buffer_load_dword v7, v3, s[16:19], s20 offen")
        A.e("s_mul_i32 s21, s7, 24576")
        A.e("s_lshl_b32 s22, s6, 20")
        A.e("s_add_u32 s21, s21, s22")
        srd(A, 24, "s8", "s9", 8*1048576)
        A.e("buffer_load_dword v8, v5, s[24:27], s21 offen")
        srd(A, 28, "s10", "s11", 8*1048576)
        A.e("buffer_load_dword v9, v5, s[28:31], s21 offen")
        if PFCODE:
            A.e("s_getpc_b64 s[16:17]")
            A.label("K0_PC2")
            A.e("s_sub_u32 s16, s16, K0_PC2 - k0_mod_kernel")
            A.e("s_subb_u32 s17, s17, 0")
            A.e("s_and_b32 s17, s17, 0xffff")
            A.e("s_mov_b32 s18, CODE_END - k0_mod_kernel")
            A.e("s_mov_b32 s19, 0x00020000")
            A.e("s_mul_i32 s21, s7, 12288")
            A.e("v_lshlrev_b32 v5, 7, v0")
            A.e("v_min_u32 v5, 12160, v5")
            A.e("buffer_load_dword v10, v5, s[16:19], s21 offen")
        A.e("s_waitcnt vmcnt(0)")
        A.e("s_endpgm")
    return name
```

```python
from asmlib import *
from layout import *
from k1 import Lgkm, mfma, f2u

DBG = False
GD = 8
NEW = False
PFW2 = True
K3_PRE = 4
def gen_gemm64(A, kind):
    if kind == 'k2':
        name, NK, WARG, BOFF, BBYTES, WROWS = "k2_oproj_kernel", 256, 32, OF_OFF, OF_BYTES, 4096
    else:
        name, NK, WARG, BOFF, BBYTES, WROWS = "k4_mlp2_kernel", 112, 56, HF_OFF, HF_BYTES, 1792
    P = kind.upper()
    NS = NK // 4
    RS = 896
    D = GD
    R = 16
    RB = 16
    ACC = 16
    BR = 128
    AR = 80
    XR = 96
    GA = 104
    kernel_begin(A, name)
    A.e("s_cmp_ge_u32 s2, 224")
    A.e(f"s_cbranch_scc1 {P}_END")
    ST = Stamps(A, DBG)
    ST.stamp()
    A.e(f"s_load_dwordx2 s[36:37], s[0:1], {WARG}")
    A.e("s_load_dwordx2 s[38:39], s[0:1], 96")
    A.e(f"s_load_dwordx2 s[40:41], s[0:1], {0 if kind == 'k2' else 80}")
    A.e("v_and_b32 v1, 63, v0")
    A.e("v_lshrrev_b32 v2, 6, v0")
    A.e("s_nop 0")
    A.e("v_readfirstlane_b32 s28, v2")
    if NEW:
        A.e("s_and_b32 s29, s2, 7")
        A.e("s_lshr_b32 s30, s2, 3")
        A.e("s_lshl_b32 s29, s29, 2")
        A.e("s_and_b32 s31, s30, 3")
        A.e("s_add_u32 s29, s29, s31")
        A.e("s_lshr_b32 s30, s30, 2")
    else:
        A.e("s_and_b32 s29, s2, 31")
        A.e("s_lshr_b32 s30, s2, 5")
    A.e("v_lshrrev_b32 v2, 3, v1")
    A.e(f"v_mul_u32_u24 v4, {RS}, v2")
    A.e("v_bfe_u32 v3, v1, 4, 1")
    A.e("v_bfe_u32 v2, v1, 2, 1")
    A.e("v_xor_b32 v3, v3, v2")
    A.e("v_lshl_add_u32 v4, v3, 6, v4")
    A.e("v_and_b32 v3, 3, v1")
    A.e("v_lshl_add_u32 v4, v3, 4, v4")
    A.e(f"v_add_u32 v5, {8*RS-1024}, v4")
    A.e("v_lshlrev_b32 v6, 4, v1")
    A.e("v_add_u32 v7, %d, v6" % (NK*1024))
    A.e("v_lshrrev_b32 v2, 5, v1")
    A.e("v_lshlrev_b32 v8, 9, v2")
    A.e("v_bfe_u32 v3, v1, 2, 2")
    A.e("v_lshl_add_u32 v8, v3, 7, v8")
    A.e("v_bfe_u32 v3, v1, 4, 1")
    A.e("v_lshl_add_u32 v8, v3, 5, v8")
    A.e("v_and_b32 v3, 3, v1")
    A.e("v_lshl_add_u32 v8, v3, 3, v8")
    A.e(f"s_mul_i32 s31, s28, {R*2048}")
    A.e("v_add_u32 v8, s31, v8")
    A.e("v_bfe_u32 v3, v1, 3, 1")
    A.e("v_xor_b32 v2, 1, v3")
    A.e("v_lshl_add_u32 v15, v2, 6, v8")
    A.e("v_lshl_add_u32 v8, v3, 6, v8")
    A.e("s_waitcnt lgkmcnt(0)")
    A.e("s_lshl_b32 s33, s30, 7")
    A.e("s_add_u32 s36, s36, s33")
    A.e("s_addc_u32 s37, s37, 0")
    A.e(f"s_sub_u32 s34, {WROWS*RS}, s33")
    srd(A, 8, "s36", "s37", "s34")
    A.e(f"s_mul_i32 s33, s29, {2*NK*1024}")
    A.e(f"s_mul_i32 s34, s28, {NS*1024}")
    A.e("s_add_u32 s33, s33, s34")
    A.e(f"s_add_u32 s33, s33, {BOFF}")
    A.e("s_add_u32 s42, s38, s33")
    A.e("s_addc_u32 s43, s39, 0")
    srd(A, 12, "s42", "s43", (NK+NS)*1024)
    A.e(f"s_mul_i32 s32, s28, {NS*16*RS}")
    def vm(st):
        o = [f"s_add_u32 m0, s31, {(st % R)*2048}",
             f"s_add_u32 s35, s32, {st*16*RS}",
             f"buffer_load_dwordx4 v4, s[8:11], s35 offen lds",
             f"buffer_load_dwordx4 v5, s[8:11], s35 offen offset:1024 lds",
             f"s_mov_b32 s44, {(st//4)*4096}",
             f"buffer_load_dwordx4 {v(BR+8*(st % RB),4)}, v6, s[12:15], s44 offen offset:{(st%4)*1024}",
             f"buffer_load_dwordx4 {v(BR+8*(st % RB)+4,4)}, v7, s[12:15], s44 offen offset:{(st%4)*1024}"]
        return o
    A.e("s_and_b32 s45, s28, 1")
    A.e("s_lshr_b32 s46, s28, 1")
    A.e("s_lshl_b32 s47, s29, 1")
    A.e("s_add_u32 s47, s47, s46")
    A.e("s_lshl_b32 s48, s30, 1")
    A.e("s_add_u32 s48, s48, s45")
    sec = 2 if kind == 'k2' else 5
    srd(A, 16, "s38", "s39", MOD_BYTES)
    A.e("v_lshrrev_b32 v2, 5, v1")
    A.e("v_lshlrev_b32 v9, 4, v2")
    A.e("s_lshl_b32 s49, s48, 7")
    A.e(f"s_add_u32 s49, s49, {sec*1792}")
    for aa in range(4):
        A.e(f"buffer_load_dwordx4 {v(GA+4*aa,4)}, v9, s[16:19], s49 offen offset:{32*aa}")
    if kind == 'k2':
        srd(A, 20, "s40", "s41", X_BYTES)
        A.e("v_and_b32 v3, 31, v1")
        A.e(f"v_mul_u32_u24 v10, 896, v3")
        A.e("v_lshl_add_u32 v10, v2, 3, v10")
        A.e(f"s_mul_i32 s50, s47, {32*896}")
        A.e("s_lshl_b32 s51, s48, 6")
        A.e("s_add_u32 s50, s50, s51")
        for aa in range(4):
            A.e(f"buffer_load_dwordx2 {v(XR+2*aa,2)}, v10, s[20:23], s50 offen offset:{16*aa}")
        npre = 8
    else:
        A.e(f"s_add_u32 s42, s38, {X1_OFF}")
        A.e("s_addc_u32 s43, s39, 0")
        srd(A, 20, "s42", "s43", X1_BYTES)
        A.e(f"s_mul_i32 s50, s47, {28*1024}")
        A.e("s_lshl_b32 s51, s48, 11")
        A.e("s_add_u32 s50, s50, s51")
        for hf in range(2):
            A.e(f"buffer_load_dwordx4 {v(XR+4*hf,4)}, v6, s[20:23], s50 offen offset:{1024*hf}")
        npre = 6
    for st in range(D):
        for t in vm(st): A.e(t)
    def tr(st):
        o = []
        for cb in range(2):
            for u in range(2):
                o.append(f"ds_read_b64_tr_b16 {v(AR+8*(st & 1)+4*cb+2*u,2)}, {'v15' if cb else 'v8'} offset:{(st % R)*2048+u*1024}")
        return o
    ST.stamp()
    A.e(f"s_waitcnt vmcnt({4*(D-1)})")
    ST.stamp()
    for t in tr(0): A.e(t)
    for st in range(NS):
        if st+1 < NS:
            issued = min(NS, st+D)
            A.e(f"s_waitcnt vmcnt({4*(issued-(st+2))})")
            for t in tr(st+1): A.e(t)
        vmo = vm(st+D) if st+D < NS else []
        A.e(f"s_waitcnt lgkmcnt({4 if st+1 < NS else 0})")
        k = 0
        for cb in range(2):
            for rb in range(2):
                acc = v(ACC+16*(2*cb+rb), 16)
                A.e(mfma(acc, v(AR+8*(st & 1)+4*cb, 4), v(BR+8*(st % RB)+4*rb, 4), "0" if st == 0 else acc))
                for t in vmo[2*k:2*k+2]: A.e(t)
                k += 1
    ST.stamp()
    A.e("s_nop 15")
    A.e("s_barrier")
    A.e("s_lshl_b32 s33, s28, 12")
    A.e("v_add_u32 v11, s33, v6")
    for b in range(4):
        ai = 2*(b & 1) + (b >> 1)
        for q4 in range(4):
            A.e(f"ds_write_b128 v11, {v(ACC+16*ai+4*q4,4)} offset:{b*16384+q4*1024}")
    A.e("s_waitcnt lgkmcnt(0)")
    A.e("s_barrier")
    A.e("s_lshl_b32 s33, s28, 14")
    A.e("v_add_u32 v11, s33, v6")
    for src in range(4):
        for q4 in range(4):
            A.e(f"ds_read_b128 {v(ACC+16*src+4*q4,4)}, v11 offset:{src*4096+q4*1024}")
    A.e("s_waitcnt lgkmcnt(0)")
    for r in range(16):
        A.e(f"v_add_f32 v{ACC+r}, v{ACC+r}, v{ACC+16+r}")
        A.e(f"v_add_f32 v{ACC+32+r}, v{ACC+32+r}, v{ACC+48+r}")
    for r in range(16):
        A.e(f"v_add_f32 v{ACC+r}, v{ACC+r}, v{ACC+32+r}")
    for d in range(8):
        A.e(f"v_lshlrev_b32 v{BR+2*d}, 16, v{XR+d}")
        A.e(f"v_and_b32 v{BR+2*d+1}, 0xffff0000, v{XR+d}")
    for r in range(16):
        A.e(f"v_fma_f32 v{ACC+r}, v{ACC+r}, v{GA+r}, v{BR+r}")
    for d in range(8):
        A.e(f"v_cvt_pk_bf16_f32 v{AR+d}, v{ACC+2*d}, v{ACC+2*d+1}")
    if kind == 'k2':
        A.e(f"s_add_u32 s42, s38, {X1_OFF}")
        A.e("s_addc_u32 s43, s39, 0")
        srd(A, 20, "s42", "s43", X1_BYTES)
        A.e(f"s_mul_i32 s50, s47, {28*1024}")
        A.e("s_lshl_b32 s51, s48, 11")
        A.e("s_add_u32 s50, s50, s51")
        for hf in range(2):
            A.e(f"buffer_store_dwordx4 {v(AR+4*hf,4)}, v6, s[20:23], s50 offen offset:{1024*hf}")
        for d in range(8):
            A.e(f"v_lshlrev_b32 v{BR+2*d}, 16, v{AR+d}")
            A.e(f"v_and_b32 v{BR+2*d+1}, 0xffff0000, v{AR+d}")
        A.e(f"v_add_f32 v12, v{BR}, v{BR+1}")
        for r in range(2, 16):
            A.e(f"v_add_f32 v12, v12, v{BR+r}")
        A.e("v_mov_b32 v13, v12")
        A.e("s_nop 1")
        A.e("v_permlane32_swap_b32 v12, v13")
        A.e("s_nop 1")
        A.e("v_add_f32 v12, v12, v13")
        A.e(f"v_mul_f32 v12, {f2u(1/32.):#x}, v12")
        for r in range(16):
            A.e(f"v_sub_f32 v{BR+r}, v{BR+r}, v12")
        A.e(f"v_mul_f32 v13, v{BR}, v{BR}")
        for r in range(1, 16):
            A.e(f"v_fmac_f32 v13, v{BR+r}, v{BR+r}")
        A.e("v_mov_b32 v14, v13")
        A.e("s_nop 1")
        A.e("v_permlane32_swap_b32 v13, v14")
        A.e("s_nop 1")
        A.e("v_add_f32 v13, v13, v14")
        A.e(f"s_add_u32 s42, s38, {ST_OFF}")
        A.e("s_addc_u32 s43, s39, 0")
        srd(A, 24, "s42", "s43", ST_BYTES)
        A.e("v_and_b32 v3, 31, v1")
        A.e("v_mul_u32_u24 v10, 112, v3")
        A.e("v_lshrrev_b32 v2, 5, v1")
        A.e("v_lshl_add_u32 v10, v2, 30, v10")
        A.e(f"s_mul_i32 s50, s47, {32*112}")
        A.e("s_lshl_b32 s51, s48, 3")
        A.e("s_add_u32 s50, s50, s51")
        A.e("buffer_store_dwordx2 v[12:13], v10, s[24:27], s50 offen")
    else:
        srd(A, 20, "s40", "s41", X_BYTES)
        A.e("v_and_b32 v3, 31, v1")
        A.e("v_lshrrev_b32 v2, 5, v1")
        A.e(f"v_mul_u32_u24 v10, 896, v3")
        A.e("v_lshl_add_u32 v10, v2, 3, v10")
        A.e(f"s_mul_i32 s50, s47, {32*896}")
        A.e("s_lshl_b32 s51, s48, 6")
        A.e("s_add_u32 s50, s50, s51")
        for aa in range(4):
            A.e(f"buffer_store_dwordx2 {v(AR+2*aa,2)}, v10, s[20:23], s50 offen offset:{16*aa}")
    ST.finish(f"{P}_END")
    A.label(f"{P}_END")
    A.e("s_endpgm")
    return name, 4*R*2048

def gen_k3(A):
    name = "k3_mlp1_kernel"
    H2 = 16
    ACC = 128
    AR = 192
    TG = 224
    MODL = 114688
    kernel_begin(A, name)
    A.e("s_cmp_ge_u32 s2, 224")
    A.e("s_cbranch_scc1 K3_END")
    ST = Stamps(A, DBG)
    ST.stamp()
    A.e("s_load_dwordx2 s[36:37], s[0:1], 48")
    A.e("s_load_dwordx2 s[38:39], s[0:1], 96")
    A.e("v_and_b32 v1, 63, v0")
    A.e("v_lshrrev_b32 v2, 6, v0")
    A.e("s_nop 0")
    A.e("v_readfirstlane_b32 s28, v2")
    if NEW:
        A.e("s_and_b32 s29, s2, 7")
        A.e("s_lshr_b32 s30, s2, 3")
        A.e("s_lshl_b32 s29, s29, 1")
        A.e("s_and_b32 s31, s30, 1")
        A.e("s_add_u32 s29, s29, s31")
        A.e("s_lshr_b32 s30, s30, 1")
    else:
        A.e("s_and_b32 s29, s2, 15")
        A.e("s_lshr_b32 s30, s2, 4")
    A.e("s_lshl_b32 s47, s29, 2")
    A.e("s_add_u32 s47, s47, s28")
    A.e("v_bfe_u32 v3, v1, 3, 2")
    A.e("v_mul_u32_u24 v4, 3584, v3")
    A.e("v_lshrrev_b32 v3, 5, v1")
    A.e("v_lshl_add_u32 v4, v3, 7, v4")
    A.e("v_bfe_u32 v3, v1, 4, 1")
    A.e("v_bfe_u32 v2, v1, 2, 1")
    A.e("v_xor_b32 v3, v3, v2")
    A.e("v_lshl_add_u32 v4, v3, 6, v4")
    A.e("v_and_b32 v3, 3, v1")
    A.e("v_lshl_add_u32 v4, v3, 4, v4")
    A.e("v_lshlrev_b32 v6, 4, v1")
    A.e("v_lshrrev_b32 v2, 5, v1")
    A.e("v_lshlrev_b32 v8, 10, v2")
    A.e("v_bfe_u32 v3, v1, 2, 2")
    A.e("v_lshl_add_u32 v8, v3, 7, v8")
    A.e("v_bfe_u32 v3, v1, 4, 1")
    A.e("v_lshl_add_u32 v8, v3, 5, v8")
    A.e("v_and_b32 v3, 3, v1")
    A.e("v_lshl_add_u32 v8, v3, 3, v8")
    A.e("v_bfe_u32 v3, v1, 3, 1")
    A.e("v_xor_b32 v5, 1, v3")
    A.e("v_lshl_add_u32 v7, v5, 6, v8")
    A.e("v_lshl_add_u32 v8, v3, 6, v8")
    A.e("v_add_u32 v9, 0x10000, v8")
    A.e("v_add_u32 v5, 0x10000, v7")
    A.e("s_waitcnt lgkmcnt(0)")
    A.e("s_lshl_b32 s33, s30, 8")
    A.e("s_add_u32 s36, s36, s33")
    A.e("s_addc_u32 s37, s37, 0")
    A.e(f"s_sub_u32 s34, {448*3584}, s33")
    srd(A, 8, "s36", "s37", "s34")
    A.e(f"s_mul_i32 s33, s47, {28*1024}")
    A.e(f"s_add_u32 s33, s33, {X1_OFF}")
    A.e("s_add_u32 s42, s38, s33")
    A.e("s_addc_u32 s43, s39, 0")
    srd(A, 12, "s42", "s43", 28*1024)
    A.e(f"s_add_u32 s42, s38, {ST_OFF}")
    A.e("s_addc_u32 s43, s39, 0")
    srd(A, 16, "s42", "s43", ST_BYTES)
    A.e(f"s_add_u32 s42, s38, {3*1792}")
    A.e("s_addc_u32 s43, s39, 0")
    srd(A, 20, "s42", "s43", 3584)
    A.e("v_and_b32 v3, 31, v1")
    A.e("v_mul_u32_u24 v10, 112, v3")
    A.e("v_mul_u32_u24 v11, 56, v2")
    A.e("v_add_u32 v10, v10, v11")
    A.e(f"s_mul_i32 s50, s47, {32*112}")
    for i in range(7):
        A.e(f"buffer_load_dwordx2 {v(ACC+2*i,2)}, v10, s[16:19], s50 offen offset:{8*i}")
    A.e("s_lshl_b32 s50, s28, 10")
    A.e(f"s_add_u32 m0, s50, {MODL}")
    A.e("s_nop 0")
    A.e("buffer_load_dwordx4 v6, s[20:23], s50 offen lds")
    for ks in range(28):
        if ks % 4 == 0:
            A.e(f"s_mov_b32 s50, {ks*1024}")
        A.e(f"buffer_load_dwordx4 {v(H2+4*ks,4)}, v6, s[12:15], s50 offen offset:{(ks%4)*1024}")
    A.e(f"s_lshl_b32 s51, s28, 10")
    A.e(f"s_mul_i32 s52, s28, {4*3584}")
    for j in range(28):
        A.e(f"s_add_u32 m0, s51, {j*4096}")
        A.e(f"s_add_u32 s50, s52, {j*16*3584}")
        A.e(f"buffer_load_dwordx4 v4, s[8:11], s50 offen lds")
    ST.stamp()
    A.e("s_waitcnt vmcnt(57)")
    ST.stamp()
    A.e(f"v_add_f32 v12, v{ACC}, v{ACC+2}")
    for i in range(2, 7):
        A.e(f"v_add_f32 v12, v12, v{ACC+2*i}")
    A.e("v_mov_b32 v13, v12")
    A.e("s_nop 1")
    A.e("v_permlane32_swap_b32 v12, v13")
    A.e("s_nop 1")
    A.e("v_add_f32 v12, v12, v13")
    A.e(f"v_mul_f32 v12, {f2u(1/14.):#x}, v12")
    A.e("v_mov_b32 v13, 0")
    for i in range(7):
        A.e(f"v_sub_f32 v14, v{ACC+2*i}, v12")
        A.e(f"v_mul_f32 v14, v14, v14")
        A.e(f"v_fma_f32 v14, v14, 4.0, 0")
        A.e(f"v_fma_f32 v13, v14, 4.0, v13")
        A.e(f"v_fma_f32 v13, v14, 4.0, v13")
        A.e(f"v_add_f32 v13, v13, v{ACC+2*i+1}")
    A.e("v_mov_b32 v14, v13")
    A.e("s_nop 1")
    A.e("v_permlane32_swap_b32 v13, v14")
    A.e("s_nop 1")
    A.e("v_add_f32 v13, v13, v14")
    A.e(f"v_mul_f32 v13, {f2u(1/448.):#x}, v13")
    A.e(f"v_add_f32 v13, {f2u(1e-5):#x}, v13")
    A.e("v_rsq_f32 v12+0, v13".replace("v12+0", "v14"))
    A.e("s_nop 0")
    A.e("v_mov_b32 v15, v14")
    A.e("v_mul_f32 v12, v12, v14")
    A.e("v_sub_f32 v12, 0, v12")
    A.e("v_mov_b32 v13, v12")
    A.e("s_waitcnt vmcnt(28)")
    A.e("s_barrier")
    ST.stamp()
    A.e("v_lshrrev_b32 v2, 5, v1")
    A.e("v_lshlrev_b32 v10, 4, v2")
    A.e(f"v_add_u32 v10, {MODL}, v10")
    def mod_reads(ks):
        b = TG + 16*(ks & 1)
        return [f"ds_read_b128 {v(b,4)}, v10 offset:{1792+ks*64}",
                f"ds_read_b128 {v(b+4,4)}, v10 offset:{1792+ks*64+32}",
                f"ds_read_b128 {v(b+8,4)}, v10 offset:{ks*64}",
                f"ds_read_b128 {v(b+12,4)}, v10 offset:{ks*64+32}"]
    for t in mod_reads(0): A.e(t)
    TU = AR
    for ks in range(28):
        if ks+1 < 28:
            for t in mod_reads(ks+1): A.e(t)
            A.e("s_waitcnt lgkmcnt(4)")
        else:
            A.e("s_waitcnt lgkmcnt(0)")
        b = TG + 16*(ks & 1)
        for d in range(4):
            r = H2+4*ks+d
            A.e(f"v_lshlrev_b32 v{TU+2*d}, 16, v{r}")
            A.e(f"v_and_b32 v{TU+2*d+1}, 0xffff0000, v{r}")
        for d in range(4):
            A.e(f"v_pk_fma_f32 {v(TU+2*d,2)}, {v(TU+2*d,2)}, v[14:15], v[12:13]")
        for d in range(4):
            A.e(f"v_pk_fma_f32 {v(TU+2*d,2)}, {v(TU+2*d,2)}, {v(b+2*d,2)}, {v(b+8+2*d,2)}")
        for d in range(4):
            A.e(f"v_cvt_pk_bf16_f32 v{H2+4*ks+d}, v{TU+2*d}, v{TU+2*d+1}")
    ST.stamp()
    A.e("s_waitcnt vmcnt(0)")
    A.e("s_barrier")
    ST.stamp()
    seq = [(ks, fb) for ks in range(28) for fb in range(4)]
    def rd(i):
        ks, fb = seq[i]
        off = ks*4096 + (fb >> 1)*512
        o = []
        for u in range(2):
            oo = off + u*2048
            base = (("v8", "v7") if oo < 65536 else ("v9", "v5"))[fb & 1]
            o.append(f"ds_read_b64_tr_b16 {v(AR+4*(i % 8)+2*u,2)}, {base} offset:{oo % 65536}")
        return o
    lg = Lgkm(A)
    L = 5
    for i in range(L):
        for t in rd(i): A.e(t); lg.issue(i)
    for i, (ks, fb) in enumerate(seq):
        w = lg.need({i})
        if w: A.e(w)
        acc = v(ACC+16*fb, 16)
        A.e(mfma(acc, v(AR+4*(i % 8), 4), v(H2+4*ks, 4), "0" if ks == 0 else acc))
        if i+L < len(seq):
            for t in rd(i+L): A.e(t); lg.issue(i+L)
    A.e("s_nop 15")
    ST.stamp()
    A.e(f"s_mul_i32 s33, s47, {112*1024}")
    A.e("s_lshl_b32 s34, s30, 13")
    A.e("s_add_u32 s33, s33, s34")
    A.e(f"s_add_u32 s33, s33, {HF_OFF}")
    A.e("s_add_u32 s42, s38, s33")
    A.e("s_addc_u32 s43, s39, 0")
    srd(A, 12, "s42", "s43", 8192)
    for fr in range(8):
        dst = H2 + 4*fr
        for r in range(4):
            A.e(f"v_cvt_pk_bf16_f32 v{dst+r}, v{ACC+8*fr+2*r}, v{ACC+8*fr+2*r+1}")
        for r in range(4):
            A.e(f"v_pk_max_i16 v{dst+r}, v{dst+r}, 0")
        if fr % 4 == 0:
            A.e(f"s_mov_b32 s50, {fr*1024}")
        A.e(f"buffer_store_dwordx4 {v(dst,4)}, v6, s[12:15], s50 offen offset:{(fr%4)*1024}")
    ST.finish("K3_END", 12)
    A.label("K3_END")
    A.e("s_endpgm")
    return name, MODL + 4096

def gen_k3n(A):
    name = "k3_mlp1_kernel"
    H2 = 16
    ACC = 128
    AR = 192
    kernel_begin(A, name)
    A.e("s_cmp_ge_u32 s2, 224")
    A.e("s_cbranch_scc1 K3_END")
    ST = Stamps(A, DBG)
    ST.stamp()
    A.e("s_load_dwordx2 s[40:41], s[0:1], 56")
    A.e("s_load_dwordx2 s[36:37], s[0:1], 48")
    A.e("s_load_dwordx2 s[38:39], s[0:1], 96")
    A.e("v_and_b32 v1, 63, v0")
    A.e("v_lshrrev_b32 v2, 6, v0")
    A.e("s_nop 0")
    A.e("v_readfirstlane_b32 s28, v2")
    A.e("s_and_b32 s29, s2, 7")
    A.e("s_lshr_b32 s30, s2, 3")
    A.e("s_lshl_b32 s29, s29, 1")
    A.e("s_and_b32 s31, s30, 1")
    A.e("s_add_u32 s29, s29, s31")
    A.e("s_lshr_b32 s30, s30, 1")
    A.e("s_lshl_b32 s47, s29, 2")
    A.e("s_add_u32 s47, s47, s28")
    A.e("v_bfe_u32 v3, v1, 3, 2")
    A.e("v_mul_u32_u24 v4, 3584, v3")
    A.e("v_lshrrev_b32 v3, 5, v1")
    A.e("v_lshl_add_u32 v4, v3, 7, v4")
    A.e("v_bfe_u32 v3, v1, 4, 1")
    A.e("v_bfe_u32 v2, v1, 2, 1")
    A.e("v_xor_b32 v3, v3, v2")
    A.e("v_lshl_add_u32 v4, v3, 6, v4")
    A.e("v_and_b32 v3, 3, v1")
    A.e("v_lshl_add_u32 v4, v3, 4, v4")
    A.e("v_lshlrev_b32 v6, 4, v1")
    A.e("v_lshrrev_b32 v2, 5, v1")
    A.e("v_lshlrev_b32 v8, 10, v2")
    A.e("v_bfe_u32 v3, v1, 2, 2")
    A.e("v_lshl_add_u32 v8, v3, 7, v8")
    A.e("v_bfe_u32 v3, v1, 4, 1")
    A.e("v_lshl_add_u32 v8, v3, 5, v8")
    A.e("v_and_b32 v3, 3, v1")
    A.e("v_lshl_add_u32 v8, v3, 3, v8")
    A.e("v_bfe_u32 v3, v1, 3, 1")
    A.e("v_xor_b32 v5, 1, v3")
    A.e("v_lshl_add_u32 v7, v5, 6, v8")
    A.e("v_lshl_add_u32 v8, v3, 6, v8")
    A.e("v_add_u32 v9, 0x10000, v8")
    A.e("v_add_u32 v5, 0x10000, v7")
    A.e("s_waitcnt lgkmcnt(0)")
    A.e("s_lshl_b32 s33, s30, 8")
    A.e("s_add_u32 s36, s36, s33")
    A.e("s_addc_u32 s37, s37, 0")
    A.e(f"s_sub_u32 s34, {448*3584}, s33")
    srd(A, 8, "s36", "s37", "s34")
    A.e(f"s_mul_i32 s33, s47, {28*1024}")
    A.e(f"s_add_u32 s33, s33, {H2_OFF}")
    A.e("s_add_u32 s42, s38, s33")
    A.e("s_addc_u32 s43, s39, 0")
    srd(A, 12, "s42", "s43", 28*1024)
    from k1b import Vm
    vm = Vm()
    A.e(f"s_lshl_b32 s51, s28, 10")
    A.e(f"s_mul_i32 s52, s28, {4*3584}")
    def chunk_loads(c):
        o = []
        for j in range(4*c, 4*c+4):
            o.append([f"s_add_u32 m0, s51, {j*4096}", f"s_add_u32 s50, s52, {j*16*3584}",
                      ("w", c, f"buffer_load_dwordx4 v4, s[8:11], s50 offen lds")])
        for j in range(4):
            o.append([f"s_mov_b32 s50, {c*4096}",
                      ("h", c, f"buffer_load_dwordx4 {v(H2+4*(4*c+j),4)}, v6, s[12:15], s50 offen offset:{j*1024}")])
        return o
    def emit_group(gr):
        for t in gr:
            if isinstance(t, tuple):
                A.e(t[2]); vm.issue((t[0], t[1]))
            else:
                A.e(t)
    NPRE = K3_PRE
    for c in range(NPRE):
        for gr in chunk_loads(c): emit_group(gr)
    ST.stamp()
    seq = [(ks, fb) for ks in range(28) for fb in range(4)]
    def rd(i):
        ks, fb = seq[i]
        off = ks*4096 + (fb >> 1)*512
        o = []
        for u in range(2):
            oo = off + u*2048
            base = (("v8", "v7") if oo < 65536 else ("v9", "v5"))[fb & 1]
            o.append(f"ds_read_b64_tr_b16 {v(AR+4*(i % 8)+2*u,2)}, {base} offset:{oo % 65536}")
        return o
    lg = Lgkm(A)
    L = 5
    A.e(vm.need({('w', 0), ('h', 0)}))
    A.e("s_barrier")
    ST.stamp()
    for i in range(L):
        for t in rd(i): A.e(t); lg.issue(i)
    pend = []
    for c in range(NPRE, 7): pend += chunk_loads(c)
    for i, (ks, fb) in enumerate(seq):
        w = lg.need({i})
        if w: A.e(w)
        acc = v(ACC+16*fb, 16)
        A.e(mfma(acc, v(AR+4*(i % 8), 4), v(H2+4*ks, 4), "0" if ks == 0 else acc))
        if i % 16 == 10 and i//16+1 < 7:
            c = i//16+1
            wv = vm.need({('w', c), ('h', c)})
            if wv: A.e(wv)
            A.e("s_barrier")
        if i+L < len(seq):
            for t in rd(i+L): A.e(t); lg.issue(i+L)
        if pend and i % 2 == 0:
            emit_group(pend.pop(0))
        if i == 60 and PFW2:
            srd(A, 16, "s40", "s41", 1792*896)
            A.e("s_lshr_b32 s33, s2, 3")
            A.e("s_mul_i32 s33, s33, 57344")
            A.e("v_lshlrev_b32 v10, 7, v0")
            A.e("buffer_load_dword v11, v10, s[16:19], s33 offen"); vm.issue('pf')
            A.e("v_add_u32 v10, 32768, v10")
            A.e("v_min_u32 v10, 57216, v10")
            A.e("buffer_load_dword v12, v10, s[16:19], s33 offen"); vm.issue('pf')
    assert not pend
    A.e("s_nop 15")
    ST.stamp()
    A.e(f"s_mul_i32 s33, s47, {112*1024}")
    A.e("s_lshl_b32 s34, s30, 13")
    A.e("s_add_u32 s33, s33, s34")
    A.e(f"s_add_u32 s33, s33, {HF_OFF}")
    A.e("s_add_u32 s42, s38, s33")
    A.e("s_addc_u32 s43, s39, 0")
    srd(A, 12, "s42", "s43", 8192)
    for fr in range(8):
        dst = H2 + 4*fr
        for r in range(4):
            A.e(f"v_cvt_pk_bf16_f32 v{dst+r}, v{ACC+8*fr+2*r}, v{ACC+8*fr+2*r+1}")
        for r in range(4):
            A.e(f"v_pk_max_i16 v{dst+r}, v{dst+r}, 0")
        if fr % 4 == 0:
            A.e(f"s_mov_b32 s50, {fr*1024}")
        A.e(f"buffer_store_dwordx4 {v(dst,4)}, v6, s[12:15], s50 offen offset:{(fr%4)*1024}")
    ST.finish("K3_END", 12)
    A.label("K3_END")
    A.e("s_endpgm")
    return name, 114688
```

```python
import sys
from asmlib import *
from layout import *
import k0, k1, k24, k1b, k2r

HEADER = open('adaLN_cond__gqa_block_cached__dense_activation_relu__prompt.s.ref').read().split("; Override launch")[0]

def build(dbg=None):
    launches = []; descs = []
    body = Asm()
    k24.NEW = True
    n = k0.gen_k0(body); launches.append((n, k0.K0_GRID, 256, 8192)); descs.append(descriptor(n, 104, 32, 104))
    n = k1b.gen_k1(body, dbg); launches.append((n, 256, 256, k1b.K1_LDS)); descs.append(descriptor(n, 512, 100, 256))
    n, lds = k2r.gen_k2r(body); launches.append((n, 256, 448, lds)); descs.append(descriptor(n, 96, 64, 96))
    n, lds = k24.gen_k3n(body); launches.append((n, 224, 256, lds)); descs.append(descriptor(n, 256, 100, 256))
    n, lds = k24.gen_gemm64(body, 'k4'); launches.append((n, 224, 256, lds)); descs.append(descriptor(n, 256, 100, 256))
    out = HEADER
    for n, g, b, lds in launches:
        out += f"; @launch kernel={n} grid=({g},1,1) block=({b},1,1) lds={lds}\n"
    out += '.amdgcn_target "amdgcn-amd-amdhsa--gfx950"\n.text\n'
    out += body.text()
    out += 'CODE_END:\n    s_endpgm\n'
    out += '.section .rodata,"a"\n.p2align 6\n'
    out += "\n.p2align 6\n".join(descs)
    return out

if __name__ == "__main__":
    dbg = sys.argv[2] if len(sys.argv) > 2 and sys.argv[2] != "none" else None
    k1.OPT['bias'] = 86
    k0.PFW = True; k0.K0_GRID = 176
    k1.OPT['pfkv'] = 0; k1.OPT['pfmall'] = 0
    for kv in sys.argv[3:]:
        k_, v_ = kv.split("=")
        if k_ == 'nopf':
            k0.PFW = False; k0.K0_GRID = 106; k2r.PF = False; k24.PFW2 = False; k1.OPT['pfwo'] = 0
            continue
        if k_ == 'pfcode':
            k0.PFCODE = bool(int(v_))
            continue
        if k_ == 'k3pre':
            k24.K3_PRE = int(v_)
            continue
        if k_ == 'gd': k24.GD = int(v_); continue
        if k_ == 'dbg24': k24.DBG = True; continue
        if k_ == 'pf': k0.PREFETCH = True; k0.K0_GRID = 138; continue
        k1.OPT[k_] = eval(v_)
    open(sys.argv[1], "w").write(build(dbg))
```

```python
from asmlib import *
from layout import *
import k1
from k1 import (Lgkm, mfma, f2u, KPIECE, KSLOT, VBASE, VSLOT, MODL, O0, S_, NEGM, P_, T_, L_,
                VKR, VVR, VKD, VVD, AQ, NRING, AK, AV, SRD_K, SRD_V, SRD_WQ, SRD_Y, SRD_M,
                S_W, S_KOFF, S_M0K, S_M0V, S_CNT, S_THR, THR_LOG2, OPT, LEAD,
                kread, softmax_ops, iteration, rare_path, reads_for_pos, distribute)

K1_LDS = 163840
SRD_WO = 16
WSLOT = [0, 28672, 132096, 66560, 95232]

class Vm:
    def __init__(self): self.q = []
    def issue(self, tag): self.q.append(tag)
    def need(self, tags):
        idx = -1
        for i, t in enumerate(self.q):
            if t in tags: idx = i
        if idx < 0: return None
        n = len(self.q) - 1 - idx
        self.q = self.q[idx+1:]
        assert n <= 63
        return f"s_waitcnt vmcnt({n})"

def gen_k1(A, dbg=None):
    name = "k1_attn_kernel"
    kernel_begin(A, name)
    ST = Stamps(A, dbg == "time", wg=OPT.get("dbgwg", 9), wave_sgpr=S_W)
    A.e("s_cmp_ge_u32 s2, 256")
    A.e("s_cbranch_scc1 K1_END")
    ST.stamp()
    A.e("s_load_dwordx4 s[36:39], s[0:1], 8")
    A.e("s_load_dwordx4 s[40:43], s[0:1], 24")
    A.e("s_load_dwordx2 s[62:63], s[0:1], 88")
    A.e("s_load_dwordx2 s[60:61], s[0:1], 96")
    A.e("s_load_dwordx2 s[20:21], s[0:1], 0")
    A.e("s_load_dwordx2 s[56:57], s[0:1], 64")
    A.e("s_load_dwordx2 s[96:97], s[0:1], 72")
    A.e("v_and_b32 v1, 63, v0")
    A.e("v_lshrrev_b32 v14, 6, v0")
    A.e("s_nop 0")
    A.e(f"v_readfirstlane_b32 s{S_W}, v14")
    A.e("s_and_b32 s44, s2, 7")
    A.e("s_lshr_b32 s45, s2, 3")
    A.e("s_lshl_b32 s45, s45, 1")
    A.e(f"s_and_b32 s46, s{S_W}, 1")
    A.e("s_add_u32 s45, s45, s46")
    A.e(f"s_lshr_b32 s47, s{S_W}, 1")
    A.e("v_bfe_u32 v14, v1, 2, 1")
    A.e("v_bfe_u32 v15, v1, 3, 1")
    A.e("v_and_b32 v12, 3, v1")
    A.e("v_lshlrev_b32 v12, 4, v12")
    A.e("v_lshrrev_b32 v13, 4, v1")
    A.e("v_lshl_add_u32 v12, v13, 7, v12")
    for n in range(4):
        A.e(f"v_xor_b32 v13, {n & 1}, v14")
        A.e(f"v_lshl_add_u32 v13, v13, 6, v12")
        A.e(f"v_lshl_add_u32 v13, v15, 13, v13")
        A.e(f"v_add_u32 v{2+n}, {2*n*8192 - n*1024}, v13")
    def tr_bases(dst, swap, add, ta, tb, tc, hshift=11):
        A.e(f"v_lshrrev_b32 v{tb}, 5, v1")
        A.e(f"v_lshlrev_b32 v{ta}, {hshift}, v{tb}")
        A.e(f"v_bfe_u32 v{tb}, v1, 3, 1")
        A.e(f"v_lshl_add_u32 v{ta}, v{tb}, 10, v{ta}")
        A.e(f"v_bfe_u32 v{tc}, v1, 2, 1")
        A.e(f"v_lshl_add_u32 v{ta}, v{tc}, 7, v{ta}")
        A.e(f"v_bfe_u32 v{tc}, v1, 4, 1")
        A.e(f"v_lshl_add_u32 v{ta}, v{tc}, 5, v{ta}")
        if swap:
            A.e(f"v_and_b32 v{tc}, 1, v1")
            A.e(f"v_lshl_add_u32 v{ta}, v{tc}, 4, v{ta}")
            A.e(f"v_bfe_u32 v{tc}, v1, 1, 1")
            A.e(f"v_lshl_add_u32 v{ta}, v{tc}, 3, v{ta}")
        else:
            A.e(f"v_and_b32 v{tc}, 3, v1")
            A.e(f"v_lshl_add_u32 v{ta}, v{tc}, 3, v{ta}")
        A.e(f"v_add_u32 v{ta}, {add}, v{ta}")
        A.e(f"v_lshl_add_u32 v{dst[0]}, v{tb}, 6, v{ta}")
        A.e(f"v_xor_b32 v{tb}, 1, v{tb}")
        A.e(f"v_lshl_add_u32 v{dst[1]}, v{tb}, 6, v{ta}")
    A.e("s_lshl_b32 s48, s47, 14")
    tr_bases([6, 7], True, "s48", 13, 14, 15, hshift=12)
    A.e("v_add_u32 v8, 0x10000, v6")
    A.e("v_add_u32 v9, 0x10000, v7")
    WQR = [[6, 7], [8, 9]]
    A.e("v_lshlrev_b32 v12, 4, v1")
    A.e("v_lshrrev_b32 v13, 5, v1")
    A.e("v_lshlrev_b32 v13, 5, v13")
    A.e(f"v_add_u32 v13, {MODL}, v13")
    A.e(f"s_lshl_b32 s49, s46, 17")
    A.e("s_lshl_b32 s50, s47, 9")
    A.e("s_add_u32 s49, s49, s50")
    A.e(f"s_lshl_b32 s48, s{S_W}, 13")
    A.e("s_waitcnt lgkmcnt(0)")
    A.e("s_and_b32 s21, s21, 0xffff")
    A.e(f"s_mov_b32 s22, {X_BYTES}")
    A.e("s_mov_b32 s23, 0x00020000")
    A.e("s_and_b32 s57, s57, 0xffff")
    A.e("s_mov_b32 s58, 896")
    A.e("s_mov_b32 s59, 0x00020000")
    A.e("s_and_b32 s97, s97, 0xffff")
    A.e(f"s_mov_b32 s98, {448*5376}")
    A.e("s_mov_b32 s99, 0x00020000")
    A.e("s_lshl_b32 s50, s44, 20")
    A.e("s_add_u32 s36, s36, s50")
    A.e("s_addc_u32 s37, s37, 0")
    A.e("s_sub_u32 s52, s36, 64")
    A.e("s_subb_u32 s53, s37, 0")
    srd(A, SRD_K, "s52", "s53", 1048576+64)
    A.e("s_add_u32 s38, s38, s50")
    A.e("s_addc_u32 s39, s39, 0")
    A.e("s_sub_u32 s52, s38, 32768")
    A.e("s_subb_u32 s53, s39, 0")
    srd(A, SRD_V, "s52", "s53", 1048576+32768)
    A.e("s_lshl_b32 s50, s44, 10")
    A.e("s_add_u32 s40, s40, s50")
    A.e("s_addc_u32 s41, s41, 0")
    A.e(f"s_sub_u32 s51, {448*8192}, s50")
    srd(A, SRD_WQ, "s40", "s41", "s51")
    YR = 16
    TG = 64
    TU = 96
    AY = 128
    XP = 912
    REDL = 136192
    def yreg(f): return YR + 4*(f % 6)
    vm = Vm()
    def wslot(s): return (s+2) % 4
    def wq_dma(s):
        out = []
        for grp in range(2):
            out.append(f"s_add_u32 m0, s48, {wslot(s)*32768 + grp*4096}")
            out.append(f"s_add_u32 s50, s49, {s*262144 + grp*65536}")
            for n in range(4):
                out.append(f"buffer_load_dwordx4 v{2+n}, s[{SRD_WQ}:{SRD_WQ+3}], s50 offen offset:{n*1024} lds")
                vm.issue(('wq', s))
        return out
    A.e("s_cmp_ge_u32 s2, 84")
    A.e("s_cbranch_scc1 K1_NOPROD1")
    A.e("v_and_b32 v14, 3, v0")
    A.e("v_lshrrev_b32 v15, 2, v0")
    A.e("v_lshlrev_b32 v120, 1, v15")
    A.e("v_mul_u32_u24 v121, 5376, v15")
    A.e("v_lshl_add_u32 v121, v14, 4, v121")
    A.e("s_lshl_b32 s52, s2, 6")
    for st in range(7):
        A.e(f"buffer_load_ushort v{156+st}, v120, s[56:59], 0 offen offset:{128*st}")
    for st in range(7):
        A.e(f"s_add_u32 s53, s52, {st*64*5376}")
        A.e(f"buffer_load_dwordx4 {v(128+4*st,4)}, v121, s[96:99], s53 offen")
    A.label("K1_NOPROD1")
    A.e("s_lshr_b32 s50, s2, 3")
    A.e(f"s_mul_i32 s50, s50, {64*896}")
    A.e(f"s_mul_i32 s51, s{S_W}, {16*896}")
    A.e("s_add_u32 s50, s50, s51")
    A.e(f"s_mul_i32 s51, s{S_W}, {16*XP}")
    A.e("s_mov_b32 exec_lo, -1")
    A.e("s_mov_b32 exec_hi, 0x00ffffff")
    for r in range(16):
        A.e(f"s_add_u32 m0, s51, {r*XP}")
        A.e(f"s_add_u32 s52, s50, {r*896}")
        A.e(f"buffer_load_dwordx4 v12, s[{SRD_Y}:{SRD_Y+3}], s52 offen lds")
        vm.issue('x')
    A.e("s_mov_b64 exec, -1")
    if not OPT.get('latewq', 1):
        wq01 = wq_dma(0) + wq_dma(1)
        for t in wq01: A.e(t)
        A.e("v_lshrrev_b32 v14, 3, v0")
        A.e("v_min_u32 v14, 13, v14")
        A.e("s_lshr_b32 s52, s2, 3")
        A.e("s_mul_i32 s52, s52, 14")
        A.e("v_add_u32 v14, s52, v14")
        A.e("v_lshlrev_b32 v14, 13, v14")
        A.e("v_and_b32 v15, 7, v0")
        A.e("v_lshl_add_u32 v14, v15, 7, v14")
        A.e(f"s_cmp_lt_u32 s{S_W}, 2")
        A.e("s_cbranch_scc0 K1_NOPFQ")
        A.e(f"buffer_load_dword v122, v14, s[{SRD_WQ}:{SRD_WQ+3}], 0 offen")
        A.label("K1_NOPFQ")
        A.e("v_and_b32 v14, 31, v1")
        A.e("v_lshlrev_b32 v14, 7, v14")
        A.e("s_lshr_b32 s52, s2, 3")
        A.e("s_lshl_b32 s52, s52, 12")
        A.e(f"s_cmp_eq_u32 s{S_W}, 2")
        A.e("s_cbranch_scc0 K1_NOPFK")
        A.e("s_add_u32 s52, s52, 64")
        A.e(f"buffer_load_dword v122, v14, s[{SRD_K}:{SRD_K+3}], s52 offen")
        A.label("K1_NOPFK")
        A.e(f"s_cmp_eq_u32 s{S_W}, 3")
        A.e("s_cbranch_scc0 K1_NOPFV")
        A.e("s_add_u32 s52, s52, 32768")
        A.e(f"buffer_load_dword v122, v14, s[{SRD_V}:{SRD_V+3}], s52 offen")
        A.label("K1_NOPFV")
    A.e("s_cmp_ge_u32 s2, 84")
    A.e("s_cbranch_scc1 K1_NOPROD2")
    A.e(f"s_waitcnt vmcnt({23 if OPT.get('latewq', 1) else 40})")
    A.e("s_mov_b32 s53, 0xbfb8aa3b")
    for st in range(7):
        x_ = 156+st
        A.e(f"v_lshlrev_b32 v{x_}, 16, v{x_}")
        A.e(f"v_mul_f32 v123, s53, v{x_}")
        A.e("v_exp_f32 v123, v123")
        A.e("s_nop 0")
        A.e("v_add_f32 v123, 1.0, v123")
        A.e("v_rcp_f32 v123, v123")
        A.e("s_nop 0")
        A.e(f"v_mul_f32 v123, v123, v{x_}")
        A.e("v_cvt_pk_bf16_f32 v123, v123, v123")
        A.e(f"v_lshlrev_b32 v{x_}, 16, v123")
    for r in range(8): A.e(f"v_mov_b32 v{164+r}, 0")
    A.e(f"s_waitcnt vmcnt({16 if OPT.get('latewq', 1) else 33})")
    for st in range(7):
        for d in range(4):
            w_ = 128+4*st+d
            A.e(f"v_lshlrev_b32 v123, 16, v{w_}")
            A.e(f"v_and_b32 v124, 0xffff0000, v{w_}")
            A.e(f"v_fmac_f32 v{164+2*d}, v123, v{156+st}")
            A.e(f"v_fmac_f32 v{164+2*d+1}, v124, v{156+st}")
    A.e("v_lshrrev_b32 v15, 2, v0")
    A.e("v_and_b32 v14, 3, v0")
    A.e("v_lshlrev_b32 v123, 7, v15")
    A.e("v_lshl_add_u32 v123, v14, 5, v123")
    A.e(f"v_add_u32 v123, {REDL+2048}, v123")
    A.e("ds_write_b128 v123, v[164:167]")
    A.e("ds_write_b128 v123, v[168:171] offset:16")
    A.e("s_waitcnt lgkmcnt(0)")
    A.e("s_barrier")
    A.e("v_and_b32 v14, 31, v0")
    A.e("v_lshrrev_b32 v15, 5, v0")
    A.e("v_lshlrev_b32 v123, 10, v15")
    A.e("v_lshl_add_u32 v123, v14, 2, v123")
    A.e(f"v_add_u32 v123, {REDL+2048}, v123")
    for r in range(8):
        A.e(f"ds_read_b32 v{128+r}, v123 offset:{128*r}")
    A.e("s_waitcnt lgkmcnt(0)")
    for r in range(1, 8): A.e(f"v_add_f32 v128, v128, v{128+r}")
    A.e("v_lshlrev_b32 v123, 2, v0")
    A.e(f"v_add_u32 v123, {REDL+2048+8192}, v123")
    A.e("ds_write_b32 v123, v128")
    A.e("s_waitcnt lgkmcnt(0)")
    A.e("s_barrier")
    A.e(f"s_cmp_eq_u32 s{S_W}, 0")
    A.e("s_cbranch_scc0 K1_NOPROD2")
    A.e("v_lshlrev_b32 v123, 2, v14")
    A.e(f"v_add_u32 v123, {REDL+2048+8192}, v123")
    for r in range(8):
        A.e(f"ds_read_b32 v{128+r}, v123 offset:{128*r}")
    A.e("s_waitcnt lgkmcnt(0)")
    for r in range(1, 8): A.e(f"v_add_f32 v128, v128, v{128+r}")
    A.e("v_cvt_pk_bf16_f32 v128, v128, v128")
    A.e("v_lshlrev_b32 v128, 16, v128")
    A.e("s_mul_i32 s52, s2, 4682")
    A.e("s_lshr_b32 s52, s52, 16")
    A.e("s_mov_b32 s53, 0")
    A.e("s_cmp_eq_u32 s52, 1")
    A.e("s_cselect_b32 s53, 1.0, s53")
    A.e("s_cmp_eq_u32 s52, 4")
    A.e("s_cselect_b32 s53, 1.0, s53")
    A.e("v_add_f32 v128, s53, v128")
    A.e("v_cvt_pk_bf16_f32 v128, v128, v128")
    A.e("v_lshlrev_b32 v128, 16, v128")
    A.e(f"s_mov_b32 s53, {f2u(CS):#x}")
    A.e("s_cmp_le_u32 s52, 1")
    A.e("s_cselect_b32 s53, s53, 1.0")
    A.e("v_mul_f32 v128, s53, v128")
    srd(A, 56, "s60", "s61", MOD_BYTES)
    A.e("s_lshl_b32 s52, s2, 7")
    A.e("v_lshlrev_b32 v123, 2, v1")
    A.e("v_cmp_gt_u32 vcc, 32, v1")
    A.e("s_and_saveexec_b64 s[54:55], vcc")
    A.e("buffer_store_dword v128, v123, s[56:59], s52 offen sc1")
    A.e("s_mov_b64 exec, s[54:55]")
    A.e("s_cmp_ge_u32 s2, 28")
    A.e("s_cbranch_scc1 K1_NOPROD2")
    A.e("s_waitcnt vmcnt(0)")
    A.e("v_mov_b32 v123, 0")
    A.e("v_mov_b32 v124, 1")
    A.e("v_cmp_eq_u32 vcc, 0, v1")
    A.e("s_and_saveexec_b64 s[54:55], vcc")
    A.e("global_atomic_add v123, v124, s[62:63] sc1")
    A.e("s_mov_b64 exec, s[54:55]")
    A.label("K1_NOPROD2")
    A.e(f"s_waitcnt vmcnt({0 if OPT.get('latewq', 1) else 17})")
    A.e("s_barrier")
    ST.stamp()
    if OPT.get('latewq', 1):
        wq01 = wq_dma(0) + wq_dma(1)
        for t in wq01: A.e(t)
        A.e("v_lshrrev_b32 v14, 3, v0")
        A.e("v_min_u32 v14, 13, v14")
        A.e("s_lshr_b32 s52, s2, 3")
        A.e("s_mul_i32 s52, s52, 14")
        A.e("v_add_u32 v14, s52, v14")
        A.e("v_lshlrev_b32 v14, 13, v14")
        A.e("v_and_b32 v15, 7, v0")
        A.e("v_lshl_add_u32 v14, v15, 7, v14")
        A.e(f"s_cmp_lt_u32 s{S_W}, 2")
        A.e("s_cbranch_scc0 K1_NOPFQ")
        A.e(f"buffer_load_dword v122, v14, s[{SRD_WQ}:{SRD_WQ+3}], 0 offen")
        A.label("K1_NOPFQ")
        A.e("v_and_b32 v14, 31, v1")
        A.e("v_lshlrev_b32 v14, 7, v14")
        A.e("s_lshr_b32 s52, s2, 3")
        A.e("s_lshl_b32 s52, s52, 12")
        A.e(f"s_cmp_eq_u32 s{S_W}, 2")
        A.e("s_cbranch_scc0 K1_NOPFK")
        A.e("s_add_u32 s52, s52, 64")
        A.e(f"buffer_load_dword v122, v14, s[{SRD_K}:{SRD_K+3}], s52 offen")
        A.label("K1_NOPFK")
        A.e(f"s_cmp_eq_u32 s{S_W}, 3")
        A.e("s_cbranch_scc0 K1_NOPFV")
        A.e("s_add_u32 s52, s52, 32768")
        A.e(f"buffer_load_dword v122, v14, s[{SRD_V}:{SRD_V+3}], s52 offen")
        A.label("K1_NOPFV")
    A.e("v_and_b32 v14, 31, v1")
    A.e("s_lshl_b32 s52, s46, 5")
    A.e("v_add_u32 v14, s52, v14")
    A.e(f"v_mul_u32_u24 v14, {XP}, v14")
    A.e("ds_read_u16 v72, v14")
    A.e("v_lshrrev_b32 v15, 5, v1")
    A.e("v_lshl_add_u32 v15, v15, 4, v14")
    A.e("s_mul_i32 s52, s47, 448")
    A.e("v_add_u32 v15, s52, v15")
    RAW = 16
    for f in range(14):
        A.e(f"ds_read_b128 {v(RAW+4*f,4)}, v15 offset:{32*f}")
    A.e("s_waitcnt lgkmcnt(14)")
    A.e("v_lshlrev_b32 v72, 16, v72")
    A.e("v_sub_f32 v72, 0, v72")
    A.e("v_mov_b32 v73, v72")
    for r in range(4): A.e(f"v_mov_b32 v{88+r}, 0")
    for f in range(14):
        A.e(f"s_waitcnt lgkmcnt({13-f})")
        for d in range(4):
            r = RAW+4*f+d
            A.e(f"v_lshlrev_b32 v{74+2*d}, 16, v{r}")
            A.e(f"v_and_b32 v{75+2*d}, 0xffff0000, v{r}")
        for d in range(4):
            A.e(f"v_pk_add_f32 {v(74+2*d,2)}, {v(74+2*d,2)}, v[72:73]")
        for d in range(4):
            A.e(f"v_pk_add_f32 v[88:89], v[88:89], {v(74+2*d,2)}")
            A.e(f"v_pk_fma_f32 v[90:91], {v(74+2*d,2)}, {v(74+2*d,2)}, v[90:91]")
    A.e("v_add_f32 v88, v88, v89")
    A.e("v_add_f32 v89, v90, v91")
    A.e("v_lshlrev_b32 v84, 3, v0")
    A.e(f"v_add_u32 v84, {REDL}, v84")
    A.e("ds_write_b64 v84, v[88:89]")
    A.e("s_waitcnt lgkmcnt(0)")
    A.e("s_barrier")
    A.e("v_and_b32 v84, 31, v1")
    A.e("v_lshlrev_b32 v84, 3, v84")
    A.e("s_lshl_b32 s52, s46, 9")
    A.e(f"s_add_u32 s52, s52, {REDL}")
    A.e("v_add_u32 v84, s52, v84")
    A.e("ds_read_b64 v[74:75], v84")
    A.e("ds_read_b64 v[76:77], v84 offset:256")
    A.e("ds_read_b64 v[78:79], v84 offset:1024")
    A.e("ds_read_b64 v[80:81], v84 offset:1280")
    A.e("s_waitcnt lgkmcnt(0)")
    A.e("v_pk_add_f32 v[74:75], v[74:75], v[76:77]")
    A.e("v_pk_add_f32 v[78:79], v[78:79], v[80:81]")
    A.e("v_pk_add_f32 v[74:75], v[74:75], v[78:79]")
    A.e(f"v_mul_f32 v74, {f2u(1/448.):#x}, v74")
    A.e(f"v_mul_f32 v75, {f2u(1/448.):#x}, v75")
    A.e("v_fma_f32 v75, -v74, v74, v75")
    A.e("v_max_f32 v75, 0, v75")
    A.e(f"v_add_f32 v75, {f2u(1e-5):#x}, v75")
    A.e("v_rsq_f32 v75, v75")
    A.e("v_sub_f32 v74, v74, v72")
    A.e("v_mov_b32 v76, v75")
    A.e("v_mov_b32 v77, v75")
    A.e("v_mul_f32 v78, v74, v75")
    A.e("v_sub_f32 v78, 0, v78")
    A.e("v_mov_b32 v79, v78")
    A.e("s_mul_i32 s52, s46, 28672")
    A.e("s_mul_i32 s53, s47, 14336")
    A.e("s_add_u32 s53, s53, s52")
    A.e("v_add_u32 v84, s53, v12")
    A.e("v_add_u32 v85, s52, v12")
    for f in range(14):
        tb = 96 + 8*(f & 1)
        for d in range(4):
            r = RAW+4*f+d
            A.e(f"v_lshlrev_b32 v{tb+2*d}, 16, v{r}")
            A.e(f"v_and_b32 v{tb+2*d+1}, 0xffff0000, v{r}")
        for d in range(4):
            A.e(f"v_pk_fma_f32 {v(tb+2*d,2)}, {v(tb+2*d,2)}, v[76:77], v[78:79]")
        for d in range(4):
            A.e(f"v_cvt_pk_bf16_f32 v{RAW+4*f+d}, v{tb+2*d}, v{tb+2*d+1}")
        A.e(f"ds_write_b128 v84, {v(RAW+4*f,4)} offset:{1024*f}")
    A.e("s_waitcnt lgkmcnt(0)")
    A.e("s_barrier")
    for f in range(28):
        A.e(f"ds_read_b128 {a(AY+4*f,4)}, v85 offset:{1024*f}")
    A.e(f"s_cmp_eq_u32 s{S_W}, 0")
    A.e("s_cbranch_scc0 K1_POLLED")
    A.e("v_mov_b32 v84, 0")
    A.e("s_mov_b32 s52, 0")
    A.label("K1_POLL")
    A.e("global_load_dword v85, v84, s[62:63] sc1")
    A.e("s_waitcnt vmcnt(0)")
    A.e("v_readfirstlane_b32 s53, v85")
    A.e("s_cmp_ge_u32 s53, 28")
    A.e("s_cbranch_scc1 K1_POLLED")
    A.e("s_sleep 4")
    A.e("s_add_u32 s52, s52, 1")
    A.e("s_cmp_lt_u32 s52, 0x40000")
    A.e("s_cbranch_scc1 K1_POLL")
    A.label("K1_POLLED")
    A.e("s_waitcnt lgkmcnt(0)")
    A.e("s_barrier")
    srd(A, SRD_M, "s60", "s61", 3584)
    A.e("v_lshlrev_b32 v84, 4, v0")
    A.e(f"buffer_load_dwordx4 v[76:79], v84, s[{SRD_M}:{SRD_M+3}], 0 offen sc1")
    vm2 = wq_dma(2)
    for t in vm2: A.e(t)
    A.e(f"v_add_u32 v84, {MODL}, v84")
    A.e("s_waitcnt vmcnt(8)")
    A.e("ds_write_b128 v84, v[76:79]")
    A.e("s_waitcnt lgkmcnt(0)")
    vm.q = [('wq', 2)]*8
    A.e("s_barrier")
    ST.stamp()
    lg = Lgkm(A)
    def ln_ops(f):
        b = TG + 16*(f & 1)
        rd = [(('m', f, 0), f"ds_read_b128 {v(b,4)}, v13 offset:{1792+f*64}"),
              (('m', f, 1), f"ds_read_b128 {v(b+4,4)}, v13 offset:{1792+f*64+16}"),
              (('m', f, 2), f"ds_read_b128 {v(b+8,4)}, v13 offset:{f*64}"),
              (('m', f, 3), f"ds_read_b128 {v(b+12,4)}, v13 offset:{f*64+16}")]
        tu = TU + 8*(f & 1)
        va = []
        for d in range(4):
            va.append(f"v_accvgpr_read_b32 v{yreg(f)+d}, a{AY+4*f+d}")
        for d in range(4):
            r = yreg(f)+d
            va.append(f"v_lshlrev_b32 v{tu+2*d}, 16, v{r}")
            va.append(f"v_and_b32 v{tu+2*d+1}, 0xffff0000, v{r}")
        vb = []
        for d in range(4):
            vb.append(f"v_pk_fma_f32 {v(tu+2*d,2)}, {v(tu+2*d,2)}, {v(b+2*d,2)}, {v(b+8+2*d,2)}")
        for d in range(4):
            vb.append(f"v_cvt_pk_bf16_f32 v{yreg(f)+d}, v{tu+2*d}, v{tu+2*d+1}")
        return rd, va, vb
    for f in (0, 1):
        rd, va, vb = ln_ops(f)
        for t, txt in rd: A.e(txt); lg.issue(t)
        for txt in va: A.e(txt)
        A.e(lg.need({('m', f, 3)}))
        for txt in vb: A.e(txt)
    QL = 4
    def q_reads(s, p):
        if p >= 16:
            s, p = s+1, p-16
            if s >= 14: return []
        db, ks = p >> 1, p & 1
        sl = wslot(s)
        o = []
        for u in range(2):
            off = (sl & 1)*32768 + ks*8192 + u*2048 + (db >> 1)*256
            o.append((('q', s, p, u), f"ds_read_b64_tr_b16 {a(AV+4*(p % NRING)+2*u,2)}, v{WQR[sl >> 1][db & 1]} offset:{off}"))
        return o
    for p in range(QL):
        for t, txt in q_reads(0, p):
            A.e(txt); lg.issue(t)
    def k_dma(blk):
        out = [f"s_add_u32 m0, s{S_M0K}, {(blk % 4)*KSLOT}", f"s_mov_b32 s50, {blk*16384}"]
        for n in range(4):
            out.append(f"buffer_load_dwordx4 v{VKD2[n]}, s[{SRD_K}:{SRD_K+3}], s50 offen offset:{n*KPIECE} lds")
            vm.issue(('k', blk))
        return out
    def v_dma(blk):
        out = [f"s_add_u32 m0, s{S_M0V}, {(blk % 4)*VSLOT}", f"s_mov_b32 s50, {blk*16384+32768}"]
        for n in range(4):
            out.append(f"buffer_load_dwordx4 v{VVD2[n & 1]}, s[{SRD_V}:{SRD_V+3}], s50 offen offset:{n*1024} lds")
            vm.issue(('v', blk))
        return out
    VKD2 = [112, 113, 114, 115]
    VVD2 = [116, 117]
    def kv_addr_setup():
        o = []
        e = o.append
        e("v_lshrrev_b32 v118, 5, v1")
        e("v_and_b32 v119, 31, v1")
        e("v_lshlrev_b32 v117, 3, v118")
        e("v_xor_b32 v119, v119, v117")
        e("v_lshlrev_b32 v119, 4, v119")
        e("v_lshl_add_u32 v119, v118, 9, v119")
        e(f"s_lshl_b32 s51, s{S_W}, 12")
        e("s_add_u32 s54, s51, 64")
        e(f"v_add_u32 v{VKD2[0]}, s54, v119")
        for n in range(1, 4):
            e(f"v_subrev_u32 v{VKD2[n]}, {16*n}, v{VKD2[0]}")
        e("v_bfe_u32 v118, v1, 2, 1")
        e("v_bfe_u32 v119, v1, 3, 1")
        e("v_and_b32 v117, 3, v1")
        e("v_lshlrev_b32 v117, 4, v117")
        e("v_lshl_add_u32 v117, v119, 9, v117")
        e("v_lshrrev_b32 v119, 4, v1")
        e("v_lshl_add_u32 v117, v119, 7, v117")
        e("v_add_u32 v117, s51, v117")
        e(f"v_lshl_add_u32 v{VVD2[0]}, v118, 6, v117")
        e("v_xor_b32 v118, 1, v118")
        e(f"v_lshl_add_u32 v{VVD2[1]}, v118, 6, v117")
        e(f"s_add_u32 s{S_M0V}, s51, {VBASE}")
        e(f"s_mul_i32 s{S_M0K}, s{S_W}, {4*KPIECE}")
        return o
    for t in kv_addr_setup(): A.e(t)
    for s_ in range(14):
        gaps = [[] for _ in range(16)]
        needs = set()
        if s_+1 < 14: needs |= {('wq', s_+1)}
        w = vm.need(needs) if needs else None
        if s_ < 13 or True:
            gaps[0] += ([w] if w else []) + ["s_barrier"]
        fill = []
        if s_+3 < 14: fill += wq_dma(s_+3)
        if s_ == 12:
            for blk in (0, 1, 2): fill += k_dma(blk)
        if s_ == 13:
            fill += k_dma(3) + v_dma(0)
        n = len(fill)
        for i, t in enumerate(fill):
            gaps[1 + (i*14)//max(n, 1)].append(t)
        lnseq = []
        if s_+1 < 14:
            r0, a0, b0 = ln_ops(2*s_+2)
            r1, a1, b1 = ln_ops(2*s_+3)
            lnseq = [('rd', r0), ('v', a0), ('rd', r1), ('need', 2*s_+2), ('v', b0), ('v', a1), ('need', 2*s_+3), ('v', b1)]
        items = []
        for kind, x in lnseq:
            if kind == 'rd':
                for t, txt in x: items.append(('rd', t, txt))
            elif kind == 'v':
                for txt in x: items.append(('v', None, txt))
            else:
                items.append(('need', x, None))
        lgaps = [[] for _ in range(16)]
        for i, it in enumerate(items):
            lgaps[1 + (i*14)//max(len(items), 1)].append(it)
        for p in range(16):
            w2 = lg.need({('q', s_, p, 0), ('q', s_, p, 1)})
            if w2: A.e(w2)
            db, ks = p >> 1, p & 1
            acc = v(O0+16*db, 16)
            first = (s_ == 0 and ks == 0)
            A.e(mfma(acc, a(AV+4*(p % NRING), 4), v(yreg(2*s_+ks), 4), "0" if first else acc))
            for t, txt in q_reads(s_, p+QL):
                A.e(txt); lg.issue(t)
            for txt in gaps[p]: A.e(txt)
            for kind, t, txt in lgaps[p]:
                if kind == 'rd':
                    A.e(txt); lg.issue(t)
                elif kind == 'v':
                    A.e(txt)
                else:
                    w3 = lg.need({('m', t, 3)})
                    if w3: A.e(w3)
    ST.stamp()
    A.e("s_barrier")
    for t in v_dma(1): A.e(t)
    for n in range(4): A.e(f"v_mov_b32 v{VKD[n]}, v{VKD2[n]}")
    for n in range(2): A.e(f"v_mov_b32 v{VVD[n]}, v{VVD2[n]}")
    A.e("v_bfe_u32 v14, v1, 1, 4")
    A.e(f"v_mul_u32_u24 v14, {KPIECE}, v14")
    A.e("v_and_b32 v15, 1, v1")
    A.e("v_lshl_add_u32 v14, v15, 9, v14")
    A.e("v_lshrrev_b32 v2, 5, v1")
    A.e("v_lshl_add_u32 v14, v2, 4, v14")
    A.e("v_lshlrev_b32 v15, 7, v15")
    A.e(f"v_add_u32 v{VKR[0]}, v14, v15")
    A.e(f"v_sub_u32 v{VKR[1]}, v14, v15")
    tr_bases(VVR, False, VBASE, 16, 17, 18)
    for db in range(8):
        for r in range(8):
            A.e(f"v_cvt_pk_bf16_f32 v{T_+(r & 3)}, v{O0+16*db+2*r}, v{O0+16*db+2*r+1}")
            A.e(f"v_accvgpr_write_b32 a{AQ+8*db+r}, v{T_+(r & 3)}")
    A.e(vm.need({('k', 0), ('k', 1)}))
    A.e("s_barrier")
    lg = Lgkm(A)
    seq = [(b, ks) for b in range(2) for ks in range(16)]
    KL = 4
    for i in range(KL):
        b, ks = seq[i]
        A.e(kread(b, ks, i % NRING)); lg.issue(i)
    zero = [f"v_mov_b32 v{O0+r}, 0" for r in range(128)]
    for i, (b, ks) in enumerate(seq):
        w = lg.need({i})
        if w: A.e(w)
        A.e(mfma(v(S_[b], 16), a(AK+4*(i % NRING), 4), a(AQ+4*ks, 4), "0" if ks == 0 else v(S_[b], 16)))
        if i+KL < 32:
            b2, ks2 = seq[i+KL]
            A.e(kread(b2, ks2, (i+KL) % NRING)); lg.issue(i+KL)
        for t in zero[4*i:4*i+4]: A.e(t)
    A.e("s_barrier")
    VKD2[:] = VKD; VVD2[:] = VVD
    for t in v_dma(2): A.e(t)
    for t in k_dma(4): A.e(t)
    A.e(f"s_mov_b32 s{S_KOFF}, {5*16384}")
    A.e(f"s_mov_b32 s{S_THR}, {f2u(2.0**(THR_LOG2-OPT['bias'])):#x}")
    A.e("s_nop 7")
    t0, t1 = T_, T_+1
    A.e(f"v_max3_f32 v{t0}, v{S_[0]}, v{S_[0]+1}, v{S_[0]+2}")
    allS = [S_[0]+j for j in range(3, 16)] + [S_[1]+j for j in range(16)]
    for j in range(0, len(allS)-1, 2):
        A.e(f"v_max3_f32 v{t0}, v{t0}, v{allS[j]}, v{allS[j+1]}")
    A.e(f"v_max_f32 v{t0}, v{t0}, v{allS[-1]}")
    A.e(f"v_mov_b32 v{t1}, v{t0}")
    A.e("s_nop 1")
    A.e(f"v_permlane32_swap_b32 v{t0}, v{t1}")
    A.e("s_nop 1")
    A.e(f"v_max_f32 v{t0}, v{t0}, v{t1}")
    if OPT['bias']:
        A.e(f"v_add_f32 v{t0}, {f2u(float(OPT['bias'])):#x}, v{t0}")
    for r in range(16):
        A.e(f"v_sub_f32 v{NEGM+r}, 0, v{t0}")
    for b in range(2):
        for r in range(16):
            A.e(f"v_sub_f32 v{S_[b]+r}, v{S_[b]+r}, v{t0}")
    A.e(f"v_mov_b32 v{L_[1]}, 0")
    for c, t in softmax_ops(S_[0], P_[0], L_[1], L_[0]):
        A.e(t)
    A.e("s_waitcnt vmcnt(8)")
    A.e("s_barrier")
    ST.stamp()
    if dbg == "time": A.e("s_waitcnt lgkmcnt(0)")
    for p in range(LEAD):
        for t, txt in reads_for_pos(0, p, True, True, True, True):
            A.e(txt)
    if OPT.get('pfkv', 1):
        A.e(f"s_cmp_lt_u32 s{S_W}, 2")
        A.e("s_cselect_b32 s96, s36, s38")
        A.e("s_cselect_b32 s97, s37, s39")
        A.e("s_and_b32 s97, s97, 0xffff")
        A.e("s_mov_b32 s98, 1048576")
        A.e("s_mov_b32 s99, 0x00020000")
        A.e("v_and_b32 v19, 7, v1")
        A.e("v_lshlrev_b32 v19, 7, v19")
        A.e("s_lshr_b32 s50, s2, 3")
        A.e("s_lshl_b32 s50, s50, 11")
        A.e("s_lshl_b32 s51, s46, 10")
        A.e("s_add_u32 s50, s50, s51")
        A.e("v_add_u32 v19, s50, v19")
    if OPT.get('pfmall', 1):
        A.e("s_load_dwordx4 s[52:55], s[0:1], 48")
        A.e("s_waitcnt lgkmcnt(0)")
        A.e("s_cmp_lt_u32 s46, 1")
        A.e("s_cselect_b32 s56, s52, s54")
        A.e("s_cselect_b32 s57, s53, s55")
        A.e("s_and_b32 s57, s57, 0xffff")
        A.e(f"s_mov_b32 s58, {448*3584}")
        A.e("s_mov_b32 s59, 0x00020000")
        A.e("s_mul_i32 s50, s2, 6272")
        A.e("v_lshlrev_b32 v20, 7, v1")
        A.e("v_min_u32 v20, 6144, v20")
        A.e(f"s_cmp_lt_u32 s{S_W}, 2")
        A.e("s_cbranch_scc0 K1_NOMALL")
        A.e("buffer_load_dword v21, v20, s[56:59], s50 offen")
        A.label("K1_NOMALL")
    A.e(f"s_mov_b32 s{S_CNT}, 15")
    A.raw(".p2align 6")
    A.label("K1_LOOP")
    if OPT.get('pfkv', 1):
        A.e(f"s_add_u32 s50, s{S_KOFF}, {7*16384}")
        A.e("buffer_load_dword v22, v19, s[96:99], s50 offen")
    if OPT.get('pfwo', 1):
        A.e(f"s_cmp_lg_u32 s{S_CNT}, 4")
        A.e("s_cbranch_scc1 K1_NOPF")
        A.e(f"s_mul_i32 s50, s44, {512*896}")
        A.e("s_add_u32 s56, s42, s50")
        A.e("s_addc_u32 s57, s43, 0")
        A.e("s_and_b32 s57, s57, 0xffff")
        A.e(f"s_mov_b32 s58, {512*896}")
        A.e("s_mov_b32 s59, 0x00020000")
        A.e("s_lshr_b32 s50, s2, 3")
        A.e("s_mul_i32 s50, s50, 14336")
        A.e("v_lshlrev_b32 v14, 7, v0")
        A.e("v_min_u32 v14, 14208, v14")
        A.e("buffer_load_dword v15, v14, s[56:59], s50 offen")
        A.label("K1_NOPF")
    for ph in range(4):
        iteration(A, ph, f"M{ph}")
    A.e(f"s_sub_u32 s{S_CNT}, s{S_CNT}, 1")
    A.e(f"s_cmp_lg_u32 s{S_CNT}, 0")
    A.e("s_cbranch_scc1 K1_LOOP")
    if dbg == "time":
        ST.stamp()
    A.e(f"s_mul_i32 s50, s44, {512*896}")
    A.e("s_add_u32 s42, s42, s50")
    A.e("s_addc_u32 s43, s43, 0")
    srd(A, SRD_WO, "s42", "s43", 512*896)
    GOFF = 34
    for n in range(7):
        A.e(f"s_mul_i32 s50, s{S_W}, 7")
        A.e(f"s_add_u32 s50, s50, {n}")
        A.e("s_cmp_ge_u32 s50, 14")
        A.e("s_cselect_b32 s51, 14, 0")
        A.e(f"s_cselect_b32 s52, {16*896}, 0")
        A.e("s_sub_u32 s50, s50, s51")
        A.e("s_and_b32 s51, s50, 1")
        A.e(f"s_mul_i32 s51, s51, {8*896}")
        A.e("s_lshr_b32 s50, s50, 1")
        A.e("s_lshl_b32 s50, s50, 7")
        A.e("s_add_u32 s50, s50, s51")
        A.e(f"s_add_u32 s{GOFF+n}, s50, s52")
    A.e(f"s_mul_i32 s41, s{S_W}, 7168")
    A.e("v_lshrrev_b32 v16, 3, v1")
    A.e("v_mul_u32_u24 v14, 896, v16")
    A.e("v_bfe_u32 v16, v1, 4, 1")
    A.e("v_bfe_u32 v17, v1, 2, 1")
    A.e("v_xor_b32 v16, v16, v17")
    A.e("v_lshl_add_u32 v14, v16, 6, v14")
    A.e("v_and_b32 v16, 3, v1")
    A.e("v_lshl_add_u32 v14, v16, 4, v14")
    vme = Vm()
    def wo_dma(t):
        out = []
        for n in range(7):
            out.append(f"s_add_u32 m0, s41, {WSLOT[t % 5] + n*1024}")
            out.append(f"s_add_u32 s50, s{GOFF+n}, {t*32*896}")
            out.append(f"buffer_load_dwordx4 v14, s[{SRD_WO}:{SRD_WO+3}], s50 offen lds")
            vme.issue(('wo', t))
        return out
    def spread(lst, lo, hi):
        d = {}
        trip = [lst[i:i+3] for i in range(0, len(lst), 3)]
        for i, tr3 in enumerate(trip):
            g = lo + (i*(hi-lo+1))//len(trip)
            d.setdefault(g, []).extend(tr3)
        return d
    iteration(A, 0, "T0", dma_k=False, dma_v=True, vmwait=8)
    iteration(A, 1, "T1", dma_k=False, dma_v=False, vmwait=4, nxt_qk=False)
    iteration(A, 2, "T2", do_qk=False, dma_k=False, dma_v=False, vmwait=0, nxt_qk=False,
              extra=spread(wo_dma(0) + wo_dma(1)[:12], 1, 30))
    vme.q = [('wo', 0)]*7 + [('wo', 1)]*4
    rest1 = []
    for n in range(4, 7):
        rest1 += [f"s_add_u32 m0, s41, {WSLOT[1] + n*1024}", f"s_add_u32 s50, s{GOFF+n}, {32*896}",
                  f"buffer_load_dwordx4 v14, s[{SRD_WO}:{SRD_WO+3}], s50 offen lds"]
        vme.issue(('wo', 1))
    iteration(A, 3, "T3", do_qk=False, do_sm=False, dma_k=False, dma_v=False, nxt_pv=False, nxt_qk=False, barrier=False,
              extra=spread(rest1 + wo_dma(2), 1, 30))
    Lf = L_[1]
    OP = 64
    A.e(f"v_mov_b32 v{t0}, v{Lf}")
    A.e(f"v_mov_b32 v{t1}, v{Lf}")
    A.e("s_nop 1")
    A.e(f"v_permlane32_swap_b32 v{t0}, v{t1}")
    A.e("s_nop 1")
    A.e(f"v_add_f32 v{t0}, v{t0}, v{t1}")
    A.e(f"v_rcp_f32 v{t0}, v{t0}")
    A.e("s_lshl_b32 s50, s46, 1")
    A.e("s_add_u32 s50, s50, s47")
    A.e("s_lshl_b32 s50, s50, 14")
    A.e(f"s_add_u32 s50, s50, {VBASE}")
    A.e("v_lshlrev_b32 v12, 4, v1")
    A.e("v_add_u32 v15, s50, v12")
    A.e("s_barrier")
    for fr in range(16):
        base = O0 + 8*fr
        for r in range(8):
            A.e(f"v_mul_f32 v{base+r}, v{base+r}, v{t0}")
        for r in range(4):
            A.e(f"v_cvt_pk_bf16_f32 v{OP+4*fr+r}, v{base+2*r}, v{base+2*r+1}")
        A.e(f"ds_write_b128 v15, {v(OP+4*fr,4)} offset:{fr*1024}")
    A.e("s_waitcnt lgkmcnt(0)")
    A.e("s_barrier")
    A.e("s_lshl_b32 s50, s46, 15")
    A.e(f"s_add_u32 s50, s50, {VBASE}")
    A.e("v_add_u32 v15, s50, v12")
    for kk in range(32):
        A.e(f"ds_read_b128 {a(4*kk,4)}, v15 offset:{kk*1024}")
    A.e("v_lshrrev_b32 v16, 5, v1")
    A.e("v_lshlrev_b32 v17, 9, v16")
    A.e("v_bfe_u32 v16, v1, 2, 2")
    A.e("v_lshl_add_u32 v17, v16, 7, v17")
    A.e("v_bfe_u32 v16, v1, 4, 1")
    A.e("v_lshl_add_u32 v17, v16, 5, v17")
    A.e("v_and_b32 v16, 3, v1")
    A.e("v_lshl_add_u32 v17, v16, 3, v17")
    A.e("v_bfe_u32 v16, v1, 3, 1")
    A.e("v_xor_b32 v18, s47, v16")
    A.e("v_lshl_add_u32 v2, v18, 6, v17")
    A.e("v_xor_b32 v18, 1, v18")
    A.e("v_lshl_add_u32 v3, v18, 6, v17")
    A.e(f"s_mul_i32 s50, s47, {3*2048}")
    A.e(f"s_mul_i32 s51, s47, {4*2048}")
    A.e("v_add_u32 v2, s50, v2")
    A.e("v_add_u32 v3, s51, v3")
    A.e(f"v_add_u32 v4, {WSLOT[2]}, v2")
    A.e(f"v_add_u32 v5, {WSLOT[2]}, v3")
    A.e(f"v_add_u32 v6, {WSLOT[3]}, v2")
    A.e(f"v_add_u32 v7, {WSLOT[3]}, v3")
    A.e("s_waitcnt lgkmcnt(0)")
    A.e("s_barrier")
    for t in wo_dma(3) + wo_dma(4): A.e(t)
    def wbase(slot, c):
        e = c & 1
        if slot in (0, 1): return (2+e, WSLOT[slot])
        if slot == 2: return (4+e, 0)
        return (6+e, WSLOT[slot]-WSLOT[3])
    ARG = AV
    ARG = 128
    def o_reads(t, p):
        if p >= 14:
            t, p = t+1, p-14
            if t >= 16: return []
        ksl, c = p // 7, p % 7
        b, off = wbase(t % 5, c)
        o = []
        for u in range(2):
            o.append((('o', t, p, u), f"ds_read_b64_tr_b16 {a(ARG+4*((14*t+p) % NRING)+2*u,2)}, v{b} offset:{off + ksl*14336 + (c >> 1)*2048 + u*1024}"))
        return o
    lg = Lgkm(A)
    OL = 4
    A.e(vme.need({('wo', 0)}))
    A.e("s_barrier")
    for p in range(OL):
        for t_, txt in o_reads(0, p): A.e(txt); lg.issue(t_)
    ACC = O0
    for t in range(16):
        gaps = [[] for _ in range(14)]
        if t+1 < 16:
            w = vme.need({('wo', t+1)})
            gaps[0] += ([w] if w else []) + ["s_barrier"]
        if t >= 1 and t+4 < 16:
            d = wo_dma(t+4)
            sp = spread(d, 1, 12)
            for g_, l_ in sp.items(): gaps[g_] += l_
        for p in range(14):
            w2 = lg.need({('o', t, p, 0), ('o', t, p, 1)})
            if w2: A.e(w2)
            ksl, c = p // 7, p % 7
            acc = v(ACC+16*c, 16)
            first = (t == 0 and ksl == 0)
            A.e(mfma(acc, a(ARG+4*((14*t+p) % NRING), 4), a(4*(2*t+ksl), 4), "0" if first else acc))
            for t_, txt in o_reads(t, p+OL): A.e(txt); lg.issue(t_)
            for txt in gaps[p]: A.e(txt)
    ST.stamp()
    A.e("s_lshl_b32 s50, s44, 6")
    A.e("s_add_u32 s50, s50, s45")
    A.e("s_mul_i32 s50, s50, 28672")
    A.e(f"s_mul_i32 s51, s47, {14*1024}")
    A.e("s_add_u32 s50, s50, s51")
    A.e(f"s_add_u32 s50, s50, {PART_OFF}")
    A.e("s_add_u32 s52, s60, s50")
    A.e("s_addc_u32 s53, s61, 0")
    srd(A, SRD_Y, "s52", "s53", 14*1024)
    A.e("s_nop 7")
    for fr in range(14):
        dst = OP + 4*(fr % 16)
        for r in range(4):
            A.e(f"v_cvt_pk_bf16_f32 v{dst+r}, v{ACC+8*fr+2*r}, v{ACC+8*fr+2*r+1}")
        if fr % 4 == 0:
            A.e(f"s_mov_b32 s50, {fr*1024}")
        A.e(f"buffer_store_dwordx4 {v(dst,4)}, v12, s[{SRD_Y}:{SRD_Y+3}], s50 offen offset:{(fr%4)*1024}")
    ST.finish("K1_END")
    A.label("K1_END")
    A.e("s_endpgm")
    if not OPT['no_sm']:
        for ph in range(4):
            rare_path(A, ph, f"M{ph}")
        rare_path(A, 0, "T0")
        rare_path(A, 1, "T1")
        rare_path(A, 2, "T2", do_qk=False)
    return name
```

```python
from asmlib import *
from layout import *
from k1 import f2u
DBG = False
PF = True
XDIRECT = False

def gen_k2r(A):
    name = "k2_reduce_kernel"
    kernel_begin(A, name)
    A.e("s_cmp_ge_u32 s2, 256")
    A.e("s_cbranch_scc1 K2R_END")
    A.e("s_load_dwordx2 s[38:39], s[0:1], 96")
    A.e("s_load_dwordx2 s[40:41], s[0:1], 48")
    A.e("s_load_dwordx2 s[46:47], s[0:1], 0")
    A.e("s_and_b32 s29, s2, 7")
    A.e("s_lshr_b32 s30, s2, 3")
    A.e("s_lshl_b32 s29, s29, 3")
    A.e("s_lshr_b32 s31, s30, 2")
    A.e("s_add_u32 s29, s29, s31")
    A.e("s_and_b32 s30, s30, 3")
    A.e("v_and_b32 v2, 7, v0")
    A.e("v_bfe_u32 v3, v0, 3, 1")
    A.e("v_lshrrev_b32 v4, 4, v0")
    A.e("v_lshlrev_b32 v5, 10, v4")
    A.e("v_lshl_add_u32 v5, v3, 9, v5")
    A.e("v_lshl_add_u32 v5, v2, 4, v5")
    A.e("s_lshl_b32 s31, s30, 7")
    A.e("v_add_u32 v5, s31, v5")
    A.e("v_lshlrev_b32 v6, 6, v4")
    A.e("v_lshl_add_u32 v6, v3, 4, v6")
    A.e("s_waitcnt lgkmcnt(0)")
    A.e(f"s_add_u32 s42, s38, {PART_OFF}")
    A.e("s_addc_u32 s43, s39, 0")
    srd(A, 8, "s42", "s43", PART_BYTES)
    if XDIRECT:
        srd(A, 12, "s46", "s47", X_BYTES)
        A.e("s_lshl_b32 s33, s29, 5")
        A.e("s_lshl_b32 s34, s30, 3")
        A.e("s_add_u32 s33, s33, s34")
        A.e("v_add_u32 v13, s33, v2")
        A.e("v_mul_u32_u24 v13, 896, v13")
        A.e("v_lshl_add_u32 v13, v4, 5, v13")
        A.e("v_lshl_add_u32 v13, v3, 3, v13")
    else:
        A.e(f"s_add_u32 s42, s38, {XF_OFF}")
        A.e("s_addc_u32 s43, s39, 0")
        srd(A, 12, "s42", "s43", XF_BYTES)
    srd(A, 16, "s38", "s39", MOD_BYTES)
    A.e("s_mul_i32 s32, s29, 28672")
    for g in range(8):
        A.e(f"s_add_u32 s33, s32, {g*64*28672}")
        A.e(f"buffer_load_dwordx4 {v(16+4*g,4)}, v5, s[8:11], s33 offen")
    if XDIRECT:
        A.e("buffer_load_dwordx2 v[48:49], v13, s[12:15], 0 offen")
        A.e("buffer_load_dwordx2 v[50:51], v13, s[12:15], 0 offen offset:16")
    else:
        A.e(f"buffer_load_dwordx4 v[48:51], v5, s[12:15], s32 offen")
    for i, sec in enumerate((2, 4, 3)):
        A.e(f"s_mov_b32 s33, {sec*1792}")
        A.e(f"buffer_load_dwordx4 {v(52+8*i,4)}, v6, s[16:19], s33 offen")
        A.e(f"buffer_load_dwordx4 {v(56+8*i,4)}, v6, s[16:19], s33 offen offset:32")
    if PF:
        srd(A, 28, "s40", "s41", 448*3584)
        A.e("s_lshr_b32 s33, s2, 3")
        A.e("s_mul_i32 s33, s33, 50176")
        A.e("v_lshlrev_b32 v11, 7, v0")
        A.e("v_min_u32 v11, 50048, v11")
        A.e("buffer_load_dword v12, v11, s[28:31], s33 offen")
    A.e(f"s_add_u32 s42, s38, {X1_OFF}")
    A.e("s_addc_u32 s43, s39, 0")
    srd(A, 20, "s42", "s43", X1_BYTES)
    A.e(f"s_add_u32 s42, s38, {H2_OFF}")
    A.e("s_addc_u32 s43, s39, 0")
    srd(A, 24, "s42", "s43", H2_BYTES)
    for g in range(8):
        A.e(f"s_waitcnt vmcnt({14-g+(1 if PF else 0)+(1 if XDIRECT else 0)})")
        for d in range(4):
            r = 16+4*g+d
            if g == 0:
                A.e(f"v_lshlrev_b32 v{80+2*d}, 16, v{r}")
                A.e(f"v_and_b32 v{81+2*d}, 0xffff0000, v{r}")
            else:
                A.e(f"v_lshlrev_b32 v{88+2*d}, 16, v{r}")
                A.e(f"v_and_b32 v{89+2*d}, 0xffff0000, v{r}")
        if g > 0:
            for d in range(4):
                A.e(f"v_pk_add_f32 {v(80+2*d,2)}, {v(80+2*d,2)}, {v(88+2*d,2)}")
    A.e(f"s_waitcnt vmcnt({5 if PF else 4})")
    for d in range(4):
        A.e(f"v_lshlrev_b32 v{88+2*d}, 16, v{48+d}")
        A.e(f"v_and_b32 v{89+2*d}, 0xffff0000, v{48+d}")
    for d in range(4):
        A.e(f"v_pk_fma_f32 {v(80+2*d,2)}, {v(80+2*d,2)}, {v(52+2*d,2)}, {v(88+2*d,2)}")
    for d in range(4):
        A.e(f"v_cvt_pk_bf16_f32 v{16+d}, v{80+2*d}, v{81+2*d}")
    A.e("buffer_store_dwordx4 v[16:19], v5, s[20:23], s32 offen")
    for d in range(4):
        A.e(f"v_lshlrev_b32 v{80+2*d}, 16, v{16+d}")
        A.e(f"v_and_b32 v{81+2*d}, 0xffff0000, v{16+d}")
    A.e("v_lshrrev_b32 v9, 6, v0")
    A.e("v_lshlrev_b32 v7, 5, v2")
    A.e("v_lshl_add_u32 v8, v9, 2, v7")
    A.e("v_and_b32 v10, 63, v0")
    def rowsum(off):
        A.e("s_nop 1")
        A.e("v_add_f32_dpp v20, v20, v20 row_ror:8 row_mask:0xf bank_mask:0xf")
        A.e("s_nop 0")
        A.e("ds_swizzle_b32 v21, v20 offset:0x401F")
        A.e("s_waitcnt lgkmcnt(0)")
        A.e("v_add_f32 v20, v20, v21")
        A.e("v_mov_b32 v21, v20")
        A.e("s_nop 1")
        A.e("v_permlane32_swap_b32 v20, v21")
        A.e("s_nop 1")
        A.e("v_add_f32 v20, v20, v21")
        A.e("v_cmp_gt_u32 vcc, 8, v10")
        A.e("s_and_saveexec_b64 s[44:45], vcc")
        A.e(f"ds_write_b32 v8, v20 offset:{off}")
        A.e("s_mov_b64 exec, s[44:45]")
        A.e("s_waitcnt lgkmcnt(0)")
        A.e("s_barrier")
        A.e(f"ds_read_b128 v[24:27], v7 offset:{off}")
        A.e(f"ds_read_b128 v[28:31], v7 offset:{off+16}")
        A.e("s_waitcnt lgkmcnt(0)")
        A.e("v_add_f32 v24, v24, v25")
        A.e("v_add_f32 v26, v26, v27")
        A.e("v_add_f32 v28, v28, v29")
        A.e("v_add_f32 v24, v24, v26")
        A.e("v_add_f32 v28, v28, v30")
        A.e("v_add_f32 v20, v24, v28")
    A.e("v_add_f32 v20, v80, v81")
    for r in range(2, 8):
        A.e(f"v_add_f32 v20, v20, v{80+r}")
    rowsum(0)
    A.e(f"v_mul_f32 v22, {f2u(1/448.):#x}, v20")
    for r in range(8):
        A.e(f"v_sub_f32 v{80+r}, v{80+r}, v22")
    A.e("v_mul_f32 v20, v80, v80")
    for r in range(1, 8):
        A.e(f"v_fmac_f32 v20, v{80+r}, v{80+r}")
    rowsum(256)
    A.e(f"v_mul_f32 v20, {f2u(1/448.):#x}, v20")
    A.e(f"v_add_f32 v20, {f2u(1e-5):#x}, v20")
    A.e("v_rsq_f32 v20, v20")
    A.e(f"s_waitcnt vmcnt({2 if PF else 1})")
    A.e("v_mov_b32 v21, v20")
    for d in range(4):
        A.e(f"v_pk_mul_f32 {v(80+2*d,2)}, {v(80+2*d,2)}, v[20:21]")
    for d in range(4):
        A.e(f"v_pk_fma_f32 {v(80+2*d,2)}, {v(80+2*d,2)}, {v(60+2*d,2)}, {v(68+2*d,2)}")
    for d in range(4):
        A.e(f"v_cvt_pk_bf16_f32 v{16+d}, v{80+2*d}, v{81+2*d}")
    A.e("buffer_store_dwordx4 v[16:19], v5, s[24:27], s32 offen")
    A.label("K2R_END")
    A.e("s_endpgm")
    return name, 1024
```

```python
import sys
from asmlib import *
from layout import *
import k0, k1, k24, k1b, k2r, k1c
MERGE = False

HEADER = open('adaLN_cond__gqa_block_cached__dense_activation_relu__prompt.s.ref').read().split("; Override launch")[0]

def build(dbg=None):
    launches = []; descs = []
    body = Asm()
    k24.NEW = True
    if MERGE:
        k2r.XDIRECT = True
        n = k1c.gen_k1(body, dbg); launches.append((n, 256, 256, k1b.K1_LDS)); descs.append(descriptor(n, 512, 100, 256))
    else:
        n = k0.gen_k0(body); launches.append((n, k0.K0_GRID, 256, 8192)); descs.append(descriptor(n, 104, 32, 104))
        n = k1b.gen_k1(body, dbg); launches.append((n, 256, 256, k1b.K1_LDS)); descs.append(descriptor(n, 512, 100, 256))
    n, lds = k2r.gen_k2r(body); launches.append((n, 256, 448, lds)); descs.append(descriptor(n, 96, 64, 96))
    n, lds = k24.gen_k3n(body); launches.append((n, 224, 256, lds)); descs.append(descriptor(n, 256, 100, 256))
    n, lds = k24.gen_gemm64(body, 'k4'); launches.append((n, 224, 256, lds)); descs.append(descriptor(n, 256, 100, 256))
    out = HEADER
    for n, g, b, lds in launches:
        out += f"; @launch kernel={n} grid=({g},1,1) block=({b},1,1) lds={lds}\n"
    out += '.amdgcn_target "amdgcn-amd-amdhsa--gfx950"\n.text\n'
    out += body.text()
    out += 'CODE_END:\n    s_endpgm\n'
    out += '.section .rodata,"a"\n.p2align 6\n'
    out += "\n.p2align 6\n".join(descs)
    return out

if __name__ == "__main__":
    dbg = sys.argv[2] if len(sys.argv) > 2 and sys.argv[2] != "none" else None
    k1.OPT['bias'] = 86
    k0.PFW = True; k0.K0_GRID = 176
    k1.OPT['pfkv'] = 0; k1.OPT['pfmall'] = 0
    for kv in sys.argv[3:]:
        k_, v_ = kv.split("=")
        if k_ == 'nopf':
            k0.PFW = False; k0.K0_GRID = 106; k2r.PF = False; k24.PFW2 = False; k1.OPT['pfwo'] = 0
            continue
        if k_ == 'merge':
            MERGE = True
            continue
        if k_ == 'pfcode':
            k0.PFCODE = bool(int(v_))
            continue
        if k_ == 'k3pre':
            k24.K3_PRE = int(v_)
            continue
        if k_ == 'gd': k24.GD = int(v_); continue
        if k_ == 'dbg24': k24.DBG = True; continue
        if k_ == 'pf': k0.PREFETCH = True; k0.K0_GRID = 138; continue
        k1.OPT[k_] = eval(v_)
    open(sys.argv[1], "w").write(build(dbg))
```

```python
from asmlib import *
from layout import *
import k1
from k1 import (Lgkm, mfma, f2u, KPIECE, KSLOT, VBASE, VSLOT, MODL, O0, S_, NEGM, P_, T_, L_,
                VKR, VVR, VKD, VVD, AQ, NRING, AK, AV, SRD_K, SRD_V, SRD_WQ, SRD_Y, SRD_M,
                S_W, S_KOFF, S_M0K, S_M0V, S_CNT, S_THR, THR_LOG2, OPT, LEAD,
                kread, softmax_ops, iteration, rare_path, reads_for_pos, distribute)

K1_LDS = 163840
SRD_WO = 16
WSLOT = [0, 28672, 132096, 66560, 95232]

class Vm:
    def __init__(self): self.q = []
    def issue(self, tag): self.q.append(tag)
    def need(self, tags):
        idx = -1
        for i, t in enumerate(self.q):
            if t in tags: idx = i
        if idx < 0: return None
        n = len(self.q) - 1 - idx
        self.q = self.q[idx+1:]
        assert n <= 63
        return f"s_waitcnt vmcnt({n})"

def gen_k1(A, dbg=None):
    name = "k1_attn_kernel"
    kernel_begin(A, name)
    ST = Stamps(A, dbg == "time", wg=9, wave_sgpr=S_W)
    A.e("s_cmp_ge_u32 s2, 256")
    A.e("s_cbranch_scc1 K1_END")
    ST.stamp()
    A.e("s_load_dwordx4 s[36:39], s[0:1], 8")
    A.e("s_load_dwordx4 s[40:43], s[0:1], 24")
    A.e("s_load_dwordx2 s[60:61], s[0:1], 96")
    A.e("v_and_b32 v1, 63, v0")
    A.e("v_lshrrev_b32 v14, 6, v0")
    A.e("s_nop 0")
    A.e(f"v_readfirstlane_b32 s{S_W}, v14")
    A.e("s_and_b32 s44, s2, 7")
    A.e("s_lshr_b32 s45, s2, 3")
    A.e("s_lshl_b32 s45, s45, 1")
    A.e(f"s_and_b32 s46, s{S_W}, 1")
    A.e("s_add_u32 s45, s45, s46")
    A.e(f"s_lshr_b32 s47, s{S_W}, 1")
    A.e("v_bfe_u32 v14, v1, 2, 1")
    A.e("v_bfe_u32 v15, v1, 3, 1")
    A.e("v_and_b32 v12, 3, v1")
    A.e("v_lshlrev_b32 v12, 4, v12")
    A.e("v_lshrrev_b32 v13, 4, v1")
    A.e("v_lshl_add_u32 v12, v13, 7, v12")
    for n in range(4):
        A.e(f"v_xor_b32 v13, {n & 1}, v14")
        A.e(f"v_lshl_add_u32 v13, v13, 6, v12")
        A.e(f"v_lshl_add_u32 v13, v15, 13, v13")
        A.e(f"v_add_u32 v{2+n}, {2*n*8192 - n*1024}, v13")
    def tr_bases(dst, swap, add, ta, tb, tc):
        A.e(f"v_lshrrev_b32 v{tb}, 5, v1")
        A.e(f"v_lshlrev_b32 v{ta}, 11, v{tb}")
        A.e(f"v_bfe_u32 v{tb}, v1, 3, 1")
        A.e(f"v_lshl_add_u32 v{ta}, v{tb}, 10, v{ta}")
        A.e(f"v_bfe_u32 v{tc}, v1, 2, 1")
        A.e(f"v_lshl_add_u32 v{ta}, v{tc}, 7, v{ta}")
        A.e(f"v_bfe_u32 v{tc}, v1, 4, 1")
        A.e(f"v_lshl_add_u32 v{ta}, v{tc}, 5, v{ta}")
        if swap:
            A.e(f"v_and_b32 v{tc}, 1, v1")
            A.e(f"v_lshl_add_u32 v{ta}, v{tc}, 4, v{ta}")
            A.e(f"v_bfe_u32 v{tc}, v1, 1, 1")
            A.e(f"v_lshl_add_u32 v{ta}, v{tc}, 3, v{ta}")
        else:
            A.e(f"v_and_b32 v{tc}, 3, v1")
            A.e(f"v_lshl_add_u32 v{ta}, v{tc}, 3, v{ta}")
        A.e(f"v_add_u32 v{ta}, {add}, v{ta}")
        A.e(f"v_lshl_add_u32 v{dst[0]}, v{tb}, 6, v{ta}")
        A.e(f"v_xor_b32 v{tb}, 1, v{tb}")
        A.e(f"v_lshl_add_u32 v{dst[1]}, v{tb}, 6, v{ta}")
    A.e("s_lshl_b32 s48, s47, 14")
    tr_bases([6, 7], True, "s48", 13, 14, 15)
    A.e("v_add_u32 v8, 0x10000, v6")
    A.e("v_add_u32 v9, 0x10000, v7")
    WQR = [[6, 7], [8, 9]]
    A.e("v_lshlrev_b32 v12, 4, v1")
    A.e("v_lshrrev_b32 v13, 5, v1")
    A.e("v_lshlrev_b32 v13, 4, v13")
    A.e(f"v_add_u32 v13, {MODL}, v13")
    A.e(f"s_lshl_b32 s49, s46, 17")
    A.e("s_lshl_b32 s50, s47, 9")
    A.e("s_add_u32 s49, s49, s50")
    A.e(f"s_lshl_b32 s48, s{S_W}, 13")
    A.e("s_waitcnt lgkmcnt(0)")
    A.e("s_lshl_b32 s50, s44, 20")
    A.e("s_add_u32 s36, s36, s50")
    A.e("s_addc_u32 s37, s37, 0")
    A.e("s_sub_u32 s52, s36, 64")
    A.e("s_subb_u32 s53, s37, 0")
    srd(A, SRD_K, "s52", "s53", 1048576+64)
    A.e("s_add_u32 s38, s38, s50")
    A.e("s_addc_u32 s39, s39, 0")
    A.e("s_sub_u32 s52, s38, 32768")
    A.e("s_subb_u32 s53, s39, 0")
    srd(A, SRD_V, "s52", "s53", 1048576+32768)
    A.e("s_lshl_b32 s50, s44, 10")
    A.e("s_add_u32 s40, s40, s50")
    A.e("s_addc_u32 s41, s41, 0")
    A.e(f"s_sub_u32 s51, {448*8192}, s50")
    srd(A, SRD_WQ, "s40", "s41", "s51")
    A.e("s_mul_i32 s50, s45, 28672")
    A.e(f"s_add_u32 s50, s50, {Y_OFF}")
    A.e("s_add_u32 s52, s60, s50")
    A.e("s_addc_u32 s53, s61, 0")
    srd(A, SRD_Y, "s52", "s53", 28672)
    srd(A, SRD_M, "s60", "s61", 3584)
    YR = 16
    TG = 64
    TU = 96
    def yreg(f): return YR + 4*(f % 12)
    vm = Vm()
    def y_load(f):
        vm.issue(('y', f))
        return [f"s_mov_b32 s50, {(f//4)*4096}",
                f"buffer_load_dwordx4 {v(yreg(f),4)}, v12, s[{SRD_Y}:{SRD_Y+3}], s50 offen offset:{(f%4)*1024}"]
    def wslot(s): return (s+2) % 4
    def wq_dma(s):
        out = []
        for grp in range(2):
            out.append(f"s_add_u32 m0, s48, {wslot(s)*32768 + grp*4096}")
            out.append(f"s_add_u32 s50, s49, {s*262144 + grp*65536}")
            for n in range(4):
                out.append(f"buffer_load_dwordx4 v{2+n}, s[{SRD_WQ}:{SRD_WQ+3}], s50 offen offset:{n*1024} lds")
                vm.issue(('wq', s))
        return out
    for f in range(4):
        for t in y_load(f): A.e(t)
    A.e(f"s_lshl_b32 s50, s{S_W}, 10")
    A.e(f"s_add_u32 m0, s50, {MODL}")
    A.e("s_nop 0")
    A.e(f"buffer_load_dwordx4 v12, s[{SRD_M}:{SRD_M+3}], s50 offen lds")
    vm.issue('mod')
    for t in wq_dma(0): A.e(t)
    for s_ in (1, 2):
        for f in (2*s_+2, 2*s_+3):
            for t in y_load(f): A.e(t)
        for t in wq_dma(s_): A.e(t)
    lg = Lgkm(A)
    def ln_ops(f):
        b = TG + 16*(f & 1)
        rd = [(('m', f, 0), f"ds_read_b128 {v(b,4)}, v13 offset:{1792+f*64}"),
              (('m', f, 1), f"ds_read_b128 {v(b+4,4)}, v13 offset:{1792+f*64+32}"),
              (('m', f, 2), f"ds_read_b128 {v(b+8,4)}, v13 offset:{f*64}"),
              (('m', f, 3), f"ds_read_b128 {v(b+12,4)}, v13 offset:{f*64+32}")]
        tu = TU + 8*(f & 1)
        va = []
        for d in range(4):
            r = yreg(f)+d
            va.append(f"v_lshlrev_b32 v{tu+2*d}, 16, v{r}")
            va.append(f"v_and_b32 v{tu+2*d+1}, 0xffff0000, v{r}")
        vb = []
        for d in range(4):
            vb.append(f"v_pk_fma_f32 {v(tu+2*d,2)}, {v(tu+2*d,2)}, {v(b+2*d,2)}, {v(b+8+2*d,2)}")
        for d in range(4):
            vb.append(f"v_cvt_pk_bf16_f32 v{yreg(f)+d}, v{tu+2*d}, v{tu+2*d+1}")
        return rd, va, vb
    w = vm.need({('y', 0), ('y', 1), 'mod', ('wq', 0)})
    A.e(w)
    A.e("s_barrier")
    ST.stamp()
    for f in (0, 1):
        rd, va, vb = ln_ops(f)
        for t, txt in rd: A.e(txt); lg.issue(t)
        for txt in va: A.e(txt)
        A.e(lg.need({('m', f, 3)}))
        for txt in vb: A.e(txt)
    QL = OPT.get('ql', 4)
    def q_reads(s, p):
        if p >= 16:
            s, p = s+1, p-16
            if s >= 14: return []
        db, ks = p >> 1, p & 1
        sl = wslot(s)
        o = []
        for u in range(2):
            off = (sl & 1)*32768 + ks*8192 + u*4096 + (db >> 1)*256
            o.append((('q', s, p, u), f"ds_read_b64_tr_b16 {a(AV+4*(p % NRING)+2*u,2)}, v{WQR[sl >> 1][db & 1]} offset:{off}"))
        return o
    for p in range(QL):
        for t, txt in q_reads(0, p):
            A.e(txt); lg.issue(t)
    def k_dma(blk):
        out = [f"s_add_u32 m0, s{S_M0K}, {(blk % 4)*KSLOT}", f"s_mov_b32 s50, {blk*16384}"]
        for n in range(4):
            out.append(f"buffer_load_dwordx4 v{VKD2[n]}, s[{SRD_K}:{SRD_K+3}], s50 offen offset:{n*KPIECE} lds")
            vm.issue(('k', blk))
        return out
    def v_dma(blk):
        out = [f"s_add_u32 m0, s{S_M0V}, {(blk % 4)*VSLOT}", f"s_mov_b32 s50, {blk*16384+32768}"]
        for n in range(4):
            out.append(f"buffer_load_dwordx4 v{VVD2[n & 1]}, s[{SRD_V}:{SRD_V+3}], s50 offen offset:{n*1024} lds")
            vm.issue(('v', blk))
        return out
    VKD2 = [112, 113, 114, 115]
    VVD2 = [116, 117]
    def kv_addr_setup():
        o = []
        e = o.append
        e("v_lshrrev_b32 v118, 5, v1")
        e("v_and_b32 v119, 31, v1")
        e("v_lshlrev_b32 v117, 3, v118")
        e("v_xor_b32 v119, v119, v117")
        e("v_lshlrev_b32 v119, 4, v119")
        e("v_lshl_add_u32 v119, v118, 9, v119")
        e(f"s_lshl_b32 s51, s{S_W}, 12")
        e("s_add_u32 s54, s51, 64")
        e(f"v_add_u32 v{VKD2[0]}, s54, v119")
        for n in range(1, 4):
            e(f"v_subrev_u32 v{VKD2[n]}, {16*n}, v{VKD2[0]}")
        e("v_bfe_u32 v118, v1, 2, 1")
        e("v_bfe_u32 v119, v1, 3, 1")
        e("v_and_b32 v117, 3, v1")
        e("v_lshlrev_b32 v117, 4, v117")
        e("v_lshl_add_u32 v117, v119, 9, v117")
        e("v_lshrrev_b32 v119, 4, v1")
        e("v_lshl_add_u32 v117, v119, 7, v117")
        e("v_add_u32 v117, s51, v117")
        e(f"v_lshl_add_u32 v{VVD2[0]}, v118, 6, v117")
        e("v_xor_b32 v118, 1, v118")
        e(f"v_lshl_add_u32 v{VVD2[1]}, v118, 6, v117")
        e(f"s_add_u32 s{S_M0V}, s51, {VBASE}")
        e(f"s_mul_i32 s{S_M0K}, s{S_W}, {4*KPIECE}")
        return o
    for t in kv_addr_setup(): A.e(t)
    for s_ in range(14):
        gaps = [[] for _ in range(16)]
        needs = set()
        if s_+1 < 14: needs |= {('wq', s_+1), ('y', 2*s_+2), ('y', 2*s_+3)}
        w = vm.need(needs) if needs else None
        if s_ < 13 or True:
            gaps[0] += ([w] if w else []) + ["s_barrier"]
        fill = []
        for f in (2*s_+8, 2*s_+9):
            if f < 28: fill += y_load(f)
        if s_+3 < 14: fill += wq_dma(s_+3)
        if s_ == 12:
            for blk in (0, 1, 2): fill += k_dma(blk)
        if s_ == 13:
            fill += k_dma(3) + v_dma(0)
        if OPT.get('q_nodma'): fill = [t for t in fill if 'buffer_load' not in t or 'K' in t]
        n = len(fill)
        for i, t in enumerate(fill):
            gaps[1 + (i*14)//max(n, 1)].append(t)
        lnseq = []
        if s_+1 < 14 and not OPT.get('q_noln'):
            r0, a0, b0 = ln_ops(2*s_+2)
            r1, a1, b1 = ln_ops(2*s_+3)
            lnseq = [('rd', r0), ('v', a0), ('rd', r1), ('need', 2*s_+2), ('v', b0), ('v', a1), ('need', 2*s_+3), ('v', b1)]
        items = []
        for kind, x in lnseq:
            if kind == 'rd':
                for t, txt in x: items.append(('rd', t, txt))
            elif kind == 'v':
                for txt in x: items.append(('v', None, txt))
            else:
                items.append(('need', x, None))
        lgaps = [[] for _ in range(16)]
        for i, it in enumerate(items):
            lgaps[1 + (i*14)//max(len(items), 1)].append(it)
        for p in range(16):
            if OPT.get('q_mw', 0):
                w2 = lg.need({('q', s_, p, 0), ('q', s_, p, 1), ('q', s_, p+1, 0), ('q', s_, p+1, 1)}) if p % 2 == 0 else None
            else:
                w2 = lg.need({('q', s_, p, 0), ('q', s_, p, 1)})
            if w2: A.e(w2)
            db, ks = p >> 1, p & 1
            acc = v(O0+16*db, 16)
            first = (s_ == 0 and ks == 0)
            A.e(mfma(acc, a(AV+4*(p % NRING), 4), v(yreg(2*s_+ks), 4), "0" if first else acc))
            for t, txt in q_reads(s_, p+QL):
                A.e(txt); lg.issue(t)
            for txt in gaps[p]: A.e(txt)
            for kind, t, txt in lgaps[p]:
                if kind == 'rd':
                    A.e(txt); lg.issue(t)
                elif kind == 'v':
                    A.e(txt)
                else:
                    w3 = lg.need({('m', t, 3)})
                    if w3: A.e(w3)
    ST.stamp()
    A.e("s_barrier")
    for t in v_dma(1): A.e(t)
    for n in range(4): A.e(f"v_mov_b32 v{VKD[n]}, v{VKD2[n]}")
    for n in range(2): A.e(f"v_mov_b32 v{VVD[n]}, v{VVD2[n]}")
    A.e("v_bfe_u32 v14, v1, 1, 4")
    A.e(f"v_mul_u32_u24 v14, {KPIECE}, v14")
    A.e("v_and_b32 v15, 1, v1")
    A.e("v_lshl_add_u32 v14, v15, 9, v14")
    A.e("v_lshrrev_b32 v2, 5, v1")
    A.e("v_lshl_add_u32 v14, v2, 4, v14")
    A.e("v_lshlrev_b32 v15, 7, v15")
    A.e(f"v_add_u32 v{VKR[0]}, v14, v15")
    A.e(f"v_sub_u32 v{VKR[1]}, v14, v15")
    tr_bases(VVR, False, VBASE, 16, 17, 18)
    for db in range(8):
        for r in range(8):
            A.e(f"v_cvt_pk_bf16_f32 v{T_+(r & 3)}, v{O0+16*db+2*r}, v{O0+16*db+2*r+1}")
            A.e(f"v_accvgpr_write_b32 a{AQ+8*db+r}, v{T_+(r & 3)}")
    A.e(vm.need({('k', 0), ('k', 1)}))
    A.e("s_barrier")
    lg = Lgkm(A)
    seq = [(b, ks) for b in range(2) for ks in range(16)]
    KL = 4
    for i in range(KL):
        b, ks = seq[i]
        A.e(kread(b, ks, i % NRING)); lg.issue(i)
    zero = [f"v_mov_b32 v{O0+r}, 0" for r in range(128)]
    for i, (b, ks) in enumerate(seq):
        w = lg.need({i})
        if w: A.e(w)
        A.e(mfma(v(S_[b], 16), a(AK+4*(i % NRING), 4), a(AQ+4*ks, 4), "0" if ks == 0 else v(S_[b], 16)))
        if i+KL < 32:
            b2, ks2 = seq[i+KL]
            A.e(kread(b2, ks2, (i+KL) % NRING)); lg.issue(i+KL)
        for t in zero[4*i:4*i+4]: A.e(t)
    A.e("s_barrier")
    VKD2[:] = VKD; VVD2[:] = VVD
    for t in v_dma(2): A.e(t)
    for t in k_dma(4): A.e(t)
    A.e(f"s_mov_b32 s{S_KOFF}, {5*16384}")
    A.e(f"s_mov_b32 s{S_THR}, {f2u(2.0**(OPT.get('thr', THR_LOG2)-OPT['bias'])):#x}")
    A.e("s_nop 7")
    t0, t1 = T_, T_+1
    A.e(f"v_max3_f32 v{t0}, v{S_[0]}, v{S_[0]+1}, v{S_[0]+2}")
    allS = [S_[0]+j for j in range(3, 16)] + [S_[1]+j for j in range(16)]
    for j in range(0, len(allS)-1, 2):
        A.e(f"v_max3_f32 v{t0}, v{t0}, v{allS[j]}, v{allS[j+1]}")
    A.e(f"v_max_f32 v{t0}, v{t0}, v{allS[-1]}")
    A.e(f"v_mov_b32 v{t1}, v{t0}")
    A.e("s_nop 1")
    A.e(f"v_permlane32_swap_b32 v{t0}, v{t1}")
    A.e("s_nop 1")
    A.e(f"v_max_f32 v{t0}, v{t0}, v{t1}")
    if OPT['bias']:
        A.e(f"v_add_f32 v{t0}, {f2u(float(OPT['bias'])):#x}, v{t0}")
    for r in range(16):
        A.e(f"v_sub_f32 v{NEGM+r}, 0, v{t0}")
    for b in range(2):
        for r in range(16):
            A.e(f"v_sub_f32 v{S_[b]+r}, v{S_[b]+r}, v{t0}")
    A.e(f"v_mov_b32 v{L_[1]}, 0")
    for c, t in softmax_ops(S_[0], P_[0], L_[1], L_[0]):
        A.e(t)
    A.e("s_waitcnt vmcnt(8)")
    A.e("s_barrier")
    ST.stamp()
    if dbg == "time": A.e("s_waitcnt lgkmcnt(0)")
    for p in range(LEAD):
        for t, txt in reads_for_pos(0, p, True, True, True, True):
            A.e(txt)
    if OPT.get('pfkv', 1):
        A.e(f"s_cmp_lt_u32 s{S_W}, 2")
        A.e("s_cselect_b32 s96, s36, s38")
        A.e("s_cselect_b32 s97, s37, s39")
        A.e("s_and_b32 s97, s97, 0xffff")
        A.e("s_mov_b32 s98, 1048576")
        A.e("s_mov_b32 s99, 0x00020000")
        A.e("v_and_b32 v19, 7, v1")
        A.e("v_lshlrev_b32 v19, 7, v19")
        A.e("s_lshr_b32 s50, s2, 3")
        A.e("s_lshl_b32 s50, s50, 11")
        A.e("s_lshl_b32 s51, s46, 10")
        A.e("s_add_u32 s50, s50, s51")
        A.e("v_add_u32 v19, s50, v19")
    if OPT.get('pfmall', 1):
        A.e("s_load_dwordx4 s[52:55], s[0:1], 48")
        A.e("s_waitcnt lgkmcnt(0)")
        A.e("s_cmp_lt_u32 s46, 1")
        A.e("s_cselect_b32 s56, s52, s54")
        A.e("s_cselect_b32 s57, s53, s55")
        A.e("s_and_b32 s57, s57, 0xffff")
        A.e(f"s_mov_b32 s58, {448*3584}")
        A.e("s_mov_b32 s59, 0x00020000")
        A.e("s_mul_i32 s50, s2, 6272")
        A.e("v_lshlrev_b32 v20, 7, v1")
        A.e("v_min_u32 v20, 6144, v20")
        A.e(f"s_cmp_lt_u32 s{S_W}, 2")
        A.e("s_cbranch_scc0 K1_NOMALL")
        A.e("buffer_load_dword v21, v20, s[56:59], s50 offen")
        A.label("K1_NOMALL")
    A.e(f"s_mov_b32 s{S_CNT}, 15")
    A.raw(".p2align 6")
    A.label("K1_LOOP")
    if OPT.get('pfkv', 1):
        A.e(f"s_add_u32 s50, s{S_KOFF}, {7*16384}")
        A.e("buffer_load_dword v22, v19, s[96:99], s50 offen")
    if OPT.get('pfwo', 1):
        A.e(f"s_cmp_lg_u32 s{S_CNT}, 4")
        A.e("s_cbranch_scc1 K1_NOPF")
        A.e(f"s_mul_i32 s50, s44, {512*896}")
        A.e("s_add_u32 s56, s42, s50")
        A.e("s_addc_u32 s57, s43, 0")
        A.e("s_and_b32 s57, s57, 0xffff")
        A.e(f"s_mov_b32 s58, {512*896}")
        A.e("s_mov_b32 s59, 0x00020000")
        A.e("s_lshr_b32 s50, s2, 3")
        A.e("s_mul_i32 s50, s50, 14336")
        A.e("v_lshlrev_b32 v14, 7, v0")
        A.e("v_min_u32 v14, 14208, v14")
        A.e("buffer_load_dword v15, v14, s[56:59], s50 offen")
        A.label("K1_NOPF")
    if OPT.get('pfw1', 0):
        A.e(f"s_cmp_lg_u32 s{S_CNT}, 2")
        A.e("s_cbranch_scc1 K1_NOPF1")
        A.e("s_load_dwordx2 s[56:57], s[0:1], 48")
        A.e("s_waitcnt lgkmcnt(0)")
        A.e("s_and_b32 s57, s57, 0xffff")
        A.e(f"s_mov_b32 s58, {448*3584}")
        A.e("s_mov_b32 s59, 0x00020000")
        A.e("s_lshr_b32 s50, s2, 3")
        A.e("s_mul_i32 s50, s50, 50176")
        A.e("v_lshlrev_b32 v14, 7, v0")
        A.e("buffer_load_dword v15, v14, s[56:59], s50 offen")
        A.e("v_add_u32 v14, 32768, v14")
        A.e("v_min_u32 v14, 50048, v14")
        A.e("buffer_load_dword v16, v14, s[56:59], s50 offen")
        A.label("K1_NOPF1")
    for ph in range(4):
        iteration(A, ph, f"M{ph}")
    A.e(f"s_sub_u32 s{S_CNT}, s{S_CNT}, 1")
    A.e(f"s_cmp_lg_u32 s{S_CNT}, 0")
    A.e("s_cbranch_scc1 K1_LOOP")
    if dbg == "time":
        ST.stamp()
    A.e(f"s_mul_i32 s50, s44, {512*896}")
    A.e("s_add_u32 s42, s42, s50")
    A.e("s_addc_u32 s43, s43, 0")
    srd(A, SRD_WO, "s42", "s43", 512*896)
    GOFF = 34
    for n in range(7):
        A.e(f"s_mul_i32 s50, s{S_W}, 7")
        A.e(f"s_add_u32 s50, s50, {n}")
        A.e("s_cmp_ge_u32 s50, 14")
        A.e("s_cselect_b32 s51, 14, 0")
        A.e(f"s_cselect_b32 s52, {16*896}, 0")
        A.e("s_sub_u32 s50, s50, s51")
        A.e("s_and_b32 s51, s50, 1")
        A.e(f"s_mul_i32 s51, s51, {8*896}")
        A.e("s_lshr_b32 s50, s50, 1")
        A.e("s_lshl_b32 s50, s50, 7")
        A.e("s_add_u32 s50, s50, s51")
        A.e(f"s_add_u32 s{GOFF+n}, s50, s52")
    A.e(f"s_mul_i32 s41, s{S_W}, 7168")
    A.e("v_lshrrev_b32 v16, 3, v1")
    A.e("v_mul_u32_u24 v14, 896, v16")
    A.e("v_bfe_u32 v16, v1, 4, 1")
    A.e("v_bfe_u32 v17, v1, 2, 1")
    A.e("v_xor_b32 v16, v16, v17")
    A.e("v_lshl_add_u32 v14, v16, 6, v14")
    A.e("v_and_b32 v16, 3, v1")
    A.e("v_lshl_add_u32 v14, v16, 4, v14")
    vme = Vm()
    def wo_dma(t):
        out = []
        for n in range(7):
            out.append(f"s_add_u32 m0, s41, {WSLOT[t % 5] + n*1024}")
            out.append(f"s_add_u32 s50, s{GOFF+n}, {t*32*896}")
            out.append(f"buffer_load_dwordx4 v14, s[{SRD_WO}:{SRD_WO+3}], s50 offen lds")
            vme.issue(('wo', t))
        return out
    def spread(lst, lo, hi):
        d = {}
        trip = [lst[i:i+3] for i in range(0, len(lst), 3)]
        for i, tr3 in enumerate(trip):
            g = lo + (i*(hi-lo+1))//len(trip)
            d.setdefault(g, []).extend(tr3)
        return d
    iteration(A, 0, "T0", dma_k=False, dma_v=True, vmwait=8)
    iteration(A, 1, "T1", dma_k=False, dma_v=False, vmwait=4, nxt_qk=False)
    iteration(A, 2, "T2", do_qk=False, dma_k=False, dma_v=False, vmwait=0, nxt_qk=False,
              extra=spread(wo_dma(0) + wo_dma(1)[:12], 1, 30))
    vme.q = [('wo', 0)]*7 + [('wo', 1)]*4
    rest1 = []
    for n in range(4, 7):
        rest1 += [f"s_add_u32 m0, s41, {WSLOT[1] + n*1024}", f"s_add_u32 s50, s{GOFF+n}, {32*896}",
                  f"buffer_load_dwordx4 v14, s[{SRD_WO}:{SRD_WO+3}], s50 offen lds"]
        vme.issue(('wo', 1))
    iteration(A, 3, "T3", do_qk=False, do_sm=False, dma_k=False, dma_v=False, nxt_pv=False, nxt_qk=False, barrier=False,
              extra=spread(rest1 + wo_dma(2), 1, 30))
    ST.stamp()
    Lf = L_[1]
    OP = 64
    A.e(f"v_mov_b32 v{t0}, v{Lf}")
    A.e(f"v_mov_b32 v{t1}, v{Lf}")
    A.e("s_nop 1")
    A.e(f"v_permlane32_swap_b32 v{t0}, v{t1}")
    A.e("s_nop 1")
    A.e(f"v_add_f32 v{t0}, v{t0}, v{t1}")
    A.e(f"v_rcp_f32 v{t0}, v{t0}")
    A.e("s_lshl_b32 s50, s46, 1")
    A.e("s_add_u32 s50, s50, s47")
    A.e("s_lshl_b32 s50, s50, 14")
    A.e(f"s_add_u32 s50, s50, {VBASE}")
    A.e("v_lshlrev_b32 v12, 4, v1")
    A.e("v_add_u32 v15, s50, v12")
    A.e("s_barrier")
    for fr in range(16):
        base = O0 + 8*fr
        for r in range(8):
            A.e(f"v_mul_f32 v{base+r}, v{base+r}, v{t0}")
        for r in range(4):
            A.e(f"v_cvt_pk_bf16_f32 v{OP+4*fr+r}, v{base+2*r}, v{base+2*r+1}")
        A.e(f"ds_write_b128 v15, {v(OP+4*fr,4)} offset:{fr*1024}")
    A.e("s_waitcnt lgkmcnt(0)")
    A.e("s_barrier")
    A.e("s_lshl_b32 s50, s46, 15")
    A.e(f"s_add_u32 s50, s50, {VBASE}")
    A.e("v_add_u32 v15, s50, v12")
    for kk in range(32):
        A.e(f"ds_read_b128 {a(4*kk,4)}, v15 offset:{kk*1024}")
    A.e("v_lshrrev_b32 v16, 5, v1")
    A.e("v_lshlrev_b32 v17, 9, v16")
    A.e("v_bfe_u32 v16, v1, 2, 2")
    A.e("v_lshl_add_u32 v17, v16, 7, v17")
    A.e("v_bfe_u32 v16, v1, 4, 1")
    A.e("v_lshl_add_u32 v17, v16, 5, v17")
    A.e("v_and_b32 v16, 3, v1")
    A.e("v_lshl_add_u32 v17, v16, 3, v17")
    A.e("v_bfe_u32 v16, v1, 3, 1")
    A.e("v_xor_b32 v18, s47, v16")
    A.e("v_lshl_add_u32 v2, v18, 6, v17")
    A.e("v_xor_b32 v18, 1, v18")
    A.e("v_lshl_add_u32 v3, v18, 6, v17")
    A.e(f"s_mul_i32 s50, s47, {3*2048}")
    A.e(f"s_mul_i32 s51, s47, {4*2048}")
    A.e("v_add_u32 v2, s50, v2")
    A.e("v_add_u32 v3, s51, v3")
    A.e(f"v_add_u32 v4, {WSLOT[2]}, v2")
    A.e(f"v_add_u32 v5, {WSLOT[2]}, v3")
    A.e(f"v_add_u32 v6, {WSLOT[3]}, v2")
    A.e(f"v_add_u32 v7, {WSLOT[3]}, v3")
    A.e("s_waitcnt lgkmcnt(0)")
    A.e("s_barrier")
    for t in wo_dma(3) + wo_dma(4): A.e(t)
    def wbase(slot, c):
        e = c & 1
        if slot in (0, 1): return (2+e, WSLOT[slot])
        if slot == 2: return (4+e, 0)
        return (6+e, WSLOT[slot]-WSLOT[3])
    ARG = AV
    ARG = 128
    def o_reads(t, p):
        if p >= 14:
            t, p = t+1, p-14
            if t >= 16: return []
        ksl, c = p // 7, p % 7
        b, off = wbase(t % 5, c)
        o = []
        for u in range(2):
            o.append((('o', t, p, u), f"ds_read_b64_tr_b16 {a(ARG+4*((14*t+p) % NRING)+2*u,2)}, v{b} offset:{off + ksl*14336 + (c >> 1)*2048 + u*1024}"))
        return o
    lg = Lgkm(A)
    OL = 4
    A.e(vme.need({('wo', 0)}))
    A.e("s_barrier")
    for p in range(OL):
        for t_, txt in o_reads(0, p): A.e(txt); lg.issue(t_)
    ACC = O0
    for t in range(16):
        gaps = [[] for _ in range(14)]
        if t+1 < 16:
            w = vme.need({('wo', t+1)})
            gaps[0] += ([w] if w else []) + ["s_barrier"]
        if t >= 1 and t+4 < 16:
            d = wo_dma(t+4)
            sp = spread(d, 1, 12)
            for g_, l_ in sp.items(): gaps[g_] += l_
        for p in range(14):
            w2 = lg.need({('o', t, p, 0), ('o', t, p, 1)})
            if w2: A.e(w2)
            ksl, c = p // 7, p % 7
            acc = v(ACC+16*c, 16)
            first = (t == 0 and ksl == 0)
            A.e(mfma(acc, a(ARG+4*((14*t+p) % NRING), 4), a(4*(2*t+ksl), 4), "0" if first else acc))
            for t_, txt in o_reads(t, p+OL): A.e(txt); lg.issue(t_)
            for txt in gaps[p]: A.e(txt)
    ST.stamp()
    A.e("s_lshl_b32 s50, s44, 6")
    A.e("s_add_u32 s50, s50, s45")
    A.e("s_mul_i32 s50, s50, 28672")
    A.e(f"s_mul_i32 s51, s47, {14*1024}")
    A.e("s_add_u32 s50, s50, s51")
    A.e(f"s_add_u32 s50, s50, {PART_OFF}")
    A.e("s_add_u32 s52, s60, s50")
    A.e("s_addc_u32 s53, s61, 0")
    srd(A, SRD_Y, "s52", "s53", 14*1024)
    A.e("s_nop 7")
    for fr in range(14):
        dst = OP + 4*(fr % 16)
        for r in range(4):
            A.e(f"v_cvt_pk_bf16_f32 v{dst+r}, v{ACC+8*fr+2*r}, v{ACC+8*fr+2*r+1}")
        if fr % 4 == 0:
            A.e(f"s_mov_b32 s50, {fr*1024}")
        A.e(f"buffer_store_dwordx4 {v(dst,4)}, v12, s[{SRD_Y}:{SRD_Y+3}], s50 offen offset:{(fr%4)*1024} {OPT.get('pstore', '')}")
    ST.finish("K1_END")
    A.label("K1_END")
    A.e("s_endpgm")
    if not OPT['no_sm']:
        for ph in range(4):
            rare_path(A, ph, f"M{ph}")
        rare_path(A, 0, "T0")
        rare_path(A, 1, "T1")
        rare_path(A, 2, "T2", do_qk=False)
    return name
```

```python
from asmlib import *
from layout import *
import k1
from k1 import (Lgkm, mfma, f2u, KPIECE, KSLOT, VBASE, VSLOT, MODL, O0, S_, NEGM, P_, T_, L_,
                VKR, VVR, VKD, VVD, AQ, NRING, AK, AV, SRD_K, SRD_V, SRD_WQ, SRD_Y, SRD_M,
                S_W, S_KOFF, S_M0K, S_M0V, S_CNT, S_THR, THR_LOG2, OPT, LEAD,
                kread, softmax_ops, iteration, rare_path, reads_for_pos, distribute)

K1_LDS = 163840
SRD_WO = 16
WSLOT = [0, 28672, 132096, 66560, 95232]

class Vm:
    def __init__(self): self.q = []
    def issue(self, tag): self.q.append(tag)
    def need(self, tags):
        idx = -1
        for i, t in enumerate(self.q):
            if t in tags: idx = i
        if idx < 0: return None
        n = len(self.q) - 1 - idx
        self.q = self.q[idx+1:]
        assert n <= 63
        return f"s_waitcnt vmcnt({n})"

def gen_k1(A, dbg=None):
    name = "k1_attn_kernel"
    kernel_begin(A, name)
    ST = Stamps(A, dbg == "time", wg=OPT.get("dbgwg", 9), wave_sgpr=S_W)
    A.e("s_cmp_ge_u32 s2, 256")
    A.e("s_cbranch_scc1 K1_END")
    ST.stamp()
    A.e("s_load_dwordx4 s[36:39], s[0:1], 8")
    A.e("s_load_dwordx4 s[40:43], s[0:1], 24")
    A.e("s_load_dwordx2 s[62:63], s[0:1], 88")
    A.e("s_load_dwordx2 s[60:61], s[0:1], 96")
    A.e("s_load_dwordx2 s[20:21], s[0:1], 0")
    A.e("s_load_dwordx2 s[56:57], s[0:1], 64")
    A.e("s_load_dwordx2 s[96:97], s[0:1], 72")
    A.e("v_and_b32 v1, 63, v0")
    A.e("v_lshrrev_b32 v14, 6, v0")
    A.e("s_nop 0")
    A.e(f"v_readfirstlane_b32 s{S_W}, v14")
    A.e("s_and_b32 s44, s2, 7")
    A.e("s_lshr_b32 s45, s2, 3")
    A.e("s_lshl_b32 s45, s45, 1")
    A.e(f"s_and_b32 s46, s{S_W}, 1")
    A.e("s_add_u32 s45, s45, s46")
    A.e(f"s_lshr_b32 s47, s{S_W}, 1")
    A.e("v_bfe_u32 v14, v1, 2, 1")
    A.e("v_bfe_u32 v15, v1, 3, 1")
    A.e("v_and_b32 v12, 3, v1")
    A.e("v_lshlrev_b32 v12, 4, v12")
    A.e("v_lshrrev_b32 v13, 4, v1")
    A.e("v_lshl_add_u32 v12, v13, 7, v12")
    for n in range(4):
        A.e(f"v_xor_b32 v13, {n & 1}, v14")
        A.e(f"v_lshl_add_u32 v13, v13, 6, v12")
        A.e(f"v_lshl_add_u32 v13, v15, 13, v13")
        A.e(f"v_add_u32 v{2+n}, {2*n*8192 - n*1024}, v13")
    def tr_bases(dst, swap, add, ta, tb, tc, hshift=11):
        A.e(f"v_lshrrev_b32 v{tb}, 5, v1")
        A.e(f"v_lshlrev_b32 v{ta}, {hshift}, v{tb}")
        A.e(f"v_bfe_u32 v{tb}, v1, 3, 1")
        A.e(f"v_lshl_add_u32 v{ta}, v{tb}, 10, v{ta}")
        A.e(f"v_bfe_u32 v{tc}, v1, 2, 1")
        A.e(f"v_lshl_add_u32 v{ta}, v{tc}, 7, v{ta}")
        A.e(f"v_bfe_u32 v{tc}, v1, 4, 1")
        A.e(f"v_lshl_add_u32 v{ta}, v{tc}, 5, v{ta}")
        if swap:
            A.e(f"v_and_b32 v{tc}, 1, v1")
            A.e(f"v_lshl_add_u32 v{ta}, v{tc}, 4, v{ta}")
            A.e(f"v_bfe_u32 v{tc}, v1, 1, 1")
            A.e(f"v_lshl_add_u32 v{ta}, v{tc}, 3, v{ta}")
        else:
            A.e(f"v_and_b32 v{tc}, 3, v1")
            A.e(f"v_lshl_add_u32 v{ta}, v{tc}, 3, v{ta}")
        A.e(f"v_add_u32 v{ta}, {add}, v{ta}")
        A.e(f"v_lshl_add_u32 v{dst[0]}, v{tb}, 6, v{ta}")
        A.e(f"v_xor_b32 v{tb}, 1, v{tb}")
        A.e(f"v_lshl_add_u32 v{dst[1]}, v{tb}, 6, v{ta}")
    A.e("s_lshl_b32 s48, s47, 14")
    tr_bases([6, 7], True, "s48", 13, 14, 15, hshift=12)
    A.e("v_add_u32 v8, 0x10000, v6")
    A.e("v_add_u32 v9, 0x10000, v7")
    WQR = [[6, 7], [8, 9]]
    A.e("v_lshlrev_b32 v12, 4, v1")
    A.e("v_lshrrev_b32 v13, 5, v1")
    A.e("v_lshlrev_b32 v13, 5, v13")
    A.e(f"v_add_u32 v13, {MODL}, v13")
    A.e(f"s_lshl_b32 s49, s46, 17")
    A.e("s_lshl_b32 s50, s47, 9")
    A.e("s_add_u32 s49, s49, s50")
    A.e(f"s_lshl_b32 s48, s{S_W}, 13")
    A.e("s_waitcnt lgkmcnt(0)")
    A.e("s_and_b32 s21, s21, 0xffff")
    A.e(f"s_mov_b32 s22, {X_BYTES}")
    A.e("s_mov_b32 s23, 0x00020000")
    A.e("s_and_b32 s57, s57, 0xffff")
    A.e("s_mov_b32 s58, 896")
    A.e("s_mov_b32 s59, 0x00020000")
    A.e("s_and_b32 s97, s97, 0xffff")
    A.e(f"s_mov_b32 s98, {448*5376}")
    A.e("s_mov_b32 s99, 0x00020000")
    A.e("s_lshl_b32 s50, s44, 20")
    A.e("s_add_u32 s36, s36, s50")
    A.e("s_addc_u32 s37, s37, 0")
    A.e("s_sub_u32 s52, s36, 64")
    A.e("s_subb_u32 s53, s37, 0")
    srd(A, SRD_K, "s52", "s53", 1048576+64)
    A.e("s_add_u32 s38, s38, s50")
    A.e("s_addc_u32 s39, s39, 0")
    A.e("s_sub_u32 s52, s38, 32768")
    A.e("s_subb_u32 s53, s39, 0")
    srd(A, SRD_V, "s52", "s53", 1048576+32768)
    A.e("s_lshl_b32 s50, s44, 10")
    A.e("s_add_u32 s40, s40, s50")
    A.e("s_addc_u32 s41, s41, 0")
    A.e(f"s_sub_u32 s51, {448*8192}, s50")
    srd(A, SRD_WQ, "s40", "s41", "s51")
    YR = 16
    TG = 64
    TU = 96
    AY = 128
    XP = 912
    REDL = 136192
    def yreg(f): return YR + 4*(f % 6)
    vm = Vm()
    def wslot(s): return (s+2) % 4
    def wq_dma(s):
        out = []
        for grp in range(2):
            out.append(f"s_add_u32 m0, s48, {wslot(s)*32768 + grp*4096}")
            out.append(f"s_add_u32 s50, s49, {s*262144 + grp*65536}")
            for n in range(4):
                out.append(f"buffer_load_dwordx4 v{2+n}, s[{SRD_WQ}:{SRD_WQ+3}], s50 offen offset:{n*1024} lds")
                vm.issue(('wq', s))
        return out
    A.e("s_cmp_ge_u32 s2, 84")
    A.e("s_cbranch_scc1 K1_NOPROD1")
    A.e("v_and_b32 v14, 3, v0")
    A.e("v_lshrrev_b32 v15, 2, v0")
    A.e("v_lshlrev_b32 v120, 1, v15")
    A.e("v_mul_u32_u24 v121, 5376, v15")
    A.e("v_lshl_add_u32 v121, v14, 4, v121")
    A.e("s_lshl_b32 s52, s2, 6")
    for st in range(7):
        A.e(f"buffer_load_ushort v{156+st}, v120, s[56:59], 0 offen offset:{128*st}")
    for st in range(7):
        A.e(f"s_add_u32 s53, s52, {st*64*5376}")
        A.e(f"buffer_load_dwordx4 {v(128+4*st,4)}, v121, s[96:99], s53 offen")
    A.label("K1_NOPROD1")
    A.e("s_lshr_b32 s50, s2, 3")
    A.e(f"s_mul_i32 s50, s50, {64*896}")
    A.e(f"s_mul_i32 s51, s{S_W}, {16*896}")
    A.e("s_add_u32 s50, s50, s51")
    A.e(f"s_mul_i32 s51, s{S_W}, {16*XP}")
    A.e("s_mov_b32 exec_lo, -1")
    A.e("s_mov_b32 exec_hi, 0x00ffffff")
    for r in range(16):
        A.e(f"s_add_u32 m0, s51, {r*XP}")
        A.e(f"s_add_u32 s52, s50, {r*896}")
        A.e(f"buffer_load_dwordx4 v12, s[{SRD_Y}:{SRD_Y+3}], s52 offen lds")
        vm.issue('x')
    A.e("s_mov_b64 exec, -1")
    if not OPT.get('latewq', 1):
        wq01 = wq_dma(0) + wq_dma(1)
        for t in wq01: A.e(t)
        A.e("v_lshrrev_b32 v14, 3, v0")
        A.e("v_min_u32 v14, 13, v14")
        A.e("s_lshr_b32 s52, s2, 3")
        A.e("s_mul_i32 s52, s52, 14")
        A.e("v_add_u32 v14, s52, v14")
        A.e("v_lshlrev_b32 v14, 13, v14")
        A.e("v_and_b32 v15, 7, v0")
        A.e("v_lshl_add_u32 v14, v15, 7, v14")
        A.e(f"s_cmp_lt_u32 s{S_W}, 2")
        A.e("s_cbranch_scc0 K1_NOPFQ")
        A.e(f"buffer_load_dword v122, v14, s[{SRD_WQ}:{SRD_WQ+3}], 0 offen")
        A.label("K1_NOPFQ")
        A.e("v_and_b32 v14, 31, v1")
        A.e("v_lshlrev_b32 v14, 7, v14")
        A.e("s_lshr_b32 s52, s2, 3")
        A.e("s_lshl_b32 s52, s52, 12")
        A.e(f"s_cmp_eq_u32 s{S_W}, 2")
        A.e("s_cbranch_scc0 K1_NOPFK")
        A.e("s_add_u32 s52, s52, 64")
        A.e(f"buffer_load_dword v122, v14, s[{SRD_K}:{SRD_K+3}], s52 offen")
        A.label("K1_NOPFK")
        A.e(f"s_cmp_eq_u32 s{S_W}, 3")
        A.e("s_cbranch_scc0 K1_NOPFV")
        A.e("s_add_u32 s52, s52, 32768")
        A.e(f"buffer_load_dword v122, v14, s[{SRD_V}:{SRD_V+3}], s52 offen")
        A.label("K1_NOPFV")
    A.e("s_cmp_ge_u32 s2, 84")
    A.e("s_cbranch_scc1 K1_NOPROD2")
    A.e(f"s_waitcnt vmcnt({23 if OPT.get('latewq', 1) else 40})")
    A.e("s_mov_b32 s53, 0xbfb8aa3b")
    for st in range(7):
        x_ = 156+st
        A.e(f"v_lshlrev_b32 v{x_}, 16, v{x_}")
        A.e(f"v_mul_f32 v123, s53, v{x_}")
        A.e("v_exp_f32 v123, v123")
        A.e("s_nop 0")
        A.e("v_add_f32 v123, 1.0, v123")
        A.e("v_rcp_f32 v123, v123")
        A.e("s_nop 0")
        A.e(f"v_mul_f32 v123, v123, v{x_}")
        A.e("v_cvt_pk_bf16_f32 v123, v123, v123")
        A.e(f"v_lshlrev_b32 v{x_}, 16, v123")
    for r in range(8): A.e(f"v_mov_b32 v{164+r}, 0")
    A.e(f"s_waitcnt vmcnt({16 if OPT.get('latewq', 1) else 33})")
    for st in range(7):
        for d in range(4):
            w_ = 128+4*st+d
            A.e(f"v_lshlrev_b32 v123, 16, v{w_}")
            A.e(f"v_and_b32 v124, 0xffff0000, v{w_}")
            A.e(f"v_fmac_f32 v{164+2*d}, v123, v{156+st}")
            A.e(f"v_fmac_f32 v{164+2*d+1}, v124, v{156+st}")
    A.e("v_lshrrev_b32 v15, 2, v0")
    A.e("v_and_b32 v14, 3, v0")
    A.e("v_lshlrev_b32 v123, 7, v15")
    A.e("v_lshl_add_u32 v123, v14, 5, v123")
    A.e(f"v_add_u32 v123, {REDL+2048}, v123")
    A.e("ds_write_b128 v123, v[164:167]")
    A.e("ds_write_b128 v123, v[168:171] offset:16")
    A.e("s_waitcnt lgkmcnt(0)")
    A.e("s_barrier")
    A.e("v_and_b32 v14, 31, v0")
    A.e("v_lshrrev_b32 v15, 5, v0")
    A.e("v_lshlrev_b32 v123, 10, v15")
    A.e("v_lshl_add_u32 v123, v14, 2, v123")
    A.e(f"v_add_u32 v123, {REDL+2048}, v123")
    for r in range(8):
        A.e(f"ds_read_b32 v{128+r}, v123 offset:{128*r}")
    A.e("s_waitcnt lgkmcnt(0)")
    for r in range(1, 8): A.e(f"v_add_f32 v128, v128, v{128+r}")
    A.e("v_lshlrev_b32 v123, 2, v0")
    A.e(f"v_add_u32 v123, {REDL+2048+8192}, v123")
    A.e("ds_write_b32 v123, v128")
    A.e("s_waitcnt lgkmcnt(0)")
    A.e("s_barrier")
    A.e(f"s_cmp_eq_u32 s{S_W}, 0")
    A.e("s_cbranch_scc0 K1_NOPROD2")
    A.e("v_lshlrev_b32 v123, 2, v14")
    A.e(f"v_add_u32 v123, {REDL+2048+8192}, v123")
    for r in range(8):
        A.e(f"ds_read_b32 v{128+r}, v123 offset:{128*r}")
    A.e("s_waitcnt lgkmcnt(0)")
    for r in range(1, 8): A.e(f"v_add_f32 v128, v128, v{128+r}")
    A.e("v_cvt_pk_bf16_f32 v128, v128, v128")
    A.e("v_lshlrev_b32 v128, 16, v128")
    A.e("s_mul_i32 s52, s2, 4682")
    A.e("s_lshr_b32 s52, s52, 16")
    A.e("s_mov_b32 s53, 0")
    A.e("s_cmp_eq_u32 s52, 1")
    A.e("s_cselect_b32 s53, 1.0, s53")
    A.e("s_cmp_eq_u32 s52, 4")
    A.e("s_cselect_b32 s53, 1.0, s53")
    A.e("v_add_f32 v128, s53, v128")
    A.e("v_cvt_pk_bf16_f32 v128, v128, v128")
    A.e("v_lshlrev_b32 v128, 16, v128")
    A.e(f"s_mov_b32 s53, {f2u(CS):#x}")
    A.e("s_cmp_le_u32 s52, 1")
    A.e("s_cselect_b32 s53, s53, 1.0")
    A.e("v_mul_f32 v128, s53, v128")
    srd(A, 56, "s60", "s61", MOD_BYTES)
    A.e("s_lshl_b32 s52, s2, 7")
    A.e("v_lshlrev_b32 v123, 2, v1")
    A.e("v_cmp_gt_u32 vcc, 32, v1")
    A.e("s_and_saveexec_b64 s[54:55], vcc")
    A.e("buffer_store_dword v128, v123, s[56:59], s52 offen sc1")
    A.e("s_mov_b64 exec, s[54:55]")
    A.e("s_cmp_ge_u32 s2, 28")
    A.e("s_cbranch_scc1 K1_NOPROD2")
    A.e("s_waitcnt vmcnt(0)")
    A.e("v_mov_b32 v123, 0")
    A.e("v_mov_b32 v124, 1")
    A.e("v_cmp_eq_u32 vcc, 0, v1")
    A.e("s_and_saveexec_b64 s[54:55], vcc")
    A.e("global_atomic_add v123, v124, s[62:63] sc1")
    A.e("s_mov_b64 exec, s[54:55]")
    A.label("K1_NOPROD2")
    A.e(f"s_waitcnt vmcnt({0 if OPT.get('latewq', 1) else 17})")
    A.e("s_barrier")
    ST.stamp()
    if OPT.get('latewq', 1):
        wq01 = wq_dma(0) + wq_dma(1)
        for t in wq01: A.e(t)
        A.e("v_lshrrev_b32 v14, 3, v0")
        A.e("v_min_u32 v14, 13, v14")
        A.e("s_lshr_b32 s52, s2, 3")
        A.e("s_mul_i32 s52, s52, 14")
        A.e("v_add_u32 v14, s52, v14")
        A.e("v_lshlrev_b32 v14, 13, v14")
        A.e("v_and_b32 v15, 7, v0")
        A.e("v_lshl_add_u32 v14, v15, 7, v14")
        A.e(f"s_cmp_lt_u32 s{S_W}, 2")
        A.e("s_cbranch_scc0 K1_NOPFQ")
        A.e(f"buffer_load_dword v122, v14, s[{SRD_WQ}:{SRD_WQ+3}], 0 offen")
        A.label("K1_NOPFQ")
        A.e("v_and_b32 v14, 31, v1")
        A.e("v_lshlrev_b32 v14, 7, v14")
        A.e("s_lshr_b32 s52, s2, 3")
        A.e("s_lshl_b32 s52, s52, 12")
        A.e(f"s_cmp_eq_u32 s{S_W}, 2")
        A.e("s_cbranch_scc0 K1_NOPFK")
        A.e("s_add_u32 s52, s52, 64")
        A.e(f"buffer_load_dword v122, v14, s[{SRD_K}:{SRD_K+3}], s52 offen")
        A.label("K1_NOPFK")
        A.e(f"s_cmp_eq_u32 s{S_W}, 3")
        A.e("s_cbranch_scc0 K1_NOPFV")
        A.e("s_add_u32 s52, s52, 32768")
        A.e(f"buffer_load_dword v122, v14, s[{SRD_V}:{SRD_V+3}], s52 offen")
        A.label("K1_NOPFV")
    A.e("v_and_b32 v14, 31, v1")
    A.e("s_lshl_b32 s52, s46, 5")
    A.e("v_add_u32 v14, s52, v14")
    A.e(f"v_mul_u32_u24 v14, {XP}, v14")
    A.e("ds_read_u16 v72, v14")
    A.e("v_lshrrev_b32 v15, 5, v1")
    A.e("v_lshl_add_u32 v15, v15, 4, v14")
    A.e("s_mul_i32 s52, s47, 448")
    A.e("v_add_u32 v15, s52, v15")
    RAW = 16
    for f in range(14):
        A.e(f"ds_read_b128 {v(RAW+4*f,4)}, v15 offset:{32*f}")
    A.e("s_waitcnt lgkmcnt(14)")
    A.e("v_lshlrev_b32 v72, 16, v72")
    A.e("v_sub_f32 v72, 0, v72")
    A.e("v_mov_b32 v73, v72")
    for r in range(4): A.e(f"v_mov_b32 v{88+r}, 0")
    for f in range(14):
        A.e(f"s_waitcnt lgkmcnt({13-f})")
        for d in range(4):
            r = RAW+4*f+d
            A.e(f"v_lshlrev_b32 v{74+2*d}, 16, v{r}")
            A.e(f"v_and_b32 v{75+2*d}, 0xffff0000, v{r}")
        for d in range(4):
            A.e(f"v_pk_add_f32 {v(74+2*d,2)}, {v(74+2*d,2)}, v[72:73]")
        for d in range(4):
            A.e(f"v_pk_add_f32 v[88:89], v[88:89], {v(74+2*d,2)}")
            A.e(f"v_pk_fma_f32 v[90:91], {v(74+2*d,2)}, {v(74+2*d,2)}, v[90:91]")
    A.e("v_add_f32 v88, v88, v89")
    A.e("v_add_f32 v89, v90, v91")
    A.e("v_lshlrev_b32 v84, 3, v0")
    A.e(f"v_add_u32 v84, {REDL}, v84")
    A.e("ds_write_b64 v84, v[88:89]")
    A.e("s_waitcnt lgkmcnt(0)")
    A.e("s_barrier")
    A.e("v_and_b32 v84, 31, v1")
    A.e("v_lshlrev_b32 v84, 3, v84")
    A.e("s_lshl_b32 s52, s46, 9")
    A.e(f"s_add_u32 s52, s52, {REDL}")
    A.e("v_add_u32 v84, s52, v84")
    A.e("ds_read_b64 v[74:75], v84")
    A.e("ds_read_b64 v[76:77], v84 offset:256")
    A.e("ds_read_b64 v[78:79], v84 offset:1024")
    A.e("ds_read_b64 v[80:81], v84 offset:1280")
    A.e("s_waitcnt lgkmcnt(0)")
    A.e("v_pk_add_f32 v[74:75], v[74:75], v[76:77]")
    A.e("v_pk_add_f32 v[78:79], v[78:79], v[80:81]")
    A.e("v_pk_add_f32 v[74:75], v[74:75], v[78:79]")
    A.e(f"v_mul_f32 v74, {f2u(1/448.):#x}, v74")
    A.e(f"v_mul_f32 v75, {f2u(1/448.):#x}, v75")
    A.e("v_fma_f32 v75, -v74, v74, v75")
    A.e("v_max_f32 v75, 0, v75")
    A.e(f"v_add_f32 v75, {f2u(1e-5):#x}, v75")
    A.e("v_rsq_f32 v75, v75")
    A.e("v_sub_f32 v74, v74, v72")
    A.e("v_mov_b32 v76, v75")
    A.e("v_mov_b32 v77, v75")
    A.e("v_mul_f32 v78, v74, v75")
    A.e("v_sub_f32 v78, 0, v78")
    A.e("v_mov_b32 v79, v78")
    A.e("s_mul_i32 s52, s46, 28672")
    A.e("s_mul_i32 s53, s47, 14336")
    A.e("s_add_u32 s53, s53, s52")
    A.e("v_add_u32 v84, s53, v12")
    A.e("v_add_u32 v85, s52, v12")
    for f in range(14):
        tb = 96 + 8*(f & 1)
        for d in range(4):
            r = RAW+4*f+d
            A.e(f"v_lshlrev_b32 v{tb+2*d}, 16, v{r}")
            A.e(f"v_and_b32 v{tb+2*d+1}, 0xffff0000, v{r}")
        for d in range(4):
            A.e(f"v_pk_fma_f32 {v(tb+2*d,2)}, {v(tb+2*d,2)}, v[76:77], v[78:79]")
        for d in range(4):
            A.e(f"v_cvt_pk_bf16_f32 v{RAW+4*f+d}, v{tb+2*d}, v{tb+2*d+1}")
        A.e(f"ds_write_b128 v84, {v(RAW+4*f,4)} offset:{1024*f}")
    A.e("s_waitcnt lgkmcnt(0)")
    A.e("s_barrier")
    for f in range(28):
        A.e(f"ds_read_b128 {a(AY+4*f,4)}, v85 offset:{1024*f}")
    A.e(f"s_cmp_eq_u32 s{S_W}, 0")
    A.e("s_cbranch_scc0 K1_POLLED")
    A.e("v_mov_b32 v84, 0")
    A.e("s_mov_b32 s52, 0")
    A.label("K1_POLL")
    A.e("global_load_dword v85, v84, s[62:63] sc1")
    A.e("s_waitcnt vmcnt(0)")
    A.e("v_readfirstlane_b32 s53, v85")
    A.e("s_cmp_ge_u32 s53, 28")
    A.e("s_cbranch_scc1 K1_POLLED")
    A.e("s_sleep 4")
    A.e("s_add_u32 s52, s52, 1")
    A.e("s_cmp_lt_u32 s52, 0x40000")
    A.e("s_cbranch_scc1 K1_POLL")
    A.label("K1_POLLED")
    A.e("s_waitcnt lgkmcnt(0)")
    A.e("s_barrier")
    srd(A, SRD_M, "s60", "s61", 3584)
    A.e("v_lshlrev_b32 v84, 4, v0")
    A.e(f"buffer_load_dwordx4 v[76:79], v84, s[{SRD_M}:{SRD_M+3}], 0 offen sc1")
    vm2 = wq_dma(2)
    for t in vm2: A.e(t)
    A.e(f"v_add_u32 v84, {MODL}, v84")
    A.e("s_waitcnt vmcnt(8)")
    A.e("ds_write_b128 v84, v[76:79]")
    A.e("s_waitcnt lgkmcnt(0)")
    vm.q = [('wq', 2)]*8
    A.e("s_barrier")
    ST.stamp()
    lg = Lgkm(A)
    def ln_ops(f):
        b = TG + 16*(f & 1)
        rd = [(('m', f, 0), f"ds_read_b128 {v(b,4)}, v13 offset:{1792+f*64}"),
              (('m', f, 1), f"ds_read_b128 {v(b+4,4)}, v13 offset:{1792+f*64+16}"),
              (('m', f, 2), f"ds_read_b128 {v(b+8,4)}, v13 offset:{f*64}"),
              (('m', f, 3), f"ds_read_b128 {v(b+12,4)}, v13 offset:{f*64+16}")]
        tu = TU + 8*(f & 1)
        va = []
        for d in range(4):
            va.append(f"v_accvgpr_read_b32 v{yreg(f)+d}, a{AY+4*f+d}")
        for d in range(4):
            r = yreg(f)+d
            va.append(f"v_lshlrev_b32 v{tu+2*d}, 16, v{r}")
            va.append(f"v_and_b32 v{tu+2*d+1}, 0xffff0000, v{r}")
        vb = []
        for d in range(4):
            vb.append(f"v_pk_fma_f32 {v(tu+2*d,2)}, {v(tu+2*d,2)}, {v(b+2*d,2)}, {v(b+8+2*d,2)}")
        for d in range(4):
            vb.append(f"v_cvt_pk_bf16_f32 v{yreg(f)+d}, v{tu+2*d}, v{tu+2*d+1}")
        return rd, va, vb
    for f in (0, 1):
        rd, va, vb = ln_ops(f)
        for t, txt in rd: A.e(txt); lg.issue(t)
        for txt in va: A.e(txt)
        A.e(lg.need({('m', f, 3)}))
        for txt in vb: A.e(txt)
    QL = 4
    def q_reads(s, p):
        if p >= 16:
            s, p = s+1, p-16
            if s >= 14: return []
        db, ks = p >> 1, p & 1
        sl = wslot(s)
        o = []
        for u in range(2):
            off = (sl & 1)*32768 + ks*8192 + u*2048 + (db >> 1)*256
            o.append((('q', s, p, u), f"ds_read_b64_tr_b16 {a(AV+4*(p % NRING)+2*u,2)}, v{WQR[sl >> 1][db & 1]} offset:{off}"))
        return o
    for p in range(QL):
        for t, txt in q_reads(0, p):
            A.e(txt); lg.issue(t)
    def k_dma(blk):
        out = [f"s_add_u32 m0, s{S_M0K}, {(blk % 4)*KSLOT}", f"s_mov_b32 s50, {blk*16384}"]
        for n in range(4):
            out.append(f"buffer_load_dwordx4 v{VKD2[n]}, s[{SRD_K}:{SRD_K+3}], s50 offen offset:{n*KPIECE} lds")
            vm.issue(('k', blk))
        return out
    def v_dma(blk):
        out = [f"s_add_u32 m0, s{S_M0V}, {(blk % 4)*VSLOT}", f"s_mov_b32 s50, {blk*16384+32768}"]
        for n in range(4):
            out.append(f"buffer_load_dwordx4 v{VVD2[n & 1]}, s[{SRD_V}:{SRD_V+3}], s50 offen offset:{n*1024} lds")
            vm.issue(('v', blk))
        return out
    VKD2 = [112, 113, 114, 115]
    VVD2 = [116, 117]
    def kv_addr_setup():
        o = []
        e = o.append
        e("v_lshrrev_b32 v118, 5, v1")
        e("v_and_b32 v119, 31, v1")
        e("v_lshlrev_b32 v117, 3, v118")
        e("v_xor_b32 v119, v119, v117")
        e("v_lshlrev_b32 v119, 4, v119")
        e("v_lshl_add_u32 v119, v118, 9, v119")
        e(f"s_lshl_b32 s51, s{S_W}, 12")
        e("s_add_u32 s54, s51, 64")
        e(f"v_add_u32 v{VKD2[0]}, s54, v119")
        for n in range(1, 4):
            e(f"v_subrev_u32 v{VKD2[n]}, {16*n}, v{VKD2[0]}")
        e("v_bfe_u32 v118, v1, 2, 1")
        e("v_bfe_u32 v119, v1, 3, 1")
        e("v_and_b32 v117, 3, v1")
        e("v_lshlrev_b32 v117, 4, v117")
        e("v_lshl_add_u32 v117, v119, 9, v117")
        e("v_lshrrev_b32 v119, 4, v1")
        e("v_lshl_add_u32 v117, v119, 7, v117")
        e("v_add_u32 v117, s51, v117")
        e(f"v_lshl_add_u32 v{VVD2[0]}, v118, 6, v117")
        e("v_xor_b32 v118, 1, v118")
        e(f"v_lshl_add_u32 v{VVD2[1]}, v118, 6, v117")
        e(f"s_add_u32 s{S_M0V}, s51, {VBASE}")
        e(f"s_mul_i32 s{S_M0K}, s{S_W}, {4*KPIECE}")
        return o
    for t in kv_addr_setup(): A.e(t)
    for s_ in range(14):
        gaps = [[] for _ in range(16)]
        needs = set()
        if s_+1 < 14: needs |= {('wq', s_+1)}
        w = vm.need(needs) if needs else None
        if s_ < 13 or True:
            gaps[0] += ([w] if w else []) + ["s_barrier"]
        fill = []
        if s_+3 < 14: fill += wq_dma(s_+3)
        if s_ == 12:
            for blk in (0, 1, 2): fill += k_dma(blk)
        if s_ == 13:
            fill += k_dma(3) + v_dma(0)
        n = len(fill)
        for i, t in enumerate(fill):
            gaps[1 + (i*14)//max(n, 1)].append(t)
        lnseq = []
        if s_+1 < 14:
            r0, a0, b0 = ln_ops(2*s_+2)
            r1, a1, b1 = ln_ops(2*s_+3)
            lnseq = [('rd', r0), ('v', a0), ('rd', r1), ('need', 2*s_+2), ('v', b0), ('v', a1), ('need', 2*s_+3), ('v', b1)]
        items = []
        for kind, x in lnseq:
            if kind == 'rd':
                for t, txt in x: items.append(('rd', t, txt))
            elif kind == 'v':
                for txt in x: items.append(('v', None, txt))
            else:
                items.append(('need', x, None))
        lgaps = [[] for _ in range(16)]
        for i, it in enumerate(items):
            lgaps[1 + (i*14)//max(len(items), 1)].append(it)
        for p in range(16):
            w2 = lg.need({('q', s_, p, 0), ('q', s_, p, 1)})
            if w2: A.e(w2)
            db, ks = p >> 1, p & 1
            acc = v(O0+16*db, 16)
            first = (s_ == 0 and ks == 0)
            A.e(mfma(acc, a(AV+4*(p % NRING), 4), v(yreg(2*s_+ks), 4), "0" if first else acc))
            for t, txt in q_reads(s_, p+QL):
                A.e(txt); lg.issue(t)
            for txt in gaps[p]: A.e(txt)
            for kind, t, txt in lgaps[p]:
                if kind == 'rd':
                    A.e(txt); lg.issue(t)
                elif kind == 'v':
                    A.e(txt)
                else:
                    w3 = lg.need({('m', t, 3)})
                    if w3: A.e(w3)
    ST.stamp()
    A.e("s_barrier")
    for t in v_dma(1): A.e(t)
    for n in range(4): A.e(f"v_mov_b32 v{VKD[n]}, v{VKD2[n]}")
    for n in range(2): A.e(f"v_mov_b32 v{VVD[n]}, v{VVD2[n]}")
    A.e("v_bfe_u32 v14, v1, 1, 4")
    A.e(f"v_mul_u32_u24 v14, {KPIECE}, v14")
    A.e("v_and_b32 v15, 1, v1")
    A.e("v_lshl_add_u32 v14, v15, 9, v14")
    A.e("v_lshrrev_b32 v2, 5, v1")
    A.e("v_lshl_add_u32 v14, v2, 4, v14")
    A.e("v_lshlrev_b32 v15, 7, v15")
    A.e(f"v_add_u32 v{VKR[0]}, v14, v15")
    A.e(f"v_sub_u32 v{VKR[1]}, v14, v15")
    tr_bases(VVR, False, VBASE, 16, 17, 18)
    for db in range(8):
        for r in range(8):
            A.e(f"v_cvt_pk_bf16_f32 v{T_+(r & 3)}, v{O0+16*db+2*r}, v{O0+16*db+2*r+1}")
            A.e(f"v_accvgpr_write_b32 a{AQ+8*db+r}, v{T_+(r & 3)}")
    A.e(vm.need({('k', 0), ('k', 1)}))
    A.e("s_barrier")
    lg = Lgkm(A)
    seq = [(b, ks) for b in range(2) for ks in range(16)]
    KL = 4
    for i in range(KL):
        b, ks = seq[i]
        A.e(kread(b, ks, i % NRING)); lg.issue(i)
    zero = [f"v_mov_b32 v{O0+r}, 0" for r in range(128)]
    for i, (b, ks) in enumerate(seq):
        w = lg.need({i})
        if w: A.e(w)
        A.e(mfma(v(S_[b], 16), a(AK+4*(i % NRING), 4), a(AQ+4*ks, 4), "0" if ks == 0 else v(S_[b], 16)))
        if i+KL < 32:
            b2, ks2 = seq[i+KL]
            A.e(kread(b2, ks2, (i+KL) % NRING)); lg.issue(i+KL)
        for t in zero[4*i:4*i+4]: A.e(t)
    A.e("s_barrier")
    VKD2[:] = VKD; VVD2[:] = VVD
    for t in v_dma(2): A.e(t)
    for t in k_dma(4): A.e(t)
    A.e(f"s_mov_b32 s{S_KOFF}, {5*16384}")
    A.e(f"s_mov_b32 s{S_THR}, {f2u(2.0**(OPT.get('thr', THR_LOG2)-OPT['bias'])):#x}")
    A.e("s_nop 7")
    t0, t1 = T_, T_+1
    A.e(f"v_max3_f32 v{t0}, v{S_[0]}, v{S_[0]+1}, v{S_[0]+2}")
    allS = [S_[0]+j for j in range(3, 16)] + [S_[1]+j for j in range(16)]
    for j in range(0, len(allS)-1, 2):
        A.e(f"v_max3_f32 v{t0}, v{t0}, v{allS[j]}, v{allS[j+1]}")
    A.e(f"v_max_f32 v{t0}, v{t0}, v{allS[-1]}")
    A.e(f"v_mov_b32 v{t1}, v{t0}")
    A.e("s_nop 1")
    A.e(f"v_permlane32_swap_b32 v{t0}, v{t1}")
    A.e("s_nop 1")
    A.e(f"v_max_f32 v{t0}, v{t0}, v{t1}")
    if OPT['bias']:
        A.e(f"v_add_f32 v{t0}, {f2u(float(OPT['bias'])):#x}, v{t0}")
    for r in range(16):
        A.e(f"v_sub_f32 v{NEGM+r}, 0, v{t0}")
    for b in range(2):
        for r in range(16):
            A.e(f"v_sub_f32 v{S_[b]+r}, v{S_[b]+r}, v{t0}")
    A.e(f"v_mov_b32 v{L_[1]}, 0")
    for c, t in softmax_ops(S_[0], P_[0], L_[1], L_[0]):
        A.e(t)
    A.e("s_waitcnt vmcnt(8)")
    A.e("s_barrier")
    ST.stamp()
    if dbg == "time": A.e("s_waitcnt lgkmcnt(0)")
    for p in range(LEAD):
        for t, txt in reads_for_pos(0, p, True, True, True, True):
            A.e(txt)
    if OPT.get('pfkv', 1):
        A.e(f"s_cmp_lt_u32 s{S_W}, 2")
        A.e("s_cselect_b32 s96, s36, s38")
        A.e("s_cselect_b32 s97, s37, s39")
        A.e("s_and_b32 s97, s97, 0xffff")
        A.e("s_mov_b32 s98, 1048576")
        A.e("s_mov_b32 s99, 0x00020000")
        A.e("v_and_b32 v19, 7, v1")
        A.e("v_lshlrev_b32 v19, 7, v19")
        A.e("s_lshr_b32 s50, s2, 3")
        A.e("s_lshl_b32 s50, s50, 11")
        A.e("s_lshl_b32 s51, s46, 10")
        A.e("s_add_u32 s50, s50, s51")
        A.e("v_add_u32 v19, s50, v19")
    if OPT.get('pfmall', 1):
        A.e("s_load_dwordx4 s[52:55], s[0:1], 48")
        A.e("s_waitcnt lgkmcnt(0)")
        A.e("s_cmp_lt_u32 s46, 1")
        A.e("s_cselect_b32 s56, s52, s54")
        A.e("s_cselect_b32 s57, s53, s55")
        A.e("s_and_b32 s57, s57, 0xffff")
        A.e(f"s_mov_b32 s58, {448*3584}")
        A.e("s_mov_b32 s59, 0x00020000")
        A.e("s_mul_i32 s50, s2, 6272")
        A.e("v_lshlrev_b32 v20, 7, v1")
        A.e("v_min_u32 v20, 6144, v20")
        A.e(f"s_cmp_lt_u32 s{S_W}, 2")
        A.e("s_cbranch_scc0 K1_NOMALL")
        A.e("buffer_load_dword v21, v20, s[56:59], s50 offen")
        A.label("K1_NOMALL")
    A.e(f"s_mov_b32 s{S_CNT}, 15")
    A.raw(".p2align 6")
    A.label("K1_LOOP")
    if OPT.get('pfkv', 1):
        A.e(f"s_add_u32 s50, s{S_KOFF}, {7*16384}")
        A.e("buffer_load_dword v22, v19, s[96:99], s50 offen")
    if OPT.get('pfwo', 1):
        A.e(f"s_cmp_lg_u32 s{S_CNT}, 4")
        A.e("s_cbranch_scc1 K1_NOPF")
        A.e(f"s_mul_i32 s50, s44, {512*896}")
        A.e("s_add_u32 s56, s42, s50")
        A.e("s_addc_u32 s57, s43, 0")
        A.e("s_and_b32 s57, s57, 0xffff")
        A.e(f"s_mov_b32 s58, {512*896}")
        A.e("s_mov_b32 s59, 0x00020000")
        A.e("s_lshr_b32 s50, s2, 3")
        A.e("s_mul_i32 s50, s50, 14336")
        A.e("v_lshlrev_b32 v14, 7, v0")
        A.e("v_min_u32 v14, 14208, v14")
        A.e("buffer_load_dword v15, v14, s[56:59], s50 offen")
        A.label("K1_NOPF")
    if OPT.get('pfw1', 0):
        A.e(f"s_cmp_lg_u32 s{S_CNT}, 2")
        A.e("s_cbranch_scc1 K1_NOPF1")
        A.e("s_load_dwordx2 s[56:57], s[0:1], 48")
        A.e("s_waitcnt lgkmcnt(0)")
        A.e("s_and_b32 s57, s57, 0xffff")
        A.e(f"s_mov_b32 s58, {448*3584}")
        A.e("s_mov_b32 s59, 0x00020000")
        A.e("s_lshr_b32 s50, s2, 3")
        A.e("s_mul_i32 s50, s50, 50176")
        A.e("v_lshlrev_b32 v14, 7, v0")
        A.e("buffer_load_dword v15, v14, s[56:59], s50 offen")
        A.e("v_add_u32 v14, 32768, v14")
        A.e("v_min_u32 v14, 50048, v14")
        A.e("buffer_load_dword v16, v14, s[56:59], s50 offen")
        A.label("K1_NOPF1")
    for ph in range(4):
        iteration(A, ph, f"M{ph}")
    A.e(f"s_sub_u32 s{S_CNT}, s{S_CNT}, 1")
    A.e(f"s_cmp_lg_u32 s{S_CNT}, 0")
    A.e("s_cbranch_scc1 K1_LOOP")
    if dbg == "time":
        ST.stamp()
    A.e(f"s_mul_i32 s50, s44, {512*896}")
    A.e("s_add_u32 s42, s42, s50")
    A.e("s_addc_u32 s43, s43, 0")
    srd(A, SRD_WO, "s42", "s43", 512*896)
    GOFF = 34
    for n in range(7):
        A.e(f"s_mul_i32 s50, s{S_W}, 7")
        A.e(f"s_add_u32 s50, s50, {n}")
        A.e("s_cmp_ge_u32 s50, 14")
        A.e("s_cselect_b32 s51, 14, 0")
        A.e(f"s_cselect_b32 s52, {16*896}, 0")
        A.e("s_sub_u32 s50, s50, s51")
        A.e("s_and_b32 s51, s50, 1")
        A.e(f"s_mul_i32 s51, s51, {8*896}")
        A.e("s_lshr_b32 s50, s50, 1")
        A.e("s_lshl_b32 s50, s50, 7")
        A.e("s_add_u32 s50, s50, s51")
        A.e(f"s_add_u32 s{GOFF+n}, s50, s52")
    A.e(f"s_mul_i32 s41, s{S_W}, 7168")
    A.e("v_lshrrev_b32 v16, 3, v1")
    A.e("v_mul_u32_u24 v14, 896, v16")
    A.e("v_bfe_u32 v16, v1, 4, 1")
    A.e("v_bfe_u32 v17, v1, 2, 1")
    A.e("v_xor_b32 v16, v16, v17")
    A.e("v_lshl_add_u32 v14, v16, 6, v14")
    A.e("v_and_b32 v16, 3, v1")
    A.e("v_lshl_add_u32 v14, v16, 4, v14")
    vme = Vm()
    def wo_dma(t):
        out = []
        for n in range(7):
            out.append(f"s_add_u32 m0, s41, {WSLOT[t % 5] + n*1024}")
            out.append(f"s_add_u32 s50, s{GOFF+n}, {t*32*896}")
            out.append(f"buffer_load_dwordx4 v14, s[{SRD_WO}:{SRD_WO+3}], s50 offen lds")
            vme.issue(('wo', t))
        return out
    def spread(lst, lo, hi):
        d = {}
        trip = [lst[i:i+3] for i in range(0, len(lst), 3)]
        for i, tr3 in enumerate(trip):
            g = lo + (i*(hi-lo+1))//len(trip)
            d.setdefault(g, []).extend(tr3)
        return d
    iteration(A, 0, "T0", dma_k=False, dma_v=True, vmwait=8)
    iteration(A, 1, "T1", dma_k=False, dma_v=False, vmwait=4, nxt_qk=False)
    iteration(A, 2, "T2", do_qk=False, dma_k=False, dma_v=False, vmwait=0, nxt_qk=False,
              extra=spread(wo_dma(0) + wo_dma(1)[:12], 1, 30))
    vme.q = [('wo', 0)]*7 + [('wo', 1)]*4
    rest1 = []
    for n in range(4, 7):
        rest1 += [f"s_add_u32 m0, s41, {WSLOT[1] + n*1024}", f"s_add_u32 s50, s{GOFF+n}, {32*896}",
                  f"buffer_load_dwordx4 v14, s[{SRD_WO}:{SRD_WO+3}], s50 offen lds"]
        vme.issue(('wo', 1))
    iteration(A, 3, "T3", do_qk=False, do_sm=False, dma_k=False, dma_v=False, nxt_pv=False, nxt_qk=False, barrier=False,
              extra=spread(rest1 + wo_dma(2), 1, 30))
    Lf = L_[1]
    OP = 64
    A.e(f"v_mov_b32 v{t0}, v{Lf}")
    A.e(f"v_mov_b32 v{t1}, v{Lf}")
    A.e("s_nop 1")
    A.e(f"v_permlane32_swap_b32 v{t0}, v{t1}")
    A.e("s_nop 1")
    A.e(f"v_add_f32 v{t0}, v{t0}, v{t1}")
    A.e(f"v_rcp_f32 v{t0}, v{t0}")
    A.e("s_lshl_b32 s50, s46, 1")
    A.e("s_add_u32 s50, s50, s47")
    A.e("s_lshl_b32 s50, s50, 14")
    A.e(f"s_add_u32 s50, s50, {VBASE}")
    A.e("v_lshlrev_b32 v12, 4, v1")
    A.e("v_add_u32 v15, s50, v12")
    A.e("s_barrier")
    for fr in range(16):
        base = O0 + 8*fr
        for r in range(8):
            A.e(f"v_mul_f32 v{base+r}, v{base+r}, v{t0}")
        for r in range(4):
            A.e(f"v_cvt_pk_bf16_f32 v{OP+4*fr+r}, v{base+2*r}, v{base+2*r+1}")
        A.e(f"ds_write_b128 v15, {v(OP+4*fr,4)} offset:{fr*1024}")
    A.e("s_waitcnt lgkmcnt(0)")
    A.e("s_barrier")
    A.e("s_lshl_b32 s50, s46, 15")
    A.e(f"s_add_u32 s50, s50, {VBASE}")
    A.e("v_add_u32 v15, s50, v12")
    for kk in range(32):
        A.e(f"ds_read_b128 {a(4*kk,4)}, v15 offset:{kk*1024}")
    A.e("v_lshrrev_b32 v16, 5, v1")
    A.e("v_lshlrev_b32 v17, 9, v16")
    A.e("v_bfe_u32 v16, v1, 2, 2")
    A.e("v_lshl_add_u32 v17, v16, 7, v17")
    A.e("v_bfe_u32 v16, v1, 4, 1")
    A.e("v_lshl_add_u32 v17, v16, 5, v17")
    A.e("v_and_b32 v16, 3, v1")
    A.e("v_lshl_add_u32 v17, v16, 3, v17")
    A.e("v_bfe_u32 v16, v1, 3, 1")
    A.e("v_xor_b32 v18, s47, v16")
    A.e("v_lshl_add_u32 v2, v18, 6, v17")
    A.e("v_xor_b32 v18, 1, v18")
    A.e("v_lshl_add_u32 v3, v18, 6, v17")
    A.e(f"s_mul_i32 s50, s47, {3*2048}")
    A.e(f"s_mul_i32 s51, s47, {4*2048}")
    A.e("v_add_u32 v2, s50, v2")
    A.e("v_add_u32 v3, s51, v3")
    A.e(f"v_add_u32 v4, {WSLOT[2]}, v2")
    A.e(f"v_add_u32 v5, {WSLOT[2]}, v3")
    A.e(f"v_add_u32 v6, {WSLOT[3]}, v2")
    A.e(f"v_add_u32 v7, {WSLOT[3]}, v3")
    A.e("s_waitcnt lgkmcnt(0)")
    A.e("s_barrier")
    for t in wo_dma(3) + wo_dma(4): A.e(t)
    def wbase(slot, c):
        e = c & 1
        if slot in (0, 1): return (2+e, WSLOT[slot])
        if slot == 2: return (4+e, 0)
        return (6+e, WSLOT[slot]-WSLOT[3])
    ARG = AV
    ARG = 128
    def o_reads(t, p):
        if p >= 14:
            t, p = t+1, p-14
            if t >= 16: return []
        ksl, c = p // 7, p % 7
        b, off = wbase(t % 5, c)
        o = []
        for u in range(2):
            o.append((('o', t, p, u), f"ds_read_b64_tr_b16 {a(ARG+4*((14*t+p) % NRING)+2*u,2)}, v{b} offset:{off + ksl*14336 + (c >> 1)*2048 + u*1024}"))
        return o
    lg = Lgkm(A)
    OL = 4
    A.e(vme.need({('wo', 0)}))
    A.e("s_barrier")
    for p in range(OL):
        for t_, txt in o_reads(0, p): A.e(txt); lg.issue(t_)
    ACC = O0
    for t in range(16):
        gaps = [[] for _ in range(14)]
        if t+1 < 16:
            w = vme.need({('wo', t+1)})
            gaps[0] += ([w] if w else []) + ["s_barrier"]
        if t >= 1 and t+4 < 16:
            d = wo_dma(t+4)
            sp = spread(d, 1, 12)
            for g_, l_ in sp.items(): gaps[g_] += l_
        for p in range(14):
            w2 = lg.need({('o', t, p, 0), ('o', t, p, 1)})
            if w2: A.e(w2)
            ksl, c = p // 7, p % 7
            acc = v(ACC+16*c, 16)
            first = (t == 0 and ksl == 0)
            A.e(mfma(acc, a(ARG+4*((14*t+p) % NRING), 4), a(4*(2*t+ksl), 4), "0" if first else acc))
            for t_, txt in o_reads(t, p+OL): A.e(txt); lg.issue(t_)
            for txt in gaps[p]: A.e(txt)
    ST.stamp()
    A.e("s_lshl_b32 s50, s44, 6")
    A.e("s_add_u32 s50, s50, s45")
    A.e("s_mul_i32 s50, s50, 28672")
    A.e(f"s_mul_i32 s51, s47, {14*1024}")
    A.e("s_add_u32 s50, s50, s51")
    A.e(f"s_add_u32 s50, s50, {PART_OFF}")
    A.e("s_add_u32 s52, s60, s50")
    A.e("s_addc_u32 s53, s61, 0")
    srd(A, SRD_Y, "s52", "s53", 14*1024)
    A.e("s_nop 7")
    for fr in range(14):
        dst = OP + 4*(fr % 16)
        for r in range(4):
            A.e(f"v_cvt_pk_bf16_f32 v{dst+r}, v{ACC+8*fr+2*r}, v{ACC+8*fr+2*r+1}")
        if fr % 4 == 0:
            A.e(f"s_mov_b32 s50, {fr*1024}")
        A.e(f"buffer_store_dwordx4 {v(dst,4)}, v12, s[{SRD_Y}:{SRD_Y+3}], s50 offen offset:{(fr%4)*1024} {OPT.get('pstore', '')}")
    ST.finish("K1_END")
    A.label("K1_END")
    A.e("s_endpgm")
    if not OPT['no_sm']:
        for ph in range(4):
            rare_path(A, ph, f"M{ph}")
        rare_path(A, 0, "T0")
        rare_path(A, 1, "T1")
        rare_path(A, 2, "T2", do_qk=False)
    return name
```

```python
from asmlib import *
from layout import *
from k1 import Lgkm, mfma, f2u
from k1b import Vm
DBG = False
PFW2 = True

def gen_k3m(A):
    name = "k3_mlp1_kernel"
    kernel_begin(A, name)
    A.e("s_cmp_ge_u32 s2, 256")
    A.e("s_cbranch_scc1 K3_END")
    ST = Stamps(A, DBG)
    ST.stamp()
    A.e("s_load_dwordx4 s[36:39], s[0:1], 48")
    A.e("s_load_dwordx2 s[40:41], s[0:1], 96")
    A.e("v_and_b32 v1, 63, v0")
    A.e("v_lshrrev_b32 v2, 6, v0")
    A.e("s_nop 0")
    A.e("v_readfirstlane_b32 s28, v2")
    A.e("s_and_b32 s29, s2, 7")
    A.e("s_lshr_b32 s30, s2, 3")
    A.e("s_lshl_b32 s29, s29, 3")
    A.e("s_lshr_b32 s31, s30, 2")
    A.e("s_add_u32 s29, s29, s31")
    A.e("s_and_b32 s30, s30, 3")
    A.e("s_lshr_b32 s46, s28, 1")
    A.e("s_and_b32 s47, s28, 1")
    A.e("v_lshlrev_b32 v12, 4, v1")
    A.e("v_lshrrev_b32 v16, 3, v1")
    A.e("v_mul_u32_u24 v14, 3584, v16")
    A.e("v_bfe_u32 v16, v1, 4, 1")
    A.e("v_bfe_u32 v17, v1, 2, 1")
    A.e("v_xor_b32 v16, v16, v17")
    A.e("v_lshl_add_u32 v14, v16, 6, v14")
    A.e("v_and_b32 v16, 3, v1")
    A.e("v_lshl_add_u32 v14, v16, 4, v14")
    SLOT = [i*28672 for i in range(5)]
    SCR = 143360
    H2L = SLOT[4]
    GOFF = 48
    for n in range(7):
        A.e(f"s_mul_i32 s44, s28, 7")
        A.e(f"s_add_u32 s44, s44, {n}")
        A.e("s_cmp_ge_u32 s44, 14")
        A.e("s_cselect_b32 s45, 14, 0")
        A.e(f"s_cselect_b32 s34, {14*16*3584}, 0")
        A.e("s_sub_u32 s44, s44, s45")
        A.e("s_and_b32 s45, s44, 1")
        A.e(f"s_mul_i32 s45, s45, {8*3584}")
        A.e("s_lshr_b32 s44, s44, 1")
        A.e("s_lshl_b32 s44, s44, 7")
        A.e("s_add_u32 s44, s44, s45")
        A.e(f"s_add_u32 s{GOFF+n}, s44, s34")
    A.e("s_mul_i32 s55, s28, 7168")
    A.e("s_waitcnt lgkmcnt(0)")
    A.e("s_mul_i32 s33, s30, 896")
    A.e("s_add_u32 s36, s36, s33")
    A.e("s_addc_u32 s37, s37, 0")
    A.e(f"s_sub_u32 s34, {448*3584}, s33")
    srd(A, 8, "s36", "s37", "s34")
    A.e(f"s_add_u32 s42, s40, {PART_OFF}")
    A.e("s_addc_u32 s43, s41, 0")
    srd(A, 12, "s42", "s43", PART_BYTES)
    A.e(f"s_add_u32 s42, s40, {XF_OFF}")
    A.e("s_addc_u32 s43, s41, 0")
    srd(A, 16, "s42", "s43", XF_BYTES)
    A.e(f"s_add_u32 s42, s40, {2*1792}")
    A.e("s_addc_u32 s43, s41, 0")
    srd(A, 20, "s42", "s43", 3*1792)
    vm = Vm()
    A.e("s_mul_i32 s32, s29, 28672")
    A.e("s_mul_i32 s33, s28, 7168")
    A.e("s_add_u32 s32, s32, s33")
    PR = 32
    AP = 128
    def preg(k, g): return 32 + 32*k + 4*g
    for k in range(7):
        for g in range(8):
            A.e(f"s_add_u32 s33, s32, {g*64*28672 + k*1024}")
            A.e(f"buffer_load_dwordx4 {a(preg(k,g),4)}, v12, s[12:15], s33 offen"); vm.issue(('p', k))
        if k == 0:
            A.e("s_lshl_b32 s33, s28, 10")
            A.e(f"s_add_u32 m0, s33, {SCR}")
            A.e("s_nop 0")
            A.e("buffer_load_dwordx4 v12, s[20:23], s33 offen lds"); vm.issue('mod')
            A.e("s_add_u32 s33, s33, 4096")
            A.e(f"s_add_u32 m0, s33, {SCR}")
            A.e("s_nop 0")
            A.e("buffer_load_dwordx4 v12, s[20:23], s33 offen lds"); vm.issue('mod')
            A.e("s_lshr_b32 s44, s2, 3")
            A.e("s_mul_i32 s44, s44, 50176")
            A.e("s_mul_i32 s45, s30, 896")
            A.e("s_sub_u32 s56, s36, s45")
            A.e("s_subb_u32 s57, s37, 0")
            A.e("s_and_b32 s57, s57, 0xffff")
            A.e(f"s_mov_b32 s58, {448*3584}")
            A.e("s_mov_b32 s59, 0x00020000")
            A.e("v_lshlrev_b32 v10, 7, v0")
            A.e("buffer_load_dword v11, v10, s[56:59], s44 offen"); vm.issue('pf1')
            A.e("v_add_u32 v10, 32768, v10")
            A.e("v_min_u32 v10, 50048, v10")
            A.e("buffer_load_dword v13, v10, s[56:59], s44 offen"); vm.issue('pf1')
    for k in range(7):
        A.e(f"s_add_u32 s33, s32, {k*1024}")
        A.e(f"buffer_load_dwordx4 {a(4*k,4)}, v12, s[16:19], s33 offen"); vm.issue(('x', k))
    ST.stamp()
    def w_dma(t):
        out = []
        for n in range(7):
            out.append([f"s_add_u32 m0, s55, {SLOT[t % 5] + n*1024}",
                        f"s_add_u32 s33, s{GOFF+n}, {t*16*3584}",
                        f"buffer_load_dwordx4 v14, s[8:11], s33 offen lds"])
        return out
    def emit_w(t):
        for gr in w_dma(t):
            for x_ in gr: A.e(x_)
            vm.issue(('w', t))
    T0 = 16
    A.e("v_and_b32 v16, 31, v1")
    A.e("v_lshrrev_b32 v17, 5, v1")
    A.e("v_bfe_u32 v18, v16, 2, 1")
    A.e("v_cmp_eq_u32 vcc, v18, v17")
    A.e("v_bfe_u32 v18, v16, 3, 1")
    A.e("v_and_b32 v19, 3, v16")
    A.e("v_lshl_add_u32 v18, v18, 2, v19")
    A.e("v_and_b32 v19, 1, v18")
    A.e("v_lshlrev_b32 v19, 4, v19")
    A.e("v_mov_b32 v20, 0x3f80")
    A.e("v_lshlrev_b32 v20, v19, v20")
    A.e("v_cndmask_b32 v20, 0, v20, vcc")
    A.e("v_lshrrev_b32 v18, 1, v18")
    A.e("v_lshrrev_b32 v19, 4, v16")
    for dd in range(4):
        A.e(f"v_cmp_eq_u32 vcc, {dd}, v18")
        A.e("s_nop 1")
        A.e(f"v_cndmask_b32 v21, 0, v20, vcc")
        A.e("v_cmp_eq_u32 vcc, 0, v19")
        A.e("s_nop 1")
        A.e(f"v_cndmask_b32 v{24+dd}, 0, v21, vcc")
        A.e(f"v_sub_u32 v{28+dd}, v21, v{24+dd}")
    DB = 192
    for k in range(7):
        A.e(vm.need({('p', k)}))
        i_ = k >> 1
        for g in range(8):
            first = (k % 2 == 0 and g == 0)
            A.e(mfma(v(DB+16*i_, 16), v(24+4*(k & 1), 4), a(preg(k, g), 4), "0" if first else v(DB+16*i_, 16)))
        if k == 1: emit_w(0)
        if k == 3: emit_w(1)
        if k == 5: emit_w(2)
    A.e("s_nop 15")
    for k in range(6):
        pass
    A.e(vm.need({'mod', ('x', 6)}))
    A.e("s_barrier")
    A.e("v_lshrrev_b32 v13, 5, v1")
    A.e("v_lshlrev_b32 v13, 4, v13")
    A.e("s_mul_i32 s33, s28, 448")
    A.e(f"s_add_u32 s33, s33, {SCR}")
    A.e("v_add_u32 v13, s33, v13")
    lg = Lgkm(A)
    def mrd(vec, k, dst):
        o = []
        for u in range(2):
            o.append(f"ds_read_b128 {v(dst+4*u,4)}, v13 offset:{vec*1792 + k*64 + u*32}")
        return o
    for k in range(7):
        b = PR+20*k
        for t in mrd(0, k, b): A.e(t)
    def sreg(k): return DB + 16*(k >> 1) + 8*(k & 1)
    for k in range(7):
        b = PR+20*k; sr = sreg(k)
        A.e(f"s_waitcnt lgkmcnt({2*(6-k)})")
        for d in range(4):
            A.e(f"v_accvgpr_read_b32 v{T0+8-8+d}, a{4*k+d}") if False else None
        for d in range(4):
            A.e(f"v_accvgpr_read_b32 v{8+d-8+16+4}, a{4*k+d}") if False else None
        for d in range(4):
            A.e(f"v_accvgpr_read_b32 v{b+8+d}, a{4*k+d}")
        for d in range(4):
            A.e(f"v_lshlrev_b32 v{T0+2*d}, 16, v{b+8+d}")
            A.e(f"v_and_b32 v{T0+2*d+1}, 0xffff0000, v{b+8+d}")
        for d in range(4):
            A.e(f"v_pk_fma_f32 {v(sr+2*d,2)}, {v(sr+2*d,2)}, {v(b+2*d,2)}, {v(T0+2*d,2)}")
        for d in range(4):
            A.e(f"v_cvt_pk_bf16_f32 v{b+8+d}, v{sr+2*d}, v{sr+2*d+1}")
        for d in range(4):
            A.e(f"v_lshlrev_b32 v{sr+2*d}, 16, v{b+8+d}")
            A.e(f"v_and_b32 v{sr+2*d+1}, 0xffff0000, v{b+8+d}")
    A.e("s_cmp_lg_u32 s30, 0")
    A.e("s_cbranch_scc1 K3_NOX1")
    A.e(f"s_add_u32 s42, s40, {X1_OFF}")
    A.e("s_addc_u32 s43, s41, 0")
    srd(A, 16, "s42", "s43", X1_BYTES)
    for k in range(7):
        A.e(f"s_add_u32 s33, s32, {k*1024}")
        A.e(f"buffer_store_dwordx4 {v(PR+20*k+8,4)}, v12, s[16:19], s33 offen")
    A.label("K3_NOX1")
    for k in range(7):
        b = PR+20*k
        for t in mrd(2, k, b): A.e(t)
        for t in mrd(1, k, b+12): A.e(t)
    STL = SCR + 5376 + 768
    A.e("v_lshlrev_b32 v15, 2, v0")
    A.e(f"v_add_u32 v15, {STL}, v15")
    A.e("v_and_b32 v10, 31, v1")
    A.e("v_lshlrev_b32 v10, 2, v10")
    A.e(f"v_add_u32 v10, {STL}, v10")
    def rowsum(src, off):
        A.e(f"ds_write_b32 v15, v{src} offset:{off}")
        A.e("s_waitcnt lgkmcnt(0)")
        A.e("s_barrier")
        for k in range(8):
            A.e(f"ds_read_b32 v{T0+k}, v10 offset:{off+128*k}")
        A.e("s_waitcnt lgkmcnt(0)")
        for k in range(1, 8): A.e(f"v_add_f32 v{T0}, v{T0}, v{T0+k}")
    A.e(f"v_pk_add_f32 v[8:9], {v(sreg(0),2)}, {v(sreg(0)+2,2)}")
    first = True
    for k in range(7):
        for d in range(4):
            if k == 0 and d < 2: continue
            A.e(f"v_pk_add_f32 v[8:9], v[8:9], {v(sreg(k)+2*d,2)}")
    A.e("v_add_f32 v8, v8, v9")
    rowsum(8, 0)
    A.e(f"v_mul_f32 v8, {f2u(1/448.):#x}, v{T0}")
    A.e("v_sub_f32 v8, 0, v8")
    A.e("v_mov_b32 v9, v8")
    for k in range(7):
        for d in range(4):
            A.e(f"v_pk_add_f32 {v(sreg(k)+2*d,2)}, {v(sreg(k)+2*d,2)}, v[8:9]")
    A.e(f"v_pk_mul_f32 v[6:7], {v(sreg(0),2)}, {v(sreg(0),2)}")
    for k in range(7):
        for d in range(4):
            if k == 0 and d == 0: continue
            A.e(f"v_pk_fma_f32 v[6:7], {v(sreg(k)+2*d,2)}, {v(sreg(k)+2*d,2)}, v[6:7]")
    A.e("v_add_f32 v6, v6, v7")
    rowsum(6, 1024)
    A.e(f"v_mul_f32 v8, {f2u(1/448.):#x}, v{T0}")
    A.e(f"v_add_f32 v8, {f2u(1e-5):#x}, v8")
    A.e("v_rsq_f32 v8, v8")
    A.e("s_nop 0")
    A.e("v_mov_b32 v9, v8")
    A.e("s_mul_i32 s33, s28, 7168")
    A.e(f"s_add_u32 s33, s33, {H2L}")
    A.e("v_add_u32 v11, s33, v12")
    for k in range(7):
        b = PR+20*k; sr = sreg(k)
        for d in range(4):
            A.e(f"v_pk_mul_f32 {v(sr+2*d,2)}, {v(sr+2*d,2)}, v[8:9]")
        for d in range(4):
            A.e(f"v_pk_fma_f32 {v(sr+2*d,2)}, {v(sr+2*d,2)}, {v(b+2*d,2)}, {v(b+12+2*d,2)}")
        for d in range(4):
            A.e(f"v_cvt_pk_bf16_f32 v{b+8+d}, v{sr+2*d}, v{sr+2*d+1}")
        A.e(f"ds_write_b128 v11, {v(b+8,4)} offset:{k*1024}")
    A.e("s_waitcnt lgkmcnt(0)")
    A.e("s_barrier")
    AB = 32
    A.e("s_mul_i32 s33, s47, 14336")
    A.e(f"s_add_u32 s33, s33, {H2L}")
    A.e("v_add_u32 v11, s33, v12")
    for k in range(14):
        A.e(f"ds_read_b128 {a(AB+4*k,4)}, v11 offset:{k*1024}")
    A.e("v_lshrrev_b32 v16, 5, v1")
    A.e("v_lshlrev_b32 v17, 9, v16")
    A.e("v_bfe_u32 v16, v1, 2, 2")
    A.e("v_lshl_add_u32 v17, v16, 7, v17")
    A.e("v_bfe_u32 v16, v1, 4, 1")
    A.e("v_lshl_add_u32 v17, v16, 5, v17")
    A.e("v_and_b32 v16, 3, v1")
    A.e("v_lshl_add_u32 v17, v16, 3, v17")
    A.e("s_mul_i32 s33, s47, 14336")
    A.e("v_add_u32 v17, s33, v17")
    A.e("v_bfe_u32 v16, v1, 3, 1")
    A.e("v_xor_b32 v18, s46, v16")
    A.e("v_lshl_add_u32 v2, v18, 6, v17")
    A.e("v_xor_b32 v18, 1, v18")
    A.e("v_lshl_add_u32 v3, v18, 6, v17")
    A.e(f"s_mul_i32 s44, s46, {3*2048}")
    A.e(f"s_mul_i32 s45, s46, {4*2048}")
    A.e("v_add_u32 v2, s44, v2")
    A.e("v_add_u32 v3, s45, v3")
    A.e(f"v_add_u32 v4, {SLOT[2]}, v2")
    A.e(f"v_add_u32 v5, {SLOT[2]}, v3")
    A.e(f"v_add_u32 v6, {SLOT[4]}, v2")
    A.e(f"v_add_u32 v7, {SLOT[4]}, v3")
    A.e("s_waitcnt lgkmcnt(0)")
    A.e("s_barrier")
    ST.stamp()
    emit_w(3)
    def wbase(slot, c):
        e = c & 1
        if slot in (0, 1): return (2+e, SLOT[slot])
        if slot in (2, 3): return (4+e, SLOT[slot]-SLOT[2])
        return (6+e, 0)
    ARG = 96
    NR = 8
    def o_reads(t, p):
        if p >= 7:
            t, p = t+1, p-7
            if t >= 14: return []
        b_, off = wbase(t % 5, p)
        return [(('o', t, p, u), f"ds_read_b64_tr_b16 {a(ARG+4*((7*t+p) % NR)+2*u,2)}, v{b_} offset:{off + (p >> 1)*2048 + u*1024}") for u in range(2)]
    lg = Lgkm(A)
    OL = 4
    ACC = 32
    w = vm.need({('w', 0)})
    if w: A.e(w)
    A.e("s_barrier")
    for p in range(OL):
        for t_, txt in o_reads(0, p): A.e(txt); lg.issue(t_)
    for t in range(14):
        gaps = [[] for _ in range(7)]
        if t+1 < 14:
            w = vm.need({('w', t+1)})
            gaps[0] += ([w] if w else []) + ["s_barrier"]
        nxt = t+4
        if nxt < 14:
            d = w_dma(nxt)
            for i_, gr in enumerate(d):
                gaps[min(6, 1 + (i_*6)//7)] += gr
                vm.issue(('w', nxt))
        if t == 8 and PFW2:
            gaps[6] += [f"s_and_b32 s39, s39, 0xffff", "s_mov_b32 s16, s38", "s_mov_b32 s17, s39", f"s_mov_b32 s18, {1792*896}", "s_mov_b32 s19, 0x00020000",
                        "s_lshr_b32 s44, s2, 3", "s_mul_i32 s44, s44, 50176", "v_lshlrev_b32 v10, 7, v0", "v_min_u32 v10, 32640, v10",
                        "buffer_load_dword v11, v10, s[16:19], s44 offen", "v_add_u32 v10, 32768, v10", "v_min_u32 v10, 50048, v10",
                        "buffer_load_dword v13, v10, s[16:19], s44 offen"]
            vm.issue('pf'); vm.issue('pf')
        for p in range(7):
            w2 = lg.need({('o', t, p, 0), ('o', t, p, 1)})
            if w2: A.e(w2)
            acc = v(ACC+16*p, 16)
            A.e(mfma(acc, a(ARG+4*((7*t+p) % NR), 4), a(AB+4*t, 4), "0" if t == 0 else acc))
            for t_, txt in o_reads(t, p+OL): A.e(txt); lg.issue(t_)
            for txt in gaps[p]: A.e(txt)
    A.e("s_nop 15")
    ST.stamp()
    A.e("s_barrier")
    A.e("s_lshl_b32 s33, s28, 14")
    A.e("v_add_u32 v11, s33, v12")
    A.e("s_cmp_eq_u32 s47, 0")
    A.e("s_cbranch_scc0 K3_WB1")
    for c in range(4, 7):
        for q4 in range(4):
            A.e(f"ds_write_b128 v11, {v(ACC+16*c+4*q4,4)} offset:{(c-4)*4096+q4*1024}")
    A.e("s_branch K3_WDONE")
    A.label("K3_WB1")
    for c in range(0, 4):
        for q4 in range(4):
            A.e(f"ds_write_b128 v11, {v(ACC+16*c+4*q4,4)} offset:{c*4096+q4*1024}")
    A.label("K3_WDONE")
    A.e("s_waitcnt lgkmcnt(0)")
    A.e("s_barrier")
    A.e("s_xor_b32 s33, s28, 1")
    A.e("s_lshl_b32 s33, s33, 14")
    A.e("v_add_u32 v11, s33, v12")
    A.e(f"s_mul_i32 s33, s29, {112*1024}")
    A.e(f"s_mul_i32 s34, s30, {28*1024}")
    A.e("s_add_u32 s33, s33, s34")
    A.e(f"s_mul_i32 s34, s46, {14*1024}")
    A.e("s_add_u32 s33, s33, s34")
    A.e(f"s_add_u32 s33, s33, {HF_OFF}")
    A.e("s_add_u32 s42, s40, s33")
    A.e("s_addc_u32 s43, s41, 0")
    srd(A, 12, "s42", "s43", 14*1024)
    PT = 160
    def fin(cs):
        for i_, c in enumerate(cs):
            for q4 in range(4):
                A.e(f"ds_read_b128 {v(PT+16*i_+4*q4,4)}, v11 offset:{i_*4096+q4*1024}")
        A.e("s_waitcnt lgkmcnt(0)")
        for i_, c in enumerate(cs):
            for r in range(16):
                A.e(f"v_add_f32 v{ACC+16*c+r}, v{ACC+16*c+r}, v{PT+16*i_+r}")
            for hf in range(2):
                dst = PT+16*i_+4*hf
                for r in range(4):
                    A.e(f"v_cvt_pk_bf16_f32 v{dst+8+r}, v{ACC+16*c+8*hf+2*r}, v{ACC+16*c+8*hf+2*r+1}") if False else None
            for hf in range(2):
                dst = 224 + 4*((2*i_+hf) % 8)
                for r in range(4):
                    A.e(f"v_cvt_pk_bf16_f32 v{dst+r}, v{ACC+16*c+8*hf+2*r}, v{ACC+16*c+8*hf+2*r+1}")
                for r in range(4):
                    A.e(f"v_pk_max_i16 v{dst+r}, v{dst+r}, 0")
                fr = 2*c+hf
                A.e(f"s_mov_b32 s34, {(fr//4)*4096}")
                A.e(f"buffer_store_dwordx4 {v(dst,4)}, v12, s[12:15], s34 offen offset:{(fr%4)*1024}")
    A.e("s_cmp_eq_u32 s47, 0")
    A.e("s_cbranch_scc0 K3_F1")
    fin([0, 1, 2, 3])
    A.e("s_branch K3_FDONE")
    A.label("K3_F1")
    fin([4, 5, 6])
    A.label("K3_FDONE")
    ST.finish("K3_END", 12)
    A.label("K3_END")
    A.e("s_endpgm")
    return name, 163840
```

```python
import sys
from asmlib import *
from layout import *
import k0, k1, k24, k1b, k2r, k1c, k3m
FUSE3 = False
MERGE = False

HEADER = open('adaLN_cond__gqa_block_cached__dense_activation_relu__prompt.s.ref').read().split("; Override launch")[0]

def build(dbg=None):
    launches = []; descs = []
    body = Asm()
    k24.NEW = True
    if MERGE:
        k2r.XDIRECT = True
        n = k1c.gen_k1(body, dbg); launches.append((n, 256, 256, k1b.K1_LDS)); descs.append(descriptor(n, 512, 100, 256))
    else:
        n = k0.gen_k0(body); launches.append((n, k0.K0_GRID, 256, 8192)); descs.append(descriptor(n, 104, 32, 104))
        n = k1b.gen_k1(body, dbg); launches.append((n, 256, 256, k1b.K1_LDS)); descs.append(descriptor(n, 512, 100, 256))
    if FUSE3:
        n, lds = k3m.gen_k3m(body); launches.append((n, 256, 256, lds)); descs.append(descriptor(n, 512, 100, 256))
    else:
        n, lds = k2r.gen_k2r(body); launches.append((n, 256, 448, lds)); descs.append(descriptor(n, 96, 64, 96))
        n, lds = k24.gen_k3n(body); launches.append((n, 224, 256, lds)); descs.append(descriptor(n, 256, 100, 256))
    n, lds = k24.gen_gemm64(body, 'k4'); launches.append((n, 224, 256, lds)); descs.append(descriptor(n, 256, 100, 256))
    out = HEADER
    for n, g, b, lds in launches:
        out += f"; @launch kernel={n} grid=({g},1,1) block=({b},1,1) lds={lds}\n"
    out += '.amdgcn_target "amdgcn-amd-amdhsa--gfx950"\n.text\n'
    out += body.text()
    out += 'CODE_END:\n    s_endpgm\n'
    out += '.section .rodata,"a"\n.p2align 6\n'
    out += "\n.p2align 6\n".join(descs)
    return out

if __name__ == "__main__":
    dbg = sys.argv[2] if len(sys.argv) > 2 and sys.argv[2] != "none" else None
    k1.OPT['bias'] = 86
    k0.PFW = True; k0.K0_GRID = 176
    k1.OPT['pfkv'] = 0; k1.OPT['pfmall'] = 0
    for kv in sys.argv[3:]:
        k_, v_ = kv.split("=")
        if k_ == 'nopf':
            k0.PFW = False; k0.K0_GRID = 106; k2r.PF = False; k24.PFW2 = False; k1.OPT['pfwo'] = 0
            continue
        if k_ == 'fuse3':
            FUSE3 = True
            continue
        if k_ == 'merge':
            MERGE = True
            continue
        if k_ == 'pfcode':
            k0.PFCODE = bool(int(v_))
            continue
        if k_ == 'k3pre':
            k24.K3_PRE = int(v_)
            continue
        if k_ == 'gd': k24.GD = int(v_); continue
        if k_ == 'dbg24': k24.DBG = True; k3m.DBG = True; continue
        if k_ == 'pf': k0.PREFETCH = True; k0.K0_GRID = 138; continue
        k1.OPT[k_] = eval(v_)
    open(sys.argv[1], "w").write(build(dbg))
```

```python
from asmlib import *
from layout import *
import struct

def f2u(x):
    return struct.unpack("<I", struct.pack("<f", x))[0]

PREFETCH = False
KDBG = None
PFW = False
YSTORE = ''
PFCODE = False
def gen_k0(A):
    name = "k0_mod_kernel"
    kernel_begin(A, name)
    A.e(f"s_cmp_ge_u32 s2, {K0_GRID}")
    A.e("s_cbranch_scc1 K0_END")
    if PREFETCH:
        A.e("s_cmp_ge_u32 s2, 106")
        A.e("s_cbranch_scc1 K0_PF")
    if PFW:
        A.e("s_cmp_ge_u32 s2, 304")
        A.e("s_cbranch_scc1 K0_PFW")
        A.e("s_cmp_ge_u32 s2, 298")
        A.e("s_cbranch_scc1 K0_END")
    ST = Stamps(A, KDBG is not None, wg=KDBG or 0, wave_sgpr=62, lane_v=107)
    if KDBG is not None:
        A.e("v_lshrrev_b32 v106, 6, v0"); A.e("v_and_b32 v107, 63, v0"); A.e("s_nop 0"); A.e("v_readfirstlane_b32 s62, v106")
    ST.stamp()
    A.e("s_load_dwordx2 s[4:5], s[0:1], 96")
    A.e("s_cmp_ge_u32 s2, 42")
    A.e("s_cbranch_scc1 K0_Y")
    A.e("v_cmp_gt_u32 vcc, 256, v0")
    A.e("s_cbranch_vccz K0_END")
    A.e("s_load_dwordx4 s[8:11], s[0:1], 64")
    A.e("v_and_b32 v3, 7, v0")
    A.e("v_lshrrev_b32 v4, 3, v0")
    A.e("v_lshlrev_b32 v2, 1, v4")
    A.e("s_movk_i32 s6, 5376")
    A.e("v_mul_lo_u32 v1, v4, s6")
    A.e("v_lshl_add_u32 v1, v3, 4, v1")
    A.e("s_lshl_b32 s7, s2, 7")
    A.e("v_add_u32 v1, s7, v1")
    A.e("s_waitcnt lgkmcnt(0)")
    srd(A, 12, "s8", "s9", 896)
    srd(A, 16, "s10", "s11", 448*5376)
    for st in range(14):
        A.e(f"buffer_load_ushort v{72+st}, v2, s[12:15], 0 offen offset:{64*st}")
    for st in range(14):
        A.e(f"s_mov_b32 s20, {st*32*5376}")
        A.e(f"buffer_load_dwordx4 {v(16+4*st,4)}, v1, s[16:19], s20 offen")
    for r in range(8):
        A.e(f"v_mov_b32 v{88+r}, 0")
    A.e("s_mov_b32 s21, 0xbfb8aa3b")
    A.e("s_waitcnt vmcnt(14)")
    if KDBG is not None and KDBG < 42: ST.stamp()
    for st in range(14):
        x = 72+st
        A.e(f"v_lshlrev_b32 v{x}, 16, v{x}")
        A.e(f"v_mul_f32 v5, s21, v{x}")
        A.e(f"v_exp_f32 v5, v5")
        A.e("s_nop 0")
        A.e(f"v_add_f32 v5, 1.0, v5")
        A.e(f"v_rcp_f32 v5, v5")
        A.e("s_nop 0")
        A.e(f"v_mul_f32 v5, v5, v{x}")
        A.e(f"v_cvt_pk_bf16_f32 v5, v5, v5")
        A.e(f"v_lshlrev_b32 v{x}, 16, v5")
    for st in range(14):
        A.e(f"s_waitcnt vmcnt({13-st})")
        for d in range(4):
            w = 16+4*st+d
            A.e(f"v_lshlrev_b32 v5, 16, v{w}")
            A.e(f"v_and_b32 v6, 0xffff0000, v{w}")
            A.e(f"v_fmac_f32 v{88+2*d}, v5, v{72+st}")
            A.e(f"v_fmac_f32 v{88+2*d+1}, v6, v{72+st}")
    if KDBG is not None and KDBG < 42: ST.stamp()
    A.e("v_lshlrev_b32 v7, 8, v4")
    A.e("v_lshl_add_u32 v7, v3, 5, v7")
    A.e("ds_write_b128 v7, v[88:91]")
    A.e("ds_write_b128 v7, v[92:95] offset:16")
    A.e("s_waitcnt lgkmcnt(0)")
    A.e("s_barrier")
    A.e("v_cmp_gt_u32 vcc, 64, v0")
    A.e("s_and_saveexec_b64 s[22:23], vcc")
    A.e("s_cbranch_execz K0_END")
    A.e("v_lshlrev_b32 v7, 2, v0")
    for r in range(32):
        A.e(f"ds_read_b32 v{16+r}, v7 offset:{256*r}")
    A.e("s_waitcnt lgkmcnt(0)")
    for r in range(1, 32):
        A.e(f"v_add_f32 v16, v16, v{16+r}")
    A.e("v_cvt_pk_bf16_f32 v16, v16, v16")
    A.e("v_lshlrev_b32 v16, 16, v16")
    A.e("s_mul_i32 s24, s2, 9363")
    A.e("s_lshr_b32 s24, s24, 16")
    A.e("s_mov_b32 s25, 0")
    A.e("s_cmp_eq_u32 s24, 1")
    A.e("s_cselect_b32 s25, 1.0, s25")
    A.e("s_cmp_eq_u32 s24, 4")
    A.e("s_cselect_b32 s25, 1.0, s25")
    A.e("v_add_f32 v16, s25, v16")
    A.e("v_cvt_pk_bf16_f32 v16, v16, v16")
    A.e("v_lshlrev_b32 v16, 16, v16")
    A.e(f"s_mov_b32 s26, {f2u(CS):#x}")
    A.e("s_cmp_le_u32 s24, 1")
    A.e("s_cselect_b32 s26, s26, 1.0")
    A.e("v_mul_f32 v16, s26, v16")
    srd(A, 12, "s4", "s5", MOD_BYTES)
    A.e("s_lshl_b32 s7, s2, 8")
    A.e("v_add_u32 v7, s7, v7")
    A.e("buffer_store_dword v16, v7, s[12:15], 0 offen")
    if KDBG is not None and KDBG < 42:
        ST.finish("K0_END", 104)
    A.e("s_endpgm")
    A.label("K0_Y")
    A.e("s_load_dwordx2 s[8:9], s[0:1], 0")
    A.e("s_sub_u32 s6, s2, 42")
    A.e("s_lshr_b32 s29, s6, 2")
    A.e("s_and_b32 s30, s6, 3")
    A.e("v_and_b32 v2, 7, v0")
    A.e("v_bfe_u32 v3, v0, 3, 1")
    A.e("v_lshrrev_b32 v4, 4, v0")
    A.e("v_lshlrev_b32 v5, 10, v4")
    A.e("v_lshl_add_u32 v5, v3, 9, v5")
    A.e("v_lshl_add_u32 v5, v2, 4, v5")
    A.e("s_lshl_b32 s31, s30, 7")
    A.e("v_add_u32 v5, s31, v5")
    A.e("s_lshl_b32 s33, s29, 5")
    A.e("s_lshl_b32 s34, s30, 3")
    A.e("s_add_u32 s33, s33, s34")
    A.e("v_add_u32 v13, s33, v2")
    A.e("v_mul_u32_u24 v13, 896, v13")
    A.e("v_lshl_add_u32 v13, v4, 5, v13")
    A.e("v_lshl_add_u32 v13, v3, 3, v13")
    A.e("v_lshrrev_b32 v9, 6, v0")
    A.e("v_lshlrev_b32 v7, 5, v2")
    A.e("v_lshl_add_u32 v8, v9, 2, v7")
    A.e("v_and_b32 v10, 63, v0")
    A.e("s_mul_i32 s32, s29, 28672")
    A.e("s_waitcnt lgkmcnt(0)")
    srd(A, 12, "s8", "s9", X_BYTES)
    A.e("buffer_load_dwordx2 v[48:49], v13, s[12:15], 0 offen")
    A.e("buffer_load_dwordx2 v[50:51], v13, s[12:15], 0 offen offset:16")
    A.e(f"s_add_u32 s8, s4, {Y_OFF}")
    A.e("s_addc_u32 s9, s5, 0")
    srd(A, 16, "s8", "s9", Y_BYTES)
    A.e(f"s_add_u32 s8, s4, {XF_OFF}")
    A.e("s_addc_u32 s9, s5, 0")
    srd(A, 20, "s8", "s9", XF_BYTES)
    A.e("s_waitcnt vmcnt(0)")
    if KDBG is not None and KDBG >= 42: ST.stamp()
    A.e("buffer_store_dwordx4 v[48:51], v5, s[20:23], s32 offen")
    for d in range(4):
        A.e(f"v_lshlrev_b32 v{80+2*d}, 16, v{48+d}")
        A.e(f"v_and_b32 v{81+2*d}, 0xffff0000, v{48+d}")
    def rowsum(off):
        A.e("s_nop 1")
        A.e("v_add_f32_dpp v20, v20, v20 row_ror:8 row_mask:0xf bank_mask:0xf")
        A.e("s_nop 0")
        A.e("ds_swizzle_b32 v21, v20 offset:0x401F")
        A.e("s_waitcnt lgkmcnt(0)")
        A.e("v_add_f32 v20, v20, v21")
        A.e("v_mov_b32 v21, v20")
        A.e("s_nop 1")
        A.e("v_permlane32_swap_b32 v20, v21")
        A.e("s_nop 1")
        A.e("v_add_f32 v20, v20, v21")
        A.e("v_cmp_gt_u32 vcc, 8, v10")
        A.e("s_and_saveexec_b64 s[44:45], vcc")
        A.e(f"ds_write_b32 v8, v20 offset:{off}")
        A.e("s_mov_b64 exec, s[44:45]")
        A.e("s_waitcnt lgkmcnt(0)")
        A.e("s_barrier")
        A.e(f"ds_read_b128 v[24:27], v7 offset:{off}")
        A.e(f"ds_read_b128 v[28:31], v7 offset:{off+16}")
        A.e("s_waitcnt lgkmcnt(0)")
        A.e("v_add_f32 v24, v24, v25")
        A.e("v_add_f32 v26, v26, v27")
        A.e("v_add_f32 v28, v28, v29")
        A.e("v_add_f32 v24, v24, v26")
        A.e("v_add_f32 v28, v28, v30")
        A.e("v_add_f32 v20, v24, v28")
    A.e("v_add_f32 v20, v80, v81")
    for r in range(2, 8):
        A.e(f"v_add_f32 v20, v20, v{80+r}")
    rowsum(0)
    A.e(f"v_mul_f32 v22, {f2u(1/448.):#x}, v20")
    for r in range(8):
        A.e(f"v_sub_f32 v{80+r}, v{80+r}, v22")
    A.e("v_mul_f32 v20, v80, v80")
    for r in range(1, 8):
        A.e(f"v_fmac_f32 v20, v{80+r}, v{80+r}")
    rowsum(256)
    A.e(f"v_mul_f32 v20, {f2u(1/448.):#x}, v20")
    A.e(f"v_add_f32 v20, {f2u(1e-5):#x}, v20")
    A.e("v_rsq_f32 v20, v20")
    A.e("s_nop 0")
    for r in range(8):
        A.e(f"v_mul_f32 v{80+r}, v{80+r}, v20")
    for d in range(4):
        A.e(f"v_cvt_pk_bf16_f32 v{16+d}, v{80+2*d}, v{81+2*d}")
    A.e(f"buffer_store_dwordx4 v[16:19], v5, s[16:19], s32 offen {YSTORE}")
    if KDBG is not None and KDBG >= 42:
        ST.finish("K0_END", 104)
    A.label("K0_END")
    A.e("s_endpgm")
    if PREFETCH:
        A.label("K0_PF")
        A.e("s_getpc_b64 s[8:9]")
        A.label("K0_PC")
        A.e("s_sub_u32 s6, s2, 106")
        A.e("s_lshr_b32 s6, s6, 3")
        A.e("s_lshl_b32 s6, s6, 14")
        A.e("v_lshlrev_b32 v1, 4, v0")
        A.e("v_add_u32 v1, s6, v1")
        A.e("s_mov_b32 s10, CODE_END - K0_PC")
        A.e("s_mov_b32 s11, 0x00020000")
        A.e("s_and_b32 s9, s9, 0xffff")
        for i in range(4):
            A.e(f"s_mov_b32 s12, {i*4096}")
            A.e(f"buffer_load_dwordx4 v[{4+4*i}:{7+4*i}], v1, s[8:11], s12 offen")
        A.e("s_waitcnt vmcnt(0)")
        A.e("s_endpgm")
    if PFW:
        A.label("K0_PFW")
        A.e("s_load_dwordx4 s[8:11], s[0:1], 8")
        A.e("s_load_dwordx2 s[12:13], s[0:1], 24")
        A.e("s_and_b32 s6, s2, 7")
        A.e("s_sub_u32 s7, s2, 304")
        A.e("v_cmp_gt_u32 vcc, 256, v0")
        A.e("s_cbranch_vccz K0_END")
        A.e("s_lshr_b32 s7, s7, 3")
        A.e("v_and_b32 v1, 63, v0")
        A.e("v_lshrrev_b32 v2, 6, v0")
        A.e("v_lshrrev_b32 v3, 3, v1")
        A.e("v_lshl_add_u32 v3, v2, 4, v3")
        A.e("s_mul_i32 s14, s7, 56")
        A.e("v_add_u32 v3, s14, v3")
        A.e("v_lshlrev_b32 v3, 13, v3")
        A.e("v_and_b32 v4, 7, v1")
        A.e("v_lshl_add_u32 v3, v4, 7, v3")
        A.e("s_lshl_b32 s15, s6, 10")
        A.e("v_add_u32 v3, s15, v3")
        A.e("v_lshlrev_b32 v5, 7, v0")
        A.e("v_min_u32 v5, 24448, v5")
        A.e("s_waitcnt lgkmcnt(0)")
        srd(A, 16, "s12", "s13", 448*8192)
        A.e("buffer_load_dword v6, v3, s[16:19], 0 offen")
        A.e("s_mov_b32 s20, 65536")
        A.e("buffer_load_dword v7, v3, s[16:19], s20 offen")
        A.e("s_mul_i32 s21, s7, 24576")
        A.e("s_lshl_b32 s22, s6, 20")
        A.e("s_add_u32 s21, s21, s22")
        srd(A, 24, "s8", "s9", 8*1048576)
        A.e("buffer_load_dword v8, v5, s[24:27], s21 offen")
        srd(A, 28, "s10", "s11", 8*1048576)
        A.e("buffer_load_dword v9, v5, s[28:31], s21 offen")
        if PFCODE:
            A.e("s_getpc_b64 s[16:17]")
            A.label("K0_PC2")
            A.e("s_sub_u32 s16, s16, K0_PC2 - k0_mod_kernel")
            A.e("s_subb_u32 s17, s17, 0")
            A.e("s_and_b32 s17, s17, 0xffff")
            A.e("s_mov_b32 s18, CODE_END - k0_mod_kernel")
            A.e("s_mov_b32 s19, 0x00020000")
            A.e("s_mul_i32 s21, s7, 12288")
            A.e("v_lshlrev_b32 v5, 7, v0")
            A.e("v_min_u32 v5, 12160, v5")
            A.e("buffer_load_dword v10, v5, s[16:19], s21 offen")
        A.e("s_waitcnt vmcnt(0)")
        A.e("s_endpgm")
    return name
```

```python
import sys
from asmlib import *
from layout import *
import k0, k1, k24, k1b, k2r, k1c, k3m
FUSE3 = False
MERGE = False

HEADER = open('adaLN_cond__gqa_block_cached__dense_activation_relu__prompt.s.ref').read().split("; Override launch")[0]

def build(dbg=None):
    launches = []; descs = []
    body = Asm()
    k24.NEW = True
    if MERGE:
        k2r.XDIRECT = True
        n = k1c.gen_k1(body, dbg); launches.append((n, 256, 256, k1b.K1_LDS)); descs.append(descriptor(n, 512, 100, 256))
    else:
        n = k0.gen_k0(body); launches.append((n, k0.K0_GRID, 448, 8192)); descs.append(descriptor(n, 112, 100, 112))
        n = k1b.gen_k1(body, dbg); launches.append((n, 256, 256, k1b.K1_LDS)); descs.append(descriptor(n, 512, 100, 256))
    if FUSE3:
        n, lds = k3m.gen_k3m(body); launches.append((n, 256, 256, lds)); descs.append(descriptor(n, 512, 100, 256))
    else:
        n, lds = k2r.gen_k2r(body); launches.append((n, 256, 448, lds)); descs.append(descriptor(n, 96, 64, 96))
        n, lds = k24.gen_k3n(body); launches.append((n, 224, 256, lds)); descs.append(descriptor(n, 256, 100, 256))
    n, lds = k24.gen_gemm64(body, 'k4'); launches.append((n, 224, 256, lds)); descs.append(descriptor(n, 256, 100, 256))
    out = HEADER
    for n, g, b, lds in launches:
        out += f"; @launch kernel={n} grid=({g},1,1) block=({b},1,1) lds={lds}\n"
    out += '.amdgcn_target "amdgcn-amd-amdhsa--gfx950"\n.text\n'
    out += body.text()
    out += 'CODE_END:\n    s_endpgm\n'
    out += '.section .rodata,"a"\n.p2align 6\n'
    out += "\n.p2align 6\n".join(descs)
    return out

if __name__ == "__main__":
    dbg = sys.argv[2] if len(sys.argv) > 2 and sys.argv[2] != "none" else None
    k1.OPT['bias'] = 91
    k1.OPT['thr'] = 151
    k1.OPT['order'] = 'grp'
    k1.OPT['pstore'] = 'sc1'
    k0.YSTORE = 'sc1'
    k0.PFW = True; k0.K0_GRID = 368
    k1.OPT['pfkv'] = 0; k1.OPT['pfmall'] = 0
    for kv in sys.argv[3:]:
        k_, v_ = kv.split("=")
        if k_ == 'nopf':
            k0.PFW = False; k0.K0_GRID = 298; k2r.PF = False; k24.PFW2 = False; k1.OPT['pfwo'] = 0
            continue
        if k_ == 'fuse3':
            FUSE3 = True
            continue
        if k_ == 'kdbg':
            k0.KDBG = int(v_)
            continue
        if k_ == 'ystore':
            k0.YSTORE = v_
            continue
        if k_ == 'merge':
            MERGE = True
            continue
        if k_ == 'pfcode':
            k0.PFCODE = bool(int(v_))
            continue
        if k_ == 'k3pre':
            k24.K3_PRE = int(v_)
            continue
        if k_ == 'gd': k24.GD = int(v_); continue
        if k_ == 'dbg24': k24.DBG = True; k3m.DBG = True; continue
        if k_ == 'pf': k0.PREFETCH = True; k0.K0_GRID = 138; continue
        k1.OPT[k_] = eval(v_)
    open(sys.argv[1], "w").write(build(dbg))
```

```python
from asmlib import *
from layout import *
import struct

def f2u(x):
    return struct.unpack("<I", struct.pack("<f", x))[0]

KPIECE = 1040
KSLOT = 16*KPIECE
VBASE = 4*KSLOT
VSLOT = 16384
MODL = VBASE + 4*VSLOT
K1_LDS = MODL + 4096

O0 = 128
S_ = [96, 112]
NEGM = 80
P_ = [64, 72]
T_ = 56
L_ = [62, 63]
H1 = 16
VKR = [2, 3]
VVR = [4, 5]
VWR = [6, 7]
VKD = [8, 9, 10, 11]
VVD = [12, 13]
AQ = 0
NRING = 8
AK = 64
AV = 96
SRD_K, SRD_V, SRD_WQ, SRD_Y, SRD_M = 8, 12, 16, 20, 24
S_W, S_KOFF, S_M0K, S_M0V, S_CNT, S_THR = 28, 29, 30, 31, 32, 33

THR_LOG2 = 146
OPT = dict(bias=0, no_reads=False, no_sm=False, no_dma=False, order='alt', no_mfma=False, fake16=False)

class Lgkm:
    def __init__(self, A, pending=None):
        self.A = A
        self.q = list(pending) if pending else []
    def issue(self, tag):
        self.q.append(tag)
    def need(self, tags):
        idx = -1
        for i, t in enumerate(self.q):
            if t in tags:
                idx = i
        if idx < 0:
            return None
        n = len(self.q) - 1 - idx
        self.q = self.q[idx+1:]
        assert n <= 15, n
        return f"s_waitcnt lgkmcnt({n})"

def vread(slot, db, ks, u, ring, bases):
    dst = AV + 4*ring + 2*u
    off = slot*VSLOT + ks*8192 + u*4096 + (db >> 1)*256
    return f"ds_read_b64_tr_b16 {a(dst,2)}, v{bases[db & 1]} offset:{off}"

def kread(slot, ks, ring):
    dst = AK + 4*ring
    off = slot*KSLOT + ks*32
    return f"ds_read_b128 {a(dst,4)}, v{VKR[(ks >> 2) & 1]} offset:{off}"

def mfma(d, A_, B_, C_):
    return f"v_mfma_f32_32x32x16_bf16 {d}, {A_}, {B_}, {C_}"

def softmax_ops(Sr, Pw, Lold, Lnew):
    ops = []
    def pairtail(j):
        t0, t1 = T_ + 2*(j & 1), T_ + 2*(j & 1) + 1
        src = Lold if j == 0 else Lnew
        return [(1, f"v_add_f32 v{Lnew}, v{src}, v{t0}"),
                (1, f"v_add_f32 v{Lnew}, v{Lnew}, v{t1}"),
                (1, f"v_cvt_pk_bf16_f32 v{Pw+j}, v{t0}, v{t1}")]
    for j in range(8):
        t0, t1 = T_ + 2*(j & 1), T_ + 2*(j & 1) + 1
        ops.append((2, f"v_exp_f32 v{t0}, v{Sr+2*j}"))
        ops.append((2, f"v_exp_f32 v{t1}, v{Sr+2*j+1}"))
        if j > 0:
            ops += pairtail(j-1)
    ops += pairtail(7)
    return ops

def distribute(ops, lo, hi, ngaps=32):
    gaps = [[] for _ in range(ngaps)]
    total = sum(c for c, _ in ops)
    n = hi - lo + 1
    acc = 0.0
    for c, t in ops:
        g = lo + min(n-1, int((acc + c*0.5) * n / total))
        gaps[g].append(t)
        acc += c
    return gaps

LEAD = 6

def pos_op(p):
    if OPT['order'] == 'alt':
        if p % 2 == 0:
            n = p >> 1
            return ('pv', n >> 1, n & 1, n)
        return ('qk', p >> 1, 0, p >> 1)
    elif OPT['order'] == 'grp':
        if p < 16:
            return ('pv', p >> 1, p & 1, p)
        return ('qk', p-16, 0, p-16)
    elif OPT['order'] == 'grp4':
        blk, r = p >> 3, p & 7
        if r < 4:
            n = blk*4 + r
            return ('pv', n >> 1, n & 1, n)
        n = blk*4 + r - 4
        return ('qk', n, 0, n)
    raise ValueError

def reads_for_pos(ph, p, do_pv, do_qk, nxt_do_pv, nxt_do_qk):
    if p >= 32:
        ph2, p2, pv, qk = (ph+1) % 4, p-32, nxt_do_pv, nxt_do_qk
    else:
        ph2, p2, pv, qk = ph, p, do_pv, do_qk
    op = pos_op(p2)
    if op[0] == 'pv':
        if not pv: return []
        _, db, ks, n = op
        return [((p2, u), vread(ph2, db, ks, u, n % NRING, VVR)) for u in range(2)]
    else:
        if not qk: return []
        _, ks, _, n = op
        return [((p2, 0), kread((ph2+2) % 4, ks, n % NRING))]

def iteration(A, ph, tag, do_qk=True, do_sm=True, dma_k=True, dma_v=True,
              nxt_pv=True, nxt_qk=True, vmwait=8, barrier=True, extra=None):
    Sw, Sr = S_[ph % 2], S_[(ph+1) % 2]
    Pr, Pw = P_[ph % 2], P_[(ph+1) % 2]
    Lold, Lnew = L_[ph % 2], L_[(ph+1) % 2]
    pend = []
    for p in range(LEAD):
        pend += [t for t, _ in reads_for_pos(ph, p, True, do_qk, True, True)]
    lg = Lgkm(A, pend)
    gaps = [[] for _ in range(32)]
    if barrier:
        gaps[0] += [f"s_waitcnt vmcnt({vmwait})", "s_barrier"]
    if OPT['no_dma']: dma_k = dma_v = False
    if OPT['no_sm']: do_sm = False
    if dma_k:
        gaps[1].append(f"s_add_u32 m0, s{S_M0K}, {((ph+1) % 4)*KSLOT}")
        for n in range(4):
            gaps[2+4*n].append(f"buffer_load_dwordx4 v{VKD[n]}, s[{SRD_K}:{SRD_K+3}], s{S_KOFF} offen offset:{n*KPIECE} lds")
    if dma_v:
        gaps[17].append(f"s_add_u32 m0, s{S_M0V}, {((ph+3) % 4)*VSLOT}")
        for n in range(4):
            gaps[18+4*n].append(f"buffer_load_dwordx4 v{VVD[n & 1]}, s[{SRD_V}:{SRD_V+3}], s{S_KOFF} offen offset:{n*1024} lds")
    gaps[31].append(f"s_add_u32 s{S_KOFF}, s{S_KOFF}, 16384")
    if extra:
        for g_, l_ in extra.items(): gaps[g_] += l_
    if do_sm:
        sm = distribute(softmax_ops(Sr, Pw, Lold, Lnew), 4, 29)
        for g in range(32):
            gaps[g] += sm[g]
        gaps[30].append(f"v_cmp_lt_f32 vcc, s{S_THR}, v{Lnew}")
    for p in range(32):
        if p % 2 == 0:
            w = lg.need({(p, 0), (p, 1), (p+1, 0), (p+1, 1)})
            if w and not OPT['no_reads']: A.e(w)
        op = pos_op(p)
        F = []
        for t, txt in reads_for_pos(ph, p+LEAD, True, do_qk, nxt_pv, nxt_qk):
            if not OPT['no_reads']: F.append(txt)
            lg.issue((t[0] + (32 if p+LEAD >= 32 else 0), t[1]))
        F += gaps[p]
        M = []
        if OPT['no_mfma']:
            pass
        elif OPT['fake16']:
            if op[0] == 'pv':
                _, db, ks, n = op
                for hh in range(2):
                    acc = v(O0+16*db+8*ks+4*hh, 4)
                    M.append(f"v_mfma_f32_16x16x32_bf16 {acc}, {a(AV+4*(n % NRING),4)}, {v(Pr+4*hh,4)}, {acc}")
            elif do_qk:
                _, ks, _, n = op
                for hh in range(2):
                    acc = v(Sw+8*(ks & 1)+4*hh, 4)
                    c_ = v(NEGM+4*hh, 4) if ks < 2 else acc
                    M.append(f"v_mfma_f32_16x16x32_bf16 {acc}, {a(AK+4*(n % NRING),4)}, {a(AQ+8*(ks>>1)+4*hh,4)}, {c_}")
        elif op[0] == 'pv':
            _, db, ks, n = op
            acc = v(O0+16*db, 16)
            if OPT.get('swap_pv'):
                M.append(mfma(acc, v(Pr+4*ks, 4), a(AV+4*(n % NRING), 4), acc))
            else:
                M.append(mfma(acc, a(AV+4*(n % NRING), 4), v(Pr+4*ks, 4), acc))
        elif do_qk:
            _, ks, _, n = op
            if OPT.get('swap_qk'):
                M.append(mfma(v(Sw, 16), a(AQ+4*ks, 4), a(AK+4*(n % NRING), 4), v(NEGM, 16) if ks == 0 else v(Sw, 16)))
            else:
                M.append(mfma(v(Sw, 16), a(AK+4*(n % NRING), 4), a(AQ+4*ks, 4), v(NEGM, 16) if ks == 0 else v(Sw, 16)))
        if len(M) == 2:
            h = len(F)//2
            A.e(M[0])
            for txt in F[:h]: A.e(txt)
            A.e(M[1])
            for txt in F[h:]: A.e(txt)
        else:
            for m in M: A.e(m)
            for txt in F: A.e(txt)
    if do_sm:
        A.e(f"s_cbranch_vccnz RARE_{tag}")
        A.label(f"CONT_{tag}")

def rare_path(A, ph, tag, do_qk=True):
    Sn, Sr = S_[ph % 2], S_[(ph+1) % 2]
    Pw = P_[(ph+1) % 2]
    Lold, Lnew = L_[ph % 2], L_[(ph+1) % 2]
    t0, t1, t2, t3 = T_, T_+1, T_+2, T_+3
    A.label(f"RARE_{tag}")
    A.e("s_nop 15")
    A.e("s_nop 15")
    A.e(f"v_max3_f32 v{t0}, v{Sr}, v{Sr+1}, v{Sr+2}")
    for j in range(3, 15, 2):
        A.e(f"v_max3_f32 v{t0}, v{t0}, v{Sr+j}, v{Sr+j+1}")
    A.e(f"v_max_f32 v{t0}, v{t0}, v{Sr+15}")
    A.e(f"v_mov_b32 v{t1}, v{t0}")
    A.e(f"v_mov_b32 v{t2}, v{Lold}")
    A.e(f"v_mov_b32 v{t3}, v{Lold}")
    A.e("s_nop 1")
    A.e(f"v_permlane32_swap_b32 v{t0}, v{t1}")
    A.e(f"v_permlane32_swap_b32 v{t2}, v{t3}")
    A.e("s_nop 1")
    A.e(f"v_max_f32 v{t0}, v{t0}, v{t1}")
    A.e(f"v_add_f32 v{t2}, v{t2}, v{t3}")
    A.e(f"v_log_f32 v{t2}, v{t2}")
    A.e("s_nop 0")
    A.e(f"v_max_f32 v{t0}, v{t0}, v{t2}")
    if OPT['bias']:
        A.e(f"v_add_f32 v{t0}, {f2u(float(OPT['bias'])):#x}, v{t0}")
    A.e(f"v_max_f32 v{t0}, 0, v{t0}")
    A.e(f"v_sub_f32 v{t3}, 0, v{t0}")
    A.e(f"v_exp_f32 v{t3}, v{t3}")
    A.e("s_nop 0")
    for r in range(128):
        A.e(f"v_mul_f32 v{O0+r}, v{O0+r}, v{t3}")
    A.e(f"v_mul_f32 v{Lold}, v{Lold}, v{t3}")
    for r in range(16):
        A.e(f"v_sub_f32 v{NEGM+r}, v{NEGM+r}, v{t0}")
    if do_qk:
        for r in range(16):
            A.e(f"v_sub_f32 v{Sn+r}, v{Sn+r}, v{t0}")
    for r in range(16):
        A.e(f"v_sub_f32 v{Sr+r}, v{Sr+r}, v{t0}")
    for j in range(8):
        A.e(f"v_exp_f32 v{t1}, v{Sr+2*j}")
        A.e(f"v_exp_f32 v{t2}, v{Sr+2*j+1}")
        A.e("s_nop 0")
        A.e(f"v_add_f32 v{Lnew}, v{Lold if j == 0 else Lnew}, v{t1}")
        A.e(f"v_add_f32 v{Lnew}, v{Lnew}, v{t2}")
        A.e(f"v_cvt_pk_bf16_f32 v{Pw+j}, v{t1}, v{t2}")
    A.e("s_nop 1")
    A.e(f"s_branch CONT_{tag}")

def gen_k1(A, dbg=None):
    name = "k1_attn_kernel"
    kernel_begin(A, name)
    stamps = []
    def stamp(real=False):
        if dbg != "time": return
        if real: return
        for r in (False, True):
            i = len(stamps)
            stamps.append(i)
            A.e(f"{'s_memrealtime' if r else 's_memtime'} s[{64+2*i}:{65+2*i}]")
    A.e("s_cmp_ge_u32 s2, 256")
    A.e("s_cbranch_scc1 K1_END")
    stamp(); stamp(True)
    A.e("s_load_dwordx4 s[36:39], s[0:1], 8")
    A.e("s_load_dwordx2 s[40:41], s[0:1], 24")
    A.e("s_load_dwordx2 s[42:43], s[0:1], 96")
    A.e("v_and_b32 v1, 63, v0")
    A.e("v_lshrrev_b32 v14, 6, v0")
    A.e("s_nop 0")
    A.e(f"v_readfirstlane_b32 s{S_W}, v14")
    A.e("s_and_b32 s44, s2, 7")
    A.e("s_lshr_b32 s45, s2, 3")
    A.e("s_and_b32 s46, s45, 1")
    A.e("s_lshl_b32 s47, s44, 1")
    A.e("s_add_u32 s46, s46, s47")
    A.e("s_lshr_b32 s45, s45, 1")
    A.e("s_lshl_b32 s45, s45, 2")
    A.e(f"s_add_u32 s45, s45, s{S_W}")
    A.e("v_lshrrev_b32 v14, 5, v1")
    A.e("v_and_b32 v15, 31, v1")
    A.e("v_lshlrev_b32 v12, 3, v14")
    A.e("v_xor_b32 v15, v15, v12")
    A.e("v_lshlrev_b32 v15, 4, v15")
    A.e("v_lshl_add_u32 v15, v14, 9, v15")
    A.e(f"s_lshl_b32 s48, s{S_W}, 12")
    A.e("s_add_u32 s49, s48, 64")
    A.e(f"v_add_u32 v{VKD[0]}, s49, v15")
    for n in range(1, 4):
        A.e(f"v_subrev_u32 v{VKD[n]}, {16*n}, v{VKD[0]}")
    A.e("v_bfe_u32 v14, v1, 2, 1")
    A.e("v_bfe_u32 v15, v1, 3, 1")
    A.e("v_and_b32 v12, 3, v1")
    A.e("v_lshlrev_b32 v12, 4, v12")
    A.e("v_lshrrev_b32 v13, 4, v1")
    A.e("v_lshl_add_u32 v12, v13, 7, v12")
    A.e(f"s_lshl_b32 s49, s{S_W}, 16")
    for n in range(4):
        A.e(f"v_xor_b32 v13, {n & 1}, v14")
        A.e(f"v_lshl_add_u32 v13, v13, 6, v12")
        A.e(f"v_lshl_add_u32 v13, v15, 13, v13")
        A.e(f"s_add_u32 s50, s49, {2*n*8192 - n*1024}")
        A.e(f"v_add_u32 v{2+n}, s50, v13")
    def tr_bases(dst, swap, ta=13, tb=14, tc=15):
        A.e(f"v_lshrrev_b32 v{tb}, 5, v1")
        A.e(f"v_lshlrev_b32 v{ta}, 11, v{tb}")
        A.e(f"v_bfe_u32 v{tb}, v1, 3, 1")
        A.e(f"v_lshl_add_u32 v{ta}, v{tb}, 10, v{ta}")
        A.e(f"v_bfe_u32 v{tc}, v1, 2, 1")
        A.e(f"v_lshl_add_u32 v{ta}, v{tc}, 7, v{ta}")
        A.e(f"v_bfe_u32 v{tc}, v1, 4, 1")
        A.e(f"v_lshl_add_u32 v{ta}, v{tc}, 5, v{ta}")
        if swap:
            A.e(f"v_and_b32 v{tc}, 1, v1")
            A.e(f"v_lshl_add_u32 v{ta}, v{tc}, 4, v{ta}")
            A.e(f"v_bfe_u32 v{tc}, v1, 1, 1")
            A.e(f"v_lshl_add_u32 v{ta}, v{tc}, 3, v{ta}")
        else:
            A.e(f"v_and_b32 v{tc}, 3, v1")
            A.e(f"v_lshl_add_u32 v{ta}, v{tc}, 3, v{ta}")
        A.e(f"v_add_u32 v{ta}, {VBASE}, v{ta}")
        A.e(f"v_lshl_add_u32 v{dst[0]}, v{tb}, 6, v{ta}")
        A.e(f"v_xor_b32 v{tb}, 1, v{tb}")
        A.e(f"v_lshl_add_u32 v{dst[1]}, v{tb}, 6, v{ta}")
    tr_bases(VWR, True)
    A.e("v_lshlrev_b32 v12, 4, v1")
    A.e("s_waitcnt lgkmcnt(0)")
    A.e("s_lshl_b32 s50, s44, 20")
    A.e("s_add_u32 s36, s36, s50")
    A.e("s_addc_u32 s37, s37, 0")
    A.e("s_sub_u32 s52, s36, 64")
    A.e("s_subb_u32 s53, s37, 0")
    srd(A, SRD_K, "s52", "s53", 1048576+64)
    A.e("s_add_u32 s38, s38, s50")
    A.e("s_addc_u32 s39, s39, 0")
    A.e("s_sub_u32 s52, s38, 32768")
    A.e("s_subb_u32 s53, s39, 0")
    srd(A, SRD_V, "s52", "s53", 1048576+32768)
    A.e("s_lshl_b32 s50, s46, 9")
    A.e("s_add_u32 s40, s40, s50")
    A.e("s_addc_u32 s41, s41, 0")
    A.e(f"s_sub_u32 s51, {448*8192}, s50")
    srd(A, SRD_WQ, "s40", "s41", "s51")
    A.e("s_mul_i32 s50, s45, 28672")
    A.e(f"s_add_u32 s50, s50, {Y_OFF}")
    A.e("s_add_u32 s52, s42, s50")
    A.e("s_addc_u32 s53, s43, 0")
    srd(A, SRD_Y, "s52", "s53", 28672)
    srd(A, SRD_M, "s42", "s43", 3584)
    for ks in range(28):
        if ks % 4 == 0:
            A.e(f"s_mov_b32 s50, {ks*1024}")
        A.e(f"buffer_load_dwordx4 {v(H1+4*ks,4)}, v12, s[{SRD_Y}:{SRD_Y+3}], s50 offen offset:{(ks%4)*1024}")
    A.e(f"s_lshl_b32 s50, s{S_W}, 10")
    A.e(f"s_add_u32 m0, s50, {MODL}")
    A.e("s_nop 0")
    A.e(f"buffer_load_dwordx4 v12, s[{SRD_M}:{SRD_M+3}], s50 offen lds")
    A.e(f"s_add_u32 s{S_M0V}, s48, {VBASE}")
    A.e(f"s_mul_i32 s{S_M0K}, s{S_W}, {4*KPIECE}")
    def wq_dma(ch):
        out = [f"s_add_u32 m0, s{S_M0V}, {(ch % 4)*VSLOT}", f"s_mov_b32 s50, {ch*32*8192}"]
        for n in range(4):
            out.append(f"buffer_load_dwordx4 v{2+n}, s[{SRD_WQ}:{SRD_WQ+3}], s50 offen offset:{n*1024} lds")
        return out
    for ch in range(3):
        for t in wq_dma(ch): A.e(t)
    def k_dma(blk):
        out = [f"s_add_u32 m0, s{S_M0K}, {(blk % 4)*KSLOT}", f"s_mov_b32 s50, {blk*16384}"]
        for n in range(4):
            out.append(f"buffer_load_dwordx4 v{VKD[n]}, s[{SRD_K}:{SRD_K+3}], s50 offen offset:{n*KPIECE} lds")
        return out
    for blk in range(4):
        for t in k_dma(blk): A.e(t)
    A.e("s_waitcnt vmcnt(28)")
    A.e("s_barrier")
    stamp()
    A.e("v_lshrrev_b32 v14, 5, v1")
    A.e("v_lshlrev_b32 v14, 4, v14")
    A.e(f"v_add_u32 v14, {MODL}, v14")
    TG = 128
    def mod_reads(ks):
        b = TG + 16*(ks & 1)
        return [f"ds_read_b128 {v(b,4)}, v14 offset:{1792+ks*64}",
                f"ds_read_b128 {v(b+4,4)}, v14 offset:{1792+ks*64+32}",
                f"ds_read_b128 {v(b+8,4)}, v14 offset:{ks*64}",
                f"ds_read_b128 {v(b+12,4)}, v14 offset:{ks*64+32}"]
    for t in mod_reads(0): A.e(t)
    TU = 160
    for ks in range(28):
        if ks+1 < 28:
            for t in mod_reads(ks+1): A.e(t)
            A.e("s_waitcnt lgkmcnt(4)")
        else:
            A.e("s_waitcnt lgkmcnt(0)")
        b = TG + 16*(ks & 1)
        for d in range(4):
            r = H1+4*ks+d
            A.e(f"v_lshlrev_b32 v{TU+2*d}, 16, v{r}")
            A.e(f"v_and_b32 v{TU+2*d+1}, 0xffff0000, v{r}")
        for d in range(4):
            A.e(f"v_pk_fma_f32 {v(TU+2*d,2)}, {v(TU+2*d,2)}, {v(b+2*d,2)}, {v(b+8+2*d,2)}")
        for d in range(4):
            A.e(f"v_cvt_pk_bf16_f32 v{H1+4*ks+d}, v{TU+2*d}, v{TU+2*d+1}")
    QL = 4
    def q_reads(ch, p):
        if p >= 16:
            ch, p = ch+1, p-16
            if ch >= 14: return []
        db, ks = p >> 1, p & 1
        ring = p % NRING
        return [((ch, p, u), vread(ch % 4, db, ks, u, ring, VWR)) for u in range(2)]
    stamp()
    A.e("s_waitcnt vmcnt(24)")
    A.e("s_barrier")
    lg = Lgkm(A)
    for p in range(QL):
        for t, txt in q_reads(0, p):
            A.e(txt); lg.issue(t)
    for ch in range(14):
        gaps = [[] for _ in range(16)]
        if ch == 0: vm = 20
        elif ch == 1: vm = 20
        elif ch <= 11: vm = 4
        else: vm = 0
        if ch < 13:
            gaps[0] += [f"s_waitcnt vmcnt({vm})", "s_barrier"]
        if ch+3 < 14:
            d = wq_dma(ch+3)
            gaps[1] += d[:2]
            for n in range(4):
                gaps[2+3*n].append(d[2+n])
        for p in range(16):
            w = lg.need({(ch, p, 0), (ch, p, 1)})
            if w: A.e(w)
            db, ks = p >> 1, p & 1
            acc = v(O0+16*db, 16)
            first = (ch == 0 and ks == 0)
            A.e(mfma(acc, a(AV+4*(p % NRING), 4), v(H1+4*(2*ch+ks), 4), "0" if first else acc))
            for t, txt in q_reads(ch, p+QL):
                A.e(txt); lg.issue(t)
            for txt in gaps[p]: A.e(txt)
    A.e("s_barrier")
    stamp()
    A.e("v_bfe_u32 v14, v1, 2, 1")
    A.e("v_bfe_u32 v15, v1, 3, 1")
    A.e("v_and_b32 v2, 3, v1")
    A.e("v_lshlrev_b32 v2, 4, v2")
    A.e("v_lshl_add_u32 v2, v15, 9, v2")
    A.e("v_lshrrev_b32 v15, 4, v1")
    A.e("v_lshl_add_u32 v2, v15, 7, v2")
    A.e("v_add_u32 v2, s48, v2")
    A.e(f"v_lshl_add_u32 v{VVD[0]}, v14, 6, v2")
    A.e("v_xor_b32 v14, 1, v14")
    A.e(f"v_lshl_add_u32 v{VVD[1]}, v14, 6, v2")
    def v_dma(blk):
        out = [f"s_add_u32 m0, s{S_M0V}, {(blk % 4)*VSLOT}", f"s_mov_b32 s50, {blk*16384+32768}"]
        for n in range(4):
            out.append(f"buffer_load_dwordx4 v{VVD[n & 1]}, s[{SRD_V}:{SRD_V+3}], s50 offen offset:{n*1024} lds")
        return out
    for blk in range(2):
        for t in v_dma(blk): A.e(t)
    A.e("v_bfe_u32 v14, v1, 1, 4")
    A.e(f"v_mul_u32_u24 v14, {KPIECE}, v14")
    A.e("v_and_b32 v15, 1, v1")
    A.e("v_lshl_add_u32 v14, v15, 9, v14")
    A.e("v_lshrrev_b32 v2, 5, v1")
    A.e("v_lshl_add_u32 v14, v2, 4, v14")
    A.e("v_lshlrev_b32 v15, 7, v15")
    A.e(f"v_add_u32 v{VKR[0]}, v14, v15")
    A.e(f"v_sub_u32 v{VKR[1]}, v14, v15")
    tr_bases(VVR, False, 16, 17, 18)
    A.e("s_nop 7")
    for db in range(8):
        for r in range(8):
            A.e(f"v_cvt_pk_bf16_f32 v{T_+(r & 3)}, v{O0+16*db+2*r}, v{O0+16*db+2*r+1}")
            A.e(f"v_accvgpr_write_b32 a{AQ+8*db+r}, v{T_+(r & 3)}")
    if dbg == "q":
        A.e("s_lshl_b32 s50, s45, 18")
        A.e("s_lshl_b32 s51, s46, 14")
        A.e("s_add_u32 s50, s50, s51")
        A.e(f"s_add_u32 s50, s50, {OF_OFF}")
        A.e("s_add_u32 s52, s42, s50")
        A.e("s_addc_u32 s53, s43, 0")
        srd(A, SRD_Y, "s52", "s53", 16384)
        A.e("v_lshlrev_b32 v12, 4, v1")
        A.e("s_nop 4")
        for ks in range(16):
            if ks % 4 == 0:
                A.e(f"s_mov_b32 s50, {ks*1024}")
            A.e(f"buffer_store_dwordx4 {a(AQ+4*ks,4)}, v12, s[{SRD_Y}:{SRD_Y+3}], s50 offen offset:{(ks%4)*1024}")
        A.e("s_waitcnt vmcnt(0)")
        A.e("s_endpgm")
    lg = Lgkm(A)
    seq = [(b, ks) for b in range(2) for ks in range(16)]
    KL = 4
    A.e("s_nop 1")
    for i in range(KL):
        b, ks = seq[i]
        A.e(kread(b, ks, i % NRING)); lg.issue(i)
    zero = [f"v_mov_b32 v{O0+r}, 0" for r in range(128)]
    for i, (b, ks) in enumerate(seq):
        w = lg.need({i})
        if w: A.e(w)
        A.e(mfma(v(S_[b], 16), a(AK+4*(i % NRING), 4), a(AQ+4*ks, 4), "0" if ks == 0 else v(S_[b], 16)))
        if i+KL < 32:
            b2, ks2 = seq[i+KL]
            A.e(kread(b2, ks2, (i+KL) % NRING)); lg.issue(i+KL)
        for t in zero[4*i:4*i+4]: A.e(t)
    A.e("s_barrier")
    for t in v_dma(2): A.e(t)
    for t in k_dma(4): A.e(t)
    A.e(f"s_mov_b32 s{S_KOFF}, {5*16384}")
    A.e(f"s_mov_b32 s{S_THR}, {f2u(2.0**(OPT.get('thr', THR_LOG2)-OPT['bias'])):#x}")
    A.e("s_nop 7")
    t0, t1 = T_, T_+1
    A.e(f"v_max3_f32 v{t0}, v{S_[0]}, v{S_[0]+1}, v{S_[0]+2}")
    allS = [S_[0]+j for j in range(3, 16)] + [S_[1]+j for j in range(16)]
    for j in range(0, len(allS)-1, 2):
        A.e(f"v_max3_f32 v{t0}, v{t0}, v{allS[j]}, v{allS[j+1]}")
    A.e(f"v_max_f32 v{t0}, v{t0}, v{allS[-1]}")
    A.e(f"v_mov_b32 v{t1}, v{t0}")
    A.e("s_nop 1")
    A.e(f"v_permlane32_swap_b32 v{t0}, v{t1}")
    A.e("s_nop 1")
    A.e(f"v_max_f32 v{t0}, v{t0}, v{t1}")
    if OPT['bias']:
        A.e(f"v_add_f32 v{t0}, {f2u(float(OPT['bias'])):#x}, v{t0}")
    for r in range(16):
        A.e(f"v_sub_f32 v{NEGM+r}, 0, v{t0}")
    for b in range(2):
        for r in range(16):
            A.e(f"v_sub_f32 v{S_[b]+r}, v{S_[b]+r}, v{t0}")
    A.e(f"v_mov_b32 v{L_[1]}, 0")
    for c, t in softmax_ops(S_[0], P_[0], L_[1], L_[0]):
        A.e(t)
    A.e("s_waitcnt vmcnt(8)")
    A.e("s_barrier")
    for p in range(LEAD):
        for t, txt in reads_for_pos(0, p, True, True, True, True):
            A.e(txt)
    if dbg == "time":
        stamp()
        A.e("s_waitcnt lgkmcnt(0)")
        for p in range(LEAD):
            for t, txt in reads_for_pos(0, p, True, True, True, True):
                A.e(txt)
    A.e(f"s_mov_b32 s{S_CNT}, 15")
    A.raw(".p2align 6")
    A.label("K1_LOOP")
    for ph in range(4):
        iteration(A, ph, f"M{ph}")
    A.e(f"s_sub_u32 s{S_CNT}, s{S_CNT}, 1")
    A.e(f"s_cmp_lg_u32 s{S_CNT}, 0")
    A.e("s_cbranch_scc1 K1_LOOP")
    if dbg == "time":
        stamp()
        A.e("s_waitcnt lgkmcnt(0)")
    iteration(A, 0, "T0", dma_k=False, dma_v=True, vmwait=8)
    iteration(A, 1, "T1", dma_k=False, dma_v=False, vmwait=4, nxt_qk=False)
    iteration(A, 2, "T2", do_qk=False, dma_k=False, dma_v=False, vmwait=0, nxt_qk=False)
    iteration(A, 3, "T3", do_qk=False, do_sm=False, dma_k=False, dma_v=False, nxt_pv=False, nxt_qk=False, barrier=False)
    stamp()
    Lf = L_[1]
    A.e(f"v_mov_b32 v{t0}, v{Lf}")
    A.e(f"v_mov_b32 v{t1}, v{Lf}")
    A.e("s_lshl_b32 s50, s45, 18")
    A.e("s_lshl_b32 s51, s46, 14")
    A.e(f"v_permlane32_swap_b32 v{t0}, v{t1}")
    A.e("s_add_u32 s50, s50, s51")
    A.e(f"s_add_u32 s50, s50, {OF_OFF}")
    A.e(f"v_add_f32 v{t0}, v{t0}, v{t1}")
    A.e(f"v_rcp_f32 v{t0}, v{t0}")
    A.e("s_add_u32 s52, s42, s50")
    A.e("s_addc_u32 s53, s43, 0")
    srd(A, SRD_Y, "s52", "s53", 16384)
    A.e("v_lshlrev_b32 v12, 4, v1")
    A.e("s_nop 7")
    for fr in range(16):
        base = O0 + 8*fr
        for r in range(8):
            A.e(f"v_mul_f32 v{base+r}, v{base+r}, v{t0}")
        dst = S_[0] + 4*(fr % 8)
        for r in range(4):
            A.e(f"v_cvt_pk_bf16_f32 v{dst+r}, v{base+2*r}, v{base+2*r+1}")
        if fr % 4 == 0:
            A.e(f"s_mov_b32 s50, {fr*1024}")
        A.e(f"buffer_store_dwordx4 {v(dst,4)}, v12, s[{SRD_Y}:{SRD_Y+3}], s50 offen offset:{(fr%4)*1024}")
        if fr == 7:
            A.e("s_waitcnt vmcnt(4)")
    if dbg == "time":
        A.e("s_waitcnt vmcnt(0)")
        stamp(); stamp(True)
        A.e("s_load_dwordx2 s[52:53], s[0:1], 88")
        A.e("s_waitcnt lgkmcnt(0)")
        if OPT.get('dbg0'):
            A.e("s_sub_u32 s52, s52, 512")
            A.e("s_subb_u32 s53, s53, 0")
        srd(A, SRD_M, "s52", "s53", 256)
        for i in range(len(stamps)):
            A.e(f"v_writelane_b32 v20, s{64+2*i}, {i}")
        A.e(f"s_cmp_eq_u32 s2, 9")
        A.e("s_cbranch_scc0 K1_END")
        A.e(f"s_cmp_eq_u32 s{S_W}, 0")
        A.e("s_cbranch_scc0 K1_END")
        A.e("v_lshlrev_b32 v21, 2, v1")
        A.e(f"v_cmp_gt_u32 vcc, {len(stamps)}, v1")
        A.e("s_and_saveexec_b64 s[54:55], vcc")
        A.e(f"buffer_store_dword v20, v21, s[{SRD_M}:{SRD_M+3}], 0 offen")
    A.label("K1_END")
    A.e("s_endpgm")
    if not OPT['no_sm']:
        for ph in range(4):
            rare_path(A, ph, f"M{ph}")
        rare_path(A, 0, "T0")
        rare_path(A, 1, "T1")
        rare_path(A, 2, "T2", do_qk=False)
    return name
```

```python
from asmlib import *
from layout import *
import struct

def f2u(x):
    return struct.unpack("<I", struct.pack("<f", x))[0]

KPIECE = 1040
KSLOT = 16*KPIECE
VBASE = 4*KSLOT
VSLOT = 16384
MODL = VBASE + 4*VSLOT
K1_LDS = MODL + 4096

O0 = 128
S_ = [96, 112]
NEGM = 80
P_ = [64, 72]
T_ = 56
L_ = [62, 63]
H1 = 16
VKR = [2, 3]
VVR = [4, 5]
VWR = [6, 7]
VKD = [8, 9, 10, 11]
VVD = [12, 13]
AQ = 0
NRING = 8
AK = 64
AV = 96
SRD_K, SRD_V, SRD_WQ, SRD_Y, SRD_M = 8, 12, 16, 20, 24
S_W, S_KOFF, S_M0K, S_M0V, S_CNT, S_THR = 28, 29, 30, 31, 32, 33

THR_LOG2 = 146
OPT = dict(bias=0, no_reads=False, no_sm=False, no_dma=False, order='alt', no_mfma=False, fake16=False)

class Lgkm:
    def __init__(self, A, pending=None):
        self.A = A
        self.q = list(pending) if pending else []
    def issue(self, tag):
        self.q.append(tag)
    def need(self, tags):
        idx = -1
        for i, t in enumerate(self.q):
            if t in tags:
                idx = i
        if idx < 0:
            return None
        n = len(self.q) - 1 - idx
        self.q = self.q[idx+1:]
        assert n <= 15, n
        return f"s_waitcnt lgkmcnt({n})"

def vread(slot, db, ks, u, ring, bases):
    dst = AV + 4*ring + 2*u
    off = slot*VSLOT + ks*8192 + u*4096 + (db >> 1)*256
    return f"ds_read_b64_tr_b16 {a(dst,2)}, v{bases[db & 1]} offset:{off}"

def kread(slot, ks, ring):
    dst = AK + 4*ring
    off = slot*KSLOT + ks*32
    return f"ds_read_b128 {a(dst,4)}, v{VKR[(ks >> 2) & 1]} offset:{off}"

def mfma(d, A_, B_, C_):
    return f"v_mfma_f32_32x32x16_bf16 {d}, {A_}, {B_}, {C_}"

def softmax_ops(Sr, Pw, Lold, Lnew):
    ops = []
    def pairtail(j):
        t0, t1 = T_ + 2*(j & 1), T_ + 2*(j & 1) + 1
        src = Lold if j == 0 else Lnew
        return [(1, f"v_add_f32 v{Lnew}, v{src}, v{t0}"),
                (1, f"v_add_f32 v{Lnew}, v{Lnew}, v{t1}"),
                (1, f"v_cvt_pk_bf16_f32 v{Pw+j}, v{t0}, v{t1}")]
    for j in range(8):
        t0, t1 = T_ + 2*(j & 1), T_ + 2*(j & 1) + 1
        ops.append((2, f"v_exp_f32 v{t0}, v{Sr+2*j}"))
        ops.append((2, f"v_exp_f32 v{t1}, v{Sr+2*j+1}"))
        if j > 0:
            ops += pairtail(j-1)
    ops += pairtail(7)
    return ops

def distribute(ops, lo, hi, ngaps=32):
    gaps = [[] for _ in range(ngaps)]
    total = sum(c for c, _ in ops)
    n = hi - lo + 1
    acc = 0.0
    for c, t in ops:
        g = lo + min(n-1, int((acc + c*0.5) * n / total))
        gaps[g].append(t)
        acc += c
    return gaps

LEAD = 6

def pos_op(p):
    if OPT['order'] == 'alt':
        if p % 2 == 0:
            n = p >> 1
            return ('pv', n >> 1, n & 1, n)
        return ('qk', p >> 1, 0, p >> 1)
    elif OPT['order'] == 'grp':
        if p < 16:
            return ('pv', p >> 1, p & 1, p)
        return ('qk', p-16, 0, p-16)
    elif OPT['order'] == 'grpk':
        if p < 16:
            return ('pv', p & 7, p >> 3, p)
        return ('qk', p-16, 0, p-16)
    elif OPT['order'] == 'qkpv':
        if p >= 16:
            q = p-16
            return ('pv', q >> 1, q & 1, q)
        return ('qk', p, 0, p)
    elif OPT['order'] == 'grp4':
        blk, r = p >> 3, p & 7
        if r < 4:
            n = blk*4 + r
            return ('pv', n >> 1, n & 1, n)
        n = blk*4 + r - 4
        return ('qk', n, 0, n)
    raise ValueError

def reads_for_pos(ph, p, do_pv, do_qk, nxt_do_pv, nxt_do_qk):
    if p >= 32:
        ph2, p2, pv, qk = (ph+1) % 4, p-32, nxt_do_pv, nxt_do_qk
    else:
        ph2, p2, pv, qk = ph, p, do_pv, do_qk
    op = pos_op(p2)
    if op[0] == 'pv':
        if not pv: return []
        _, db, ks, n = op
        return [((p2, u), vread(ph2, db, ks, u, n % NRING, VVR)) for u in range(2)]
    else:
        if not qk: return []
        _, ks, _, n = op
        return [((p2, 0), kread((ph2+2) % 4, ks, n % NRING))]

def iteration(A, ph, tag, do_qk=True, do_sm=True, dma_k=True, dma_v=True,
              nxt_pv=True, nxt_qk=True, vmwait=8, barrier=True, extra=None):
    Sw, Sr = S_[ph % 2], S_[(ph+1) % 2]
    Pr, Pw = P_[ph % 2], P_[(ph+1) % 2]
    Lold, Lnew = L_[ph % 2], L_[(ph+1) % 2]
    pend = []
    for p in range(LEAD):
        pend += [t for t, _ in reads_for_pos(ph, p, True, do_qk, True, True)]
    lg = Lgkm(A, pend)
    gaps = [[] for _ in range(32)]
    if barrier:
        gaps[0] += [f"s_waitcnt vmcnt({vmwait})", "s_barrier"]
    if OPT['no_dma']: dma_k = dma_v = False
    if OPT['no_sm']: do_sm = False
    if dma_k:
        gaps[1].append(f"s_add_u32 m0, s{S_M0K}, {((ph+1) % 4)*KSLOT}")
        for n in range(4):
            gaps[2+4*n].append(f"buffer_load_dwordx4 v{VKD[n]}, s[{SRD_K}:{SRD_K+3}], s{S_KOFF} offen offset:{n*KPIECE} lds")
    if dma_v:
        gaps[17].append(f"s_add_u32 m0, s{S_M0V}, {((ph+3) % 4)*VSLOT}")
        for n in range(4):
            gaps[18+4*n].append(f"buffer_load_dwordx4 v{VVD[n & 1]}, s[{SRD_V}:{SRD_V+3}], s{S_KOFF} offen offset:{n*1024} lds")
    gaps[31].append(f"s_add_u32 s{S_KOFF}, s{S_KOFF}, 16384")
    if extra:
        for g_, l_ in extra.items(): gaps[g_] += l_
    if do_sm:
        sm = distribute(softmax_ops(Sr, Pw, Lold, Lnew), 4, 29)
        for g in range(32):
            gaps[g] += sm[g]
        gaps[30].append(f"v_cmp_lt_f32 vcc, s{S_THR}, v{Lnew}")
    for p in range(32):
        WM = OPT.get('wmerge', 2)
        if p % WM == 0:
            w = lg.need({(p+x, u) for x in range(WM) for u in range(2)})
            if w and not OPT['no_reads']: A.e(w)
        op = pos_op(p)
        F = []
        for t, txt in reads_for_pos(ph, p+LEAD, True, do_qk, nxt_pv, nxt_qk):
            if not OPT['no_reads']: F.append(txt)
            lg.issue((t[0] + (32 if p+LEAD >= 32 else 0), t[1]))
        F += gaps[p]
        M = []
        if OPT['no_mfma']:
            pass
        elif OPT['fake16']:
            if op[0] == 'pv':
                _, db, ks, n = op
                for hh in range(2):
                    acc = v(O0+16*db+8*ks+4*hh, 4)
                    M.append(f"v_mfma_f32_16x16x32_bf16 {acc}, {a(AV+4*(n % NRING),4)}, {v(Pr+4*hh,4)}, {acc}")
            elif do_qk:
                _, ks, _, n = op
                for hh in range(2):
                    acc = v(Sw+8*(ks & 1)+4*hh, 4)
                    c_ = v(NEGM+4*hh, 4) if ks < 2 else acc
                    M.append(f"v_mfma_f32_16x16x32_bf16 {acc}, {a(AK+4*(n % NRING),4)}, {a(AQ+8*(ks>>1)+4*hh,4)}, {c_}")
        elif op[0] == 'pv':
            _, db, ks, n = op
            acc = v(O0+16*db, 16)
            if OPT.get('swap_pv'):
                M.append(mfma(acc, v(Pr+4*ks, 4), a(AV+4*(n % NRING), 4), acc))
            else:
                M.append(mfma(acc, a(AV+4*(n % NRING), 4), v(Pr+4*ks, 4), acc))
        elif do_qk:
            _, ks, _, n = op
            if OPT.get('swap_qk'):
                M.append(mfma(v(Sw, 16), a(AQ+4*ks, 4), a(AK+4*(n % NRING), 4), v(NEGM, 16) if ks == 0 else v(Sw, 16)))
            else:
                M.append(mfma(v(Sw, 16), a(AK+4*(n % NRING), 4), a(AQ+4*ks, 4), v(NEGM, 16) if ks == 0 else v(Sw, 16)))
        if len(M) == 2:
            def cst(t): return 2 if (t.startswith('v_exp') or t.startswith('buffer_load')) else 1
            tot = sum(cst(t) for t in F); acc_ = 0; h = 0
            for t in F:
                if acc_ + cst(t) > (tot+1)//2: break
                acc_ += cst(t); h += 1
            A.e(M[0])
            for txt in F[:h]: A.e(txt)
            A.e(M[1])
            for txt in F[h:]: A.e(txt)
        else:
            for m in M: A.e(m)
            for txt in F: A.e(txt)
    if do_sm:
        A.e(f"s_cbranch_vccnz RARE_{tag}")
        A.label(f"CONT_{tag}")

def rare_path(A, ph, tag, do_qk=True):
    Sn, Sr = S_[ph % 2], S_[(ph+1) % 2]
    Pw = P_[(ph+1) % 2]
    Lold, Lnew = L_[ph % 2], L_[(ph+1) % 2]
    t0, t1, t2, t3 = T_, T_+1, T_+2, T_+3
    A.label(f"RARE_{tag}")
    A.e("s_nop 15")
    A.e("s_nop 15")
    A.e(f"v_max3_f32 v{t0}, v{Sr}, v{Sr+1}, v{Sr+2}")
    for j in range(3, 15, 2):
        A.e(f"v_max3_f32 v{t0}, v{t0}, v{Sr+j}, v{Sr+j+1}")
    A.e(f"v_max_f32 v{t0}, v{t0}, v{Sr+15}")
    A.e(f"v_mov_b32 v{t1}, v{t0}")
    A.e(f"v_mov_b32 v{t2}, v{Lold}")
    A.e(f"v_mov_b32 v{t3}, v{Lold}")
    A.e("s_nop 1")
    A.e(f"v_permlane32_swap_b32 v{t0}, v{t1}")
    A.e(f"v_permlane32_swap_b32 v{t2}, v{t3}")
    A.e("s_nop 1")
    A.e(f"v_max_f32 v{t0}, v{t0}, v{t1}")
    A.e(f"v_add_f32 v{t2}, v{t2}, v{t3}")
    A.e(f"v_log_f32 v{t2}, v{t2}")
    A.e("s_nop 0")
    A.e(f"v_max_f32 v{t0}, v{t0}, v{t2}")
    if OPT['bias']:
        A.e(f"v_add_f32 v{t0}, {f2u(float(OPT['bias'])):#x}, v{t0}")
    A.e(f"v_max_f32 v{t0}, 0, v{t0}")
    A.e(f"v_sub_f32 v{t3}, 0, v{t0}")
    A.e(f"v_exp_f32 v{t3}, v{t3}")
    A.e("s_nop 0")
    for r in range(128):
        A.e(f"v_mul_f32 v{O0+r}, v{O0+r}, v{t3}")
    A.e(f"v_mul_f32 v{Lold}, v{Lold}, v{t3}")
    for r in range(16):
        A.e(f"v_sub_f32 v{NEGM+r}, v{NEGM+r}, v{t0}")
    if do_qk:
        for r in range(16):
            A.e(f"v_sub_f32 v{Sn+r}, v{Sn+r}, v{t0}")
    for r in range(16):
        A.e(f"v_sub_f32 v{Sr+r}, v{Sr+r}, v{t0}")
    for j in range(8):
        A.e(f"v_exp_f32 v{t1}, v{Sr+2*j}")
        A.e(f"v_exp_f32 v{t2}, v{Sr+2*j+1}")
        A.e("s_nop 0")
        A.e(f"v_add_f32 v{Lnew}, v{Lold if j == 0 else Lnew}, v{t1}")
        A.e(f"v_add_f32 v{Lnew}, v{Lnew}, v{t2}")
        A.e(f"v_cvt_pk_bf16_f32 v{Pw+j}, v{t1}, v{t2}")
    A.e("s_nop 1")
    A.e(f"s_branch CONT_{tag}")

def gen_k1(A, dbg=None):
    name = "k1_attn_kernel"
    kernel_begin(A, name)
    stamps = []
    def stamp(real=False):
        if dbg != "time": return
        if real: return
        for r in (False, True):
            i = len(stamps)
            stamps.append(i)
            A.e(f"{'s_memrealtime' if r else 's_memtime'} s[{64+2*i}:{65+2*i}]")
    A.e("s_cmp_ge_u32 s2, 256")
    A.e("s_cbranch_scc1 K1_END")
    stamp(); stamp(True)
    A.e("s_load_dwordx4 s[36:39], s[0:1], 8")
    A.e("s_load_dwordx2 s[40:41], s[0:1], 24")
    A.e("s_load_dwordx2 s[42:43], s[0:1], 96")
    A.e("v_and_b32 v1, 63, v0")
    A.e("v_lshrrev_b32 v14, 6, v0")
    A.e("s_nop 0")
    A.e(f"v_readfirstlane_b32 s{S_W}, v14")
    A.e("s_and_b32 s44, s2, 7")
    A.e("s_lshr_b32 s45, s2, 3")
    A.e("s_and_b32 s46, s45, 1")
    A.e("s_lshl_b32 s47, s44, 1")
    A.e("s_add_u32 s46, s46, s47")
    A.e("s_lshr_b32 s45, s45, 1")
    A.e("s_lshl_b32 s45, s45, 2")
    A.e(f"s_add_u32 s45, s45, s{S_W}")
    A.e("v_lshrrev_b32 v14, 5, v1")
    A.e("v_and_b32 v15, 31, v1")
    A.e("v_lshlrev_b32 v12, 3, v14")
    A.e("v_xor_b32 v15, v15, v12")
    A.e("v_lshlrev_b32 v15, 4, v15")
    A.e("v_lshl_add_u32 v15, v14, 9, v15")
    A.e(f"s_lshl_b32 s48, s{S_W}, 12")
    A.e("s_add_u32 s49, s48, 64")
    A.e(f"v_add_u32 v{VKD[0]}, s49, v15")
    for n in range(1, 4):
        A.e(f"v_subrev_u32 v{VKD[n]}, {16*n}, v{VKD[0]}")
    A.e("v_bfe_u32 v14, v1, 2, 1")
    A.e("v_bfe_u32 v15, v1, 3, 1")
    A.e("v_and_b32 v12, 3, v1")
    A.e("v_lshlrev_b32 v12, 4, v12")
    A.e("v_lshrrev_b32 v13, 4, v1")
    A.e("v_lshl_add_u32 v12, v13, 7, v12")
    A.e(f"s_lshl_b32 s49, s{S_W}, 16")
    for n in range(4):
        A.e(f"v_xor_b32 v13, {n & 1}, v14")
        A.e(f"v_lshl_add_u32 v13, v13, 6, v12")
        A.e(f"v_lshl_add_u32 v13, v15, 13, v13")
        A.e(f"s_add_u32 s50, s49, {2*n*8192 - n*1024}")
        A.e(f"v_add_u32 v{2+n}, s50, v13")
    def tr_bases(dst, swap, ta=13, tb=14, tc=15):
        A.e(f"v_lshrrev_b32 v{tb}, 5, v1")
        A.e(f"v_lshlrev_b32 v{ta}, 11, v{tb}")
        A.e(f"v_bfe_u32 v{tb}, v1, 3, 1")
        A.e(f"v_lshl_add_u32 v{ta}, v{tb}, 10, v{ta}")
        A.e(f"v_bfe_u32 v{tc}, v1, 2, 1")
        A.e(f"v_lshl_add_u32 v{ta}, v{tc}, 7, v{ta}")
        A.e(f"v_bfe_u32 v{tc}, v1, 4, 1")
        A.e(f"v_lshl_add_u32 v{ta}, v{tc}, 5, v{ta}")
        if swap:
            A.e(f"v_and_b32 v{tc}, 1, v1")
            A.e(f"v_lshl_add_u32 v{ta}, v{tc}, 4, v{ta}")
            A.e(f"v_bfe_u32 v{tc}, v1, 1, 1")
            A.e(f"v_lshl_add_u32 v{ta}, v{tc}, 3, v{ta}")
        else:
            A.e(f"v_and_b32 v{tc}, 3, v1")
            A.e(f"v_lshl_add_u32 v{ta}, v{tc}, 3, v{ta}")
        A.e(f"v_add_u32 v{ta}, {VBASE}, v{ta}")
        A.e(f"v_lshl_add_u32 v{dst[0]}, v{tb}, 6, v{ta}")
        A.e(f"v_xor_b32 v{tb}, 1, v{tb}")
        A.e(f"v_lshl_add_u32 v{dst[1]}, v{tb}, 6, v{ta}")
    tr_bases(VWR, True)
    A.e("v_lshlrev_b32 v12, 4, v1")
    A.e("s_waitcnt lgkmcnt(0)")
    A.e("s_lshl_b32 s50, s44, 20")
    A.e("s_add_u32 s36, s36, s50")
    A.e("s_addc_u32 s37, s37, 0")
    A.e("s_sub_u32 s52, s36, 64")
    A.e("s_subb_u32 s53, s37, 0")
    srd(A, SRD_K, "s52", "s53", 1048576+64)
    A.e("s_add_u32 s38, s38, s50")
    A.e("s_addc_u32 s39, s39, 0")
    A.e("s_sub_u32 s52, s38, 32768")
    A.e("s_subb_u32 s53, s39, 0")
    srd(A, SRD_V, "s52", "s53", 1048576+32768)
    A.e("s_lshl_b32 s50, s46, 9")
    A.e("s_add_u32 s40, s40, s50")
    A.e("s_addc_u32 s41, s41, 0")
    A.e(f"s_sub_u32 s51, {448*8192}, s50")
    srd(A, SRD_WQ, "s40", "s41", "s51")
    A.e("s_mul_i32 s50, s45, 28672")
    A.e(f"s_add_u32 s50, s50, {Y_OFF}")
    A.e("s_add_u32 s52, s42, s50")
    A.e("s_addc_u32 s53, s43, 0")
    srd(A, SRD_Y, "s52", "s53", 28672)
    srd(A, SRD_M, "s42", "s43", 3584)
    for ks in range(28):
        if ks % 4 == 0:
            A.e(f"s_mov_b32 s50, {ks*1024}")
        A.e(f"buffer_load_dwordx4 {v(H1+4*ks,4)}, v12, s[{SRD_Y}:{SRD_Y+3}], s50 offen offset:{(ks%4)*1024}")
    A.e(f"s_lshl_b32 s50, s{S_W}, 10")
    A.e(f"s_add_u32 m0, s50, {MODL}")
    A.e("s_nop 0")
    A.e(f"buffer_load_dwordx4 v12, s[{SRD_M}:{SRD_M+3}], s50 offen lds")
    A.e(f"s_add_u32 s{S_M0V}, s48, {VBASE}")
    A.e(f"s_mul_i32 s{S_M0K}, s{S_W}, {4*KPIECE}")
    def wq_dma(ch):
        out = [f"s_add_u32 m0, s{S_M0V}, {(ch % 4)*VSLOT}", f"s_mov_b32 s50, {ch*32*8192}"]
        for n in range(4):
            out.append(f"buffer_load_dwordx4 v{2+n}, s[{SRD_WQ}:{SRD_WQ+3}], s50 offen offset:{n*1024} lds")
        return out
    for ch in range(3):
        for t in wq_dma(ch): A.e(t)
    def k_dma(blk):
        out = [f"s_add_u32 m0, s{S_M0K}, {(blk % 4)*KSLOT}", f"s_mov_b32 s50, {blk*16384}"]
        for n in range(4):
            out.append(f"buffer_load_dwordx4 v{VKD[n]}, s[{SRD_K}:{SRD_K+3}], s50 offen offset:{n*KPIECE} lds")
        return out
    for blk in range(4):
        for t in k_dma(blk): A.e(t)
    A.e("s_waitcnt vmcnt(28)")
    A.e("s_barrier")
    stamp()
    A.e("v_lshrrev_b32 v14, 5, v1")
    A.e("v_lshlrev_b32 v14, 4, v14")
    A.e(f"v_add_u32 v14, {MODL}, v14")
    TG = 128
    def mod_reads(ks):
        b = TG + 16*(ks & 1)
        return [f"ds_read_b128 {v(b,4)}, v14 offset:{1792+ks*64}",
                f"ds_read_b128 {v(b+4,4)}, v14 offset:{1792+ks*64+32}",
                f"ds_read_b128 {v(b+8,4)}, v14 offset:{ks*64}",
                f"ds_read_b128 {v(b+12,4)}, v14 offset:{ks*64+32}"]
    for t in mod_reads(0): A.e(t)
    TU = 160
    for ks in range(28):
        if ks+1 < 28:
            for t in mod_reads(ks+1): A.e(t)
            A.e("s_waitcnt lgkmcnt(4)")
        else:
            A.e("s_waitcnt lgkmcnt(0)")
        b = TG + 16*(ks & 1)
        for d in range(4):
            r = H1+4*ks+d
            A.e(f"v_lshlrev_b32 v{TU+2*d}, 16, v{r}")
            A.e(f"v_and_b32 v{TU+2*d+1}, 0xffff0000, v{r}")
        for d in range(4):
            A.e(f"v_pk_fma_f32 {v(TU+2*d,2)}, {v(TU+2*d,2)}, {v(b+2*d,2)}, {v(b+8+2*d,2)}")
        for d in range(4):
            A.e(f"v_cvt_pk_bf16_f32 v{H1+4*ks+d}, v{TU+2*d}, v{TU+2*d+1}")
    QL = 4
    def q_reads(ch, p):
        if p >= 16:
            ch, p = ch+1, p-16
            if ch >= 14: return []
        db, ks = p >> 1, p & 1
        ring = p % NRING
        return [((ch, p, u), vread(ch % 4, db, ks, u, ring, VWR)) for u in range(2)]
    stamp()
    A.e("s_waitcnt vmcnt(24)")
    A.e("s_barrier")
    lg = Lgkm(A)
    for p in range(QL):
        for t, txt in q_reads(0, p):
            A.e(txt); lg.issue(t)
    for ch in range(14):
        gaps = [[] for _ in range(16)]
        if ch == 0: vm = 20
        elif ch == 1: vm = 20
        elif ch <= 11: vm = 4
        else: vm = 0
        if ch < 13:
            gaps[0] += [f"s_waitcnt vmcnt({vm})", "s_barrier"]
        if ch+3 < 14:
            d = wq_dma(ch+3)
            gaps[1] += d[:2]
            for n in range(4):
                gaps[2+3*n].append(d[2+n])
        for p in range(16):
            w = lg.need({(ch, p, 0), (ch, p, 1)})
            if w: A.e(w)
            db, ks = p >> 1, p & 1
            acc = v(O0+16*db, 16)
            first = (ch == 0 and ks == 0)
            A.e(mfma(acc, a(AV+4*(p % NRING), 4), v(H1+4*(2*ch+ks), 4), "0" if first else acc))
            for t, txt in q_reads(ch, p+QL):
                A.e(txt); lg.issue(t)
            for txt in gaps[p]: A.e(txt)
    A.e("s_barrier")
    stamp()
    A.e("v_bfe_u32 v14, v1, 2, 1")
    A.e("v_bfe_u32 v15, v1, 3, 1")
    A.e("v_and_b32 v2, 3, v1")
    A.e("v_lshlrev_b32 v2, 4, v2")
    A.e("v_lshl_add_u32 v2, v15, 9, v2")
    A.e("v_lshrrev_b32 v15, 4, v1")
    A.e("v_lshl_add_u32 v2, v15, 7, v2")
    A.e("v_add_u32 v2, s48, v2")
    A.e(f"v_lshl_add_u32 v{VVD[0]}, v14, 6, v2")
    A.e("v_xor_b32 v14, 1, v14")
    A.e(f"v_lshl_add_u32 v{VVD[1]}, v14, 6, v2")
    def v_dma(blk):
        out = [f"s_add_u32 m0, s{S_M0V}, {(blk % 4)*VSLOT}", f"s_mov_b32 s50, {blk*16384+32768}"]
        for n in range(4):
            out.append(f"buffer_load_dwordx4 v{VVD[n & 1]}, s[{SRD_V}:{SRD_V+3}], s50 offen offset:{n*1024} lds")
        return out
    for blk in range(2):
        for t in v_dma(blk): A.e(t)
    A.e("v_bfe_u32 v14, v1, 1, 4")
    A.e(f"v_mul_u32_u24 v14, {KPIECE}, v14")
    A.e("v_and_b32 v15, 1, v1")
    A.e("v_lshl_add_u32 v14, v15, 9, v14")
    A.e("v_lshrrev_b32 v2, 5, v1")
    A.e("v_lshl_add_u32 v14, v2, 4, v14")
    A.e("v_lshlrev_b32 v15, 7, v15")
    A.e(f"v_add_u32 v{VKR[0]}, v14, v15")
    A.e(f"v_sub_u32 v{VKR[1]}, v14, v15")
    tr_bases(VVR, False, 16, 17, 18)
    A.e("s_nop 7")
    for db in range(8):
        for r in range(8):
            A.e(f"v_cvt_pk_bf16_f32 v{T_+(r & 3)}, v{O0+16*db+2*r}, v{O0+16*db+2*r+1}")
            A.e(f"v_accvgpr_write_b32 a{AQ+8*db+r}, v{T_+(r & 3)}")
    if dbg == "q":
        A.e("s_lshl_b32 s50, s45, 18")
        A.e("s_lshl_b32 s51, s46, 14")
        A.e("s_add_u32 s50, s50, s51")
        A.e(f"s_add_u32 s50, s50, {OF_OFF}")
        A.e("s_add_u32 s52, s42, s50")
        A.e("s_addc_u32 s53, s43, 0")
        srd(A, SRD_Y, "s52", "s53", 16384)
        A.e("v_lshlrev_b32 v12, 4, v1")
        A.e("s_nop 4")
        for ks in range(16):
            if ks % 4 == 0:
                A.e(f"s_mov_b32 s50, {ks*1024}")
            A.e(f"buffer_store_dwordx4 {a(AQ+4*ks,4)}, v12, s[{SRD_Y}:{SRD_Y+3}], s50 offen offset:{(ks%4)*1024}")
        A.e("s_waitcnt vmcnt(0)")
        A.e("s_endpgm")
    lg = Lgkm(A)
    seq = [(b, ks) for b in range(2) for ks in range(16)]
    KL = 4
    A.e("s_nop 1")
    for i in range(KL):
        b, ks = seq[i]
        A.e(kread(b, ks, i % NRING)); lg.issue(i)
    zero = [f"v_mov_b32 v{O0+r}, 0" for r in range(128)]
    for i, (b, ks) in enumerate(seq):
        w = lg.need({i})
        if w: A.e(w)
        A.e(mfma(v(S_[b], 16), a(AK+4*(i % NRING), 4), a(AQ+4*ks, 4), "0" if ks == 0 else v(S_[b], 16)))
        if i+KL < 32:
            b2, ks2 = seq[i+KL]
            A.e(kread(b2, ks2, (i+KL) % NRING)); lg.issue(i+KL)
        for t in zero[4*i:4*i+4]: A.e(t)
    A.e("s_barrier")
    for t in v_dma(2): A.e(t)
    for t in k_dma(4): A.e(t)
    A.e(f"s_mov_b32 s{S_KOFF}, {5*16384}")
    A.e(f"s_mov_b32 s{S_THR}, {f2u(2.0**(OPT.get('thr', THR_LOG2)-OPT['bias'])):#x}")
    A.e("s_nop 7")
    t0, t1 = T_, T_+1
    A.e(f"v_max3_f32 v{t0}, v{S_[0]}, v{S_[0]+1}, v{S_[0]+2}")
    allS = [S_[0]+j for j in range(3, 16)] + [S_[1]+j for j in range(16)]
    for j in range(0, len(allS)-1, 2):
        A.e(f"v_max3_f32 v{t0}, v{t0}, v{allS[j]}, v{allS[j+1]}")
    A.e(f"v_max_f32 v{t0}, v{t0}, v{allS[-1]}")
    A.e(f"v_mov_b32 v{t1}, v{t0}")
    A.e("s_nop 1")
    A.e(f"v_permlane32_swap_b32 v{t0}, v{t1}")
    A.e("s_nop 1")
    A.e(f"v_max_f32 v{t0}, v{t0}, v{t1}")
    if OPT['bias']:
        A.e(f"v_add_f32 v{t0}, {f2u(float(OPT['bias'])):#x}, v{t0}")
    for r in range(16):
        A.e(f"v_sub_f32 v{NEGM+r}, 0, v{t0}")
    for b in range(2):
        for r in range(16):
            A.e(f"v_sub_f32 v{S_[b]+r}, v{S_[b]+r}, v{t0}")
    A.e(f"v_mov_b32 v{L_[1]}, 0")
    for c, t in softmax_ops(S_[0], P_[0], L_[1], L_[0]):
        A.e(t)
    A.e("s_waitcnt vmcnt(8)")
    A.e("s_barrier")
    for p in range(LEAD):
        for t, txt in reads_for_pos(0, p, True, True, True, True):
            A.e(txt)
    if dbg == "time":
        stamp()
        A.e("s_waitcnt lgkmcnt(0)")
        for p in range(LEAD):
            for t, txt in reads_for_pos(0, p, True, True, True, True):
                A.e(txt)
    A.e(f"s_mov_b32 s{S_CNT}, 15")
    A.raw(".p2align 6")
    A.label("K1_LOOP")
    for ph in range(4):
        iteration(A, ph, f"M{ph}")
    A.e(f"s_sub_u32 s{S_CNT}, s{S_CNT}, 1")
    A.e(f"s_cmp_lg_u32 s{S_CNT}, 0")
    A.e("s_cbranch_scc1 K1_LOOP")
    if dbg == "time":
        stamp()
        A.e("s_waitcnt lgkmcnt(0)")
    iteration(A, 0, "T0", dma_k=False, dma_v=True, vmwait=8)
    iteration(A, 1, "T1", dma_k=False, dma_v=False, vmwait=4, nxt_qk=False)
    iteration(A, 2, "T2", do_qk=False, dma_k=False, dma_v=False, vmwait=0, nxt_qk=False)
    iteration(A, 3, "T3", do_qk=False, do_sm=False, dma_k=False, dma_v=False, nxt_pv=False, nxt_qk=False, barrier=False)
    stamp()
    Lf = L_[1]
    A.e(f"v_mov_b32 v{t0}, v{Lf}")
    A.e(f"v_mov_b32 v{t1}, v{Lf}")
    A.e("s_lshl_b32 s50, s45, 18")
    A.e("s_lshl_b32 s51, s46, 14")
    A.e(f"v_permlane32_swap_b32 v{t0}, v{t1}")
    A.e("s_add_u32 s50, s50, s51")
    A.e(f"s_add_u32 s50, s50, {OF_OFF}")
    A.e(f"v_add_f32 v{t0}, v{t0}, v{t1}")
    A.e(f"v_rcp_f32 v{t0}, v{t0}")
    A.e("s_add_u32 s52, s42, s50")
    A.e("s_addc_u32 s53, s43, 0")
    srd(A, SRD_Y, "s52", "s53", 16384)
    A.e("v_lshlrev_b32 v12, 4, v1")
    A.e("s_nop 7")
    for fr in range(16):
        base = O0 + 8*fr
        for r in range(8):
            A.e(f"v_mul_f32 v{base+r}, v{base+r}, v{t0}")
        dst = S_[0] + 4*(fr % 8)
        for r in range(4):
            A.e(f"v_cvt_pk_bf16_f32 v{dst+r}, v{base+2*r}, v{base+2*r+1}")
        if fr % 4 == 0:
            A.e(f"s_mov_b32 s50, {fr*1024}")
        A.e(f"buffer_store_dwordx4 {v(dst,4)}, v12, s[{SRD_Y}:{SRD_Y+3}], s50 offen offset:{(fr%4)*1024}")
        if fr == 7:
            A.e("s_waitcnt vmcnt(4)")
    if dbg == "time":
        A.e("s_waitcnt vmcnt(0)")
        stamp(); stamp(True)
        A.e("s_load_dwordx2 s[52:53], s[0:1], 88")
        A.e("s_waitcnt lgkmcnt(0)")
        if OPT.get('dbg0'):
            A.e("s_sub_u32 s52, s52, 512")
            A.e("s_subb_u32 s53, s53, 0")
        srd(A, SRD_M, "s52", "s53", 256)
        for i in range(len(stamps)):
            A.e(f"v_writelane_b32 v20, s{64+2*i}, {i}")
        A.e(f"s_cmp_eq_u32 s2, 9")
        A.e("s_cbranch_scc0 K1_END")
        A.e(f"s_cmp_eq_u32 s{S_W}, 0")
        A.e("s_cbranch_scc0 K1_END")
        A.e("v_lshlrev_b32 v21, 2, v1")
        A.e(f"v_cmp_gt_u32 vcc, {len(stamps)}, v1")
        A.e("s_and_saveexec_b64 s[54:55], vcc")
        A.e(f"buffer_store_dword v20, v21, s[{SRD_M}:{SRD_M+3}], 0 offen")
    A.label("K1_END")
    A.e("s_endpgm")
    if not OPT['no_sm']:
        for ph in range(4):
            rare_path(A, ph, f"M{ph}")
        rare_path(A, 0, "T0")
        rare_path(A, 1, "T1")
        rare_path(A, 2, "T2", do_qk=False)
    return name
```

```python
from asmlib import *
from layout import *
import k1
from k1 import (Lgkm, mfma, f2u, AQ, NRING, AK, AV, SRD_K, SRD_V, SRD_WQ, SRD_Y, SRD_M,
                S_W, S_KOFF, S_M0K, S_M0V, S_CNT, S_THR, THR_LOG2, OPT, distribute)

K1_LDS = 163840
SRD_WO = 16
KPIECE = 1056
KSLOT = 16*KPIECE
VBASE = 4*KSLOT
VSLOT = 16384
MODL = VBASE + 4*VSLOT
SPARE = MODL + 4096
WSLOT = [0, 28672, MODL, VBASE, VBASE+28672]
O0 = 128
S_ = [96, 112]
NEGM = 80
P_ = [64, 72]
T_ = 56
L_ = [[60, 61], [62, 63]]
VKR = [2, 3]
VVR = [4, 5, 6, 7]
VKD = [8, 9, 10, 11]
VVD = [12, 13, 14, 15]
LEAD = 6

def m16(d, A_, B_, C_):
    return f"v_mfma_f32_16x16x32_bf16 {d}, {A_}, {B_}, {C_}"

def vread(slot, db, u, ring):
    return f"ds_read_b64_tr_b16 {a(AV+4*ring+2*u,2)}, v{VVR[db & 3]} offset:{slot*VSLOT + u*8192 + (db >> 2)*256}"

def kread(slot, kb, ks, ring):
    return f"ds_read_b128 {a(AK+4*ring,4)}, v{VKR[(ks >> 1) & 1]} offset:{slot*KSLOT + kb*8448 + ks*64}"

def softmax_ops(Sr, Pw, Lold, Lnew):
    ops = []
    def info(j):
        kb, qb, hf = j >> 2, (j >> 1) & 1, j & 1
        return (kb*2+qb)*4 + 2*hf, qb*4 + 2*kb + hf, qb, (kb == 0 and hf == 0)
    def pairtail(j):
        t0, t1 = T_ + 2*(j & 1), T_ + 2*(j & 1) + 1
        si, pi, qb, first = info(j)
        src = Lold[qb] if first else Lnew[qb]
        return [(1, f"v_add_f32 v{Lnew[qb]}, v{src}, v{t0}"),
                (1, f"v_add_f32 v{Lnew[qb]}, v{Lnew[qb]}, v{t1}"),
                (1, f"v_cvt_pk_bf16_f32 v{Pw+pi}, v{t0}, v{t1}")]
    for j in range(8):
        t0, t1 = T_ + 2*(j & 1), T_ + 2*(j & 1) + 1
        si = info(j)[0]
        ops.append((2, f"v_exp_f32 v{t0}, v{Sr+si}"))
        ops.append((2, f"v_exp_f32 v{t1}, v{Sr+si+1}"))
        if j > 0: ops += pairtail(j-1)
    ops += pairtail(7)
    return ops

def reads_for_pos(ph, p, do_pv, do_qk, nxt_pv, nxt_qk):
    if p >= 32:
        ph2, p2, pv, qk = (ph+1) % 4, p-32, nxt_pv, nxt_qk
    else:
        ph2, p2, pv, qk = ph, p, do_pv, do_qk
    if p2 < 16:
        if not pv: return []
        return [((p2, u), vread(ph2, p2, u, p2 % NRING)) for u in range(2)]
    if not qk: return []
    n = p2-16
    return [((p2, 0), kread((ph2+2) % 4, n & 1, n >> 1, n % NRING))]

def iteration(A, ph, tag, do_qk=True, do_sm=True, dma_k=True, dma_v=True,
              nxt_pv=True, nxt_qk=True, vmwait=8, barrier=True, extra=None, first=False):
    Sw, Sr = S_[ph % 2], S_[(ph+1) % 2]
    Pr, Pw = P_[ph % 2], P_[(ph+1) % 2]
    Lold, Lnew = L_[ph % 2], L_[(ph+1) % 2]
    pend = []
    for p in range(LEAD):
        pend += [t for t, _ in reads_for_pos(ph, p, True, do_qk, True, True)]
    lg = Lgkm(A, pend)
    gaps = [[] for _ in range(32)]
    if barrier:
        gaps[0] += [f"s_waitcnt vmcnt({vmwait})", "s_barrier"]
    if dma_k:
        kp = OPT.get('kdma', [10, 11, 13, 15, 17])
        gaps[kp[0]].append(f"s_add_u32 m0, s{S_M0K}, {((ph+1) % 4)*KSLOT}")
        for n in range(4):
            gaps[kp[1+n]].append(f"buffer_load_dwordx4 v{VKD[n]}, s[{SRD_K}:{SRD_K+3}], s{S_KOFF} offen offset:{n*KPIECE} lds")
    if dma_v:
        vp = OPT.get('vdma', [18, 19, 21, 23, 25])
        gaps[vp[0]].append(f"s_add_u32 m0, s{S_M0V}, {((ph+3) % 4)*VSLOT}")
        for n in range(4):
            gaps[vp[1+n]].append(f"buffer_load_dwordx4 v{VVD[n]}, s[{SRD_V}:{SRD_V+3}], s{S_KOFF} offen offset:{n*1024} lds")
    gaps[31].append(f"s_add_u32 s{S_KOFF}, s{S_KOFF}, 16384")
    if extra:
        for g_, l_ in extra.items(): gaps[g_] += l_
    def cst(t):
        if t.startswith('v_exp'): return 2
        if t.startswith('buffer_load'): return OPT.get('dmacost', 3)
        return 1
    if do_sm:
        if OPT.get('level', 1):
            WM_ = OPT.get('wmerge', 2)
            fixed = []
            for p in range(32):
                f_ = len(reads_for_pos(ph, p+LEAD, True, do_qk, nxt_pv, nxt_qk)) + sum(cst(t) for t in gaps[p])
                if (p+1) % WM_ == 0: f_ += 1
                fixed.append(f_)
            ops = softmax_ops(Sr, Pw, Lold, Lnew)
            lo, hi = OPT.get('smlo', 3), 29
            total = sum(c for c, _ in ops) + sum(fixed[lo:hi+1])
            tgt = total / (hi-lo+1)
            g = lo; cum_t = 0.0; cum = 0.0
            load = [fixed[p] for p in range(32)]
            budget = 0.0
            i_ = 0
            for p in range(lo, hi+1):
                budget += tgt - fixed[p]
                while i_ < len(ops) and (budget >= ops[i_][0]*0.5 or p == hi):
                    gaps[p].append(ops[i_][1]); budget -= ops[i_][0]; i_ += 1
            assert i_ == len(ops)
        else:
            sm = distribute(softmax_ops(Sr, Pw, Lold, Lnew), OPT.get('smlo', 3), 29)
            for g in range(32): gaps[g] += sm[g]
        gaps[30].append(f"v_max_f32 v{T_}, v{Lnew[0]}, v{Lnew[1]}")
        gaps[31].append(f"v_cmp_lt_f32 vcc, s{S_THR}, v{T_}")
    for p in range(32):
        WM = OPT.get('wmerge', 2)
        if p % WM == 0:
            w = lg.need({(p+x, u) for x in range(WM) for u in range(2)})
            if w: A.e(w)
        F = []
        for t, txt in reads_for_pos(ph, p+LEAD, True, do_qk, nxt_pv, nxt_qk):
            F.append(txt)
            lg.issue((t[0] + (32 if p+LEAD >= 32 else 0), t[1]))
        F += gaps[p]
        M = []
        if p < 16:
            for qb in range(2):
                acc = v(O0+(p*2+qb)*4, 4)
                M.append(m16(acc, a(AV+4*(p % NRING), 4), v(Pr+4*qb, 4), "0" if first else acc))
        elif do_qk:
            n = p-16; ks, kb = n >> 1, n & 1
            for qb in range(2):
                d = v(Sw+(kb*2+qb)*4, 4)
                M.append(m16(d, a(AK+4*(n % NRING), 4), a(AQ+(qb*8+ks)*4, 4), v(NEGM+4*qb, 4) if ks == 0 else d))
        if len(M) == 2:
            def cst(t): return 2 if (t.startswith('v_exp') or t.startswith('buffer_load')) else 1
            tot = sum(cst(t) for t in F); acc_ = 0; h = 0
            for t in F:
                if acc_ + cst(t) > (tot+1)//2: break
                acc_ += cst(t); h += 1
            A.e(M[0])
            for txt in F[:h]: A.e(txt)
            A.e(M[1])
            for txt in F[h:]: A.e(txt)
        else:
            for txt in F: A.e(txt)
    if do_sm:
        A.e(f"s_cbranch_vccnz RARE_{tag}")
        A.label(f"CONT_{tag}")

def xlane(A, r, tmp, op):
    A.e(f"v_mov_b32 v{tmp}, v{r}")
    A.e("s_nop 1")
    A.e(f"v_permlane16_swap_b32 v{r}, v{tmp}")
    A.e("s_nop 1")
    A.e(f"{op} v{r}, v{r}, v{tmp}")
    A.e(f"v_mov_b32 v{tmp}, v{r}")
    A.e("s_nop 1")
    A.e(f"v_permlane32_swap_b32 v{r}, v{tmp}")
    A.e("s_nop 1")
    A.e(f"{op} v{r}, v{r}, v{tmp}")

def rare_path(A, ph, tag, do_qk=True):
    Sn, Sr = S_[ph % 2], S_[(ph+1) % 2]
    Pw = P_[(ph+1) % 2]
    Lold, Lnew = L_[ph % 2], L_[(ph+1) % 2]
    DL = [16, 17]; FF = [18, 19]; t1, t2, t3 = 20, 21, 22
    A.label(f"RARE_{tag}")
    A.e("s_nop 15")
    A.e("s_nop 15")
    for qb in range(2):
        regs = [Sr+(kb*2+qb)*4+r for kb in range(2) for r in range(4)]
        d = DL[qb]
        A.e(f"v_max3_f32 v{d}, v{regs[0]}, v{regs[1]}, v{regs[2]}")
        A.e(f"v_max3_f32 v{d}, v{d}, v{regs[3]}, v{regs[4]}")
        A.e(f"v_max3_f32 v{d}, v{d}, v{regs[5]}, v{regs[6]}")
        A.e(f"v_max_f32 v{d}, v{d}, v{regs[7]}")
        xlane(A, d, t1, "v_max_f32")
        A.e(f"v_mov_b32 v{t2}, v{Lold[qb]}")
        xlane(A, t2, t1, "v_add_f32")
        A.e(f"v_log_f32 v{t2}, v{t2}")
        A.e("s_nop 0")
        A.e(f"v_max_f32 v{d}, v{d}, v{t2}")
        if OPT['bias']:
            A.e(f"v_add_f32 v{d}, {f2u(float(OPT['bias'])):#x}, v{d}")
        A.e(f"v_max_f32 v{d}, 0, v{d}")
        A.e(f"v_sub_f32 v{FF[qb]}, 0, v{d}")
        A.e(f"v_exp_f32 v{FF[qb]}, v{FF[qb]}")
        A.e("s_nop 0")
    for db in range(16):
        for qb in range(2):
            for r in range(4):
                x = O0+(db*2+qb)*4+r
                A.e(f"v_mul_f32 v{x}, v{x}, v{FF[qb]}")
    for qb in range(2):
        A.e(f"v_mul_f32 v{Lold[qb]}, v{Lold[qb]}, v{FF[qb]}")
        for r in range(4):
            A.e(f"v_sub_f32 v{NEGM+4*qb+r}, v{NEGM+4*qb+r}, v{DL[qb]}")
        for kb in range(2):
            for r in range(4):
                if do_qk:
                    x = Sn+(kb*2+qb)*4+r
                    A.e(f"v_sub_f32 v{x}, v{x}, v{DL[qb]}")
                x = Sr+(kb*2+qb)*4+r
                A.e(f"v_sub_f32 v{x}, v{x}, v{DL[qb]}")
    for c, t in softmax_ops(Sr, Pw, Lold, Lnew):
        A.e(t)
    A.e("s_nop 1")
    A.e(f"s_branch CONT_{tag}")

class Vm:
    def __init__(self): self.q = []
    def issue(self, tag): self.q.append(tag)
    def need(self, tags):
        idx = -1
        for i, t in enumerate(self.q):
            if t in tags: idx = i
        if idx < 0: return None
        n = len(self.q) - 1 - idx
        self.q = self.q[idx+1:]
        assert n <= 63
        return f"s_waitcnt vmcnt({n})"

def gen_k1(A, dbg=None):
    name = "k1_attn_kernel"
    kernel_begin(A, name)
    ST = Stamps(A, dbg == "time", wg=9, wave_sgpr=S_W)
    A.e("s_cmp_ge_u32 s2, 256")
    A.e("s_cbranch_scc1 K1_END")
    ST.stamp()
    A.e("s_load_dwordx4 s[36:39], s[0:1], 8")
    A.e("s_load_dwordx4 s[40:43], s[0:1], 24")
    A.e("s_load_dwordx2 s[60:61], s[0:1], 96")
    A.e("v_and_b32 v1, 63, v0")
    A.e("v_lshrrev_b32 v14, 6, v0")
    A.e("s_nop 0")
    A.e(f"v_readfirstlane_b32 s{S_W}, v14")
    A.e("s_and_b32 s44, s2, 7")
    A.e("s_lshr_b32 s45, s2, 3")
    A.e("s_lshl_b32 s45, s45, 1")
    A.e(f"s_and_b32 s46, s{S_W}, 1")
    A.e("s_add_u32 s45, s45, s46")
    A.e(f"s_lshr_b32 s47, s{S_W}, 1")
    A.e("v_bfe_u32 v14, v1, 2, 1")
    A.e("v_bfe_u32 v15, v1, 3, 1")
    A.e("v_and_b32 v12, 3, v1")
    A.e("v_lshlrev_b32 v12, 4, v12")
    A.e("v_lshrrev_b32 v13, 4, v1")
    A.e("v_lshl_add_u32 v12, v13, 7, v12")
    for n in range(4):
        A.e(f"v_xor_b32 v13, {n & 1}, v14")
        A.e(f"v_lshl_add_u32 v13, v13, 6, v12")
        A.e(f"v_lshl_add_u32 v13, v15, 13, v13")
        A.e(f"v_add_u32 v{2+n}, {2*n*8192 - n*1024}, v13")
    def tr_bases(dst, swap, add, ta, tb, tc):
        A.e(f"v_lshrrev_b32 v{tb}, 5, v1")
        A.e(f"v_lshlrev_b32 v{ta}, 11, v{tb}")
        A.e(f"v_bfe_u32 v{tb}, v1, 3, 1")
        A.e(f"v_lshl_add_u32 v{ta}, v{tb}, 10, v{ta}")
        A.e(f"v_bfe_u32 v{tc}, v1, 2, 1")
        A.e(f"v_lshl_add_u32 v{ta}, v{tc}, 7, v{ta}")
        A.e(f"v_bfe_u32 v{tc}, v1, 4, 1")
        A.e(f"v_lshl_add_u32 v{ta}, v{tc}, 5, v{ta}")
        if swap:
            A.e(f"v_and_b32 v{tc}, 1, v1")
            A.e(f"v_lshl_add_u32 v{ta}, v{tc}, 4, v{ta}")
            A.e(f"v_bfe_u32 v{tc}, v1, 1, 1")
            A.e(f"v_lshl_add_u32 v{ta}, v{tc}, 3, v{ta}")
        else:
            A.e(f"v_and_b32 v{tc}, 3, v1")
            A.e(f"v_lshl_add_u32 v{ta}, v{tc}, 3, v{ta}")
        A.e(f"v_add_u32 v{ta}, {add}, v{ta}")
        A.e(f"v_lshl_add_u32 v{dst[0]}, v{tb}, 6, v{ta}")
        A.e(f"v_xor_b32 v{tb}, 1, v{tb}")
        A.e(f"v_lshl_add_u32 v{dst[1]}, v{tb}, 6, v{ta}")
    A.e("s_lshl_b32 s48, s47, 14")
    tr_bases([6, 7], True, "s48", 13, 14, 15)
    A.e("v_add_u32 v8, 0x10000, v6")
    A.e("v_add_u32 v9, 0x10000, v7")
    WQR = [[6, 7], [8, 9]]
    A.e("v_lshlrev_b32 v12, 4, v1")
    A.e("v_lshrrev_b32 v13, 5, v1")
    A.e("v_lshlrev_b32 v13, 4, v13")
    A.e(f"v_add_u32 v13, {MODL}, v13")
    A.e(f"s_lshl_b32 s49, s46, 17")
    A.e("s_lshl_b32 s50, s47, 9")
    A.e("s_add_u32 s49, s49, s50")
    A.e(f"s_lshl_b32 s48, s{S_W}, 13")
    A.e("s_waitcnt lgkmcnt(0)")
    A.e("s_lshl_b32 s50, s44, 20")
    A.e("s_add_u32 s36, s36, s50")
    A.e("s_addc_u32 s37, s37, 0")
    A.e("s_sub_u32 s52, s36, 128")
    A.e("s_subb_u32 s53, s37, 0")
    srd(A, SRD_K, "s52", "s53", 1048576+128)
    A.e("s_add_u32 s38, s38, s50")
    A.e("s_addc_u32 s39, s39, 0")
    A.e("s_sub_u32 s52, s38, 32768")
    A.e("s_subb_u32 s53, s39, 0")
    srd(A, SRD_V, "s52", "s53", 1048576+32768)
    A.e("s_lshl_b32 s50, s44, 10")
    A.e("s_add_u32 s40, s40, s50")
    A.e("s_addc_u32 s41, s41, 0")
    A.e(f"s_sub_u32 s51, {448*8192}, s50")
    srd(A, SRD_WQ, "s40", "s41", "s51")
    A.e("s_mul_i32 s50, s45, 28672")
    A.e(f"s_add_u32 s50, s50, {Y_OFF}")
    A.e("s_add_u32 s52, s60, s50")
    A.e("s_addc_u32 s53, s61, 0")
    srd(A, SRD_Y, "s52", "s53", 28672)
    srd(A, SRD_M, "s60", "s61", 3584)
    YR = 16
    TG = 64
    TU = 96
    def yreg(f): return YR + 4*(f % 12)
    vm = Vm()
    def y_load(f):
        vm.issue(('y', f))
        return [f"s_mov_b32 s50, {(f//4)*4096}",
                f"buffer_load_dwordx4 {v(yreg(f),4)}, v12, s[{SRD_Y}:{SRD_Y+3}], s50 offen offset:{(f%4)*1024}"]
    def wslot(s): return (s+2) % 4
    def wq_dma(s):
        out = []
        for grp in range(2):
            out.append(f"s_add_u32 m0, s48, {wslot(s)*32768 + grp*4096}")
            out.append(f"s_add_u32 s50, s49, {s*262144 + grp*65536}")
            for n in range(4):
                out.append(f"buffer_load_dwordx4 v{2+n}, s[{SRD_WQ}:{SRD_WQ+3}], s50 offen offset:{n*1024} lds")
                vm.issue(('wq', s))
        return out
    for f in range(4):
        for t in y_load(f): A.e(t)
    A.e(f"s_lshl_b32 s50, s{S_W}, 10")
    A.e(f"s_add_u32 m0, s50, {MODL}")
    A.e("s_nop 0")
    A.e(f"buffer_load_dwordx4 v12, s[{SRD_M}:{SRD_M+3}], s50 offen lds")
    vm.issue('mod')
    for t in wq_dma(0): A.e(t)
    for s_ in (1, 2):
        for f in (2*s_+2, 2*s_+3):
            for t in y_load(f): A.e(t)
        for t in wq_dma(s_): A.e(t)
    lg = Lgkm(A)
    def ln_ops(f):
        b = TG + 16*(f & 1)
        rd = [(('m', f, 0), f"ds_read_b128 {v(b,4)}, v13 offset:{1792+f*64}"),
              (('m', f, 1), f"ds_read_b128 {v(b+4,4)}, v13 offset:{1792+f*64+32}"),
              (('m', f, 2), f"ds_read_b128 {v(b+8,4)}, v13 offset:{f*64}"),
              (('m', f, 3), f"ds_read_b128 {v(b+12,4)}, v13 offset:{f*64+32}")]
        tu = TU + 8*(f & 1)
        va = []
        for d in range(4):
            r = yreg(f)+d
            va.append(f"v_lshlrev_b32 v{tu+2*d}, 16, v{r}")
            va.append(f"v_and_b32 v{tu+2*d+1}, 0xffff0000, v{r}")
        vb = []
        for d in range(4):
            vb.append(f"v_pk_fma_f32 {v(tu+2*d,2)}, {v(tu+2*d,2)}, {v(b+2*d,2)}, {v(b+8+2*d,2)}")
        for d in range(4):
            vb.append(f"v_cvt_pk_bf16_f32 v{yreg(f)+d}, v{tu+2*d}, v{tu+2*d+1}")
        return rd, va, vb
    w = vm.need({('y', 0), ('y', 1), 'mod', ('wq', 0)})
    A.e(w)
    A.e("s_barrier")
    ST.stamp()
    for f in (0, 1):
        rd, va, vb = ln_ops(f)
        for t, txt in rd: A.e(txt); lg.issue(t)
        for txt in va: A.e(txt)
        A.e(lg.need({('m', f, 3)}))
        for txt in vb: A.e(txt)
    QL = OPT.get('ql', 4)
    def q_reads(s, p):
        if p >= 16:
            s, p = s+1, p-16
            if s >= 14: return []
        db, ks = p >> 1, p & 1
        sl = wslot(s)
        o = []
        for u in range(2):
            off = (sl & 1)*32768 + ks*8192 + u*4096 + (db >> 1)*256
            o.append((('q', s, p, u), f"ds_read_b64_tr_b16 {a(AV+4*(p % NRING)+2*u,2)}, v{WQR[sl >> 1][db & 1]} offset:{off}"))
        return o
    for p in range(QL):
        for t, txt in q_reads(0, p):
            A.e(txt); lg.issue(t)
    def k_dma(blk):
        out = [f"s_add_u32 m0, s{S_M0K}, {(blk % 4)*KSLOT}", f"s_mov_b32 s50, {blk*16384}"]
        for n in range(4):
            out.append(f"buffer_load_dwordx4 v{VKD2[n]}, s[{SRD_K}:{SRD_K+3}], s50 offen offset:{n*KPIECE} lds")
            vm.issue(('k', blk))
        return out
    def v_dma(blk):
        out = [f"s_add_u32 m0, s{S_M0V}, {(blk % 4)*VSLOT}", f"s_mov_b32 s50, {blk*16384+32768}"]
        for n in range(4):
            out.append(f"buffer_load_dwordx4 v{VVD2[n]}, s[{SRD_V}:{SRD_V+3}], s50 offen offset:{n*1024} lds")
            vm.issue(('v', blk))
        return out
    VKD2 = [112, 113, 114, 115]
    VVD2 = [116, 117, 118, 119]
    def kv_addr_setup():
        o = []
        e = o.append
        e("v_lshrrev_b32 v120, 5, v1")
        e("v_and_b32 v121, 31, v1")
        e("v_lshlrev_b32 v122, 3, v120")
        e("v_xor_b32 v121, v121, v122")
        e("v_lshlrev_b32 v121, 4, v121")
        e("v_lshl_add_u32 v121, v120, 9, v121")
        e(f"s_lshl_b32 s51, s{S_W}, 12")
        e("s_add_u32 s54, s51, 128")
        e(f"v_add_u32 v{VKD2[0]}, s54, v121")
        for n in range(1, 4):
            e(f"v_subrev_u32 v{VKD2[n]}, {32*n}, v{VKD2[0]}")
        e("v_bfe_u32 v120, v1, 3, 1")
        e("v_lshlrev_b32 v121, 9, v120")
        e("v_lshrrev_b32 v120, 4, v1")
        e("v_lshl_add_u32 v121, v120, 7, v121")
        e("v_add_u32 v121, s51, v121")
        e("v_and_b32 v120, 7, v1")
        for n in range(4):
            e(f"v_xor_b32 v122, {2*n}, v120")
            e(f"v_lshl_add_u32 v{VVD2[n]}, v122, 4, v121")
        e(f"s_add_u32 s{S_M0V}, s51, {VBASE}")
        e(f"s_mul_i32 s{S_M0K}, s{S_W}, {4*KPIECE}")
        return o
    for t in kv_addr_setup(): A.e(t)
    for s_ in range(14):
        gaps = [[] for _ in range(16)]
        needs = set()
        if s_+1 < 14: needs |= {('wq', s_+1), ('y', 2*s_+2), ('y', 2*s_+3)}
        w = vm.need(needs) if needs else None
        if s_ < 13 or True:
            gaps[0] += ([w] if w else []) + ["s_barrier"]
        fill = []
        for f in (2*s_+8, 2*s_+9):
            if f < 28: fill += y_load(f)
        if s_+3 < 14: fill += wq_dma(s_+3)
        if s_ == 12:
            for blk in (0, 1, 2): fill += k_dma(blk)
        if s_ == 13:
            fill += k_dma(3) + v_dma(0)
        if OPT.get('q_nodma'): fill = [t for t in fill if 'buffer_load' not in t or 'K' in t]
        n = len(fill)
        for i, t in enumerate(fill):
            gaps[1 + (i*14)//max(n, 1)].append(t)
        lnseq = []
        if s_+1 < 14 and not OPT.get('q_noln'):
            r0, a0, b0 = ln_ops(2*s_+2)
            r1, a1, b1 = ln_ops(2*s_+3)
            lnseq = [('rd', r0), ('v', a0), ('rd', r1), ('need', 2*s_+2), ('v', b0), ('v', a1), ('need', 2*s_+3), ('v', b1)]
        items = []
        for kind, x in lnseq:
            if kind == 'rd':
                for t, txt in x: items.append(('rd', t, txt))
            elif kind == 'v':
                for txt in x: items.append(('v', None, txt))
            else:
                items.append(('need', x, None))
        lgaps = [[] for _ in range(16)]
        for i, it in enumerate(items):
            lgaps[1 + (i*14)//max(len(items), 1)].append(it)
        for p in range(16):
            if OPT.get('q_mw', 0):
                w2 = lg.need({('q', s_, p, 0), ('q', s_, p, 1), ('q', s_, p+1, 0), ('q', s_, p+1, 1)}) if p % 2 == 0 else None
            else:
                w2 = lg.need({('q', s_, p, 0), ('q', s_, p, 1)})
            if w2: A.e(w2)
            db, ks = p >> 1, p & 1
            acc = v(O0+16*db, 16)
            first = (s_ == 0 and ks == 0)
            A.e(mfma(acc, a(AV+4*(p % NRING), 4), v(yreg(2*s_+ks), 4), "0" if first else acc))
            for t, txt in q_reads(s_, p+QL):
                A.e(txt); lg.issue(t)
            for txt in gaps[p]: A.e(txt)
            for kind, t, txt in lgaps[p]:
                if kind == 'rd':
                    A.e(txt); lg.issue(t)
                elif kind == 'v':
                    A.e(txt)
                else:
                    w3 = lg.need({('m', t, 3)})
                    if w3: A.e(w3)
    ST.stamp()
    A.e("s_barrier")
    for n in range(4): A.e(f"v_mov_b32 v{VKD[n]}, v{VKD2[n]}")
    for n in range(4): A.e(f"v_mov_b32 v{VVD[n]}, v{VVD2[n]}")
    A.e("v_bfe_u32 v16, v1, 1, 3")
    A.e(f"v_mul_u32_u24 v16, {KPIECE}, v16")
    A.e("v_and_b32 v17, 1, v1")
    A.e("v_lshl_add_u32 v16, v17, 9, v16")
    A.e("v_lshrrev_b32 v18, 4, v1")
    A.e("v_lshl_add_u32 v16, v18, 4, v16")
    A.e("v_lshlrev_b32 v17, 7, v17")
    A.e(f"v_add_u32 v{VKR[0]}, v16, v17")
    A.e(f"v_sub_u32 v{VKR[1]}, v16, v17")
    A.e("v_bfe_u32 v17, v1, 3, 1")
    A.e("v_lshl_add_u32 v19, v18, 1, v17")
    A.e("v_lshlrev_b32 v16, 10, v19")
    A.e("v_bfe_u32 v17, v1, 2, 1")
    A.e("v_lshl_add_u32 v16, v17, 7, v16")
    A.e("v_and_b32 v17, 3, v1")
    A.e("v_lshl_add_u32 v16, v17, 3, v16")
    A.e(f"v_add_u32 v16, {VBASE}, v16")
    A.e("v_and_b32 v19, 3, v19")
    for sx in range(4):
        A.e(f"v_xor_b32 v17, {sx}, v19")
        A.e(f"v_lshl_add_u32 v{VVR[sx]}, v17, 5, v16")
    A.e(f"s_add_u32 s50, s{S_W}, 1")
    A.e("s_lshl_b32 s50, s50, 14")
    A.e(f"s_add_u32 s50, s50, {VBASE}")
    A.e(f"s_cmp_eq_u32 s{S_W}, 3")
    A.e(f"s_cselect_b32 s50, {SPARE}, s50")
    A.e("v_and_b32 v16, 31, v1")
    A.e("v_lshlrev_b32 v17, 9, v16")
    A.e("v_and_b32 v16, 15, v1")
    A.e("v_lshrrev_b32 v18, 5, v1")
    A.e("v_xor_b32 v18, v18, v16")
    A.e("v_lshl_add_u32 v17, v18, 4, v17")
    A.e("v_add_u32 v20, s50, v17")
    A.e("v_lshlrev_b32 v17, 9, v16")
    A.e("v_lshrrev_b32 v18, 4, v1")
    A.e("v_xor_b32 v18, v18, v16")
    A.e("v_lshl_add_u32 v17, v18, 4, v17")
    A.e("v_add_u32 v21, s50, v17")
    for fr in range(16):
        base = O0 + 8*fr
        dst = 24 + 4*(fr & 3)
        for r in range(4):
            A.e(f"v_cvt_pk_bf16_f32 v{dst+r}, v{base+2*r}, v{base+2*r+1}")
        A.e(f"v_xor_b32 v{40+(fr & 3)}, {32*fr}, v20")
        A.e(f"ds_write_b128 v{40+(fr & 3)}, {v(dst,4)}")
    A.e("s_waitcnt lgkmcnt(0)")
    for ks in range(8):
        A.e(f"v_xor_b32 v{40+(ks & 3)}, {64*ks}, v21")
        for qb in range(2):
            A.e(f"ds_read_b128 {a(AQ+(qb*8+ks)*4,4)}, v{40+(ks & 3)} offset:{qb*8192}")
    A.e("s_waitcnt lgkmcnt(0)")
    A.e(vm.need({('k', 0), ('k', 1)}))
    A.e("s_barrier")
    VKD2[:] = VKD; VVD2[:] = VVD
    for t in v_dma(1): A.e(t)
    lg = Lgkm(A)
    seq = [(b, n) for b in range(2) for n in range(16)]
    KL = 4
    for i in range(KL):
        b, n = seq[i]
        A.e(kread(b, n & 1, n >> 1, i % NRING)); lg.issue(i)
    zero = [f"v_mov_b32 v{O0+r}, 0" for r in range(128)]
    for i, (b, n) in enumerate(seq):
        w = lg.need({i})
        if w: A.e(w)
        ks, kb = n >> 1, n & 1
        for qb in range(2):
            d = v(S_[b]+(kb*2+qb)*4, 4)
            A.e(m16(d, a(AK+4*(i % NRING), 4), a(AQ+(qb*8+ks)*4, 4), "0" if ks == 0 else d))
        if i+KL < 32:
            b2, n2 = seq[i+KL]
            A.e(kread(b2, n2 & 1, n2 >> 1, (i+KL) % NRING)); lg.issue(i+KL)
    A.e("s_barrier")
    for t in v_dma(2): A.e(t)
    for t in k_dma(4): A.e(t)
    A.e(f"s_mov_b32 s{S_KOFF}, {5*16384}")
    A.e(f"s_mov_b32 s{S_THR}, {f2u(2.0**(OPT.get('thr', THR_LOG2)-OPT['bias'])):#x}")
    A.e("s_nop 7")
    for qb in range(2):
        regs = [S_[b]+(kb*2+qb)*4+r for b in range(2) for kb in range(2) for r in range(4)]
        d = 16+qb
        A.e(f"v_max3_f32 v{d}, v{regs[0]}, v{regs[1]}, v{regs[2]}")
        for j in range(3, 15, 2):
            A.e(f"v_max3_f32 v{d}, v{d}, v{regs[j]}, v{regs[j+1]}")
        A.e(f"v_max_f32 v{d}, v{d}, v{regs[15]}")
        xlane(A, d, 18, "v_max_f32")
        if OPT['bias']:
            A.e(f"v_add_f32 v{d}, {f2u(float(OPT['bias'])):#x}, v{d}")
        for r in range(4):
            A.e(f"v_sub_f32 v{NEGM+4*qb+r}, 0, v{d}")
        for x in regs:
            A.e(f"v_sub_f32 v{x}, v{x}, v{d}")
        A.e(f"v_mov_b32 v{L_[1][qb]}, 0")
    for c, t in softmax_ops(S_[0], P_[0], L_[1], L_[0]):
        A.e(t)
    A.e("s_waitcnt vmcnt(8)")
    A.e("s_barrier")
    ST.stamp()
    if dbg == "time": A.e("s_waitcnt lgkmcnt(0)")
    for p in range(LEAD):
        for t, txt in reads_for_pos(0, p, True, True, True, True):
            A.e(txt)
    if OPT.get('pfkv', 1):
        A.e(f"s_cmp_lt_u32 s{S_W}, 2")
        A.e("s_cselect_b32 s96, s36, s38")
        A.e("s_cselect_b32 s97, s37, s39")
        A.e("s_and_b32 s97, s97, 0xffff")
        A.e("s_mov_b32 s98, 1048576")
        A.e("s_mov_b32 s99, 0x00020000")
        A.e("v_and_b32 v19, 7, v1")
        A.e("v_lshlrev_b32 v19, 7, v19")
        A.e("s_lshr_b32 s50, s2, 3")
        A.e("s_lshl_b32 s50, s50, 11")
        A.e("s_lshl_b32 s51, s46, 10")
        A.e("s_add_u32 s50, s50, s51")
        A.e("v_add_u32 v19, s50, v19")
    if OPT.get('pfmall', 1):
        A.e("s_load_dwordx4 s[52:55], s[0:1], 48")
        A.e("s_waitcnt lgkmcnt(0)")
        A.e("s_cmp_lt_u32 s46, 1")
        A.e("s_cselect_b32 s56, s52, s54")
        A.e("s_cselect_b32 s57, s53, s55")
        A.e("s_and_b32 s57, s57, 0xffff")
        A.e(f"s_mov_b32 s58, {448*3584}")
        A.e("s_mov_b32 s59, 0x00020000")
        A.e("s_mul_i32 s50, s2, 6272")
        A.e("v_lshlrev_b32 v20, 7, v1")
        A.e("v_min_u32 v20, 6144, v20")
        A.e(f"s_cmp_lt_u32 s{S_W}, 2")
        A.e("s_cbranch_scc0 K1_NOMALL")
        A.e("buffer_load_dword v21, v20, s[56:59], s50 offen")
        A.label("K1_NOMALL")
    iteration(A, 0, "F0", first=True)
    for ph in range(1, 4):
        iteration(A, ph, f"F{ph}")
    A.e(f"s_mov_b32 s{S_CNT}, 14")
    A.raw(".p2align 6")
    A.label("K1_LOOP")
    if OPT.get('pfkv', 1):
        A.e(f"s_add_u32 s50, s{S_KOFF}, {7*16384}")
        A.e("buffer_load_dword v22, v19, s[96:99], s50 offen")
    if OPT.get('pfwo', 1):
        A.e(f"s_cmp_lg_u32 s{S_CNT}, 4")
        A.e("s_cbranch_scc1 K1_NOPF")
        A.e(f"s_mul_i32 s50, s44, {512*896}")
        A.e("s_add_u32 s56, s42, s50")
        A.e("s_addc_u32 s57, s43, 0")
        A.e("s_and_b32 s57, s57, 0xffff")
        A.e(f"s_mov_b32 s58, {512*896}")
        A.e("s_mov_b32 s59, 0x00020000")
        A.e("s_lshr_b32 s50, s2, 3")
        A.e("s_mul_i32 s50, s50, 14336")
        A.e("v_lshlrev_b32 v26, 7, v0")
        A.e("v_min_u32 v26, 14208, v26")
        A.e("buffer_load_dword v27, v26, s[56:59], s50 offen")
        A.label("K1_NOPF")
    if OPT.get('pfw1', 0):
        A.e(f"s_cmp_lg_u32 s{S_CNT}, 2")
        A.e("s_cbranch_scc1 K1_NOPF1")
        A.e("s_load_dwordx2 s[56:57], s[0:1], 48")
        A.e("s_waitcnt lgkmcnt(0)")
        A.e("s_and_b32 s57, s57, 0xffff")
        A.e(f"s_mov_b32 s58, {448*3584}")
        A.e("s_mov_b32 s59, 0x00020000")
        A.e("s_lshr_b32 s50, s2, 3")
        A.e("s_mul_i32 s50, s50, 50176")
        A.e("v_lshlrev_b32 v14, 7, v0")
        A.e("buffer_load_dword v15, v14, s[56:59], s50 offen")
        A.e("v_add_u32 v14, 32768, v14")
        A.e("v_min_u32 v14, 50048, v14")
        A.e("buffer_load_dword v16, v14, s[56:59], s50 offen")
        A.label("K1_NOPF1")
    for ph in range(4):
        iteration(A, ph, f"M{ph}")
    A.e(f"s_sub_u32 s{S_CNT}, s{S_CNT}, 1")
    A.e(f"s_cmp_lg_u32 s{S_CNT}, 0")
    A.e("s_cbranch_scc1 K1_LOOP")
    if dbg == "time":
        ST.stamp()
    A.e(f"s_mul_i32 s50, s44, {512*896}")
    A.e("s_add_u32 s42, s42, s50")
    A.e("s_addc_u32 s43, s43, 0")
    srd(A, SRD_WO, "s42", "s43", 512*896)
    GOFF = 34
    for n in range(7):
        A.e(f"s_mul_i32 s50, s{S_W}, 7")
        A.e(f"s_add_u32 s50, s50, {n}")
        A.e("s_cmp_ge_u32 s50, 14")
        A.e("s_cselect_b32 s51, 14, 0")
        A.e(f"s_cselect_b32 s52, {16*896}, 0")
        A.e("s_sub_u32 s50, s50, s51")
        A.e("s_and_b32 s51, s50, 1")
        A.e(f"s_mul_i32 s51, s51, {8*896}")
        A.e("s_lshr_b32 s50, s50, 1")
        A.e("s_lshl_b32 s50, s50, 7")
        A.e("s_add_u32 s50, s50, s51")
        A.e(f"s_add_u32 s{GOFF+n}, s50, s52")
    A.e(f"s_mul_i32 s41, s{S_W}, 7168")
    A.e("v_lshrrev_b32 v16, 3, v1")
    A.e("v_mul_u32_u24 v23, 896, v16")
    A.e("v_bfe_u32 v16, v1, 4, 1")
    A.e("v_bfe_u32 v17, v1, 2, 1")
    A.e("v_xor_b32 v16, v16, v17")
    A.e("v_lshl_add_u32 v23, v16, 6, v23")
    A.e("v_and_b32 v16, 3, v1")
    A.e("v_lshl_add_u32 v23, v16, 4, v23")
    vme = Vm()
    def wo_dma(t):
        out = []
        for n in range(7):
            out.append(f"s_add_u32 m0, s41, {WSLOT[t % 5] + n*1024}")
            out.append(f"s_add_u32 s50, s{GOFF+n}, {t*32*896}")
            out.append(f"buffer_load_dwordx4 v23, s[{SRD_WO}:{SRD_WO+3}], s50 offen lds")
            vme.issue(('wo', t))
        return out
    def spread(lst, lo, hi):
        d = {}
        trip = [lst[i:i+3] for i in range(0, len(lst), 3)]
        for i, tr3 in enumerate(trip):
            g = lo + (i*(hi-lo+1))//len(trip)
            d.setdefault(g, []).extend(tr3)
        return d
    iteration(A, 0, "T0", dma_k=False, dma_v=True, vmwait=8)
    iteration(A, 1, "T1", dma_k=False, dma_v=False, vmwait=4, nxt_qk=False)
    iteration(A, 2, "T2", do_qk=False, dma_k=False, dma_v=False, vmwait=0, nxt_qk=False,
              extra=spread(wo_dma(0) + wo_dma(1)[:12], 1, 30))
    vme.q = [('wo', 0)]*7 + [('wo', 1)]*4
    rest1 = []
    for n in range(4, 7):
        rest1 += [f"s_add_u32 m0, s41, {WSLOT[1] + n*1024}", f"s_add_u32 s50, s{GOFF+n}, {32*896}",
                  f"buffer_load_dwordx4 v23, s[{SRD_WO}:{SRD_WO+3}], s50 offen lds"]
        vme.issue(('wo', 1))
    iteration(A, 3, "T3", do_qk=False, do_sm=False, dma_k=False, dma_v=False, nxt_pv=False, nxt_qk=False, barrier=False,
              extra=spread(rest1 + wo_dma(2), 1, 30))
    ST.stamp()
    Lf = L_[1]
    OP = 64
    INV = [16, 17]
    for qb in range(2):
        A.e(f"v_mov_b32 v{INV[qb]}, v{Lf[qb]}")
        xlane(A, INV[qb], 18, "v_add_f32")
        A.e(f"v_rcp_f32 v{INV[qb]}, v{INV[qb]}")
    A.e("s_lshl_b32 s50, s46, 1")
    A.e("s_add_u32 s50, s50, s47")
    A.e("s_lshl_b32 s50, s50, 14")
    A.e(f"s_add_u32 s50, s50, {VBASE}")
    A.e("v_lshlrev_b32 v12, 4, v1")
    A.e("v_and_b32 v18, 15, v1")
    A.e("v_lshlrev_b32 v19, 9, v18")
    A.e("v_lshrrev_b32 v20, 5, v1")
    A.e("v_xor_b32 v20, v20, v18")
    A.e("v_lshl_add_u32 v19, v20, 4, v19")
    A.e("v_bfe_u32 v20, v1, 4, 1")
    A.e("v_lshl_add_u32 v19, v20, 3, v19")
    A.e("v_add_u32 v19, s50, v19")
    A.e("s_barrier")
    for db in range(16):
        A.e(f"v_xor_b32 v{24+(db & 3)}, {32*db}, v19")
        for qb in range(2):
            base = O0+(db*2+qb)*4
            for r in range(4):
                A.e(f"v_mul_f32 v{base+r}, v{base+r}, v{INV[qb]}")
            dst = 32 + 4*(db & 3) + 2*qb
            A.e(f"v_cvt_pk_bf16_f32 v{dst}, v{base}, v{base+1}")
            A.e(f"v_cvt_pk_bf16_f32 v{dst+1}, v{base+2}, v{base+3}")
            A.e(f"ds_write_b64 v{24+(db & 3)}, {v(dst,2)} offset:{qb*8192}")
    A.e("s_waitcnt lgkmcnt(0)")
    A.e("s_barrier")
    A.e("s_lshl_b32 s50, s46, 15")
    A.e(f"s_add_u32 s50, s50, {VBASE}")
    A.e("v_and_b32 v18, 31, v1")
    A.e("v_lshlrev_b32 v19, 9, v18")
    A.e("v_and_b32 v18, 15, v1")
    A.e("v_lshrrev_b32 v20, 5, v1")
    A.e("v_xor_b32 v20, v20, v18")
    A.e("v_lshl_add_u32 v19, v20, 4, v19")
    A.e("v_add_u32 v19, s50, v19")
    for ks in range(16):
        A.e(f"v_xor_b32 v{24+(ks & 3)}, {32*ks}, v19")
        for hd in range(2):
            A.e(f"ds_read_b128 {a(4*(16*hd+ks),4)}, v{24+(ks & 3)} offset:{hd*16384}")
    A.e("v_lshrrev_b32 v16, 5, v1")
    A.e("v_lshlrev_b32 v17, 10, v16")
    A.e("v_bfe_u32 v16, v1, 2, 2")
    A.e("v_lshl_add_u32 v17, v16, 7, v17")
    A.e("v_bfe_u32 v16, v1, 4, 1")
    A.e("v_lshl_add_u32 v17, v16, 5, v17")
    A.e("v_and_b32 v16, 3, v1")
    A.e("v_lshl_add_u32 v17, v16, 3, v17")
    A.e("v_bfe_u32 v16, v1, 3, 1")
    A.e("v_xor_b32 v18, s47, v16")
    A.e("v_lshl_add_u32 v2, v18, 6, v17")
    A.e("v_xor_b32 v18, 1, v18")
    A.e("v_lshl_add_u32 v3, v18, 6, v17")
    A.e(f"s_mul_i32 s50, s47, {3*2048}")
    A.e(f"s_mul_i32 s51, s47, {4*2048}")
    A.e("v_add_u32 v2, s50, v2")
    A.e("v_add_u32 v3, s51, v3")
    A.e(f"v_add_u32 v4, {WSLOT[2]}, v2")
    A.e(f"v_add_u32 v5, {WSLOT[2]}, v3")
    A.e(f"v_add_u32 v6, {WSLOT[3]}, v2")
    A.e(f"v_add_u32 v7, {WSLOT[3]}, v3")
    A.e("s_waitcnt lgkmcnt(0)")
    A.e("s_barrier")
    for t in wo_dma(3) + wo_dma(4): A.e(t)
    def wbase(slot, c):
        e = c & 1
        if slot in (0, 1): return (2+e, WSLOT[slot])
        if slot == 2: return (4+e, 0)
        return (6+e, WSLOT[slot]-WSLOT[3])
    ARG = AV
    ARG = 128
    def o_reads(t, p):
        if p >= 14:
            t, p = t+1, p-14
            if t >= 16: return []
        ksl, c = p // 7, p % 7
        b, off = wbase(t % 5, c)
        o = []
        for u in range(2):
            o.append((('o', t, p, u), f"ds_read_b64_tr_b16 {a(ARG+4*((14*t+p) % NRING)+2*u,2)}, v{b} offset:{off + ksl*14336 + (c >> 1)*2048 + u*512}"))
        return o
    lg = Lgkm(A)
    OL = 4
    A.e(vme.need({('wo', 0)}))
    A.e("s_barrier")
    for p in range(OL):
        for t_, txt in o_reads(0, p): A.e(txt); lg.issue(t_)
    ACC = O0
    for t in range(16):
        gaps = [[] for _ in range(14)]
        if t+1 < 16:
            w = vme.need({('wo', t+1)})
            gaps[0] += ([w] if w else []) + ["s_barrier"]
        if t >= 1 and t+4 < 16:
            d = wo_dma(t+4)
            sp = spread(d, 1, 12)
            for g_, l_ in sp.items(): gaps[g_] += l_
        for p in range(14):
            w2 = lg.need({('o', t, p, 0), ('o', t, p, 1)})
            if w2: A.e(w2)
            ksl, c = p // 7, p % 7
            acc = v(ACC+16*c, 16)
            first = (t == 0 and ksl == 0)
            A.e(mfma(acc, a(ARG+4*((14*t+p) % NRING), 4), a(4*(2*t+ksl), 4), "0" if first else acc))
            for t_, txt in o_reads(t, p+OL): A.e(txt); lg.issue(t_)
            for txt in gaps[p]: A.e(txt)
    ST.stamp()
    A.e("s_lshl_b32 s50, s44, 6")
    A.e("s_add_u32 s50, s50, s45")
    A.e("s_mul_i32 s50, s50, 28672")
    A.e(f"s_mul_i32 s51, s47, {14*1024}")
    A.e("s_add_u32 s50, s50, s51")
    A.e(f"s_add_u32 s50, s50, {PART_OFF}")
    A.e("s_add_u32 s52, s60, s50")
    A.e("s_addc_u32 s53, s61, 0")
    srd(A, SRD_Y, "s52", "s53", 14*1024)
    A.e("s_nop 7")
    for fr in range(14):
        dst = OP + 4*(fr % 16)
        for r in range(4):
            A.e(f"v_cvt_pk_bf16_f32 v{dst+r}, v{ACC+8*fr+2*r}, v{ACC+8*fr+2*r+1}")
        if fr % 4 == 0:
            A.e(f"s_mov_b32 s50, {fr*1024}")
        A.e(f"buffer_store_dwordx4 {v(dst,4)}, v12, s[{SRD_Y}:{SRD_Y+3}], s50 offen offset:{(fr%4)*1024} {OPT.get('pstore', '')}")
    ST.finish("K1_END")
    A.label("K1_END")
    A.e("s_endpgm")
    if not OPT['no_sm']:
        for ph in range(4):
            rare_path(A, ph, f"M{ph}")
        for ph in range(4):
            rare_path(A, ph, f"F{ph}")
        rare_path(A, 0, "T0")
        rare_path(A, 1, "T1")
        rare_path(A, 2, "T2", do_qk=False)
    return name
```

```python
import sys
from asmlib import *
from layout import *
import k0, k1, k24, k1b, k2r, k1c, k3m, k1d
M16 = True
FUSE3 = False
MERGE = False

HEADER = open('adaLN_cond__gqa_block_cached__dense_activation_relu__prompt.s.ref').read().split("; Override launch")[0]

def build(dbg=None):
    launches = []; descs = []
    body = Asm()
    k24.NEW = True
    if MERGE:
        k2r.XDIRECT = True
        n = k1c.gen_k1(body, dbg); launches.append((n, 256, 256, k1b.K1_LDS)); descs.append(descriptor(n, 512, 100, 256))
    else:
        n = k0.gen_k0(body); launches.append((n, k0.K0_GRID, 448, 8192)); descs.append(descriptor(n, 112, 100, 112))
        n = (k1d if M16 else k1b).gen_k1(body, dbg); launches.append((n, 256, 256, k1b.K1_LDS)); descs.append(descriptor(n, 512, 100, 256))
    if FUSE3:
        n, lds = k3m.gen_k3m(body); launches.append((n, 256, 256, lds)); descs.append(descriptor(n, 512, 100, 256))
    else:
        n, lds = k2r.gen_k2r(body); launches.append((n, 256, 448, lds)); descs.append(descriptor(n, 96, 64, 96))
        n, lds = k24.gen_k3n(body); launches.append((n, 224, 256, lds)); descs.append(descriptor(n, 256, 100, 256))
    n, lds = k24.gen_gemm64(body, 'k4'); launches.append((n, 224, 256, lds)); descs.append(descriptor(n, 256, 100, 256))
    out = HEADER
    for n, g, b, lds in launches:
        out += f"; @launch kernel={n} grid=({g},1,1) block=({b},1,1) lds={lds}\n"
    out += '.amdgcn_target "amdgcn-amd-amdhsa--gfx950"\n.text\n'
    out += body.text()
    out += 'CODE_END:\n    s_endpgm\n'
    out += '.section .rodata,"a"\n.p2align 6\n'
    out += "\n.p2align 6\n".join(descs)
    return out

if __name__ == "__main__":
    dbg = sys.argv[2] if len(sys.argv) > 2 and sys.argv[2] != "none" else None
    k1.OPT['bias'] = 91
    k1.OPT['thr'] = 151
    k1.OPT['order'] = 'grp'
    k1.OPT['wmerge'] = 4; k1d.LEAD = 7; k1.OPT['kdma'] = [1,2,6,10,14]; k1.OPT['vdma'] = [17,18,22,26,30]
    k1.OPT['pstore'] = 'sc1'
    k0.YSTORE = 'sc1'
    k0.PFW = True; k0.K0_GRID = 368
    k1.OPT['pfkv'] = 0; k1.OPT['pfmall'] = 0
    for kv in sys.argv[3:]:
        k_, v_ = kv.split("=")
        if k_ == 'nopf':
            k0.PFW = False; k0.K0_GRID = 298; k2r.PF = False; k24.PFW2 = False; k1.OPT['pfwo'] = 0
            continue
        if k_ == 'fuse3':
            FUSE3 = True
            continue
        if k_ == 'kdbg':
            k0.KDBG = int(v_)
            continue
        if k_ == 'ystore':
            k0.YSTORE = v_
            continue
        if k_ == 'lead':
            k1.LEAD = int(v_); k1b.LEAD = int(v_); k1d.LEAD = int(v_)
            continue
        if k_ == 'm16':
            M16 = bool(int(v_))
            continue
        if k_ == 'merge':
            MERGE = True
            continue
        if k_ == 'pfcode':
            k0.PFCODE = bool(int(v_))
            continue
        if k_ == 'k3pre':
            k24.K3_PRE = int(v_)
            continue
        if k_ == 'gd': k24.GD = int(v_); continue
        if k_ == 'dbg24': k24.DBG = True; k3m.DBG = True; continue
        if k_ == 'pf': k0.PREFETCH = True; k0.K0_GRID = 138; continue
        k1.OPT[k_] = eval(v_)
    open(sys.argv[1], "w").write(build(dbg))
```

```python
from asmlib import *
from layout import *
import k1
from k1 import (Lgkm, mfma, f2u, AQ, NRING, AK, AV, SRD_K, SRD_V, SRD_WQ, SRD_Y, SRD_M,
                S_W, S_KOFF, S_M0K, S_M0V, S_CNT, S_THR, THR_LOG2, OPT, distribute)

K1_LDS = 163840
SRD_WO = 16
KPIECE = 1056
KSLOT = 16*KPIECE
VBASE = 4*KSLOT
VSLOT = 16384
MODL = VBASE + 4*VSLOT
SPARE = MODL + 4096
WSLOT = [0, 28672, MODL, VBASE, VBASE+28672]
O0 = 128
S_ = [96, 112]
NEGM = 80
P_ = [64, 72]
T_ = 56
L_ = [[60, 61], [62, 63]]
VKR = [2, 3]
VVR = [4, 5, 6, 7]
VKD = [8, 9, 10, 11]
VVD = [12, 13, 14, 15]
LEAD = 6

def m16(d, A_, B_, C_):
    return f"v_mfma_f32_16x16x32_bf16 {d}, {A_}, {B_}, {C_}"

def vread(slot, db, u, ring):
    return f"ds_read_b64_tr_b16 {a(AV+4*ring+2*u,2)}, v{VVR[db & 3]} offset:{slot*VSLOT + u*8192 + (db >> 2)*256}"

def kread(slot, kb, ks, ring):
    return f"ds_read_b128 {a(AK+4*ring,4)}, v{VKR[(ks >> 1) & 1]} offset:{slot*KSLOT + kb*8448 + ks*64}"

def softmax_ops(Sr, Pw, Lold, Lnew):
    ops = []
    def info(j):
        kb, qb, hf = j >> 2, (j >> 1) & 1, j & 1
        return (kb*2+qb)*4 + 2*hf, qb*4 + 2*kb + hf, qb, (kb == 0 and hf == 0)
    def pairtail(j):
        t0, t1 = T_ + 2*(j & 1), T_ + 2*(j & 1) + 1
        si, pi, qb, first = info(j)
        src = Lold[qb] if first else Lnew[qb]
        return [(1, f"v_add_f32 v{Lnew[qb]}, v{src}, v{t0}"),
                (1, f"v_add_f32 v{Lnew[qb]}, v{Lnew[qb]}, v{t1}"),
                (1, f"v_cvt_pk_bf16_f32 v{Pw+pi}, v{t0}, v{t1}")]
    for j in range(8):
        t0, t1 = T_ + 2*(j & 1), T_ + 2*(j & 1) + 1
        si = info(j)[0]
        ops.append((2, f"v_exp_f32 v{t0}, v{Sr+si}"))
        ops.append((2, f"v_exp_f32 v{t1}, v{Sr+si+1}"))
        if j > 0: ops += pairtail(j-1)
    ops += pairtail(7)
    return ops

def reads_for_pos(ph, p, do_pv, do_qk, nxt_pv, nxt_qk):
    if p >= 32:
        ph2, p2, pv, qk = (ph+1) % 4, p-32, nxt_pv, nxt_qk
    else:
        ph2, p2, pv, qk = ph, p, do_pv, do_qk
    if p2 < 16:
        if not pv: return []
        return [((p2, u), vread(ph2, p2, u, p2 % NRING)) for u in range(2)]
    if not qk: return []
    n = p2-16
    return [((p2, 0), kread((ph2+2) % 4, n & 1, n >> 1, n % NRING))]

def iteration(A, ph, tag, do_qk=True, do_sm=True, dma_k=True, dma_v=True,
              nxt_pv=True, nxt_qk=True, vmwait=8, barrier=True, extra=None, first=False):
    Sw, Sr = S_[ph % 2], S_[(ph+1) % 2]
    Pr, Pw = P_[ph % 2], P_[(ph+1) % 2]
    Lold, Lnew = L_[ph % 2], L_[(ph+1) % 2]
    pend = []
    for p in range(LEAD):
        pend += [t for t, _ in reads_for_pos(ph, p, True, do_qk, True, True)]
    lg = Lgkm(A, pend)
    gaps = [[] for _ in range(32)]
    if barrier:
        gaps[0] += [f"s_waitcnt vmcnt({vmwait})", "s_barrier"]
    if dma_k:
        kp = OPT.get('kdma', [10, 11, 13, 15, 17])
        gaps[kp[0]].append(f"s_add_u32 m0, s{S_M0K}, {((ph+1) % 4)*KSLOT}")
        for n in range(4):
            gaps[kp[1+n]].append(f"buffer_load_dwordx4 v{VKD[n]}, s[{SRD_K}:{SRD_K+3}], s{S_KOFF} offen offset:{n*KPIECE} lds")
    if dma_v:
        vp = OPT.get('vdma', [18, 19, 21, 23, 25])
        gaps[vp[0]].append(f"s_add_u32 m0, s{S_M0V}, {((ph+3) % 4)*VSLOT}")
        for n in range(4):
            gaps[vp[1+n]].append(f"buffer_load_dwordx4 v{VVD[n]}, s[{SRD_V}:{SRD_V+3}], s{S_KOFF} offen offset:{n*1024} lds")
    gaps[31].append(f"s_add_u32 s{S_KOFF}, s{S_KOFF}, 16384")
    if extra:
        for g_, l_ in extra.items(): gaps[g_] += l_
    def cst(t):
        if t.startswith('v_exp'): return 2
        if t.startswith('buffer_load'): return OPT.get('dmacost', 3)
        return 1
    if do_sm:
        if OPT.get('level', 1):
            WM_ = OPT.get('wmerge', 2)
            fixed = []
            for p in range(32):
                f_ = len(reads_for_pos(ph, p+LEAD, True, do_qk, nxt_pv, nxt_qk)) + sum(cst(t) for t in gaps[p])
                if (p+1) % WM_ == 0: f_ += 1
                fixed.append(f_)
            ops = softmax_ops(Sr, Pw, Lold, Lnew)
            lo, hi = OPT.get('smlo', 3), 29
            total = sum(c for c, _ in ops) + sum(fixed[lo:hi+1])
            tgt = total / (hi-lo+1)
            g = lo; cum_t = 0.0; cum = 0.0
            load = [fixed[p] for p in range(32)]
            budget = 0.0
            i_ = 0
            for p in range(lo, hi+1):
                budget += tgt - fixed[p]
                while i_ < len(ops) and (budget >= ops[i_][0]*0.5 or p == hi):
                    gaps[p].append(ops[i_][1]); budget -= ops[i_][0]; i_ += 1
            assert i_ == len(ops)
        else:
            sm = distribute(softmax_ops(Sr, Pw, Lold, Lnew), OPT.get('smlo', 3), 29)
            for g in range(32): gaps[g] += sm[g]
        gaps[30].append(f"v_max_f32 v{T_}, v{Lnew[0]}, v{Lnew[1]}")
        gaps[31].append(f"v_cmp_lt_f32 vcc, s{S_THR}, v{T_}")
    for p in range(32):
        WM = OPT.get('wmerge', 2)
        if p % WM == 0:
            w = lg.need({(p+x, u) for x in range(WM) for u in range(2)})
            if w: A.e(w)
        F = []
        for t, txt in reads_for_pos(ph, p+LEAD, True, do_qk, nxt_pv, nxt_qk):
            F.append(txt)
            lg.issue((t[0] + (32 if p+LEAD >= 32 else 0), t[1]))
        F += gaps[p]
        M = []
        if p < 16:
            for qb in range(2):
                acc = v(O0+(p*2+qb)*4, 4)
                M.append(m16(acc, a(AV+4*(p % NRING), 4), v(Pr+4*qb, 4), "0" if first else acc))
        elif do_qk:
            n = p-16; ks, kb = n >> 1, n & 1
            for qb in range(2):
                d = v(Sw+(kb*2+qb)*4, 4)
                M.append(m16(d, a(AK+4*(n % NRING), 4), a(AQ+(qb*8+ks)*4, 4), v(NEGM+4*qb, 4) if ks == 0 else d))
        if len(M) == 2:
            def cst(t): return 2 if (t.startswith('v_exp') or t.startswith('buffer_load')) else 1
            tot = sum(cst(t) for t in F); acc_ = 0; h = 0
            for t in F:
                if acc_ + cst(t) > (tot+1)//2: break
                acc_ += cst(t); h += 1
            A.e(M[0])
            for txt in F[:h]: A.e(txt)
            A.e(M[1])
            for txt in F[h:]: A.e(txt)
        else:
            for txt in F: A.e(txt)
    if do_sm:
        A.e(f"s_cbranch_vccnz RARE_{tag}")
        A.label(f"CONT_{tag}")

def xlane(A, r, tmp, op):
    A.e(f"v_mov_b32 v{tmp}, v{r}")
    A.e("s_nop 1")
    A.e(f"v_permlane16_swap_b32 v{r}, v{tmp}")
    A.e("s_nop 1")
    A.e(f"{op} v{r}, v{r}, v{tmp}")
    A.e(f"v_mov_b32 v{tmp}, v{r}")
    A.e("s_nop 1")
    A.e(f"v_permlane32_swap_b32 v{r}, v{tmp}")
    A.e("s_nop 1")
    A.e(f"{op} v{r}, v{r}, v{tmp}")

def rare_path(A, ph, tag, do_qk=True):
    Sn, Sr = S_[ph % 2], S_[(ph+1) % 2]
    Pw = P_[(ph+1) % 2]
    Lold, Lnew = L_[ph % 2], L_[(ph+1) % 2]
    DL = [16, 17]; FF = [18, 19]; t1, t2, t3 = 20, 21, 22
    A.label(f"RARE_{tag}")
    A.e("s_nop 15")
    A.e("s_nop 15")
    for qb in range(2):
        regs = [Sr+(kb*2+qb)*4+r for kb in range(2) for r in range(4)]
        d = DL[qb]
        A.e(f"v_max3_f32 v{d}, v{regs[0]}, v{regs[1]}, v{regs[2]}")
        A.e(f"v_max3_f32 v{d}, v{d}, v{regs[3]}, v{regs[4]}")
        A.e(f"v_max3_f32 v{d}, v{d}, v{regs[5]}, v{regs[6]}")
        A.e(f"v_max_f32 v{d}, v{d}, v{regs[7]}")
        xlane(A, d, t1, "v_max_f32")
        A.e(f"v_mov_b32 v{t2}, v{Lold[qb]}")
        xlane(A, t2, t1, "v_add_f32")
        A.e(f"v_log_f32 v{t2}, v{t2}")
        A.e("s_nop 0")
        A.e(f"v_max_f32 v{d}, v{d}, v{t2}")
        if OPT['bias']:
            A.e(f"v_add_f32 v{d}, {f2u(float(OPT['bias'])):#x}, v{d}")
        A.e(f"v_max_f32 v{d}, 0, v{d}")
        A.e(f"v_sub_f32 v{FF[qb]}, 0, v{d}")
        A.e(f"v_exp_f32 v{FF[qb]}, v{FF[qb]}")
        A.e("s_nop 0")
    for db in range(16):
        for qb in range(2):
            for r in range(4):
                x = O0+(db*2+qb)*4+r
                A.e(f"v_mul_f32 v{x}, v{x}, v{FF[qb]}")
    for qb in range(2):
        A.e(f"v_mul_f32 v{Lold[qb]}, v{Lold[qb]}, v{FF[qb]}")
        for r in range(4):
            A.e(f"v_sub_f32 v{NEGM+4*qb+r}, v{NEGM+4*qb+r}, v{DL[qb]}")
        for kb in range(2):
            for r in range(4):
                if do_qk:
                    x = Sn+(kb*2+qb)*4+r
                    A.e(f"v_sub_f32 v{x}, v{x}, v{DL[qb]}")
                x = Sr+(kb*2+qb)*4+r
                A.e(f"v_sub_f32 v{x}, v{x}, v{DL[qb]}")
    for c, t in softmax_ops(Sr, Pw, Lold, Lnew):
        A.e(t)
    A.e("s_nop 1")
    A.e(f"s_branch CONT_{tag}")

class Vm:
    def __init__(self): self.q = []
    def issue(self, tag): self.q.append(tag)
    def need(self, tags):
        idx = -1
        for i, t in enumerate(self.q):
            if t in tags: idx = i
        if idx < 0: return None
        n = len(self.q) - 1 - idx
        self.q = self.q[idx+1:]
        assert n <= 63
        return f"s_waitcnt vmcnt({n})"

def gen_k1(A, dbg=None):
    name = "k1_attn_kernel"
    kernel_begin(A, name)
    ST = Stamps(A, dbg == "time", wg=9, wave_sgpr=S_W)
    A.e("s_cmp_ge_u32 s2, 256")
    A.e("s_cbranch_scc1 K1_END")
    ST.stamp()
    A.e("s_load_dwordx4 s[36:39], s[0:1], 8")
    A.e("s_load_dwordx4 s[40:43], s[0:1], 24")
    A.e("s_load_dwordx2 s[60:61], s[0:1], 96")
    A.e("v_and_b32 v1, 63, v0")
    A.e("v_lshrrev_b32 v14, 6, v0")
    A.e("s_nop 0")
    A.e(f"v_readfirstlane_b32 s{S_W}, v14")
    A.e("s_and_b32 s44, s2, 7")
    A.e("s_lshr_b32 s45, s2, 3")
    A.e("s_lshl_b32 s45, s45, 1")
    A.e(f"s_and_b32 s46, s{S_W}, 1")
    A.e("s_add_u32 s45, s45, s46")
    A.e(f"s_lshr_b32 s47, s{S_W}, 1")
    A.e("v_bfe_u32 v14, v1, 2, 1")
    A.e("v_bfe_u32 v15, v1, 3, 1")
    A.e("v_and_b32 v12, 3, v1")
    A.e("v_lshlrev_b32 v12, 4, v12")
    A.e("v_lshrrev_b32 v13, 4, v1")
    A.e("v_lshl_add_u32 v12, v13, 7, v12")
    for n in range(4):
        A.e(f"v_xor_b32 v13, {n & 1}, v14")
        A.e(f"v_lshl_add_u32 v13, v13, 6, v12")
        A.e(f"v_lshl_add_u32 v13, v15, 13, v13")
        A.e(f"v_add_u32 v{2+n}, {2*n*8192 - n*1024}, v13")
    def tr_bases(dst, swap, add, ta, tb, tc):
        A.e(f"v_lshrrev_b32 v{tb}, 5, v1")
        A.e(f"v_lshlrev_b32 v{ta}, 11, v{tb}")
        A.e(f"v_bfe_u32 v{tb}, v1, 3, 1")
        A.e(f"v_lshl_add_u32 v{ta}, v{tb}, 10, v{ta}")
        A.e(f"v_bfe_u32 v{tc}, v1, 2, 1")
        A.e(f"v_lshl_add_u32 v{ta}, v{tc}, 7, v{ta}")
        A.e(f"v_bfe_u32 v{tc}, v1, 4, 1")
        A.e(f"v_lshl_add_u32 v{ta}, v{tc}, 5, v{ta}")
        if swap:
            A.e(f"v_and_b32 v{tc}, 1, v1")
            A.e(f"v_lshl_add_u32 v{ta}, v{tc}, 4, v{ta}")
            A.e(f"v_bfe_u32 v{tc}, v1, 1, 1")
            A.e(f"v_lshl_add_u32 v{ta}, v{tc}, 3, v{ta}")
        else:
            A.e(f"v_and_b32 v{tc}, 3, v1")
            A.e(f"v_lshl_add_u32 v{ta}, v{tc}, 3, v{ta}")
        A.e(f"v_add_u32 v{ta}, {add}, v{ta}")
        A.e(f"v_lshl_add_u32 v{dst[0]}, v{tb}, 6, v{ta}")
        A.e(f"v_xor_b32 v{tb}, 1, v{tb}")
        A.e(f"v_lshl_add_u32 v{dst[1]}, v{tb}, 6, v{ta}")
    A.e("s_lshl_b32 s48, s47, 14")
    tr_bases([6, 7], True, "s48", 13, 14, 15)
    A.e("v_add_u32 v8, 0x10000, v6")
    A.e("v_add_u32 v9, 0x10000, v7")
    WQR = [[6, 7], [8, 9]]
    A.e("v_lshlrev_b32 v12, 4, v1")
    A.e("v_lshrrev_b32 v13, 5, v1")
    A.e("v_lshlrev_b32 v13, 4, v13")
    A.e(f"v_add_u32 v13, {MODL}, v13")
    A.e(f"s_lshl_b32 s49, s46, 17")
    A.e("s_lshl_b32 s50, s47, 9")
    A.e("s_add_u32 s49, s49, s50")
    A.e(f"s_lshl_b32 s48, s{S_W}, 13")
    A.e("s_waitcnt lgkmcnt(0)")
    A.e("s_lshl_b32 s50, s44, 20")
    A.e("s_add_u32 s36, s36, s50")
    A.e("s_addc_u32 s37, s37, 0")
    A.e("s_sub_u32 s52, s36, 128")
    A.e("s_subb_u32 s53, s37, 0")
    srd(A, SRD_K, "s52", "s53", 1048576+128)
    A.e("s_add_u32 s38, s38, s50")
    A.e("s_addc_u32 s39, s39, 0")
    A.e("s_sub_u32 s52, s38, 32768")
    A.e("s_subb_u32 s53, s39, 0")
    srd(A, SRD_V, "s52", "s53", 1048576+32768)
    A.e("s_lshl_b32 s50, s44, 10")
    A.e("s_add_u32 s40, s40, s50")
    A.e("s_addc_u32 s41, s41, 0")
    A.e(f"s_sub_u32 s51, {448*8192}, s50")
    srd(A, SRD_WQ, "s40", "s41", "s51")
    A.e("s_mul_i32 s50, s45, 28672")
    A.e(f"s_add_u32 s50, s50, {Y_OFF}")
    A.e("s_add_u32 s52, s60, s50")
    A.e("s_addc_u32 s53, s61, 0")
    srd(A, SRD_Y, "s52", "s53", 28672)
    srd(A, SRD_M, "s60", "s61", 3584)
    YR = 16
    TG = 64
    TU = 96
    def yreg(f): return YR + 4*(f % 12)
    vm = Vm()
    def y_load(f):
        vm.issue(('y', f))
        return [f"s_mov_b32 s50, {(f//4)*4096}",
                f"buffer_load_dwordx4 {v(yreg(f),4)}, v12, s[{SRD_Y}:{SRD_Y+3}], s50 offen offset:{(f%4)*1024}"]
    def wslot(s): return (s+2) % 4
    def wq_dma(s):
        out = []
        for grp in range(2):
            out.append(f"s_add_u32 m0, s48, {wslot(s)*32768 + grp*4096}")
            out.append(f"s_add_u32 s50, s49, {s*262144 + grp*65536}")
            for n in range(4):
                out.append(f"buffer_load_dwordx4 v{2+n}, s[{SRD_WQ}:{SRD_WQ+3}], s50 offen offset:{n*1024} lds")
                vm.issue(('wq', s))
        return out
    for f in range(4):
        for t in y_load(f): A.e(t)
    A.e(f"s_lshl_b32 s50, s{S_W}, 10")
    A.e(f"s_add_u32 m0, s50, {MODL}")
    A.e("s_nop 0")
    A.e(f"buffer_load_dwordx4 v12, s[{SRD_M}:{SRD_M+3}], s50 offen lds")
    vm.issue('mod')
    for t in wq_dma(0): A.e(t)
    for s_ in (1, 2):
        for f in (2*s_+2, 2*s_+3):
            for t in y_load(f): A.e(t)
        for t in wq_dma(s_): A.e(t)
    lg = Lgkm(A)
    def ln_ops(f):
        b = TG + 16*(f & 1)
        rd = [(('m', f, 0), f"ds_read_b128 {v(b,4)}, v13 offset:{1792+f*64}"),
              (('m', f, 1), f"ds_read_b128 {v(b+4,4)}, v13 offset:{1792+f*64+32}"),
              (('m', f, 2), f"ds_read_b128 {v(b+8,4)}, v13 offset:{f*64}"),
              (('m', f, 3), f"ds_read_b128 {v(b+12,4)}, v13 offset:{f*64+32}")]
        tu = TU + 8*(f & 1)
        va = []
        for d in range(4):
            r = yreg(f)+d
            va.append(f"v_lshlrev_b32 v{tu+2*d}, 16, v{r}")
            va.append(f"v_and_b32 v{tu+2*d+1}, 0xffff0000, v{r}")
        vb = []
        for d in range(4):
            vb.append(f"v_pk_fma_f32 {v(tu+2*d,2)}, {v(tu+2*d,2)}, {v(b+2*d,2)}, {v(b+8+2*d,2)}")
        for d in range(4):
            vb.append(f"v_cvt_pk_bf16_f32 v{yreg(f)+d}, v{tu+2*d}, v{tu+2*d+1}")
        return rd, va, vb
    w = vm.need({('y', 0), ('y', 1), 'mod', ('wq', 0)})
    A.e(w)
    A.e("s_barrier")
    ST.stamp()
    for f in (0, 1):
        rd, va, vb = ln_ops(f)
        for t, txt in rd: A.e(txt); lg.issue(t)
        for txt in va: A.e(txt)
        A.e(lg.need({('m', f, 3)}))
        for txt in vb: A.e(txt)
    QL = OPT.get('ql', 4)
    def q_reads(s, p):
        if p >= 16:
            s, p = s+1, p-16
            if s >= 14: return []
        db, ks = p >> 1, p & 1
        sl = wslot(s)
        o = []
        for u in range(2):
            off = (sl & 1)*32768 + ks*8192 + u*4096 + (db >> 1)*256
            o.append((('q', s, p, u), f"ds_read_b64_tr_b16 {a(AV+4*(p % NRING)+2*u,2)}, v{WQR[sl >> 1][db & 1]} offset:{off}"))
        return o
    for p in range(QL):
        for t, txt in q_reads(0, p):
            A.e(txt); lg.issue(t)
    def k_dma(blk):
        out = [f"s_add_u32 m0, s{S_M0K}, {(blk % 4)*KSLOT}", f"s_mov_b32 s50, {blk*16384}"]
        for n in range(4):
            out.append(f"buffer_load_dwordx4 v{VKD2[n]}, s[{SRD_K}:{SRD_K+3}], s50 offen offset:{n*KPIECE} lds")
            vm.issue(('k', blk))
        return out
    def v_dma(blk):
        out = [f"s_add_u32 m0, s{S_M0V}, {(blk % 4)*VSLOT}", f"s_mov_b32 s50, {blk*16384+32768}"]
        for n in range(4):
            out.append(f"buffer_load_dwordx4 v{VVD2[n]}, s[{SRD_V}:{SRD_V+3}], s50 offen offset:{n*1024} lds")
            vm.issue(('v', blk))
        return out
    VKD2 = [112, 113, 114, 115]
    VVD2 = [116, 117, 118, 119]
    def kv_addr_setup():
        o = []
        e = o.append
        e("v_lshrrev_b32 v120, 5, v1")
        e("v_and_b32 v121, 31, v1")
        e("v_lshlrev_b32 v122, 3, v120")
        e("v_xor_b32 v121, v121, v122")
        e("v_lshlrev_b32 v121, 4, v121")
        e("v_lshl_add_u32 v121, v120, 9, v121")
        e(f"s_lshl_b32 s51, s{S_W}, 12")
        e("s_add_u32 s54, s51, 128")
        e(f"v_add_u32 v{VKD2[0]}, s54, v121")
        for n in range(1, 4):
            e(f"v_subrev_u32 v{VKD2[n]}, {32*n}, v{VKD2[0]}")
        e("v_bfe_u32 v120, v1, 3, 1")
        e("v_lshlrev_b32 v121, 9, v120")
        e("v_lshrrev_b32 v120, 4, v1")
        e("v_lshl_add_u32 v121, v120, 7, v121")
        e("v_add_u32 v121, s51, v121")
        e("v_and_b32 v120, 7, v1")
        for n in range(4):
            e(f"v_xor_b32 v122, {2*n}, v120")
            e(f"v_lshl_add_u32 v{VVD2[n]}, v122, 4, v121")
        e(f"s_add_u32 s{S_M0V}, s51, {VBASE}")
        e(f"s_mul_i32 s{S_M0K}, s{S_W}, {4*KPIECE}")
        return o
    for t in kv_addr_setup(): A.e(t)
    for s_ in range(14):
        gaps = [[] for _ in range(16)]
        needs = set()
        if s_+1 < 14: needs |= {('wq', s_+1), ('y', 2*s_+2), ('y', 2*s_+3)}
        w = vm.need(needs) if needs else None
        if s_ < 13 or True:
            gaps[0] += ([w] if w else []) + ["s_barrier"]
        fill = []
        for f in (2*s_+8, 2*s_+9):
            if f < 28: fill += y_load(f)
        if s_+3 < 14: fill += wq_dma(s_+3)
        if s_ == 12:
            for blk in (0, 1, 2): fill += k_dma(blk)
        if s_ == 13:
            fill += k_dma(3) + v_dma(0)
        if OPT.get('q_nodma'): fill = [t for t in fill if 'buffer_load' not in t or 'K' in t]
        n = len(fill)
        for i, t in enumerate(fill):
            gaps[1 + (i*14)//max(n, 1)].append(t)
        lnseq = []
        if s_+1 < 14 and not OPT.get('q_noln'):
            r0, a0, b0 = ln_ops(2*s_+2)
            r1, a1, b1 = ln_ops(2*s_+3)
            lnseq = [('rd', r0), ('v', a0), ('rd', r1), ('need', 2*s_+2), ('v', b0), ('v', a1), ('need', 2*s_+3), ('v', b1)]
        items = []
        for kind, x in lnseq:
            if kind == 'rd':
                for t, txt in x: items.append(('rd', t, txt))
            elif kind == 'v':
                for txt in x: items.append(('v', None, txt))
            else:
                items.append(('need', x, None))
        lgaps = [[] for _ in range(16)]
        for i, it in enumerate(items):
            lgaps[1 + (i*14)//max(len(items), 1)].append(it)
        for p in range(16):
            if OPT.get('q_mw', 0):
                w2 = lg.need({('q', s_, p, 0), ('q', s_, p, 1), ('q', s_, p+1, 0), ('q', s_, p+1, 1)}) if p % 2 == 0 else None
            else:
                w2 = lg.need({('q', s_, p, 0), ('q', s_, p, 1)})
            if w2: A.e(w2)
            db, ks = p >> 1, p & 1
            acc = v(O0+16*db, 16)
            first = (s_ == 0 and ks == 0)
            if OPT.get('fakeq16'):
                for hh in range(2):
                    a4 = v(O0+16*db+8*ks+4*hh, 4)
                    A.e(m16(a4, a(AV+4*(p % NRING), 4), v(yreg(2*s_+hh), 4), "0" if s_ == 0 else a4))
            else:
                A.e(mfma(acc, a(AV+4*(p % NRING), 4), v(yreg(2*s_+ks), 4), "0" if first else acc))
            for t, txt in q_reads(s_, p+QL):
                A.e(txt); lg.issue(t)
            for txt in gaps[p]: A.e(txt)
            for kind, t, txt in lgaps[p]:
                if kind == 'rd':
                    A.e(txt); lg.issue(t)
                elif kind == 'v':
                    A.e(txt)
                else:
                    w3 = lg.need({('m', t, 3)})
                    if w3: A.e(w3)
    ST.stamp()
    A.e("s_barrier")
    for n in range(4): A.e(f"v_mov_b32 v{VKD[n]}, v{VKD2[n]}")
    for n in range(4): A.e(f"v_mov_b32 v{VVD[n]}, v{VVD2[n]}")
    A.e("v_bfe_u32 v16, v1, 1, 3")
    A.e(f"v_mul_u32_u24 v16, {KPIECE}, v16")
    A.e("v_and_b32 v17, 1, v1")
    A.e("v_lshl_add_u32 v16, v17, 9, v16")
    A.e("v_lshrrev_b32 v18, 4, v1")
    A.e("v_lshl_add_u32 v16, v18, 4, v16")
    A.e("v_lshlrev_b32 v17, 7, v17")
    A.e(f"v_add_u32 v{VKR[0]}, v16, v17")
    A.e(f"v_sub_u32 v{VKR[1]}, v16, v17")
    A.e("v_bfe_u32 v17, v1, 3, 1")
    A.e("v_lshl_add_u32 v19, v18, 1, v17")
    A.e("v_lshlrev_b32 v16, 10, v19")
    A.e("v_bfe_u32 v17, v1, 2, 1")
    A.e("v_lshl_add_u32 v16, v17, 7, v16")
    A.e("v_and_b32 v17, 3, v1")
    A.e("v_lshl_add_u32 v16, v17, 3, v16")
    A.e(f"v_add_u32 v16, {VBASE}, v16")
    A.e("v_and_b32 v19, 3, v19")
    for sx in range(4):
        A.e(f"v_xor_b32 v17, {sx}, v19")
        A.e(f"v_lshl_add_u32 v{VVR[sx]}, v17, 5, v16")
    A.e(f"s_add_u32 s50, s{S_W}, 1")
    A.e("s_lshl_b32 s50, s50, 14")
    A.e(f"s_add_u32 s50, s50, {VBASE}")
    A.e(f"s_cmp_eq_u32 s{S_W}, 3")
    A.e(f"s_cselect_b32 s50, {SPARE}, s50")
    A.e("v_and_b32 v16, 31, v1")
    A.e("v_lshlrev_b32 v17, 9, v16")
    A.e("v_and_b32 v16, 15, v1")
    A.e("v_lshrrev_b32 v18, 5, v1")
    A.e("v_xor_b32 v18, v18, v16")
    A.e("v_lshl_add_u32 v17, v18, 4, v17")
    A.e("v_add_u32 v20, s50, v17")
    A.e("v_lshlrev_b32 v17, 9, v16")
    A.e("v_lshrrev_b32 v18, 4, v1")
    A.e("v_xor_b32 v18, v18, v16")
    A.e("v_lshl_add_u32 v17, v18, 4, v17")
    A.e("v_add_u32 v21, s50, v17")
    for fr in range(16):
        base = O0 + 8*fr
        dst = 24 + 4*(fr & 3)
        for r in range(4):
            A.e(f"v_cvt_pk_bf16_f32 v{dst+r}, v{base+2*r}, v{base+2*r+1}")
        A.e(f"v_xor_b32 v{40+(fr & 3)}, {32*fr}, v20")
        A.e(f"ds_write_b128 v{40+(fr & 3)}, {v(dst,4)}")
    A.e("s_waitcnt lgkmcnt(0)")
    for ks in range(8):
        A.e(f"v_xor_b32 v{40+(ks & 3)}, {64*ks}, v21")
        for qb in range(2):
            A.e(f"ds_read_b128 {a(AQ+(qb*8+ks)*4,4)}, v{40+(ks & 3)} offset:{qb*8192}")
    A.e("s_waitcnt lgkmcnt(0)")
    A.e(vm.need({('k', 0), ('k', 1)}))
    A.e("s_barrier")
    VKD2[:] = VKD; VVD2[:] = VVD
    for t in v_dma(1): A.e(t)
    lg = Lgkm(A)
    seq = [(b, n) for b in range(2) for n in range(16)]
    KL = 4
    for i in range(KL):
        b, n = seq[i]
        A.e(kread(b, n & 1, n >> 1, i % NRING)); lg.issue(i)
    zero = [f"v_mov_b32 v{O0+r}, 0" for r in range(128)]
    for i, (b, n) in enumerate(seq):
        w = lg.need({i})
        if w: A.e(w)
        ks, kb = n >> 1, n & 1
        for qb in range(2):
            d = v(S_[b]+(kb*2+qb)*4, 4)
            A.e(m16(d, a(AK+4*(i % NRING), 4), a(AQ+(qb*8+ks)*4, 4), "0" if ks == 0 else d))
        if i+KL < 32:
            b2, n2 = seq[i+KL]
            A.e(kread(b2, n2 & 1, n2 >> 1, (i+KL) % NRING)); lg.issue(i+KL)
    A.e("s_barrier")
    for t in v_dma(2): A.e(t)
    for t in k_dma(4): A.e(t)
    A.e(f"s_mov_b32 s{S_KOFF}, {5*16384}")
    A.e(f"s_mov_b32 s{S_THR}, {f2u(2.0**(OPT.get('thr', THR_LOG2)-OPT['bias'])):#x}")
    A.e("s_nop 7")
    for qb in range(2):
        regs = [S_[b]+(kb*2+qb)*4+r for b in range(2) for kb in range(2) for r in range(4)]
        d = 16+qb
        A.e(f"v_max3_f32 v{d}, v{regs[0]}, v{regs[1]}, v{regs[2]}")
        for j in range(3, 15, 2):
            A.e(f"v_max3_f32 v{d}, v{d}, v{regs[j]}, v{regs[j+1]}")
        A.e(f"v_max_f32 v{d}, v{d}, v{regs[15]}")
        xlane(A, d, 18, "v_max_f32")
        if OPT['bias']:
            A.e(f"v_add_f32 v{d}, {f2u(float(OPT['bias'])):#x}, v{d}")
        for r in range(4):
            A.e(f"v_sub_f32 v{NEGM+4*qb+r}, 0, v{d}")
        for x in regs:
            A.e(f"v_sub_f32 v{x}, v{x}, v{d}")
        A.e(f"v_mov_b32 v{L_[1][qb]}, 0")
    for c, t in softmax_ops(S_[0], P_[0], L_[1], L_[0]):
        A.e(t)
    A.e("s_waitcnt vmcnt(8)")
    A.e("s_barrier")
    ST.stamp()
    if dbg == "time": A.e("s_waitcnt lgkmcnt(0)")
    for p in range(LEAD):
        for t, txt in reads_for_pos(0, p, True, True, True, True):
            A.e(txt)
    if OPT.get('pfkv', 1):
        A.e(f"s_cmp_lt_u32 s{S_W}, 2")
        A.e("s_cselect_b32 s96, s36, s38")
        A.e("s_cselect_b32 s97, s37, s39")
        A.e("s_and_b32 s97, s97, 0xffff")
        A.e("s_mov_b32 s98, 1048576")
        A.e("s_mov_b32 s99, 0x00020000")
        A.e("v_and_b32 v19, 7, v1")
        A.e("v_lshlrev_b32 v19, 7, v19")
        A.e("s_lshr_b32 s50, s2, 3")
        A.e("s_lshl_b32 s50, s50, 11")
        A.e("s_lshl_b32 s51, s46, 10")
        A.e("s_add_u32 s50, s50, s51")
        A.e("v_add_u32 v19, s50, v19")
    if OPT.get('pfmall', 1):
        A.e("s_load_dwordx4 s[52:55], s[0:1], 48")
        A.e("s_waitcnt lgkmcnt(0)")
        A.e("s_cmp_lt_u32 s46, 1")
        A.e("s_cselect_b32 s56, s52, s54")
        A.e("s_cselect_b32 s57, s53, s55")
        A.e("s_and_b32 s57, s57, 0xffff")
        A.e(f"s_mov_b32 s58, {448*3584}")
        A.e("s_mov_b32 s59, 0x00020000")
        A.e("s_mul_i32 s50, s2, 6272")
        A.e("v_lshlrev_b32 v20, 7, v1")
        A.e("v_min_u32 v20, 6144, v20")
        A.e(f"s_cmp_lt_u32 s{S_W}, 2")
        A.e("s_cbranch_scc0 K1_NOMALL")
        A.e("buffer_load_dword v21, v20, s[56:59], s50 offen")
        A.label("K1_NOMALL")
    iteration(A, 0, "F0", first=True)
    for ph in range(1, 4):
        iteration(A, ph, f"F{ph}")
    A.e(f"s_mov_b32 s{S_CNT}, 14")
    A.raw(".p2align 6")
    A.label("K1_LOOP")
    if OPT.get('pfkv', 1):
        A.e(f"s_add_u32 s50, s{S_KOFF}, {7*16384}")
        A.e("buffer_load_dword v22, v19, s[96:99], s50 offen")
    if OPT.get('pfwo', 1):
        A.e(f"s_cmp_lg_u32 s{S_CNT}, 4")
        A.e("s_cbranch_scc1 K1_NOPF")
        A.e(f"s_mul_i32 s50, s44, {512*896}")
        A.e("s_add_u32 s56, s42, s50")
        A.e("s_addc_u32 s57, s43, 0")
        A.e("s_and_b32 s57, s57, 0xffff")
        A.e(f"s_mov_b32 s58, {512*896}")
        A.e("s_mov_b32 s59, 0x00020000")
        A.e("s_lshr_b32 s50, s2, 3")
        A.e("s_mul_i32 s50, s50, 14336")
        A.e("v_lshlrev_b32 v26, 7, v0")
        A.e("v_min_u32 v26, 14208, v26")
        A.e("buffer_load_dword v27, v26, s[56:59], s50 offen")
        A.label("K1_NOPF")
    if OPT.get('pfw1', 0):
        A.e(f"s_cmp_lg_u32 s{S_CNT}, {OPT.get('pfw1')}")
        A.e("s_cbranch_scc1 K1_NOPF1")
        A.e("s_load_dwordx2 s[56:57], s[0:1], 48")
        A.e("s_waitcnt lgkmcnt(0)")
        A.e("s_and_b32 s57, s57, 0xffff")
        A.e(f"s_mov_b32 s58, {448*3584}")
        A.e("s_mov_b32 s59, 0x00020000")
        A.e("s_lshr_b32 s50, s2, 3")
        A.e("s_mul_i32 s50, s50, 50176")
        A.e("v_lshlrev_b32 v26, 7, v0")
        A.e("buffer_load_dword v27, v26, s[56:59], s50 offen")
        A.e("v_add_u32 v26, 32768, v26")
        A.e("v_min_u32 v26, 50048, v26")
        A.e("buffer_load_dword v28, v26, s[56:59], s50 offen")
        A.label("K1_NOPF1")
    for ph in range(4):
        iteration(A, ph, f"M{ph}")
    A.e(f"s_sub_u32 s{S_CNT}, s{S_CNT}, 1")
    A.e(f"s_cmp_lg_u32 s{S_CNT}, 0")
    A.e("s_cbranch_scc1 K1_LOOP")
    if dbg == "time":
        ST.stamp()
    A.e(f"s_mul_i32 s50, s44, {512*896}")
    A.e("s_add_u32 s42, s42, s50")
    A.e("s_addc_u32 s43, s43, 0")
    srd(A, SRD_WO, "s42", "s43", 512*896)
    GOFF = 34
    for n in range(7):
        A.e(f"s_mul_i32 s50, s{S_W}, 7")
        A.e(f"s_add_u32 s50, s50, {n}")
        A.e("s_cmp_ge_u32 s50, 14")
        A.e("s_cselect_b32 s51, 14, 0")
        A.e(f"s_cselect_b32 s52, {16*896}, 0")
        A.e("s_sub_u32 s50, s50, s51")
        A.e("s_and_b32 s51, s50, 1")
        A.e(f"s_mul_i32 s51, s51, {8*896}")
        A.e("s_lshr_b32 s50, s50, 1")
        A.e("s_lshl_b32 s50, s50, 7")
        A.e("s_add_u32 s50, s50, s51")
        A.e(f"s_add_u32 s{GOFF+n}, s50, s52")
    A.e(f"s_mul_i32 s41, s{S_W}, 7168")
    A.e("v_lshrrev_b32 v16, 3, v1")
    A.e("v_mul_u32_u24 v23, 896, v16")
    A.e("v_bfe_u32 v16, v1, 4, 1")
    A.e("v_bfe_u32 v17, v1, 2, 1")
    A.e("v_xor_b32 v16, v16, v17")
    A.e("v_lshl_add_u32 v23, v16, 6, v23")
    A.e("v_and_b32 v16, 3, v1")
    A.e("v_lshl_add_u32 v23, v16, 4, v23")
    vme = Vm()
    def wo_dma(t):
        out = []
        for n in range(7):
            out.append(f"s_add_u32 m0, s41, {WSLOT[t % 5] + n*1024}")
            out.append(f"s_add_u32 s50, s{GOFF+n}, {t*32*896}")
            out.append(f"buffer_load_dwordx4 v23, s[{SRD_WO}:{SRD_WO+3}], s50 offen lds")
            vme.issue(('wo', t))
        return out
    def spread(lst, lo, hi):
        d = {}
        trip = [lst[i:i+3] for i in range(0, len(lst), 3)]
        for i, tr3 in enumerate(trip):
            g = lo + (i*(hi-lo+1))//len(trip)
            d.setdefault(g, []).extend(tr3)
        return d
    iteration(A, 0, "T0", dma_k=False, dma_v=True, vmwait=8)
    iteration(A, 1, "T1", dma_k=False, dma_v=False, vmwait=4, nxt_qk=False)
    iteration(A, 2, "T2", do_qk=False, dma_k=False, dma_v=False, vmwait=0, nxt_qk=False,
              extra=spread(wo_dma(0) + wo_dma(1)[:12], 1, 30))
    vme.q = [('wo', 0)]*7 + [('wo', 1)]*4
    rest1 = []
    for n in range(4, 7):
        rest1 += [f"s_add_u32 m0, s41, {WSLOT[1] + n*1024}", f"s_add_u32 s50, s{GOFF+n}, {32*896}",
                  f"buffer_load_dwordx4 v23, s[{SRD_WO}:{SRD_WO+3}], s50 offen lds"]
        vme.issue(('wo', 1))
    iteration(A, 3, "T3", do_qk=False, do_sm=False, dma_k=False, dma_v=False, nxt_pv=False, nxt_qk=False, barrier=False,
              extra=spread(rest1 + wo_dma(2), 1, 30))
    ST.stamp()
    Lf = L_[1]
    OP = 64
    INV = [16, 17]
    for qb in range(2):
        A.e(f"v_mov_b32 v{INV[qb]}, v{Lf[qb]}")
        xlane(A, INV[qb], 18, "v_add_f32")
        A.e(f"v_rcp_f32 v{INV[qb]}, v{INV[qb]}")
    A.e("s_lshl_b32 s50, s46, 1")
    A.e("s_add_u32 s50, s50, s47")
    A.e("s_lshl_b32 s50, s50, 14")
    A.e(f"s_add_u32 s50, s50, {VBASE}")
    A.e("v_lshlrev_b32 v12, 4, v1")
    A.e("v_and_b32 v18, 15, v1")
    A.e("v_lshlrev_b32 v19, 9, v18")
    A.e("v_lshrrev_b32 v20, 5, v1")
    A.e("v_xor_b32 v20, v20, v18")
    A.e("v_lshl_add_u32 v19, v20, 4, v19")
    A.e("v_bfe_u32 v20, v1, 4, 1")
    A.e("v_lshl_add_u32 v19, v20, 3, v19")
    A.e("v_add_u32 v19, s50, v19")
    A.e("s_barrier")
    for db in range(16):
        A.e(f"v_xor_b32 v{24+(db & 3)}, {32*db}, v19")
        for qb in range(2):
            base = O0+(db*2+qb)*4
            for r in range(4):
                A.e(f"v_mul_f32 v{base+r}, v{base+r}, v{INV[qb]}")
            dst = 32 + 4*(db & 3) + 2*qb
            A.e(f"v_cvt_pk_bf16_f32 v{dst}, v{base}, v{base+1}")
            A.e(f"v_cvt_pk_bf16_f32 v{dst+1}, v{base+2}, v{base+3}")
            A.e(f"ds_write_b64 v{24+(db & 3)}, {v(dst,2)} offset:{qb*8192}")
    A.e("s_waitcnt lgkmcnt(0)")
    A.e("s_barrier")
    A.e("s_lshl_b32 s50, s46, 15")
    A.e(f"s_add_u32 s50, s50, {VBASE}")
    A.e("v_and_b32 v18, 31, v1")
    A.e("v_lshlrev_b32 v19, 9, v18")
    A.e("v_and_b32 v18, 15, v1")
    A.e("v_lshrrev_b32 v20, 5, v1")
    A.e("v_xor_b32 v20, v20, v18")
    A.e("v_lshl_add_u32 v19, v20, 4, v19")
    A.e("v_add_u32 v19, s50, v19")
    for ks in range(16):
        A.e(f"v_xor_b32 v{24+(ks & 3)}, {32*ks}, v19")
        for hd in range(2):
            A.e(f"ds_read_b128 {a(4*(16*hd+ks),4)}, v{24+(ks & 3)} offset:{hd*16384}")
    A.e("v_lshrrev_b32 v16, 5, v1")
    A.e("v_lshlrev_b32 v17, 10, v16")
    A.e("v_bfe_u32 v16, v1, 2, 2")
    A.e("v_lshl_add_u32 v17, v16, 7, v17")
    A.e("v_bfe_u32 v16, v1, 4, 1")
    A.e("v_lshl_add_u32 v17, v16, 5, v17")
    A.e("v_and_b32 v16, 3, v1")
    A.e("v_lshl_add_u32 v17, v16, 3, v17")
    A.e("v_bfe_u32 v16, v1, 3, 1")
    A.e("v_xor_b32 v18, s47, v16")
    A.e("v_lshl_add_u32 v2, v18, 6, v17")
    A.e("v_xor_b32 v18, 1, v18")
    A.e("v_lshl_add_u32 v3, v18, 6, v17")
    A.e(f"s_mul_i32 s50, s47, {3*2048}")
    A.e(f"s_mul_i32 s51, s47, {4*2048}")
    A.e("v_add_u32 v2, s50, v2")
    A.e("v_add_u32 v3, s51, v3")
    A.e(f"v_add_u32 v4, {WSLOT[2]}, v2")
    A.e(f"v_add_u32 v5, {WSLOT[2]}, v3")
    A.e(f"v_add_u32 v6, {WSLOT[3]}, v2")
    A.e(f"v_add_u32 v7, {WSLOT[3]}, v3")
    A.e("s_waitcnt lgkmcnt(0)")
    A.e("s_barrier")
    for t in wo_dma(3) + wo_dma(4): A.e(t)
    def wbase(slot, c):
        e = c & 1
        if slot in (0, 1): return (2+e, WSLOT[slot])
        if slot == 2: return (4+e, 0)
        return (6+e, WSLOT[slot]-WSLOT[3])
    ARG = AV
    ARG = 128
    def o_reads(t, p):
        if p >= 14:
            t, p = t+1, p-14
            if t >= 16: return []
        ksl, c = p // 7, p % 7
        b, off = wbase(t % 5, c)
        o = []
        for u in range(2):
            o.append((('o', t, p, u), f"ds_read_b64_tr_b16 {a(ARG+4*((14*t+p) % NRING)+2*u,2)}, v{b} offset:{off + ksl*14336 + (c >> 1)*2048 + u*512}"))
        return o
    lg = Lgkm(A)
    OL = OPT.get('ol', 4)
    A.e(vme.need({('wo', 0)}))
    A.e("s_barrier")
    for p in range(OL):
        for t_, txt in o_reads(0, p): A.e(txt); lg.issue(t_)
    ACC = O0
    for t in range(16):
        gaps = [[] for _ in range(14)]
        if t+1 < 16:
            w = vme.need({('wo', t+1)})
            gaps[0] += ([w] if w else []) + ["s_barrier"]
        if t >= 1 and t+4 < 16:
            d = wo_dma(t+4)
            sp = spread(d, OPT.get('osp0', 1), OPT.get('osp1', 12))
            for g_, l_ in sp.items(): gaps[g_] += l_
        for p in range(14):
            if OPT.get('omw', 0):
                w2 = lg.need({('o', t, p+x, u) for x in range(2) for u in range(2)}) if p % 2 == 0 else None
            else:
                w2 = lg.need({('o', t, p, 0), ('o', t, p, 1)})
            if w2: A.e(w2)
            ksl, c = p // 7, p % 7
            acc = v(ACC+16*c, 16)
            first = (t == 0 and ksl == 0)
            if OPT.get('fakeo16'):
                for hh in range(2):
                    a4 = v(ACC+16*c+8*ksl+4*hh, 4)
                    A.e(m16(a4, a(ARG+4*((14*t+p) % NRING), 4), a(4*(2*t+hh), 4), "0" if t == 0 else a4))
            else:
                A.e(mfma(acc, a(ARG+4*((14*t+p) % NRING), 4), a(4*(2*t+ksl), 4), "0" if first else acc))
            for t_, txt in o_reads(t, p+OL): A.e(txt); lg.issue(t_)
            for txt in gaps[p]: A.e(txt)
    ST.stamp()
    A.e("s_lshl_b32 s50, s44, 6")
    A.e("s_add_u32 s50, s50, s45")
    A.e("s_mul_i32 s50, s50, 28672")
    A.e(f"s_mul_i32 s51, s47, {14*1024}")
    A.e("s_add_u32 s50, s50, s51")
    A.e(f"s_add_u32 s50, s50, {PART_OFF}")
    A.e("s_add_u32 s52, s60, s50")
    A.e("s_addc_u32 s53, s61, 0")
    srd(A, SRD_Y, "s52", "s53", 14*1024)
    A.e("s_nop 7")
    for fr in range(14):
        dst = OP + 4*(fr % 16)
        for r in range(4):
            A.e(f"v_cvt_pk_bf16_f32 v{dst+r}, v{ACC+8*fr+2*r}, v{ACC+8*fr+2*r+1}")
        if fr % 4 == 0:
            A.e(f"s_mov_b32 s50, {fr*1024}")
        A.e(f"buffer_store_dwordx4 {v(dst,4)}, v12, s[{SRD_Y}:{SRD_Y+3}], s50 offen offset:{(fr%4)*1024} {OPT.get('pstore', '')}")
    ST.finish("K1_END")
    A.label("K1_END")
    A.e("s_endpgm")
    if not OPT['no_sm']:
        for ph in range(4):
            rare_path(A, ph, f"M{ph}")
        for ph in range(4):
            rare_path(A, ph, f"F{ph}")
        rare_path(A, 0, "T0")
        rare_path(A, 1, "T1")
        rare_path(A, 2, "T2", do_qk=False)
    return name
```

```python
from asmlib import *
from layout import *
from k1 import f2u
DBG = False
PF = 'early'
PNT = ''
XDIRECT = False

def gen_k2r(A):
    name = "k2_reduce_kernel"
    kernel_begin(A, name)
    A.e("s_cmp_ge_u32 s2, 256")
    A.e("s_cbranch_scc1 K2R_END")
    ST = Stamps(A, DBG, wg=9, wave_sgpr=62, lane_v=101)
    if DBG:
        A.e("v_lshrrev_b32 v100, 6, v0"); A.e("v_and_b32 v101, 63, v0"); A.e("s_nop 0"); A.e("v_readfirstlane_b32 s62, v100")
    ST.stamp()
    A.e("s_load_dwordx2 s[38:39], s[0:1], 96")
    A.e("s_load_dwordx2 s[40:41], s[0:1], 48")
    A.e("s_load_dwordx2 s[46:47], s[0:1], 0")
    A.e("s_and_b32 s29, s2, 7")
    A.e("s_lshr_b32 s30, s2, 3")
    A.e("s_lshl_b32 s29, s29, 3")
    A.e("s_lshr_b32 s31, s30, 2")
    A.e("s_add_u32 s29, s29, s31")
    A.e("s_and_b32 s30, s30, 3")
    A.e("v_and_b32 v2, 7, v0")
    A.e("v_bfe_u32 v3, v0, 3, 1")
    A.e("v_lshrrev_b32 v4, 4, v0")
    A.e("v_lshlrev_b32 v5, 10, v4")
    A.e("v_lshl_add_u32 v5, v3, 9, v5")
    A.e("v_lshl_add_u32 v5, v2, 4, v5")
    A.e("s_lshl_b32 s31, s30, 7")
    A.e("v_add_u32 v5, s31, v5")
    A.e("v_lshlrev_b32 v6, 6, v4")
    A.e("v_lshl_add_u32 v6, v3, 4, v6")
    A.e("s_waitcnt lgkmcnt(0)")
    A.e(f"s_add_u32 s42, s38, {PART_OFF}")
    A.e("s_addc_u32 s43, s39, 0")
    srd(A, 8, "s42", "s43", PART_BYTES)
    if XDIRECT:
        srd(A, 12, "s46", "s47", X_BYTES)
        A.e("s_lshl_b32 s33, s29, 5")
        A.e("s_lshl_b32 s34, s30, 3")
        A.e("s_add_u32 s33, s33, s34")
        A.e("v_add_u32 v13, s33, v2")
        A.e("v_mul_u32_u24 v13, 896, v13")
        A.e("v_lshl_add_u32 v13, v4, 5, v13")
        A.e("v_lshl_add_u32 v13, v3, 3, v13")
    else:
        A.e(f"s_add_u32 s42, s38, {XF_OFF}")
        A.e("s_addc_u32 s43, s39, 0")
        srd(A, 12, "s42", "s43", XF_BYTES)
    srd(A, 16, "s38", "s39", MOD_BYTES)
    A.e("s_mul_i32 s32, s29, 28672")
    for g in range(8):
        A.e(f"s_add_u32 s33, s32, {g*64*28672}")
        A.e(f"buffer_load_dwordx4 {v(16+4*g,4)}, v5, s[8:11], s33 offen {PNT}")
    if XDIRECT:
        A.e("buffer_load_dwordx2 v[48:49], v13, s[12:15], 0 offen")
        A.e("buffer_load_dwordx2 v[50:51], v13, s[12:15], 0 offen offset:16")
    else:
        A.e(f"buffer_load_dwordx4 v[48:51], v5, s[12:15], s32 offen")
    for i, sec in enumerate((2, 4, 3)):
        A.e(f"s_mov_b32 s33, {sec*1792}")
        A.e(f"buffer_load_dwordx4 {v(52+8*i,4)}, v6, s[16:19], s33 offen")
        A.e(f"buffer_load_dwordx4 {v(56+8*i,4)}, v6, s[16:19], s33 offen offset:32")
    if PF == 'early':
        srd(A, 28, "s40", "s41", 448*3584)
        A.e("s_lshr_b32 s33, s2, 3")
        A.e("s_mul_i32 s33, s33, 50176")
        A.e("v_lshlrev_b32 v11, 7, v0")
        A.e("v_min_u32 v11, 50048, v11")
        A.e("buffer_load_dword v12, v11, s[28:31], s33 offen")
    A.e(f"s_add_u32 s42, s38, {X1_OFF}")
    A.e("s_addc_u32 s43, s39, 0")
    srd(A, 20, "s42", "s43", X1_BYTES)
    A.e(f"s_add_u32 s42, s38, {H2_OFF}")
    A.e("s_addc_u32 s43, s39, 0")
    srd(A, 24, "s42", "s43", H2_BYTES)
    ST.stamp()
    for g in range(8):
        A.e(f"s_waitcnt vmcnt({14-g+(1 if PF == 'early' else 0)+(1 if XDIRECT else 0)})")
        for d in range(4):
            r = 16+4*g+d
            if g == 0:
                A.e(f"v_lshlrev_b32 v{80+2*d}, 16, v{r}")
                A.e(f"v_and_b32 v{81+2*d}, 0xffff0000, v{r}")
            else:
                A.e(f"v_lshlrev_b32 v{88+2*d}, 16, v{r}")
                A.e(f"v_and_b32 v{89+2*d}, 0xffff0000, v{r}")
        if g > 0:
            for d in range(4):
                A.e(f"v_pk_add_f32 {v(80+2*d,2)}, {v(80+2*d,2)}, {v(88+2*d,2)}")
    ST.stamp()
    A.e(f"s_waitcnt vmcnt({5 if PF == 'early' else 4})")
    for d in range(4):
        A.e(f"v_lshlrev_b32 v{88+2*d}, 16, v{48+d}")
        A.e(f"v_and_b32 v{89+2*d}, 0xffff0000, v{48+d}")
    for d in range(4):
        A.e(f"v_pk_fma_f32 {v(80+2*d,2)}, {v(80+2*d,2)}, {v(52+2*d,2)}, {v(88+2*d,2)}")
    for d in range(4):
        A.e(f"v_cvt_pk_bf16_f32 v{16+d}, v{80+2*d}, v{81+2*d}")
    A.e("buffer_store_dwordx4 v[16:19], v5, s[20:23], s32 offen")
    for d in range(4):
        A.e(f"v_lshlrev_b32 v{80+2*d}, 16, v{16+d}")
        A.e(f"v_and_b32 v{81+2*d}, 0xffff0000, v{16+d}")
    A.e("v_lshrrev_b32 v9, 6, v0")
    A.e("v_lshlrev_b32 v7, 5, v2")
    A.e("v_lshl_add_u32 v8, v9, 2, v7")
    A.e("v_and_b32 v10, 63, v0")
    def rowsum(off):
        A.e("s_nop 1")
        A.e("v_add_f32_dpp v20, v20, v20 row_ror:8 row_mask:0xf bank_mask:0xf")
        A.e("s_nop 0")
        A.e("ds_swizzle_b32 v21, v20 offset:0x401F")
        A.e("s_waitcnt lgkmcnt(0)")
        A.e("v_add_f32 v20, v20, v21")
        A.e("v_mov_b32 v21, v20")
        A.e("s_nop 1")
        A.e("v_permlane32_swap_b32 v20, v21")
        A.e("s_nop 1")
        A.e("v_add_f32 v20, v20, v21")
        A.e("v_cmp_gt_u32 vcc, 8, v10")
        A.e("s_and_saveexec_b64 s[44:45], vcc")
        A.e(f"ds_write_b32 v8, v20 offset:{off}")
        A.e("s_mov_b64 exec, s[44:45]")
        A.e("s_waitcnt lgkmcnt(0)")
        A.e("s_barrier")
        A.e(f"ds_read_b128 v[24:27], v7 offset:{off}")
        A.e(f"ds_read_b128 v[28:31], v7 offset:{off+16}")
        A.e("s_waitcnt lgkmcnt(0)")
        A.e("v_add_f32 v24, v24, v25")
        A.e("v_add_f32 v26, v26, v27")
        A.e("v_add_f32 v28, v28, v29")
        A.e("v_add_f32 v24, v24, v26")
        A.e("v_add_f32 v28, v28, v30")
        A.e("v_add_f32 v20, v24, v28")
    A.e("v_add_f32 v20, v80, v81")
    for r in range(2, 8):
        A.e(f"v_add_f32 v20, v20, v{80+r}")
    rowsum(0)
    A.e(f"v_mul_f32 v22, {f2u(1/448.):#x}, v20")
    for r in range(8):
        A.e(f"v_sub_f32 v{80+r}, v{80+r}, v22")
    A.e("v_mul_f32 v20, v80, v80")
    for r in range(1, 8):
        A.e(f"v_fmac_f32 v20, v{80+r}, v{80+r}")
    rowsum(256)
    ST.stamp()
    A.e(f"v_mul_f32 v20, {f2u(1/448.):#x}, v20")
    A.e(f"v_add_f32 v20, {f2u(1e-5):#x}, v20")
    A.e("v_rsq_f32 v20, v20")
    A.e(f"s_waitcnt vmcnt({2 if PF == 'early' else 1})")
    A.e("v_mov_b32 v21, v20")
    for d in range(4):
        A.e(f"v_pk_mul_f32 {v(80+2*d,2)}, {v(80+2*d,2)}, v[20:21]")
    for d in range(4):
        A.e(f"v_pk_fma_f32 {v(80+2*d,2)}, {v(80+2*d,2)}, {v(60+2*d,2)}, {v(68+2*d,2)}")
    for d in range(4):
        A.e(f"v_cvt_pk_bf16_f32 v{16+d}, v{80+2*d}, v{81+2*d}")
    A.e("buffer_store_dwordx4 v[16:19], v5, s[24:27], s32 offen")
    if PF == 'late':
        srd(A, 28, "s40", "s41", 448*3584)
        A.e("s_lshr_b32 s33, s2, 3")
        A.e("s_mul_i32 s33, s33, 50176")
        A.e("v_lshlrev_b32 v11, 7, v0")
        A.e("v_min_u32 v11, 50048, v11")
        A.e("buffer_load_dword v12, v11, s[28:31], s33 offen")
    ST.finish("K2R_END", 102)
    A.label("K2R_END")
    A.e("s_endpgm")
    return name, 1024
```

```python
import sys
from asmlib import *
from layout import *
import k0, k1, k24, k1b, k2r, k1c, k3m, k1d
M16 = True
FUSE3 = False
MERGE = False

HEADER = open('adaLN_cond__gqa_block_cached__dense_activation_relu__prompt.s.ref').read().split("; Override launch")[0]

def build(dbg=None):
    launches = []; descs = []
    body = Asm()
    k24.NEW = True
    if MERGE:
        k2r.XDIRECT = True
        n = k1c.gen_k1(body, dbg); launches.append((n, 256, 256, k1b.K1_LDS)); descs.append(descriptor(n, 512, 100, 256))
    else:
        n = k0.gen_k0(body); launches.append((n, k0.K0_GRID, 448, 8192)); descs.append(descriptor(n, 112, 100, 112))
        n = (k1d if M16 else k1b).gen_k1(body, dbg); launches.append((n, 256, 256, k1b.K1_LDS)); descs.append(descriptor(n, 512, 100, 256))
    if FUSE3:
        n, lds = k3m.gen_k3m(body); launches.append((n, 256, 256, lds)); descs.append(descriptor(n, 512, 100, 256))
    else:
        n, lds = k2r.gen_k2r(body); launches.append((n, 256, 448, lds)); descs.append(descriptor(n, 104, 100, 104))
        n, lds = k24.gen_k3n(body); launches.append((n, 224, 256, lds)); descs.append(descriptor(n, 256, 100, 256))
    n, lds = k24.gen_gemm64(body, 'k4'); launches.append((n, 224, 256, lds)); descs.append(descriptor(n, 256, 100, 256))
    out = HEADER
    for n, g, b, lds in launches:
        out += f"; @launch kernel={n} grid=({g},1,1) block=({b},1,1) lds={lds}\n"
    out += '.amdgcn_target "amdgcn-amd-amdhsa--gfx950"\n.text\n'
    out += body.text()
    out += 'CODE_END:\n    s_endpgm\n'
    out += '.section .rodata,"a"\n.p2align 6\n'
    out += "\n.p2align 6\n".join(descs)
    return out

if __name__ == "__main__":
    dbg = sys.argv[2] if len(sys.argv) > 2 and sys.argv[2] != "none" else None
    k1.OPT['bias'] = 91
    k1.OPT['thr'] = 151
    k1.OPT['order'] = 'grp'
    k1.OPT['wmerge'] = 4; k1d.LEAD = 7; k1.OPT['kdma'] = [1,2,6,10,14]; k1.OPT['vdma'] = [17,18,22,26,30]
    k1.OPT['pstore'] = 'sc1'
    k0.YSTORE = 'sc1'
    k2r.PF = None; k2r.PNT = 'nt'; k1.OPT['pfw1'] = 1
    k0.PFW = True; k0.K0_GRID = 368
    k1.OPT['pfkv'] = 0; k1.OPT['pfmall'] = 0
    for kv in sys.argv[3:]:
        k_, v_ = kv.split("=")
        if k_ == 'nopf':
            k0.PFW = False; k0.K0_GRID = 298; k2r.PF = None; k24.PFW2 = False; k1.OPT['pfwo'] = 0
            continue
        if k_ == 'fuse3':
            FUSE3 = True
            continue
        if k_ == 'kdbg':
            k0.KDBG = int(v_)
            continue
        if k_ == 'ystore':
            k0.YSTORE = v_
            continue
        if k_ == 'lead':
            k1.LEAD = int(v_); k1b.LEAD = int(v_); k1d.LEAD = int(v_)
            continue
        if k_ == 'm16':
            M16 = bool(int(v_))
            continue
        if k_ == 'k2pf':
            k2r.PF = None if v_ == 'none' else v_
            continue
        if k_ == 'pnt':
            k2r.PNT = v_
            continue
        if k_ == 'merge':
            MERGE = True
            continue
        if k_ == 'pfcode':
            k0.PFCODE = bool(int(v_))
            continue
        if k_ == 'k3pre':
            k24.K3_PRE = int(v_)
            continue
        if k_ == 'gd': k24.GD = int(v_); continue
        if k_ == 'dbg24': k24.DBG = True; k3m.DBG = True; k2r.DBG = True; continue
        if k_ == 'pf': k0.PREFETCH = True; k0.K0_GRID = 138; continue
        k1.OPT[k_] = eval(v_)
    open(sys.argv[1], "w").write(build(dbg))
```

```python
from asmlib import *
from layout import *
import k1
from k1 import (Lgkm, mfma, f2u, AQ, NRING, AK, AV, SRD_K, SRD_V, SRD_WQ, SRD_Y, SRD_M,
                S_W, S_KOFF, S_M0K, S_M0V, S_CNT, S_THR, THR_LOG2, OPT, distribute)

K1_LDS = 163840
SRD_WO = 16
KPIECE = 1056
KSLOT = 16*KPIECE
VBASE = 4*KSLOT
VSLOT = 16384
MODL = VBASE + 4*VSLOT
SPARE = MODL + 4096
WSLOT = [0, 28672, MODL, VBASE, VBASE+28672]
O0 = 128
S_ = [96, 112]
NEGM = 80
P_ = [64, 72]
T_ = 56
L_ = [[60, 61], [62, 63]]
VKR = [2, 3]
VVR = [4, 5, 6, 7]
VKD = [8, 9, 10, 11]
VVD = [12, 13, 14, 15]
LEAD = 6

def m16(d, A_, B_, C_):
    return f"v_mfma_f32_16x16x32_bf16 {d}, {A_}, {B_}, {C_}"

def vread(slot, db, u, ring):
    return f"ds_read_b64_tr_b16 {a(AV+4*ring+2*u,2)}, v{VVR[db & 3]} offset:{slot*VSLOT + u*8192 + (db >> 2)*256}"

def kread(slot, kb, ks, ring):
    return f"ds_read_b128 {a(AK+4*ring,4)}, v{VKR[(ks >> 1) & 1]} offset:{slot*KSLOT + kb*8448 + ks*64}"

def softmax_ops(Sr, Pw, Lold, Lnew):
    ops = []
    def info(j):
        kb, qb, hf = j >> 2, (j >> 1) & 1, j & 1
        return (kb*2+qb)*4 + 2*hf, qb*4 + 2*kb + hf, qb, (kb == 0 and hf == 0)
    def pairtail(j):
        t0, t1 = T_ + 2*(j & 1), T_ + 2*(j & 1) + 1
        si, pi, qb, first = info(j)
        src = Lold[qb] if first else Lnew[qb]
        return [(1, f"v_add_f32 v{Lnew[qb]}, v{src}, v{t0}"),
                (1, f"v_add_f32 v{Lnew[qb]}, v{Lnew[qb]}, v{t1}"),
                (1, f"v_cvt_pk_bf16_f32 v{Pw+pi}, v{t0}, v{t1}")]
    for j in range(8):
        t0, t1 = T_ + 2*(j & 1), T_ + 2*(j & 1) + 1
        si = info(j)[0]
        ops.append((2, f"v_exp_f32 v{t0}, v{Sr+si}"))
        ops.append((2, f"v_exp_f32 v{t1}, v{Sr+si+1}"))
        if j > 0: ops += pairtail(j-1)
    ops += pairtail(7)
    return ops

def reads_for_pos(ph, p, do_pv, do_qk, nxt_pv, nxt_qk):
    if p >= 32:
        ph2, p2, pv, qk = (ph+1) % 4, p-32, nxt_pv, nxt_qk
    else:
        ph2, p2, pv, qk = ph, p, do_pv, do_qk
    if p2 < 16:
        if not pv: return []
        return [((p2, u), vread(ph2, p2, u, p2 % NRING)) for u in range(2)]
    if not qk: return []
    n = p2-16
    return [((p2, 0), kread((ph2+2) % 4, n & 1, n >> 1, n % NRING))]

def iteration(A, ph, tag, do_qk=True, do_sm=True, dma_k=True, dma_v=True,
              nxt_pv=True, nxt_qk=True, vmwait=8, barrier=True, extra=None, first=False):
    Sw, Sr = S_[ph % 2], S_[(ph+1) % 2]
    Pr, Pw = P_[ph % 2], P_[(ph+1) % 2]
    Lold, Lnew = L_[ph % 2], L_[(ph+1) % 2]
    pend = []
    for p in range(LEAD):
        pend += [t for t, _ in reads_for_pos(ph, p, True, do_qk, True, True)]
    lg = Lgkm(A, pend)
    gaps = [[] for _ in range(32)]
    if barrier:
        gaps[0] += [f"s_waitcnt vmcnt({vmwait})", "s_barrier"]
    if dma_k:
        kp = OPT.get('kdma', [10, 11, 13, 15, 17])
        gaps[kp[0]].append(f"s_add_u32 m0, s{S_M0K}, {((ph+1) % 4)*KSLOT}")
        for n in range(4):
            gaps[kp[1+n]].append(f"buffer_load_dwordx4 v{VKD[n]}, s[{SRD_K}:{SRD_K+3}], s{S_KOFF} offen offset:{n*KPIECE} lds")
    if dma_v:
        vp = OPT.get('vdma', [18, 19, 21, 23, 25])
        gaps[vp[0]].append(f"s_add_u32 m0, s{S_M0V}, {((ph+3) % 4)*VSLOT}")
        for n in range(4):
            gaps[vp[1+n]].append(f"buffer_load_dwordx4 v{VVD[n]}, s[{SRD_V}:{SRD_V+3}], s{S_KOFF} offen offset:{n*1024} lds")
    gaps[31].append(f"s_add_u32 s{S_KOFF}, s{S_KOFF}, 16384")
    if extra:
        for g_, l_ in extra.items(): gaps[g_] += l_
    def cst(t):
        if t.startswith('v_exp'): return 2
        if t.startswith('buffer_load'): return OPT.get('dmacost', 3)
        return 1
    if do_sm:
        if OPT.get('level', 1):
            WM_ = OPT.get('wmerge', 2)
            fixed = []
            for p in range(32):
                f_ = len(reads_for_pos(ph, p+LEAD, True, do_qk, nxt_pv, nxt_qk)) + sum(cst(t) for t in gaps[p])
                if (p+1) % WM_ == 0: f_ += 1
                fixed.append(f_)
            ops = softmax_ops(Sr, Pw, Lold, Lnew)
            lo, hi = OPT.get('smlo', 3), 29
            total = sum(c for c, _ in ops) + sum(fixed[lo:hi+1])
            tgt = total / (hi-lo+1)
            g = lo; cum_t = 0.0; cum = 0.0
            load = [fixed[p] for p in range(32)]
            budget = 0.0
            i_ = 0
            for p in range(lo, hi+1):
                budget += tgt - fixed[p]
                while i_ < len(ops) and (budget >= ops[i_][0]*0.5 or p == hi):
                    gaps[p].append(ops[i_][1]); budget -= ops[i_][0]; i_ += 1
            assert i_ == len(ops)
        else:
            sm = distribute(softmax_ops(Sr, Pw, Lold, Lnew), OPT.get('smlo', 3), 29)
            for g in range(32): gaps[g] += sm[g]
        gaps[30].append(f"v_max_f32 v{T_}, v{Lnew[0]}, v{Lnew[1]}")
        gaps[31].append(f"v_cmp_lt_f32 vcc, s{S_THR}, v{T_}")
    for p in range(32):
        WM = OPT.get('wmerge', 2)
        if p % WM == 0:
            w = lg.need({(p+x, u) for x in range(WM) for u in range(2)})
            if w: A.e(w)
        F = []
        for t, txt in reads_for_pos(ph, p+LEAD, True, do_qk, nxt_pv, nxt_qk):
            F.append(txt)
            lg.issue((t[0] + (32 if p+LEAD >= 32 else 0), t[1]))
        F += gaps[p]
        M = []
        if p < 16:
            for qb in range(2):
                acc = v(O0+(p*2+qb)*4, 4)
                M.append(m16(acc, a(AV+4*(p % NRING), 4), v(Pr+4*qb, 4), "0" if first else acc))
        elif do_qk:
            n = p-16; ks, kb = n >> 1, n & 1
            for qb in range(2):
                d = v(Sw+(kb*2+qb)*4, 4)
                M.append(m16(d, a(AK+4*(n % NRING), 4), a(AQ+(qb*8+ks)*4, 4), v(NEGM+4*qb, 4) if ks == 0 else d))
        if len(M) == 2:
            def cst(t): return 2 if (t.startswith('v_exp') or t.startswith('buffer_load')) else 1
            tot = sum(cst(t) for t in F); acc_ = 0; h = 0
            for t in F:
                if acc_ + cst(t) > (tot+1)//2: break
                acc_ += cst(t); h += 1
            A.e(M[0])
            for txt in F[:h]: A.e(txt)
            A.e(M[1])
            for txt in F[h:]: A.e(txt)
        else:
            for txt in F: A.e(txt)
    if do_sm:
        A.e(f"s_cbranch_vccnz RARE_{tag}")
        A.label(f"CONT_{tag}")

def xlane(A, r, tmp, op):
    A.e(f"v_mov_b32 v{tmp}, v{r}")
    A.e("s_nop 1")
    A.e(f"v_permlane16_swap_b32 v{r}, v{tmp}")
    A.e("s_nop 1")
    A.e(f"{op} v{r}, v{r}, v{tmp}")
    A.e(f"v_mov_b32 v{tmp}, v{r}")
    A.e("s_nop 1")
    A.e(f"v_permlane32_swap_b32 v{r}, v{tmp}")
    A.e("s_nop 1")
    A.e(f"{op} v{r}, v{r}, v{tmp}")

def rare_path(A, ph, tag, do_qk=True):
    Sn, Sr = S_[ph % 2], S_[(ph+1) % 2]
    Pw = P_[(ph+1) % 2]
    Lold, Lnew = L_[ph % 2], L_[(ph+1) % 2]
    DL = [16, 17]; FF = [18, 19]; t1, t2, t3 = 20, 21, 22
    A.label(f"RARE_{tag}")
    A.e("s_nop 15")
    A.e("s_nop 15")
    for qb in range(2):
        regs = [Sr+(kb*2+qb)*4+r for kb in range(2) for r in range(4)]
        d = DL[qb]
        A.e(f"v_max3_f32 v{d}, v{regs[0]}, v{regs[1]}, v{regs[2]}")
        A.e(f"v_max3_f32 v{d}, v{d}, v{regs[3]}, v{regs[4]}")
        A.e(f"v_max3_f32 v{d}, v{d}, v{regs[5]}, v{regs[6]}")
        A.e(f"v_max_f32 v{d}, v{d}, v{regs[7]}")
        xlane(A, d, t1, "v_max_f32")
        A.e(f"v_mov_b32 v{t2}, v{Lold[qb]}")
        xlane(A, t2, t1, "v_add_f32")
        A.e(f"v_log_f32 v{t2}, v{t2}")
        A.e("s_nop 0")
        A.e(f"v_max_f32 v{d}, v{d}, v{t2}")
        if OPT['bias']:
            A.e(f"v_add_f32 v{d}, {f2u(float(OPT['bias'])):#x}, v{d}")
        A.e(f"v_max_f32 v{d}, 0, v{d}")
        A.e(f"v_mul_f32 v{FF[qb]}, -0.5, v{d}")
        A.e(f"v_exp_f32 v{FF[qb]}, v{FF[qb]}")
        A.e("s_nop 0")
    for rep in range(2):
        for db in range(16):
            for qb in range(2):
                for r in range(4):
                    x = O0+(db*2+qb)*4+r
                    A.e(f"v_mul_f32 v{x}, v{x}, v{FF[qb]}")
    for qb in range(2):
        A.e(f"v_mul_f32 v{Lold[qb]}, v{Lold[qb]}, v{FF[qb]}")
        A.e(f"v_mul_f32 v{Lold[qb]}, v{Lold[qb]}, v{FF[qb]}")
        for r in range(4):
            A.e(f"v_sub_f32 v{NEGM+4*qb+r}, v{NEGM+4*qb+r}, v{DL[qb]}")
        for kb in range(2):
            for r in range(4):
                if do_qk:
                    x = Sn+(kb*2+qb)*4+r
                    A.e(f"v_sub_f32 v{x}, v{x}, v{DL[qb]}")
                x = Sr+(kb*2+qb)*4+r
                A.e(f"v_sub_f32 v{x}, v{x}, v{DL[qb]}")
    for c, t in softmax_ops(Sr, Pw, Lold, Lnew):
        A.e(t)
    A.e("s_nop 1")
    A.e(f"s_branch CONT_{tag}")

class Vm:
    def __init__(self): self.q = []
    def issue(self, tag): self.q.append(tag)
    def need(self, tags):
        idx = -1
        for i, t in enumerate(self.q):
            if t in tags: idx = i
        if idx < 0: return None
        n = len(self.q) - 1 - idx
        self.q = self.q[idx+1:]
        assert n <= 63
        return f"s_waitcnt vmcnt({n})"

def gen_k1(A, dbg=None):
    name = "k1_attn_kernel"
    kernel_begin(A, name)
    ST = Stamps(A, dbg == "time", wg=9, wave_sgpr=S_W)
    A.e("s_cmp_ge_u32 s2, 256")
    A.e("s_cbranch_scc1 K1_END")
    ST.stamp()
    A.e("s_load_dwordx4 s[36:39], s[0:1], 8")
    A.e("s_load_dwordx4 s[40:43], s[0:1], 24")
    A.e("s_load_dwordx2 s[60:61], s[0:1], 96")
    A.e("v_and_b32 v1, 63, v0")
    A.e("v_lshrrev_b32 v14, 6, v0")
    A.e("s_nop 0")
    A.e(f"v_readfirstlane_b32 s{S_W}, v14")
    A.e("s_and_b32 s44, s2, 7")
    A.e("s_lshr_b32 s45, s2, 3")
    A.e("s_lshl_b32 s45, s45, 1")
    A.e(f"s_and_b32 s46, s{S_W}, 1")
    A.e("s_add_u32 s45, s45, s46")
    A.e(f"s_lshr_b32 s47, s{S_W}, 1")
    A.e("v_bfe_u32 v14, v1, 2, 1")
    A.e("v_bfe_u32 v15, v1, 3, 1")
    A.e("v_and_b32 v12, 3, v1")
    A.e("v_lshlrev_b32 v12, 4, v12")
    A.e("v_lshrrev_b32 v13, 4, v1")
    A.e("v_lshl_add_u32 v12, v13, 7, v12")
    for n in range(4):
        A.e(f"v_xor_b32 v13, {n & 1}, v14")
        A.e(f"v_lshl_add_u32 v13, v13, 6, v12")
        A.e(f"v_lshl_add_u32 v13, v15, 13, v13")
        A.e(f"v_add_u32 v{2+n}, {2*n*8192 - n*1024}, v13")
    def tr_bases(dst, swap, add, ta, tb, tc):
        A.e(f"v_lshrrev_b32 v{tb}, 5, v1")
        A.e(f"v_lshlrev_b32 v{ta}, 11, v{tb}")
        A.e(f"v_bfe_u32 v{tb}, v1, 3, 1")
        A.e(f"v_lshl_add_u32 v{ta}, v{tb}, 10, v{ta}")
        A.e(f"v_bfe_u32 v{tc}, v1, 2, 1")
        A.e(f"v_lshl_add_u32 v{ta}, v{tc}, 7, v{ta}")
        A.e(f"v_bfe_u32 v{tc}, v1, 4, 1")
        A.e(f"v_lshl_add_u32 v{ta}, v{tc}, 5, v{ta}")
        if swap:
            A.e(f"v_and_b32 v{tc}, 1, v1")
            A.e(f"v_lshl_add_u32 v{ta}, v{tc}, 4, v{ta}")
            A.e(f"v_bfe_u32 v{tc}, v1, 1, 1")
            A.e(f"v_lshl_add_u32 v{ta}, v{tc}, 3, v{ta}")
        else:
            A.e(f"v_and_b32 v{tc}, 3, v1")
            A.e(f"v_lshl_add_u32 v{ta}, v{tc}, 3, v{ta}")
        A.e(f"v_add_u32 v{ta}, {add}, v{ta}")
        A.e(f"v_lshl_add_u32 v{dst[0]}, v{tb}, 6, v{ta}")
        A.e(f"v_xor_b32 v{tb}, 1, v{tb}")
        A.e(f"v_lshl_add_u32 v{dst[1]}, v{tb}, 6, v{ta}")
    A.e("s_lshl_b32 s48, s47, 14")
    tr_bases([6, 7], True, "s48", 13, 14, 15)
    A.e("v_add_u32 v8, 0x10000, v6")
    A.e("v_add_u32 v9, 0x10000, v7")
    WQR = [[6, 7], [8, 9]]
    A.e("v_lshlrev_b32 v12, 4, v1")
    A.e("v_lshrrev_b32 v13, 5, v1")
    A.e("v_lshlrev_b32 v13, 4, v13")
    A.e(f"v_add_u32 v13, {MODL}, v13")
    A.e(f"s_lshl_b32 s49, s46, 17")
    A.e("s_lshl_b32 s50, s47, 9")
    A.e("s_add_u32 s49, s49, s50")
    A.e(f"s_lshl_b32 s48, s{S_W}, 13")
    A.e("s_waitcnt lgkmcnt(0)")
    A.e("s_lshl_b32 s50, s44, 20")
    A.e("s_add_u32 s36, s36, s50")
    A.e("s_addc_u32 s37, s37, 0")
    A.e("s_sub_u32 s52, s36, 128")
    A.e("s_subb_u32 s53, s37, 0")
    srd(A, SRD_K, "s52", "s53", 1048576+128)
    A.e("s_add_u32 s38, s38, s50")
    A.e("s_addc_u32 s39, s39, 0")
    A.e("s_sub_u32 s52, s38, 32768")
    A.e("s_subb_u32 s53, s39, 0")
    srd(A, SRD_V, "s52", "s53", 1048576+32768)
    A.e("s_lshl_b32 s50, s44, 10")
    A.e("s_add_u32 s40, s40, s50")
    A.e("s_addc_u32 s41, s41, 0")
    A.e(f"s_sub_u32 s51, {448*8192}, s50")
    srd(A, SRD_WQ, "s40", "s41", "s51")
    A.e("s_mul_i32 s50, s45, 28672")
    A.e(f"s_add_u32 s50, s50, {Y_OFF}")
    A.e("s_add_u32 s52, s60, s50")
    A.e("s_addc_u32 s53, s61, 0")
    srd(A, SRD_Y, "s52", "s53", 28672)
    srd(A, SRD_M, "s60", "s61", 3584)
    YR = 16
    TG = 64
    TU = 96
    def yreg(f): return YR + 4*(f % 12)
    vm = Vm()
    def y_load(f):
        vm.issue(('y', f))
        return [f"s_mov_b32 s50, {(f//4)*4096}",
                f"buffer_load_dwordx4 {v(yreg(f),4)}, v12, s[{SRD_Y}:{SRD_Y+3}], s50 offen offset:{(f%4)*1024}"]
    def wslot(s): return (s+2) % 4
    def wq_dma(s):
        out = []
        for grp in range(2):
            out.append(f"s_add_u32 m0, s48, {wslot(s)*32768 + grp*4096}")
            out.append(f"s_add_u32 s50, s49, {s*262144 + grp*65536}")
            for n in range(4):
                out.append(f"buffer_load_dwordx4 v{2+n}, s[{SRD_WQ}:{SRD_WQ+3}], s50 offen offset:{n*1024} lds")
                vm.issue(('wq', s))
        return out
    for f in range(4):
        for t in y_load(f): A.e(t)
    A.e(f"s_lshl_b32 s50, s{S_W}, 10")
    A.e(f"s_add_u32 m0, s50, {MODL}")
    A.e("s_nop 0")
    A.e(f"buffer_load_dwordx4 v12, s[{SRD_M}:{SRD_M+3}], s50 offen lds")
    vm.issue('mod')
    for t in wq_dma(0): A.e(t)
    for s_ in (1, 2):
        for f in (2*s_+2, 2*s_+3):
            for t in y_load(f): A.e(t)
        for t in wq_dma(s_): A.e(t)
    lg = Lgkm(A)
    def ln_ops(f):
        b = TG + 16*(f & 1)
        rd = [(('m', f, 0), f"ds_read_b128 {v(b,4)}, v13 offset:{1792+f*64}"),
              (('m', f, 1), f"ds_read_b128 {v(b+4,4)}, v13 offset:{1792+f*64+32}"),
              (('m', f, 2), f"ds_read_b128 {v(b+8,4)}, v13 offset:{f*64}"),
              (('m', f, 3), f"ds_read_b128 {v(b+12,4)}, v13 offset:{f*64+32}")]
        tu = TU + 8*(f & 1)
        va = []
        for d in range(4):
            r = yreg(f)+d
            va.append(f"v_lshlrev_b32 v{tu+2*d}, 16, v{r}")
            va.append(f"v_and_b32 v{tu+2*d+1}, 0xffff0000, v{r}")
        vb = []
        for d in range(4):
            vb.append(f"v_pk_fma_f32 {v(tu+2*d,2)}, {v(tu+2*d,2)}, {v(b+2*d,2)}, {v(b+8+2*d,2)}")
        for d in range(4):
            vb.append(f"v_cvt_pk_bf16_f32 v{yreg(f)+d}, v{tu+2*d}, v{tu+2*d+1}")
        return rd, va, vb
    w = vm.need({('y', 0), ('y', 1), 'mod', ('wq', 0)})
    A.e(w)
    A.e("s_barrier")
    ST.stamp()
    for f in (0, 1):
        rd, va, vb = ln_ops(f)
        for t, txt in rd: A.e(txt); lg.issue(t)
        for txt in va: A.e(txt)
        A.e(lg.need({('m', f, 3)}))
        for txt in vb: A.e(txt)
    QL = OPT.get('ql', 4)
    def q_reads(s, p):
        if p >= 16:
            s, p = s+1, p-16
            if s >= 14: return []
        db, ks = p >> 1, p & 1
        sl = wslot(s)
        o = []
        for u in range(2):
            off = (sl & 1)*32768 + ks*8192 + u*4096 + (db >> 1)*256
            o.append((('q', s, p, u), f"ds_read_b64_tr_b16 {a(AV+4*(p % NRING)+2*u,2)}, v{WQR[sl >> 1][db & 1]} offset:{off}"))
        return o
    for p in range(QL):
        for t, txt in q_reads(0, p):
            A.e(txt); lg.issue(t)
    def k_dma(blk):
        out = [f"s_add_u32 m0, s{S_M0K}, {(blk % 4)*KSLOT}", f"s_mov_b32 s50, {blk*16384}"]
        for n in range(4):
            out.append(f"buffer_load_dwordx4 v{VKD2[n]}, s[{SRD_K}:{SRD_K+3}], s50 offen offset:{n*KPIECE} lds")
            vm.issue(('k', blk))
        return out
    def v_dma(blk):
        out = [f"s_add_u32 m0, s{S_M0V}, {(blk % 4)*VSLOT}", f"s_mov_b32 s50, {blk*16384+32768}"]
        for n in range(4):
            out.append(f"buffer_load_dwordx4 v{VVD2[n]}, s[{SRD_V}:{SRD_V+3}], s50 offen offset:{n*1024} lds")
            vm.issue(('v', blk))
        return out
    VKD2 = [112, 113, 114, 115]
    VVD2 = [116, 117, 118, 119]
    def kv_addr_setup():
        o = []
        e = o.append
        e("v_lshrrev_b32 v120, 5, v1")
        e("v_and_b32 v121, 31, v1")
        e("v_lshlrev_b32 v122, 3, v120")
        e("v_xor_b32 v121, v121, v122")
        e("v_lshlrev_b32 v121, 4, v121")
        e("v_lshl_add_u32 v121, v120, 9, v121")
        e(f"s_lshl_b32 s51, s{S_W}, 12")
        e("s_add_u32 s54, s51, 128")
        e(f"v_add_u32 v{VKD2[0]}, s54, v121")
        for n in range(1, 4):
            e(f"v_subrev_u32 v{VKD2[n]}, {32*n}, v{VKD2[0]}")
        e("v_bfe_u32 v120, v1, 3, 1")
        e("v_lshlrev_b32 v121, 9, v120")
        e("v_lshrrev_b32 v120, 4, v1")
        e("v_lshl_add_u32 v121, v120, 7, v121")
        e("v_add_u32 v121, s51, v121")
        e("v_and_b32 v120, 7, v1")
        for n in range(4):
            e(f"v_xor_b32 v122, {2*n}, v120")
            e(f"v_lshl_add_u32 v{VVD2[n]}, v122, 4, v121")
        e(f"s_add_u32 s{S_M0V}, s51, {VBASE}")
        e(f"s_mul_i32 s{S_M0K}, s{S_W}, {4*KPIECE}")
        return o
    for t in kv_addr_setup(): A.e(t)
    for s_ in range(14):
        gaps = [[] for _ in range(16)]
        needs = set()
        if s_+1 < 14: needs |= {('wq', s_+1), ('y', 2*s_+2), ('y', 2*s_+3)}
        w = vm.need(needs) if needs else None
        if s_ < 13 or True:
            gaps[0] += ([w] if w else []) + ["s_barrier"]
        fill = []
        for f in (2*s_+8, 2*s_+9):
            if f < 28: fill += y_load(f)
        if s_+3 < 14: fill += wq_dma(s_+3)
        if s_ == 12:
            for blk in (0, 1, 2): fill += k_dma(blk)
        if s_ == 13:
            fill += k_dma(3) + v_dma(0)
        if OPT.get('q_nodma'): fill = [t for t in fill if 'buffer_load' not in t or 'K' in t]
        n = len(fill)
        for i, t in enumerate(fill):
            gaps[1 + (i*14)//max(n, 1)].append(t)
        lnseq = []
        if s_+1 < 14 and not OPT.get('q_noln'):
            r0, a0, b0 = ln_ops(2*s_+2)
            r1, a1, b1 = ln_ops(2*s_+3)
            lnseq = [('rd', r0), ('v', a0), ('rd', r1), ('need', 2*s_+2), ('v', b0), ('v', a1), ('need', 2*s_+3), ('v', b1)]
        items = []
        for kind, x in lnseq:
            if kind == 'rd':
                for t, txt in x: items.append(('rd', t, txt))
            elif kind == 'v':
                for txt in x: items.append(('v', None, txt))
            else:
                items.append(('need', x, None))
        lgaps = [[] for _ in range(16)]
        for i, it in enumerate(items):
            lgaps[1 + (i*14)//max(len(items), 1)].append(it)
        for p in range(16):
            if OPT.get('q_mw', 0):
                w2 = lg.need({('q', s_, p, 0), ('q', s_, p, 1), ('q', s_, p+1, 0), ('q', s_, p+1, 1)}) if p % 2 == 0 else None
            else:
                w2 = lg.need({('q', s_, p, 0), ('q', s_, p, 1)})
            if w2: A.e(w2)
            db, ks = p >> 1, p & 1
            acc = v(O0+16*db, 16)
            first = (s_ == 0 and ks == 0)
            if OPT.get('fakeq16'):
                for hh in range(2):
                    a4 = v(O0+16*db+8*ks+4*hh, 4)
                    A.e(m16(a4, a(AV+4*(p % NRING), 4), v(yreg(2*s_+hh), 4), "0" if s_ == 0 else a4))
            else:
                A.e(mfma(acc, a(AV+4*(p % NRING), 4), v(yreg(2*s_+ks), 4), "0" if first else acc))
            for t, txt in q_reads(s_, p+QL):
                A.e(txt); lg.issue(t)
            for txt in gaps[p]: A.e(txt)
            for kind, t, txt in lgaps[p]:
                if kind == 'rd':
                    A.e(txt); lg.issue(t)
                elif kind == 'v':
                    A.e(txt)
                else:
                    w3 = lg.need({('m', t, 3)})
                    if w3: A.e(w3)
    ST.stamp()
    A.e("s_barrier")
    for n in range(4): A.e(f"v_mov_b32 v{VKD[n]}, v{VKD2[n]}")
    for n in range(4): A.e(f"v_mov_b32 v{VVD[n]}, v{VVD2[n]}")
    A.e("v_bfe_u32 v16, v1, 1, 3")
    A.e(f"v_mul_u32_u24 v16, {KPIECE}, v16")
    A.e("v_and_b32 v17, 1, v1")
    A.e("v_lshl_add_u32 v16, v17, 9, v16")
    A.e("v_lshrrev_b32 v18, 4, v1")
    A.e("v_lshl_add_u32 v16, v18, 4, v16")
    A.e("v_lshlrev_b32 v17, 7, v17")
    A.e(f"v_add_u32 v{VKR[0]}, v16, v17")
    A.e(f"v_sub_u32 v{VKR[1]}, v16, v17")
    A.e("v_bfe_u32 v17, v1, 3, 1")
    A.e("v_lshl_add_u32 v19, v18, 1, v17")
    A.e("v_lshlrev_b32 v16, 10, v19")
    A.e("v_bfe_u32 v17, v1, 2, 1")
    A.e("v_lshl_add_u32 v16, v17, 7, v16")
    A.e("v_and_b32 v17, 3, v1")
    A.e("v_lshl_add_u32 v16, v17, 3, v16")
    A.e(f"v_add_u32 v16, {VBASE}, v16")
    A.e("v_and_b32 v19, 3, v19")
    for sx in range(4):
        A.e(f"v_xor_b32 v17, {sx}, v19")
        A.e(f"v_lshl_add_u32 v{VVR[sx]}, v17, 5, v16")
    A.e(f"s_add_u32 s50, s{S_W}, 1")
    A.e("s_lshl_b32 s50, s50, 14")
    A.e(f"s_add_u32 s50, s50, {VBASE}")
    A.e(f"s_cmp_eq_u32 s{S_W}, 3")
    A.e(f"s_cselect_b32 s50, {SPARE}, s50")
    A.e("v_and_b32 v16, 31, v1")
    A.e("v_lshlrev_b32 v17, 9, v16")
    A.e("v_and_b32 v16, 15, v1")
    A.e("v_lshrrev_b32 v18, 5, v1")
    A.e("v_xor_b32 v18, v18, v16")
    A.e("v_lshl_add_u32 v17, v18, 4, v17")
    A.e("v_add_u32 v20, s50, v17")
    A.e("v_lshlrev_b32 v17, 9, v16")
    A.e("v_lshrrev_b32 v18, 4, v1")
    A.e("v_xor_b32 v18, v18, v16")
    A.e("v_lshl_add_u32 v17, v18, 4, v17")
    A.e("v_add_u32 v21, s50, v17")
    for fr in range(16):
        base = O0 + 8*fr
        dst = 24 + 4*(fr & 3)
        for r in range(4):
            A.e(f"v_cvt_pk_bf16_f32 v{dst+r}, v{base+2*r}, v{base+2*r+1}")
        A.e(f"v_xor_b32 v{40+(fr & 3)}, {32*fr}, v20")
        A.e(f"ds_write_b128 v{40+(fr & 3)}, {v(dst,4)}")
    A.e("s_waitcnt lgkmcnt(0)")
    for ks in range(8):
        A.e(f"v_xor_b32 v{40+(ks & 3)}, {64*ks}, v21")
        for qb in range(2):
            A.e(f"ds_read_b128 {a(AQ+(qb*8+ks)*4,4)}, v{40+(ks & 3)} offset:{qb*8192}")
    A.e("s_waitcnt lgkmcnt(0)")
    A.e(vm.need({('k', 0), ('k', 1)}))
    A.e("s_barrier")
    VKD2[:] = VKD; VVD2[:] = VVD
    for t in v_dma(1): A.e(t)
    lg = Lgkm(A)
    seq = [(b, n) for b in range(2) for n in range(16)]
    KL = 4
    for i in range(KL):
        b, n = seq[i]
        A.e(kread(b, n & 1, n >> 1, i % NRING)); lg.issue(i)
    zero = [f"v_mov_b32 v{O0+r}, 0" for r in range(128)]
    for i, (b, n) in enumerate(seq):
        w = lg.need({i})
        if w: A.e(w)
        ks, kb = n >> 1, n & 1
        for qb in range(2):
            d = v(S_[b]+(kb*2+qb)*4, 4)
            A.e(m16(d, a(AK+4*(i % NRING), 4), a(AQ+(qb*8+ks)*4, 4), "0" if ks == 0 else d))
        if i+KL < 32:
            b2, n2 = seq[i+KL]
            A.e(kread(b2, n2 & 1, n2 >> 1, (i+KL) % NRING)); lg.issue(i+KL)
    A.e("s_barrier")
    for t in v_dma(2): A.e(t)
    for t in k_dma(4): A.e(t)
    A.e(f"s_mov_b32 s{S_KOFF}, {5*16384}")
    A.e(f"s_mov_b32 s{S_THR}, {f2u(2.0**(OPT.get('thr', THR_LOG2)-OPT['bias'])):#x}")
    A.e("s_nop 7")
    for qb in range(2):
        regs = [S_[b]+(kb*2+qb)*4+r for b in range(2) for kb in range(2) for r in range(4)]
        d = 16+qb
        A.e(f"v_max3_f32 v{d}, v{regs[0]}, v{regs[1]}, v{regs[2]}")
        for j in range(3, 15, 2):
            A.e(f"v_max3_f32 v{d}, v{d}, v{regs[j]}, v{regs[j+1]}")
        A.e(f"v_max_f32 v{d}, v{d}, v{regs[15]}")
        xlane(A, d, 18, "v_max_f32")
        if OPT['bias']:
            A.e(f"v_add_f32 v{d}, {f2u(float(OPT['bias'])):#x}, v{d}")
        for r in range(4):
            A.e(f"v_sub_f32 v{NEGM+4*qb+r}, 0, v{d}")
        for x in regs:
            A.e(f"v_sub_f32 v{x}, v{x}, v{d}")
        A.e(f"v_mov_b32 v{L_[1][qb]}, 0")
    for c, t in softmax_ops(S_[0], P_[0], L_[1], L_[0]):
        A.e(t)
    A.e("s_waitcnt vmcnt(8)")
    A.e("s_barrier")
    ST.stamp()
    if dbg == "time": A.e("s_waitcnt lgkmcnt(0)")
    for p in range(LEAD):
        for t, txt in reads_for_pos(0, p, True, True, True, True):
            A.e(txt)
    if OPT.get('pfkv', 1):
        A.e(f"s_cmp_lt_u32 s{S_W}, 2")
        A.e("s_cselect_b32 s96, s36, s38")
        A.e("s_cselect_b32 s97, s37, s39")
        A.e("s_and_b32 s97, s97, 0xffff")
        A.e("s_mov_b32 s98, 1048576")
        A.e("s_mov_b32 s99, 0x00020000")
        A.e("v_and_b32 v19, 7, v1")
        A.e("v_lshlrev_b32 v19, 7, v19")
        A.e("s_lshr_b32 s50, s2, 3")
        A.e("s_lshl_b32 s50, s50, 11")
        A.e("s_lshl_b32 s51, s46, 10")
        A.e("s_add_u32 s50, s50, s51")
        A.e("v_add_u32 v19, s50, v19")
    if OPT.get('pfmall', 1):
        A.e("s_load_dwordx4 s[52:55], s[0:1], 48")
        A.e("s_waitcnt lgkmcnt(0)")
        A.e("s_cmp_lt_u32 s46, 1")
        A.e("s_cselect_b32 s56, s52, s54")
        A.e("s_cselect_b32 s57, s53, s55")
        A.e("s_and_b32 s57, s57, 0xffff")
        A.e(f"s_mov_b32 s58, {448*3584}")
        A.e("s_mov_b32 s59, 0x00020000")
        A.e("s_mul_i32 s50, s2, 6272")
        A.e("v_lshlrev_b32 v20, 7, v1")
        A.e("v_min_u32 v20, 6144, v20")
        A.e(f"s_cmp_lt_u32 s{S_W}, 2")
        A.e("s_cbranch_scc0 K1_NOMALL")
        A.e("buffer_load_dword v21, v20, s[56:59], s50 offen")
        A.label("K1_NOMALL")
    iteration(A, 0, "F0", first=True)
    for ph in range(1, 4):
        iteration(A, ph, f"F{ph}")
    A.e(f"s_mov_b32 s{S_CNT}, 14")
    A.raw(".p2align 6")
    A.label("K1_LOOP")
    if OPT.get('pfkv', 1):
        A.e(f"s_add_u32 s50, s{S_KOFF}, {7*16384}")
        A.e("buffer_load_dword v22, v19, s[96:99], s50 offen")
    if OPT.get('pfwo', 1):
        A.e(f"s_cmp_lg_u32 s{S_CNT}, 4")
        A.e("s_cbranch_scc1 K1_NOPF")
        A.e(f"s_mul_i32 s50, s44, {512*896}")
        A.e("s_add_u32 s56, s42, s50")
        A.e("s_addc_u32 s57, s43, 0")
        A.e("s_and_b32 s57, s57, 0xffff")
        A.e(f"s_mov_b32 s58, {512*896}")
        A.e("s_mov_b32 s59, 0x00020000")
        A.e("s_lshr_b32 s50, s2, 3")
        A.e("s_mul_i32 s50, s50, 14336")
        A.e("v_lshlrev_b32 v26, 7, v0")
        A.e("v_min_u32 v26, 14208, v26")
        A.e("buffer_load_dword v27, v26, s[56:59], s50 offen")
        A.label("K1_NOPF")
    if OPT.get('pfw1', 0):
        A.e(f"s_cmp_lg_u32 s{S_CNT}, {OPT.get('pfw1')}")
        A.e("s_cbranch_scc1 K1_NOPF1")
        A.e("s_load_dwordx2 s[56:57], s[0:1], 48")
        A.e("s_waitcnt lgkmcnt(0)")
        A.e("s_and_b32 s57, s57, 0xffff")
        A.e(f"s_mov_b32 s58, {448*3584}")
        A.e("s_mov_b32 s59, 0x00020000")
        A.e("s_lshr_b32 s50, s2, 3")
        A.e("s_mul_i32 s50, s50, 50176")
        A.e("v_lshlrev_b32 v26, 7, v0")
        A.e("buffer_load_dword v27, v26, s[56:59], s50 offen")
        A.e("v_add_u32 v26, 32768, v26")
        A.e("v_min_u32 v26, 50048, v26")
        A.e("buffer_load_dword v28, v26, s[56:59], s50 offen")
        A.label("K1_NOPF1")
    for ph in range(4):
        iteration(A, ph, f"M{ph}")
    A.e(f"s_sub_u32 s{S_CNT}, s{S_CNT}, 1")
    A.e(f"s_cmp_lg_u32 s{S_CNT}, 0")
    A.e("s_cbranch_scc1 K1_LOOP")
    if dbg == "time":
        ST.stamp()
    A.e(f"s_mul_i32 s50, s44, {512*896}")
    A.e("s_add_u32 s42, s42, s50")
    A.e("s_addc_u32 s43, s43, 0")
    srd(A, SRD_WO, "s42", "s43", 512*896)
    GOFF = 34
    for n in range(7):
        A.e(f"s_mul_i32 s50, s{S_W}, 7")
        A.e(f"s_add_u32 s50, s50, {n}")
        A.e("s_cmp_ge_u32 s50, 14")
        A.e("s_cselect_b32 s51, 14, 0")
        A.e(f"s_cselect_b32 s52, {16*896}, 0")
        A.e("s_sub_u32 s50, s50, s51")
        A.e("s_and_b32 s51, s50, 1")
        A.e(f"s_mul_i32 s51, s51, {8*896}")
        A.e("s_lshr_b32 s50, s50, 1")
        A.e("s_lshl_b32 s50, s50, 7")
        A.e("s_add_u32 s50, s50, s51")
        A.e(f"s_add_u32 s{GOFF+n}, s50, s52")
    A.e(f"s_mul_i32 s41, s{S_W}, 7168")
    A.e("v_lshrrev_b32 v16, 3, v1")
    A.e("v_mul_u32_u24 v23, 896, v16")
    A.e("v_bfe_u32 v16, v1, 4, 1")
    A.e("v_bfe_u32 v17, v1, 2, 1")
    A.e("v_xor_b32 v16, v16, v17")
    A.e("v_lshl_add_u32 v23, v16, 6, v23")
    A.e("v_and_b32 v16, 3, v1")
    A.e("v_lshl_add_u32 v23, v16, 4, v23")
    vme = Vm()
    def wo_dma(t):
        out = []
        for n in range(7):
            out.append(f"s_add_u32 m0, s41, {WSLOT[t % 5] + n*1024}")
            out.append(f"s_add_u32 s50, s{GOFF+n}, {t*32*896}")
            out.append(f"buffer_load_dwordx4 v23, s[{SRD_WO}:{SRD_WO+3}], s50 offen lds")
            vme.issue(('wo', t))
        return out
    def spread(lst, lo, hi):
        d = {}
        trip = [lst[i:i+3] for i in range(0, len(lst), 3)]
        for i, tr3 in enumerate(trip):
            g = lo + (i*(hi-lo+1))//len(trip)
            d.setdefault(g, []).extend(tr3)
        return d
    iteration(A, 0, "T0", dma_k=False, dma_v=True, vmwait=8)
    iteration(A, 1, "T1", dma_k=False, dma_v=False, vmwait=4, nxt_qk=False)
    iteration(A, 2, "T2", do_qk=False, dma_k=False, dma_v=False, vmwait=0, nxt_qk=False,
              extra=spread(wo_dma(0) + wo_dma(1)[:12], 1, 30))
    vme.q = [('wo', 0)]*7 + [('wo', 1)]*4
    rest1 = []
    for n in range(4, 7):
        rest1 += [f"s_add_u32 m0, s41, {WSLOT[1] + n*1024}", f"s_add_u32 s50, s{GOFF+n}, {32*896}",
                  f"buffer_load_dwordx4 v23, s[{SRD_WO}:{SRD_WO+3}], s50 offen lds"]
        vme.issue(('wo', 1))
    iteration(A, 3, "T3", do_qk=False, do_sm=False, dma_k=False, dma_v=False, nxt_pv=False, nxt_qk=False, barrier=False,
              extra=spread(rest1 + wo_dma(2), 1, 30))
    ST.stamp()
    Lf = L_[1]
    OP = 64
    INV = [16, 17]
    for qb in range(2):
        A.e(f"v_mov_b32 v{INV[qb]}, v{Lf[qb]}")
        xlane(A, INV[qb], 18, "v_add_f32")
        A.e(f"v_rcp_f32 v{INV[qb]}, v{INV[qb]}")
    A.e("s_lshl_b32 s50, s46, 1")
    A.e("s_add_u32 s50, s50, s47")
    A.e("s_lshl_b32 s50, s50, 14")
    A.e(f"s_add_u32 s50, s50, {VBASE}")
    A.e("v_lshlrev_b32 v12, 4, v1")
    A.e("v_and_b32 v18, 15, v1")
    A.e("v_lshlrev_b32 v19, 9, v18")
    A.e("v_lshrrev_b32 v20, 5, v1")
    A.e("v_xor_b32 v20, v20, v18")
    A.e("v_lshl_add_u32 v19, v20, 4, v19")
    A.e("v_bfe_u32 v20, v1, 4, 1")
    A.e("v_lshl_add_u32 v19, v20, 3, v19")
    A.e("v_add_u32 v19, s50, v19")
    A.e("s_barrier")
    for db in range(16):
        A.e(f"v_xor_b32 v{24+(db & 3)}, {32*db}, v19")
        for qb in range(2):
            base = O0+(db*2+qb)*4
            for r in range(4):
                A.e(f"v_mul_f32 v{base+r}, v{base+r}, v{INV[qb]}")
            dst = 32 + 4*(db & 3) + 2*qb
            A.e(f"v_cvt_pk_bf16_f32 v{dst}, v{base}, v{base+1}")
            A.e(f"v_cvt_pk_bf16_f32 v{dst+1}, v{base+2}, v{base+3}")
            A.e(f"ds_write_b64 v{24+(db & 3)}, {v(dst,2)} offset:{qb*8192}")
    A.e("s_waitcnt lgkmcnt(0)")
    A.e("s_barrier")
    A.e("s_lshl_b32 s50, s46, 15")
    A.e(f"s_add_u32 s50, s50, {VBASE}")
    A.e("v_and_b32 v18, 31, v1")
    A.e("v_lshlrev_b32 v19, 9, v18")
    A.e("v_and_b32 v18, 15, v1")
    A.e("v_lshrrev_b32 v20, 5, v1")
    A.e("v_xor_b32 v20, v20, v18")
    A.e("v_lshl_add_u32 v19, v20, 4, v19")
    A.e("v_add_u32 v19, s50, v19")
    for ks in range(16):
        A.e(f"v_xor_b32 v{24+(ks & 3)}, {32*ks}, v19")
        for hd in range(2):
            A.e(f"ds_read_b128 {a(4*(16*hd+ks),4)}, v{24+(ks & 3)} offset:{hd*16384}")
    A.e("v_lshrrev_b32 v16, 5, v1")
    A.e("v_lshlrev_b32 v17, 10, v16")
    A.e("v_bfe_u32 v16, v1, 2, 2")
    A.e("v_lshl_add_u32 v17, v16, 7, v17")
    A.e("v_bfe_u32 v16, v1, 4, 1")
    A.e("v_lshl_add_u32 v17, v16, 5, v17")
    A.e("v_and_b32 v16, 3, v1")
    A.e("v_lshl_add_u32 v17, v16, 3, v17")
    A.e("v_bfe_u32 v16, v1, 3, 1")
    A.e("v_xor_b32 v18, s47, v16")
    A.e("v_lshl_add_u32 v2, v18, 6, v17")
    A.e("v_xor_b32 v18, 1, v18")
    A.e("v_lshl_add_u32 v3, v18, 6, v17")
    A.e(f"s_mul_i32 s50, s47, {3*2048}")
    A.e(f"s_mul_i32 s51, s47, {4*2048}")
    A.e("v_add_u32 v2, s50, v2")
    A.e("v_add_u32 v3, s51, v3")
    A.e(f"v_add_u32 v4, {WSLOT[2]}, v2")
    A.e(f"v_add_u32 v5, {WSLOT[2]}, v3")
    A.e(f"v_add_u32 v6, {WSLOT[3]}, v2")
    A.e(f"v_add_u32 v7, {WSLOT[3]}, v3")
    A.e("s_waitcnt lgkmcnt(0)")
    A.e("s_barrier")
    for t in wo_dma(3) + wo_dma(4): A.e(t)
    def wbase(slot, c):
        e = c & 1
        if slot in (0, 1): return (2+e, WSLOT[slot])
        if slot == 2: return (4+e, 0)
        return (6+e, WSLOT[slot]-WSLOT[3])
    ARG = AV
    ARG = 128
    def o_reads(t, p):
        if p >= 14:
            t, p = t+1, p-14
            if t >= 16: return []
        ksl, c = p // 7, p % 7
        b, off = wbase(t % 5, c)
        o = []
        for u in range(2):
            o.append((('o', t, p, u), f"ds_read_b64_tr_b16 {a(ARG+4*((14*t+p) % NRING)+2*u,2)}, v{b} offset:{off + ksl*14336 + (c >> 1)*2048 + u*512}"))
        return o
    lg = Lgkm(A)
    OL = OPT.get('ol', 4)
    A.e(vme.need({('wo', 0)}))
    A.e("s_barrier")
    for p in range(OL):
        for t_, txt in o_reads(0, p): A.e(txt); lg.issue(t_)
    ACC = O0
    for t in range(16):
        gaps = [[] for _ in range(14)]
        if t+1 < 16:
            w = vme.need({('wo', t+1)})
            gaps[0] += ([w] if w else []) + ["s_barrier"]
        if t >= 1 and t+4 < 16:
            d = wo_dma(t+4)
            sp = spread(d, OPT.get('osp0', 1), OPT.get('osp1', 12))
            for g_, l_ in sp.items(): gaps[g_] += l_
        for p in range(14):
            if OPT.get('omw', 0):
                w2 = lg.need({('o', t, p+x, u) for x in range(2) for u in range(2)}) if p % 2 == 0 else None
            else:
                w2 = lg.need({('o', t, p, 0), ('o', t, p, 1)})
            if w2: A.e(w2)
            ksl, c = p // 7, p % 7
            acc = v(ACC+16*c, 16)
            first = (t == 0 and ksl == 0)
            if OPT.get('fakeo16'):
                for hh in range(2):
                    a4 = v(ACC+16*c+8*ksl+4*hh, 4)
                    A.e(m16(a4, a(ARG+4*((14*t+p) % NRING), 4), a(4*(2*t+hh), 4), "0" if t == 0 else a4))
            else:
                A.e(mfma(acc, a(ARG+4*((14*t+p) % NRING), 4), a(4*(2*t+ksl), 4), "0" if first else acc))
            for t_, txt in o_reads(t, p+OL): A.e(txt); lg.issue(t_)
            for txt in gaps[p]: A.e(txt)
    ST.stamp()
    A.e("s_lshl_b32 s50, s44, 6")
    A.e("s_add_u32 s50, s50, s45")
    A.e("s_mul_i32 s50, s50, 28672")
    A.e(f"s_mul_i32 s51, s47, {14*1024}")
    A.e("s_add_u32 s50, s50, s51")
    A.e(f"s_add_u32 s50, s50, {PART_OFF}")
    A.e("s_add_u32 s52, s60, s50")
    A.e("s_addc_u32 s53, s61, 0")
    srd(A, SRD_Y, "s52", "s53", 14*1024)
    A.e("s_nop 7")
    for fr in range(14):
        dst = OP + 4*(fr % 16)
        for r in range(4):
            A.e(f"v_cvt_pk_bf16_f32 v{dst+r}, v{ACC+8*fr+2*r}, v{ACC+8*fr+2*r+1}")
        if fr % 4 == 0:
            A.e(f"s_mov_b32 s50, {fr*1024}")
        A.e(f"buffer_store_dwordx4 {v(dst,4)}, v12, s[{SRD_Y}:{SRD_Y+3}], s50 offen offset:{(fr%4)*1024} {OPT.get('pstore', '')}")
    ST.finish("K1_END")
    A.label("K1_END")
    A.e("s_endpgm")
    if not OPT['no_sm']:
        for ph in range(4):
            rare_path(A, ph, f"M{ph}")
        for ph in range(4):
            rare_path(A, ph, f"F{ph}")
        rare_path(A, 0, "T0")
        rare_path(A, 1, "T1")
        rare_path(A, 2, "T2", do_qk=False)
    return name
```

```python
from asmlib import *
from layout import *
from k1 import f2u
DBG = False
PF = 'early'
PNT = ''
SMOD = ''
XDIRECT = False

def gen_k2r(A):
    name = "k2_reduce_kernel"
    kernel_begin(A, name)
    A.e("s_cmp_ge_u32 s2, 256")
    A.e("s_cbranch_scc1 K2R_END")
    ST = Stamps(A, DBG, wg=9, wave_sgpr=62, lane_v=101)
    if DBG:
        A.e("v_lshrrev_b32 v100, 6, v0"); A.e("v_and_b32 v101, 63, v0"); A.e("s_nop 0"); A.e("v_readfirstlane_b32 s62, v100")
    ST.stamp()
    A.e("s_load_dwordx2 s[38:39], s[0:1], 96")
    A.e("s_load_dwordx2 s[40:41], s[0:1], 48")
    A.e("s_load_dwordx2 s[46:47], s[0:1], 0")
    A.e("s_and_b32 s29, s2, 7")
    A.e("s_lshr_b32 s30, s2, 3")
    A.e("s_lshl_b32 s29, s29, 3")
    A.e("s_lshr_b32 s31, s30, 2")
    A.e("s_add_u32 s29, s29, s31")
    A.e("s_and_b32 s30, s30, 3")
    A.e("v_and_b32 v2, 7, v0")
    A.e("v_bfe_u32 v3, v0, 3, 1")
    A.e("v_lshrrev_b32 v4, 4, v0")
    A.e("v_lshlrev_b32 v5, 10, v4")
    A.e("v_lshl_add_u32 v5, v3, 9, v5")
    A.e("v_lshl_add_u32 v5, v2, 4, v5")
    A.e("s_lshl_b32 s31, s30, 7")
    A.e("v_add_u32 v5, s31, v5")
    A.e("v_lshlrev_b32 v6, 6, v4")
    A.e("v_lshl_add_u32 v6, v3, 4, v6")
    A.e("s_waitcnt lgkmcnt(0)")
    A.e(f"s_add_u32 s42, s38, {PART_OFF}")
    A.e("s_addc_u32 s43, s39, 0")
    srd(A, 8, "s42", "s43", PART_BYTES)
    if XDIRECT:
        srd(A, 12, "s46", "s47", X_BYTES)
        A.e("s_lshl_b32 s33, s29, 5")
        A.e("s_lshl_b32 s34, s30, 3")
        A.e("s_add_u32 s33, s33, s34")
        A.e("v_add_u32 v13, s33, v2")
        A.e("v_mul_u32_u24 v13, 896, v13")
        A.e("v_lshl_add_u32 v13, v4, 5, v13")
        A.e("v_lshl_add_u32 v13, v3, 3, v13")
    else:
        A.e(f"s_add_u32 s42, s38, {XF_OFF}")
        A.e("s_addc_u32 s43, s39, 0")
        srd(A, 12, "s42", "s43", XF_BYTES)
    srd(A, 16, "s38", "s39", MOD_BYTES)
    A.e("s_mul_i32 s32, s29, 28672")
    for g in range(8):
        A.e(f"s_add_u32 s33, s32, {g*64*28672}")
        A.e(f"buffer_load_dwordx4 {v(16+4*g,4)}, v5, s[8:11], s33 offen {PNT}")
    if XDIRECT:
        A.e("buffer_load_dwordx2 v[48:49], v13, s[12:15], 0 offen")
        A.e("buffer_load_dwordx2 v[50:51], v13, s[12:15], 0 offen offset:16")
    else:
        A.e(f"buffer_load_dwordx4 v[48:51], v5, s[12:15], s32 offen")
    for i, sec in enumerate((2, 4, 3)):
        A.e(f"s_mov_b32 s33, {sec*1792}")
        A.e(f"buffer_load_dwordx4 {v(52+8*i,4)}, v6, s[16:19], s33 offen")
        A.e(f"buffer_load_dwordx4 {v(56+8*i,4)}, v6, s[16:19], s33 offen offset:32")
    if PF == 'early':
        srd(A, 28, "s40", "s41", 448*3584)
        A.e("s_lshr_b32 s33, s2, 3")
        A.e("s_mul_i32 s33, s33, 50176")
        A.e("v_lshlrev_b32 v11, 7, v0")
        A.e("v_min_u32 v11, 50048, v11")
        A.e("buffer_load_dword v12, v11, s[28:31], s33 offen")
    A.e(f"s_add_u32 s42, s38, {X1_OFF}")
    A.e("s_addc_u32 s43, s39, 0")
    srd(A, 20, "s42", "s43", X1_BYTES)
    A.e(f"s_add_u32 s42, s38, {H2_OFF}")
    A.e("s_addc_u32 s43, s39, 0")
    srd(A, 24, "s42", "s43", H2_BYTES)
    ST.stamp()
    for g in range(8):
        A.e(f"s_waitcnt vmcnt({14-g+(1 if PF == 'early' else 0)+(1 if XDIRECT else 0)})")
        for d in range(4):
            r = 16+4*g+d
            if g == 0:
                A.e(f"v_lshlrev_b32 v{80+2*d}, 16, v{r}")
                A.e(f"v_and_b32 v{81+2*d}, 0xffff0000, v{r}")
            else:
                A.e(f"v_lshlrev_b32 v{88+2*d}, 16, v{r}")
                A.e(f"v_and_b32 v{89+2*d}, 0xffff0000, v{r}")
        if g > 0:
            for d in range(4):
                A.e(f"v_pk_add_f32 {v(80+2*d,2)}, {v(80+2*d,2)}, {v(88+2*d,2)}")
    ST.stamp()
    A.e(f"s_waitcnt vmcnt({5 if PF == 'early' else 4})")
    ST.stamp()
    for d in range(4):
        A.e(f"v_lshlrev_b32 v{88+2*d}, 16, v{48+d}")
        A.e(f"v_and_b32 v{89+2*d}, 0xffff0000, v{48+d}")
    for d in range(4):
        A.e(f"v_pk_fma_f32 {v(80+2*d,2)}, {v(80+2*d,2)}, {v(52+2*d,2)}, {v(88+2*d,2)}")
    for d in range(4):
        A.e(f"v_cvt_pk_bf16_f32 v{16+d}, v{80+2*d}, v{81+2*d}")
    A.e(f"buffer_store_dwordx4 v[16:19], v5, s[20:23], s32 offen {SMOD}")
    for d in range(4):
        A.e(f"v_lshlrev_b32 v{80+2*d}, 16, v{16+d}")
        A.e(f"v_and_b32 v{81+2*d}, 0xffff0000, v{16+d}")
    A.e("v_lshrrev_b32 v9, 6, v0")
    A.e("v_lshlrev_b32 v7, 5, v2")
    A.e("v_lshl_add_u32 v8, v9, 2, v7")
    A.e("v_and_b32 v10, 63, v0")
    def rowsum(off):
        A.e("s_nop 1")
        A.e("v_add_f32_dpp v20, v20, v20 row_ror:8 row_mask:0xf bank_mask:0xf")
        A.e("s_nop 0")
        A.e("ds_swizzle_b32 v21, v20 offset:0x401F")
        A.e("s_waitcnt lgkmcnt(0)")
        A.e("v_add_f32 v20, v20, v21")
        A.e("v_mov_b32 v21, v20")
        A.e("s_nop 1")
        A.e("v_permlane32_swap_b32 v20, v21")
        A.e("s_nop 1")
        A.e("v_add_f32 v20, v20, v21")
        A.e("v_cmp_gt_u32 vcc, 8, v10")
        A.e("s_and_saveexec_b64 s[44:45], vcc")
        A.e(f"ds_write_b32 v8, v20 offset:{off}")
        A.e("s_mov_b64 exec, s[44:45]")
        A.e("s_waitcnt lgkmcnt(0)")
        A.e("s_barrier")
        A.e(f"ds_read_b128 v[24:27], v7 offset:{off}")
        A.e(f"ds_read_b128 v[28:31], v7 offset:{off+16}")
        A.e("s_waitcnt lgkmcnt(0)")
        A.e("v_add_f32 v24, v24, v25")
        A.e("v_add_f32 v26, v26, v27")
        A.e("v_add_f32 v28, v28, v29")
        A.e("v_add_f32 v24, v24, v26")
        A.e("v_add_f32 v28, v28, v30")
        A.e("v_add_f32 v20, v24, v28")
    A.e("v_add_f32 v20, v80, v81")
    for r in range(2, 8):
        A.e(f"v_add_f32 v20, v20, v{80+r}")
    ST.stamp()
    rowsum(0)
    ST.stamp()
    A.e(f"v_mul_f32 v22, {f2u(1/448.):#x}, v20")
    for r in range(8):
        A.e(f"v_sub_f32 v{80+r}, v{80+r}, v22")
    A.e("v_mul_f32 v20, v80, v80")
    for r in range(1, 8):
        A.e(f"v_fmac_f32 v20, v{80+r}, v{80+r}")
    rowsum(256)
    ST.stamp()
    A.e(f"v_mul_f32 v20, {f2u(1/448.):#x}, v20")
    A.e(f"v_add_f32 v20, {f2u(1e-5):#x}, v20")
    A.e("v_rsq_f32 v20, v20")
    A.e(f"s_waitcnt vmcnt({2 if PF == 'early' else 1})")
    A.e("v_mov_b32 v21, v20")
    for d in range(4):
        A.e(f"v_pk_mul_f32 {v(80+2*d,2)}, {v(80+2*d,2)}, v[20:21]")
    for d in range(4):
        A.e(f"v_pk_fma_f32 {v(80+2*d,2)}, {v(80+2*d,2)}, {v(60+2*d,2)}, {v(68+2*d,2)}")
    for d in range(4):
        A.e(f"v_cvt_pk_bf16_f32 v{16+d}, v{80+2*d}, v{81+2*d}")
    A.e(f"buffer_store_dwordx4 v[16:19], v5, s[24:27], s32 offen {SMOD}")
    if PF == 'late':
        srd(A, 28, "s40", "s41", 448*3584)
        A.e("s_lshr_b32 s33, s2, 3")
        A.e("s_mul_i32 s33, s33, 50176")
        A.e("v_lshlrev_b32 v11, 7, v0")
        A.e("v_min_u32 v11, 50048, v11")
        A.e("buffer_load_dword v12, v11, s[28:31], s33 offen")
    ST.finish("K2R_END", 102)
    A.label("K2R_END")
    A.e("s_endpgm")
    return name, 1024
```

```python
from asmlib import *
from layout import *
import k1
from k1 import (Lgkm, mfma, f2u, AQ, NRING, AK, AV, SRD_K, SRD_V, SRD_WQ, SRD_Y, SRD_M,
                S_W, S_KOFF, S_M0K, S_M0V, S_CNT, S_THR, THR_LOG2, OPT, distribute)

K1_LDS = 163840
SRD_WO = 16
KPIECE = 1056
KSLOT = 16*KPIECE
VBASE = 4*KSLOT
VSLOT = 16384
MODL = VBASE + 4*VSLOT
SPARE = MODL + 4096
WSLOT = [0, 28672, MODL, VBASE, VBASE+28672]
O0 = 128
S_ = [96, 112]
NEGM = 80
P_ = [64, 72]
T_ = 56
L_ = [[60, 61], [62, 63]]
VKR = [2, 3]
VVR = [4, 5, 6, 7]
VKD = [8, 9, 10, 11]
VVD = [12, 13, 14, 15]
LEAD = 6

def m16(d, A_, B_, C_):
    return f"v_mfma_f32_16x16x32_bf16 {d}, {A_}, {B_}, {C_}"

def vread(slot, db, u, ring):
    return f"ds_read_b64_tr_b16 {a(AV+4*ring+2*u,2)}, v{VVR[db & 3]} offset:{slot*VSLOT + u*8192 + (db >> 2)*256}"

def kread(slot, kb, ks, ring):
    return f"ds_read_b128 {a(AK+4*ring,4)}, v{VKR[(ks >> 1) & 1]} offset:{slot*KSLOT + kb*8448 + ks*64}"

def softmax_ops(Sr, Pw, Lold, Lnew):
    ops = []
    def info(j):
        kb, qb, hf = j >> 2, (j >> 1) & 1, j & 1
        return (kb*2+qb)*4 + 2*hf, qb*4 + 2*kb + hf, qb, (kb == 0 and hf == 0)
    def pairtail(j):
        t0, t1 = T_ + 2*(j & 1), T_ + 2*(j & 1) + 1
        si, pi, qb, first = info(j)
        src = Lold[qb] if first else Lnew[qb]
        return [(1, f"v_add_f32 v{Lnew[qb]}, v{src}, v{t0}"),
                (1, f"v_add_f32 v{Lnew[qb]}, v{Lnew[qb]}, v{t1}"),
                (1, f"v_cvt_pk_bf16_f32 v{Pw+pi}, v{t0}, v{t1}")]
    for j in range(8):
        t0, t1 = T_ + 2*(j & 1), T_ + 2*(j & 1) + 1
        si = info(j)[0]
        ops.append((2, f"v_exp_f32 v{t0}, v{Sr+si}"))
        ops.append((2, f"v_exp_f32 v{t1}, v{Sr+si+1}"))
        if j > 0: ops += pairtail(j-1)
    ops += pairtail(7)
    return ops

def reads_for_pos(ph, p, do_pv, do_qk, nxt_pv, nxt_qk):
    if p >= 32:
        ph2, p2, pv, qk = (ph+1) % 4, p-32, nxt_pv, nxt_qk
    else:
        ph2, p2, pv, qk = ph, p, do_pv, do_qk
    if p2 < 16:
        if not pv: return []
        return [((p2, u), vread(ph2, p2, u, p2 % NRING)) for u in range(2)]
    if not qk: return []
    n = p2-16
    return [((p2, 0), kread((ph2+2) % 4, n & 1, n >> 1, n % NRING))]

def iteration(A, ph, tag, do_qk=True, do_sm=True, dma_k=True, dma_v=True,
              nxt_pv=True, nxt_qk=True, vmwait=8, barrier=True, extra=None, first=False):
    Sw, Sr = S_[ph % 2], S_[(ph+1) % 2]
    Pr, Pw = P_[ph % 2], P_[(ph+1) % 2]
    Lold, Lnew = L_[ph % 2], L_[(ph+1) % 2]
    pend = []
    for p in range(LEAD):
        pend += [t for t, _ in reads_for_pos(ph, p, True, do_qk, True, True)]
    lg = Lgkm(A, pend)
    gaps = [[] for _ in range(32)]
    if barrier:
        gaps[OPT.get('bargap', 0)] += [f"s_waitcnt vmcnt({vmwait})"] + ([] if OPT.get('nobar') else ["s_barrier"])
    if OPT.get('no_dma'): dma_k = dma_v = False
    if dma_k:
        kp = OPT.get('kdma', [10, 11, 13, 15, 17])
        gaps[kp[0]].append(f"s_add_u32 m0, s{S_M0K}, {((ph+1) % 4)*KSLOT}")
        for n in range(4):
            gaps[kp[1+n]].append(f"buffer_load_dwordx4 v{VKD[n]}, s[{SRD_K}:{SRD_K+3}], s{S_KOFF} offen offset:{n*KPIECE} {OPT.get('kvmod', '')} lds")
    if dma_v:
        vp = OPT.get('vdma', [18, 19, 21, 23, 25])
        gaps[vp[0]].append(f"s_add_u32 m0, s{S_M0V}, {((ph+3) % 4)*VSLOT}")
        for n in range(4):
            gaps[vp[1+n]].append(f"buffer_load_dwordx4 v{VVD[n]}, s[{SRD_V}:{SRD_V+3}], s{S_KOFF} offen offset:{n*1024} {OPT.get('kvmod', '')} lds")
    gaps[31].append(f"s_add_u32 s{S_KOFF}, s{S_KOFF}, 16384")
    if extra:
        for g_, l_ in extra.items(): gaps[g_] += l_
    def cst(t):
        if t.startswith('v_exp'): return 2
        if t.startswith('buffer_load'): return OPT.get('dmacost', 3)
        return 1
    if do_sm:
        if OPT.get('level', 1):
            WM_ = OPT.get('wmerge', 2)
            fixed = []
            for p in range(32):
                f_ = len(reads_for_pos(ph, p+LEAD, True, do_qk, nxt_pv, nxt_qk)) + sum(cst(t) for t in gaps[p])
                if (p+1) % WM_ == 0: f_ += 1
                fixed.append(f_)
            ops = softmax_ops(Sr, Pw, Lold, Lnew)
            lo, hi = OPT.get('smlo', 3), 29
            total = sum(c for c, _ in ops) + sum(fixed[lo:hi+1])
            tgt = total / (hi-lo+1)
            g = lo; cum_t = 0.0; cum = 0.0
            load = [fixed[p] for p in range(32)]
            budget = 0.0
            i_ = 0
            for p in range(lo, hi+1):
                budget += tgt - fixed[p]
                while i_ < len(ops) and (budget >= ops[i_][0]*0.5 or p == hi):
                    gaps[p].append(ops[i_][1]); budget -= ops[i_][0]; i_ += 1
            assert i_ == len(ops)
        else:
            sm = distribute(softmax_ops(Sr, Pw, Lold, Lnew), OPT.get('smlo', 3), 29)
            for g in range(32): gaps[g] += sm[g]
        gaps[30].append(f"v_max_f32 v{T_}, v{Lnew[0]}, v{Lnew[1]}")
        gaps[31].append(f"v_cmp_lt_f32 vcc, s{S_THR}, v{T_}")
    for p in range(32):
        WM = OPT.get('wmerge', 2)
        if p % WM == 0:
            w = lg.need({(p+x, u) for x in range(WM) for u in range(2)})
            if w: A.e(w)
        F = []
        for t, txt in reads_for_pos(ph, p+LEAD, True, do_qk, nxt_pv, nxt_qk):
            F.append(txt)
            lg.issue((t[0] + (32 if p+LEAD >= 32 else 0), t[1]))
        F += gaps[p]
        M = []
        if p < 16:
            for qb in range(2):
                acc = v(O0+(p*2+qb)*4, 4)
                M.append(m16(acc, a(AV+4*(p % NRING), 4), v(Pr+4*qb, 4), "0" if first else acc))
        elif do_qk:
            n = p-16; ks, kb = n >> 1, n & 1
            for qb in range(2):
                d = v(Sw+(kb*2+qb)*4, 4)
                M.append(m16(d, a(AK+4*(n % NRING), 4), a(AQ+(qb*8+ks)*4, 4), v(NEGM+4*qb, 4) if ks == 0 else d))
        if len(M) == 2:
            def cst(t): return 2 if (t.startswith('v_exp') or t.startswith('buffer_load')) else 1
            tot = sum(cst(t) for t in F); acc_ = 0; h = 0
            for t in F:
                if acc_ + cst(t) > (tot+1)//2: break
                acc_ += cst(t); h += 1
            A.e(M[0])
            for txt in F[:h]: A.e(txt)
            A.e(M[1])
            for txt in F[h:]: A.e(txt)
        else:
            for txt in F: A.e(txt)
    if do_sm:
        A.e(f"s_cbranch_vccnz RARE_{tag}")
        A.label(f"CONT_{tag}")

def xlane(A, r, tmp, op):
    A.e(f"v_mov_b32 v{tmp}, v{r}")
    A.e("s_nop 1")
    A.e(f"v_permlane16_swap_b32 v{r}, v{tmp}")
    A.e("s_nop 1")
    A.e(f"{op} v{r}, v{r}, v{tmp}")
    A.e(f"v_mov_b32 v{tmp}, v{r}")
    A.e("s_nop 1")
    A.e(f"v_permlane32_swap_b32 v{r}, v{tmp}")
    A.e("s_nop 1")
    A.e(f"{op} v{r}, v{r}, v{tmp}")

def rare_path(A, ph, tag, do_qk=True):
    Sn, Sr = S_[ph % 2], S_[(ph+1) % 2]
    Pw = P_[(ph+1) % 2]
    Lold, Lnew = L_[ph % 2], L_[(ph+1) % 2]
    DL = [16, 17]; FF = [18, 19]; t1, t2, t3 = 20, 21, 22
    A.label(f"RARE_{tag}")
    A.e("s_nop 15")
    A.e("s_nop 15")
    for qb in range(2):
        regs = [Sr+(kb*2+qb)*4+r for kb in range(2) for r in range(4)]
        d = DL[qb]
        A.e(f"v_max3_f32 v{d}, v{regs[0]}, v{regs[1]}, v{regs[2]}")
        A.e(f"v_max3_f32 v{d}, v{d}, v{regs[3]}, v{regs[4]}")
        A.e(f"v_max3_f32 v{d}, v{d}, v{regs[5]}, v{regs[6]}")
        A.e(f"v_max_f32 v{d}, v{d}, v{regs[7]}")
        xlane(A, d, t1, "v_max_f32")
        A.e(f"v_mov_b32 v{t2}, v{Lold[qb]}")
        xlane(A, t2, t1, "v_add_f32")
        A.e(f"v_log_f32 v{t2}, v{t2}")
        A.e("s_nop 0")
        A.e(f"v_max_f32 v{d}, v{d}, v{t2}")
        if OPT['bias']:
            A.e(f"v_add_f32 v{d}, {f2u(float(OPT['bias'])):#x}, v{d}")
        A.e(f"v_max_f32 v{d}, 0, v{d}")
        A.e(f"v_mul_f32 v{FF[qb]}, -0.5, v{d}")
        A.e(f"v_exp_f32 v{FF[qb]}, v{FF[qb]}")
        A.e("s_nop 0")
    for rep in range(2):
        for db in range(16):
            for qb in range(2):
                for r in range(4):
                    x = O0+(db*2+qb)*4+r
                    A.e(f"v_mul_f32 v{x}, v{x}, v{FF[qb]}")
    for qb in range(2):
        A.e(f"v_mul_f32 v{Lold[qb]}, v{Lold[qb]}, v{FF[qb]}")
        A.e(f"v_mul_f32 v{Lold[qb]}, v{Lold[qb]}, v{FF[qb]}")
        for r in range(4):
            A.e(f"v_sub_f32 v{NEGM+4*qb+r}, v{NEGM+4*qb+r}, v{DL[qb]}")
        for kb in range(2):
            for r in range(4):
                if do_qk:
                    x = Sn+(kb*2+qb)*4+r
                    A.e(f"v_sub_f32 v{x}, v{x}, v{DL[qb]}")
                x = Sr+(kb*2+qb)*4+r
                A.e(f"v_sub_f32 v{x}, v{x}, v{DL[qb]}")
    for c, t in softmax_ops(Sr, Pw, Lold, Lnew):
        A.e(t)
    A.e("s_nop 1")
    A.e(f"s_branch CONT_{tag}")

class Vm:
    def __init__(self): self.q = []
    def issue(self, tag): self.q.append(tag)
    def need(self, tags):
        idx = -1
        for i, t in enumerate(self.q):
            if t in tags: idx = i
        if idx < 0: return None
        n = len(self.q) - 1 - idx
        self.q = self.q[idx+1:]
        assert n <= 63
        return f"s_waitcnt vmcnt({n})"

def gen_k1(A, dbg=None):
    name = "k1_attn_kernel"
    kernel_begin(A, name)
    ST = Stamps(A, dbg == "time", wg=9, wave_sgpr=S_W)
    A.e("s_cmp_ge_u32 s2, 256")
    A.e("s_cbranch_scc1 K1_END")
    ST.stamp()
    A.e("s_load_dwordx4 s[36:39], s[0:1], 8")
    A.e("s_load_dwordx4 s[40:43], s[0:1], 24")
    A.e("s_load_dwordx2 s[60:61], s[0:1], 96")
    A.e("v_and_b32 v1, 63, v0")
    A.e("v_lshrrev_b32 v14, 6, v0")
    A.e("s_nop 0")
    A.e(f"v_readfirstlane_b32 s{S_W}, v14")
    A.e("s_and_b32 s44, s2, 7")
    A.e("s_lshr_b32 s45, s2, 3")
    A.e("s_lshl_b32 s45, s45, 1")
    A.e(f"s_and_b32 s46, s{S_W}, 1")
    A.e("s_add_u32 s45, s45, s46")
    A.e(f"s_lshr_b32 s47, s{S_W}, 1")
    A.e("v_bfe_u32 v14, v1, 2, 1")
    A.e("v_bfe_u32 v15, v1, 3, 1")
    A.e("v_and_b32 v12, 3, v1")
    A.e("v_lshlrev_b32 v12, 4, v12")
    A.e("v_lshrrev_b32 v13, 4, v1")
    A.e("v_lshl_add_u32 v12, v13, 7, v12")
    for n in range(4):
        A.e(f"v_xor_b32 v13, {n & 1}, v14")
        A.e(f"v_lshl_add_u32 v13, v13, 6, v12")
        A.e(f"v_lshl_add_u32 v13, v15, 13, v13")
        A.e(f"v_add_u32 v{2+n}, {2*n*8192 - n*1024}, v13")
    def tr_bases(dst, swap, add, ta, tb, tc):
        A.e(f"v_lshrrev_b32 v{tb}, 5, v1")
        A.e(f"v_lshlrev_b32 v{ta}, 11, v{tb}")
        A.e(f"v_bfe_u32 v{tb}, v1, 3, 1")
        A.e(f"v_lshl_add_u32 v{ta}, v{tb}, 10, v{ta}")
        A.e(f"v_bfe_u32 v{tc}, v1, 2, 1")
        A.e(f"v_lshl_add_u32 v{ta}, v{tc}, 7, v{ta}")
        A.e(f"v_bfe_u32 v{tc}, v1, 4, 1")
        A.e(f"v_lshl_add_u32 v{ta}, v{tc}, 5, v{ta}")
        if swap:
            A.e(f"v_and_b32 v{tc}, 1, v1")
            A.e(f"v_lshl_add_u32 v{ta}, v{tc}, 4, v{ta}")
            A.e(f"v_bfe_u32 v{tc}, v1, 1, 1")
            A.e(f"v_lshl_add_u32 v{ta}, v{tc}, 3, v{ta}")
        else:
            A.e(f"v_and_b32 v{tc}, 3, v1")
            A.e(f"v_lshl_add_u32 v{ta}, v{tc}, 3, v{ta}")
        A.e(f"v_add_u32 v{ta}, {add}, v{ta}")
        A.e(f"v_lshl_add_u32 v{dst[0]}, v{tb}, 6, v{ta}")
        A.e(f"v_xor_b32 v{tb}, 1, v{tb}")
        A.e(f"v_lshl_add_u32 v{dst[1]}, v{tb}, 6, v{ta}")
    A.e("s_lshl_b32 s48, s47, 14")
    tr_bases([6, 7], True, "s48", 13, 14, 15)
    A.e("v_add_u32 v8, 0x10000, v6")
    A.e("v_add_u32 v9, 0x10000, v7")
    WQR = [[6, 7], [8, 9]]
    A.e("v_lshlrev_b32 v12, 4, v1")
    A.e("v_lshrrev_b32 v13, 5, v1")
    A.e("v_lshlrev_b32 v13, 4, v13")
    A.e(f"v_add_u32 v13, {MODL}, v13")
    A.e(f"s_lshl_b32 s49, s46, 17")
    A.e("s_lshl_b32 s50, s47, 9")
    A.e("s_add_u32 s49, s49, s50")
    A.e(f"s_lshl_b32 s48, s{S_W}, 13")
    A.e("s_waitcnt lgkmcnt(0)")
    A.e("s_lshl_b32 s50, s44, 20")
    A.e("s_add_u32 s36, s36, s50")
    A.e("s_addc_u32 s37, s37, 0")
    A.e("s_sub_u32 s52, s36, 128")
    A.e("s_subb_u32 s53, s37, 0")
    srd(A, SRD_K, "s52", "s53", 1048576+128)
    A.e("s_add_u32 s38, s38, s50")
    A.e("s_addc_u32 s39, s39, 0")
    A.e("s_sub_u32 s52, s38, 32768")
    A.e("s_subb_u32 s53, s39, 0")
    srd(A, SRD_V, "s52", "s53", 1048576+32768)
    A.e("s_lshl_b32 s50, s44, 10")
    A.e("s_add_u32 s40, s40, s50")
    A.e("s_addc_u32 s41, s41, 0")
    A.e(f"s_sub_u32 s51, {448*8192}, s50")
    srd(A, SRD_WQ, "s40", "s41", "s51")
    A.e("s_mul_i32 s50, s45, 28672")
    A.e(f"s_add_u32 s50, s50, {Y_OFF}")
    A.e("s_add_u32 s52, s60, s50")
    A.e("s_addc_u32 s53, s61, 0")
    srd(A, SRD_Y, "s52", "s53", 28672)
    srd(A, SRD_M, "s60", "s61", 3584)
    YR = 16
    BF = 40
    TG = 64
    TU = 96
    H1L = SPARE
    def yreg(s): return YR + 4*(s % 6)
    def breg(s, j): return BF + 8*(s & 1) + 4*j
    vm = Vm()
    A.e("s_lshl_b32 s50, s47, 10")
    A.e("v_add_u32 v14, s50, v12")
    A.e("s_lshl_b32 s51, s47, 6")
    A.e("v_add_u32 v13, s51, v13")
    A.e("s_mul_i32 s51, s46, 6144")
    A.e(f"s_add_u32 s51, s51, {H1L}")
    A.e("v_add_u32 v10, s51, v12")
    A.e("v_add_u32 v15, s50, v10")
    def y_load(s):
        vm.issue(('y', s))
        return [f"s_mov_b32 s50, {(s//2)*4096}",
                f"buffer_load_dwordx4 {v(yreg(s),4)}, v14, s[{SRD_Y}:{SRD_Y+3}], s50 offen offset:{(s%2)*2048}"]
    def wslot(s): return (s+2) % 4
    def wq_dma(s):
        out = []
        for grp in range(2):
            out.append(f"s_add_u32 m0, s48, {wslot(s)*32768 + grp*4096}")
            out.append(f"s_add_u32 s50, s49, {s*262144 + grp*65536}")
            for n in range(4):
                out.append(f"buffer_load_dwordx4 v{2+n}, s[{SRD_WQ}:{SRD_WQ+3}], s50 offen offset:{n*1024} lds")
                vm.issue(('wq', s))
        return out
    for f in range(2):
        for t in y_load(f): A.e(t)
    A.e(f"s_lshl_b32 s50, s{S_W}, 10")
    A.e(f"s_add_u32 m0, s50, {MODL}")
    A.e("s_nop 0")
    A.e(f"buffer_load_dwordx4 v12, s[{SRD_M}:{SRD_M+3}], s50 offen lds")
    vm.issue('mod')
    for t in wq_dma(0): A.e(t)
    for s_ in (1, 2):
        for t in y_load(s_+1): A.e(t)
        for t in wq_dma(s_): A.e(t)
    lg = Lgkm(A)
    def ln_ops(s):
        b = TG + 16*(s & 1)
        rd = [(('m', s, 0), f"ds_read_b128 {v(b,4)}, v13 offset:{1792+s*128}"),
              (('m', s, 1), f"ds_read_b128 {v(b+4,4)}, v13 offset:{1792+s*128+32}"),
              (('m', s, 2), f"ds_read_b128 {v(b+8,4)}, v13 offset:{s*128}"),
              (('m', s, 3), f"ds_read_b128 {v(b+12,4)}, v13 offset:{s*128+32}")]
        tu = TU + 8*(s & 1)
        va = []
        for d in range(4):
            r = yreg(s)+d
            va.append(f"v_lshlrev_b32 v{tu+2*d}, 16, v{r}")
            va.append(f"v_and_b32 v{tu+2*d+1}, 0xffff0000, v{r}")
        vb = []
        for d in range(4):
            vb.append(f"v_pk_fma_f32 {v(tu+2*d,2)}, {v(tu+2*d,2)}, {v(b+2*d,2)}, {v(b+8+2*d,2)}")
        for d in range(4):
            vb.append(f"v_cvt_pk_bf16_f32 v{yreg(s)+d}, v{tu+2*d}, v{tu+2*d+1}")
        wr = (('hw', s), f"ds_write_b128 v15, {v(yreg(s),4)} offset:{(s % 3)*2048}")
        return rd, va, vb, wr
    def b_reads(s):
        return [(('b', s, j), f"ds_read_b128 {v(breg(s, j),4)}, v10 offset:{(s % 3)*2048 + j*1024}") for j in range(2)]
    w = vm.need({('y', 0), ('y', 1), 'mod', ('wq', 0)})
    A.e(w)
    A.e("s_barrier")
    ST.stamp()
    for f in (0, 1):
        rd, va, vb, wr = ln_ops(f)
        for t, txt in rd: A.e(txt); lg.issue(t)
        for txt in va: A.e(txt)
        A.e(lg.need({('m', f, 3)}))
        for txt in vb: A.e(txt)
        A.e(wr[1]); lg.issue(wr[0])
    A.e("s_waitcnt lgkmcnt(0)")
    lg.q = []
    A.e("s_barrier")
    for t, txt in b_reads(0): A.e(txt); lg.issue(t)
    QL = OPT.get('ql', 4)
    def q_reads(s, p):
        if p >= 16:
            s, p = s+1, p-16
            if s >= 14: return []
        db, ks = p >> 1, p & 1
        sl = wslot(s)
        o = []
        for u in range(2):
            off = (sl & 1)*32768 + ks*8192 + u*4096 + (db >> 1)*256
            o.append((('q', s, p, u), f"ds_read_b64_tr_b16 {a(AV+4*(p % NRING)+2*u,2)}, v{WQR[sl >> 1][db & 1]} offset:{off}"))
        return o
    for p in range(QL):
        for t, txt in q_reads(0, p):
            A.e(txt); lg.issue(t)
    def k_dma(blk):
        out = [f"s_add_u32 m0, s{S_M0K}, {(blk % 4)*KSLOT}", f"s_mov_b32 s50, {blk*16384}"]
        for n in range(4):
            out.append(f"buffer_load_dwordx4 v{VKD2[n]}, s[{SRD_K}:{SRD_K+3}], s50 offen offset:{n*KPIECE} lds")
            vm.issue(('k', blk))
        return out
    def v_dma(blk):
        out = [f"s_add_u32 m0, s{S_M0V}, {(blk % 4)*VSLOT}", f"s_mov_b32 s50, {blk*16384+32768}"]
        for n in range(4):
            out.append(f"buffer_load_dwordx4 v{VVD2[n]}, s[{SRD_V}:{SRD_V+3}], s50 offen offset:{n*1024} lds")
            vm.issue(('v', blk))
        return out
    VKD2 = [112, 113, 114, 115]
    VVD2 = [116, 117, 118, 119]
    def kv_addr_setup():
        o = []
        e = o.append
        e("v_lshrrev_b32 v120, 5, v1")
        e("v_and_b32 v121, 31, v1")
        e("v_lshlrev_b32 v122, 3, v120")
        e("v_xor_b32 v121, v121, v122")
        e("v_lshlrev_b32 v121, 4, v121")
        e("v_lshl_add_u32 v121, v120, 9, v121")
        e(f"s_lshl_b32 s51, s{S_W}, 12")
        e("s_add_u32 s54, s51, 128")
        e(f"v_add_u32 v{VKD2[0]}, s54, v121")
        for n in range(1, 4):
            e(f"v_subrev_u32 v{VKD2[n]}, {32*n}, v{VKD2[0]}")
        e("v_bfe_u32 v120, v1, 3, 1")
        e("v_lshlrev_b32 v121, 9, v120")
        e("v_lshrrev_b32 v120, 4, v1")
        e("v_lshl_add_u32 v121, v120, 7, v121")
        e("v_add_u32 v121, s51, v121")
        e("v_and_b32 v120, 7, v1")
        for n in range(4):
            e(f"v_xor_b32 v122, {2*n}, v120")
            e(f"v_lshl_add_u32 v{VVD2[n]}, v122, 4, v121")
        e(f"s_add_u32 s{S_M0V}, s51, {VBASE}")
        e(f"s_mul_i32 s{S_M0K}, s{S_W}, {4*KPIECE}")
        return o
    for t in kv_addr_setup(): A.e(t)
    for s_ in range(14):
        gaps = [[] for _ in range(16)]
        needs = set()
        if s_+1 < 14: needs |= {('wq', s_+1)}
        if s_+2 < 14: needs |= {('y', s_+2)}
        w = vm.need(needs) if needs else None
        wl = lg.need({('hw', s_+1)}) if False else None
        gaps[0] += ([w] if w else []) + [('barrier', s_+1)]
        fill = []
        if s_+4 < 14: fill += y_load(s_+4)
        if s_+3 < 14: fill += wq_dma(s_+3)
        if s_ == 12:
            for blk in (0, 1, 2): fill += k_dma(blk)
        if s_ == 13:
            fill += k_dma(3) + v_dma(0)
        n = len(fill)
        if OPT.get('qstag', 0) and n:
            for k in range(4):
                lab = A.newlabel("QS")
                gaps[1+4*k] += [f"s_cmp_lg_u32 s{S_W}, {k}", f"s_cbranch_scc1 {lab}"] + fill + [("label", lab)]
        else:
            for i, t in enumerate(fill):
                gaps[1 + (i*14)//max(n, 1)].append(t)
        items = []
        if s_+1 < 14:
            for t, txt in b_reads(s_+1): items.append(('rd', t, txt))
        if s_+2 < 14:
            r0, a0, b0, wr = ln_ops(s_+2)
            for t, txt in r0: items.append(('rd', t, txt))
            for txt in a0: items.append(('v', None, txt))
            items.append(('need', s_+2, None))
            for txt in b0: items.append(('v', None, txt))
            items.append(('rd', wr[0], wr[1]))
        lgaps = [[] for _ in range(16)]
        for i, it in enumerate(items):
            lgaps[1 + (i*13)//max(len(items), 1)].append(it)
        for p in range(16):
            if OPT.get('q_mw', 0):
                w2 = lg.need({('q', s_, p, 0), ('q', s_, p, 1), ('q', s_, p+1, 0), ('q', s_, p+1, 1)}) if p % 2 == 0 else None
            else:
                w2 = lg.need({('q', s_, p, 0), ('q', s_, p, 1)} | ({('b', s_, p)} if p < 2 else set()))
            if w2: A.e(w2)
            db, ks = p >> 1, p & 1
            acc = v(O0+16*db, 16)
            first = (s_ == 0 and ks == 0)
            if OPT.get('fakeq16'):
                for hh in range(2):
                    a4 = v(O0+16*db+8*ks+4*hh, 4)
                    A.e(m16(a4, a(AV+4*(p % NRING), 4), v(yreg(2*s_+hh), 4), "0" if s_ == 0 else a4))
            else:
                A.e(mfma(acc, a(AV+4*(p % NRING), 4), v(breg(s_, ks), 4), "0" if first else acc))
            for t, txt in q_reads(s_, p+QL):
                A.e(txt); lg.issue(t)
            for txt in gaps[p]:
                if isinstance(txt, tuple) and txt[0] == 'label':
                    A.label(txt[1])
                elif isinstance(txt, tuple):
                    w4 = lg.need({('hw', txt[1])})
                    if w4: A.e(w4)
                    A.e("s_barrier")
                else:
                    A.e(txt)
            for kind, t, txt in lgaps[p]:
                if kind == 'rd':
                    A.e(txt); lg.issue(t)
                elif kind == 'v':
                    A.e(txt)
                else:
                    w3 = lg.need({('m', t, 3)})
                    if w3: A.e(w3)
    ST.stamp()
    A.e("s_barrier")
    for n in range(4): A.e(f"v_mov_b32 v{VKD[n]}, v{VKD2[n]}")
    for n in range(4): A.e(f"v_mov_b32 v{VVD[n]}, v{VVD2[n]}")
    A.e("v_bfe_u32 v16, v1, 1, 3")
    A.e(f"v_mul_u32_u24 v16, {KPIECE}, v16")
    A.e("v_and_b32 v17, 1, v1")
    A.e("v_lshl_add_u32 v16, v17, 9, v16")
    A.e("v_lshrrev_b32 v18, 4, v1")
    A.e("v_lshl_add_u32 v16, v18, 4, v16")
    A.e("v_lshlrev_b32 v17, 7, v17")
    A.e(f"v_add_u32 v{VKR[0]}, v16, v17")
    A.e(f"v_sub_u32 v{VKR[1]}, v16, v17")
    A.e("v_bfe_u32 v17, v1, 3, 1")
    A.e("v_lshl_add_u32 v19, v18, 1, v17")
    A.e("v_lshlrev_b32 v16, 10, v19")
    A.e("v_bfe_u32 v17, v1, 2, 1")
    A.e("v_lshl_add_u32 v16, v17, 7, v16")
    A.e("v_and_b32 v17, 3, v1")
    A.e("v_lshl_add_u32 v16, v17, 3, v16")
    A.e(f"v_add_u32 v16, {VBASE}, v16")
    A.e("v_and_b32 v19, 3, v19")
    for sx in range(4):
        A.e(f"v_xor_b32 v17, {sx}, v19")
        A.e(f"v_lshl_add_u32 v{VVR[sx]}, v17, 5, v16")
    A.e(f"s_add_u32 s50, s{S_W}, 1")
    A.e("s_lshl_b32 s50, s50, 14")
    A.e(f"s_add_u32 s50, s50, {VBASE}")
    A.e(f"s_cmp_eq_u32 s{S_W}, 3")
    A.e(f"s_cselect_b32 s50, {SPARE}, s50")
    A.e("v_and_b32 v16, 31, v1")
    A.e("v_lshlrev_b32 v17, 9, v16")
    A.e("v_and_b32 v16, 15, v1")
    A.e("v_lshrrev_b32 v18, 5, v1")
    A.e("v_xor_b32 v18, v18, v16")
    A.e("v_lshl_add_u32 v17, v18, 4, v17")
    A.e("v_add_u32 v20, s50, v17")
    A.e("v_lshlrev_b32 v17, 9, v16")
    A.e("v_lshrrev_b32 v18, 4, v1")
    A.e("v_xor_b32 v18, v18, v16")
    A.e("v_lshl_add_u32 v17, v18, 4, v17")
    A.e("v_add_u32 v21, s50, v17")
    for fr in range(16):
        base = O0 + 8*fr
        dst = 24 + 4*(fr & 3)
        for r in range(4):
            A.e(f"v_cvt_pk_bf16_f32 v{dst+r}, v{base+2*r}, v{base+2*r+1}")
        A.e(f"v_xor_b32 v{40+(fr & 3)}, {32*fr}, v20")
        A.e(f"ds_write_b128 v{40+(fr & 3)}, {v(dst,4)}")
    A.e("s_waitcnt lgkmcnt(0)")
    for ks in range(8):
        A.e(f"v_xor_b32 v{40+(ks & 3)}, {64*ks}, v21")
        for qb in range(2):
            A.e(f"ds_read_b128 {a(AQ+(qb*8+ks)*4,4)}, v{40+(ks & 3)} offset:{qb*8192}")
    A.e("s_waitcnt lgkmcnt(0)")
    A.e(vm.need({('k', 0), ('k', 1)}))
    A.e("s_barrier")
    VKD2[:] = VKD; VVD2[:] = VVD
    for t in v_dma(1): A.e(t)
    lg = Lgkm(A)
    seq = [(b, n) for b in range(2) for n in range(16)]
    KL = 4
    for i in range(KL):
        b, n = seq[i]
        A.e(kread(b, n & 1, n >> 1, i % NRING)); lg.issue(i)
    zero = [f"v_mov_b32 v{O0+r}, 0" for r in range(128)]
    for i, (b, n) in enumerate(seq):
        w = lg.need({i})
        if w: A.e(w)
        ks, kb = n >> 1, n & 1
        for qb in range(2):
            d = v(S_[b]+(kb*2+qb)*4, 4)
            A.e(m16(d, a(AK+4*(i % NRING), 4), a(AQ+(qb*8+ks)*4, 4), "0" if ks == 0 else d))
        if i+KL < 32:
            b2, n2 = seq[i+KL]
            A.e(kread(b2, n2 & 1, n2 >> 1, (i+KL) % NRING)); lg.issue(i+KL)
    A.e("s_barrier")
    for t in v_dma(2): A.e(t)
    for t in k_dma(4): A.e(t)
    A.e(f"s_mov_b32 s{S_KOFF}, {5*16384}")
    A.e(f"s_mov_b32 s{S_THR}, {f2u(2.0**(OPT.get('thr', THR_LOG2)-OPT['bias'])):#x}")
    A.e("s_nop 7")
    for qb in range(2):
        regs = [S_[b]+(kb*2+qb)*4+r for b in range(2) for kb in range(2) for r in range(4)]
        d = 16+qb
        A.e(f"v_max3_f32 v{d}, v{regs[0]}, v{regs[1]}, v{regs[2]}")
        for j in range(3, 15, 2):
            A.e(f"v_max3_f32 v{d}, v{d}, v{regs[j]}, v{regs[j+1]}")
        A.e(f"v_max_f32 v{d}, v{d}, v{regs[15]}")
        xlane(A, d, 18, "v_max_f32")
        if OPT['bias']:
            A.e(f"v_add_f32 v{d}, {f2u(float(OPT['bias'])):#x}, v{d}")
        for r in range(4):
            A.e(f"v_sub_f32 v{NEGM+4*qb+r}, 0, v{d}")
        for x in regs:
            A.e(f"v_sub_f32 v{x}, v{x}, v{d}")
        A.e(f"v_mov_b32 v{L_[1][qb]}, 0")
    for c, t in softmax_ops(S_[0], P_[0], L_[1], L_[0]):
        A.e(t)
    A.e("s_waitcnt vmcnt(8)")
    A.e("s_barrier")
    ST.stamp()
    if dbg == "time": A.e("s_waitcnt lgkmcnt(0)")
    for p in range(LEAD):
        for t, txt in reads_for_pos(0, p, True, True, True, True):
            A.e(txt)
    if OPT.get('pfkv', 1):
        A.e(f"s_cmp_lt_u32 s{S_W}, 2")
        A.e("s_cselect_b32 s96, s36, s38")
        A.e("s_cselect_b32 s97, s37, s39")
        A.e("s_and_b32 s97, s97, 0xffff")
        A.e("s_mov_b32 s98, 1048576")
        A.e("s_mov_b32 s99, 0x00020000")
        A.e("v_and_b32 v19, 7, v1")
        A.e("v_lshlrev_b32 v19, 7, v19")
        A.e("s_lshr_b32 s50, s2, 3")
        A.e("s_lshl_b32 s50, s50, 11")
        A.e("s_lshl_b32 s51, s46, 10")
        A.e("s_add_u32 s50, s50, s51")
        A.e("v_add_u32 v19, s50, v19")
    if OPT.get('pfmall', 1):
        A.e("s_load_dwordx4 s[52:55], s[0:1], 48")
        A.e("s_waitcnt lgkmcnt(0)")
        A.e("s_cmp_lt_u32 s46, 1")
        A.e("s_cselect_b32 s56, s52, s54")
        A.e("s_cselect_b32 s57, s53, s55")
        A.e("s_and_b32 s57, s57, 0xffff")
        A.e(f"s_mov_b32 s58, {448*3584}")
        A.e("s_mov_b32 s59, 0x00020000")
        A.e("s_mul_i32 s50, s2, 6272")
        A.e("v_lshlrev_b32 v20, 7, v1")
        A.e("v_min_u32 v20, 6144, v20")
        A.e(f"s_cmp_lt_u32 s{S_W}, 2")
        A.e("s_cbranch_scc0 K1_NOMALL")
        A.e("buffer_load_dword v21, v20, s[56:59], s50 offen")
        A.label("K1_NOMALL")
    iteration(A, 0, "F0", first=True)
    for ph in range(1, 4):
        iteration(A, ph, f"F{ph}")
    A.e(f"s_mov_b32 s{S_CNT}, 14")
    A.raw(".p2align 6")
    A.label("K1_LOOP")
    if OPT.get('pfkv', 1):
        A.e(f"s_add_u32 s50, s{S_KOFF}, {7*16384}")
        A.e("buffer_load_dword v22, v19, s[96:99], s50 offen")
    if OPT.get('pfwo', 1):
        A.e(f"s_cmp_lg_u32 s{S_CNT}, 4")
        A.e("s_cbranch_scc1 K1_NOPF")
        A.e(f"s_mul_i32 s50, s44, {512*896}")
        A.e("s_add_u32 s56, s42, s50")
        A.e("s_addc_u32 s57, s43, 0")
        A.e("s_and_b32 s57, s57, 0xffff")
        A.e(f"s_mov_b32 s58, {512*896}")
        A.e("s_mov_b32 s59, 0x00020000")
        A.e("s_lshr_b32 s50, s2, 3")
        A.e("s_mul_i32 s50, s50, 14336")
        A.e("v_lshlrev_b32 v26, 7, v0")
        A.e("v_min_u32 v26, 14208, v26")
        A.e("buffer_load_dword v27, v26, s[56:59], s50 offen")
        A.label("K1_NOPF")
    if OPT.get('pfw1', 0):
        A.e(f"s_cmp_lg_u32 s{S_CNT}, {OPT.get('pfw1')}")
        A.e("s_cbranch_scc1 K1_NOPF1")
        A.e("s_load_dwordx2 s[56:57], s[0:1], 48")
        A.e("s_waitcnt lgkmcnt(0)")
        A.e("s_and_b32 s57, s57, 0xffff")
        A.e(f"s_mov_b32 s58, {448*3584}")
        A.e("s_mov_b32 s59, 0x00020000")
        A.e("s_lshr_b32 s50, s2, 3")
        A.e("s_mul_i32 s50, s50, 50176")
        A.e("v_lshlrev_b32 v26, 7, v0")
        A.e("buffer_load_dword v27, v26, s[56:59], s50 offen")
        A.e("v_add_u32 v26, 32768, v26")
        A.e("v_min_u32 v26, 50048, v26")
        A.e("buffer_load_dword v28, v26, s[56:59], s50 offen")
        A.label("K1_NOPF1")
    for ph in range(4):
        iteration(A, ph, f"M{ph}")
    A.e(f"s_sub_u32 s{S_CNT}, s{S_CNT}, 1")
    A.e(f"s_cmp_lg_u32 s{S_CNT}, 0")
    A.e("s_cbranch_scc1 K1_LOOP")
    if dbg == "time":
        ST.stamp()
    A.e(f"s_mul_i32 s50, s44, {512*896}")
    A.e("s_add_u32 s42, s42, s50")
    A.e("s_addc_u32 s43, s43, 0")
    srd(A, SRD_WO, "s42", "s43", 512*896)
    GOFF = 34
    for n in range(7):
        A.e(f"s_mul_i32 s50, s{S_W}, 7")
        A.e(f"s_add_u32 s50, s50, {n}")
        A.e("s_cmp_ge_u32 s50, 14")
        A.e("s_cselect_b32 s51, 14, 0")
        A.e(f"s_cselect_b32 s52, {16*896}, 0")
        A.e("s_sub_u32 s50, s50, s51")
        A.e("s_and_b32 s51, s50, 1")
        A.e(f"s_mul_i32 s51, s51, {8*896}")
        A.e("s_lshr_b32 s50, s50, 1")
        A.e("s_lshl_b32 s50, s50, 7")
        A.e("s_add_u32 s50, s50, s51")
        A.e(f"s_add_u32 s{GOFF+n}, s50, s52")
    A.e(f"s_mul_i32 s41, s{S_W}, 7168")
    A.e("v_lshrrev_b32 v16, 3, v1")
    A.e("v_mul_u32_u24 v23, 896, v16")
    A.e("v_bfe_u32 v16, v1, 4, 1")
    A.e("v_bfe_u32 v17, v1, 2, 1")
    A.e("v_xor_b32 v16, v16, v17")
    A.e("v_lshl_add_u32 v23, v16, 6, v23")
    A.e("v_and_b32 v16, 3, v1")
    A.e("v_lshl_add_u32 v23, v16, 4, v23")
    vme = Vm()
    def wo_dma(t):
        out = []
        for n in range(7):
            out.append(f"s_add_u32 m0, s41, {WSLOT[t % 5] + n*1024}")
            out.append(f"s_add_u32 s50, s{GOFF+n}, {t*32*896}")
            out.append(f"buffer_load_dwordx4 v23, s[{SRD_WO}:{SRD_WO+3}], s50 offen lds")
            vme.issue(('wo', t))
        return out
    def spread(lst, lo, hi):
        d = {}
        trip = [lst[i:i+3] for i in range(0, len(lst), 3)]
        for i, tr3 in enumerate(trip):
            g = lo + (i*(hi-lo+1))//len(trip)
            d.setdefault(g, []).extend(tr3)
        return d
    iteration(A, 0, "T0", dma_k=False, dma_v=True, vmwait=8)
    iteration(A, 1, "T1", dma_k=False, dma_v=False, vmwait=4, nxt_qk=False)
    iteration(A, 2, "T2", do_qk=False, dma_k=False, dma_v=False, vmwait=0, nxt_qk=False,
              extra=spread(wo_dma(0) + wo_dma(1)[:12], 1, 30))
    vme.q = [('wo', 0)]*7 + [('wo', 1)]*4
    rest1 = []
    for n in range(4, 7):
        rest1 += [f"s_add_u32 m0, s41, {WSLOT[1] + n*1024}", f"s_add_u32 s50, s{GOFF+n}, {32*896}",
                  f"buffer_load_dwordx4 v23, s[{SRD_WO}:{SRD_WO+3}], s50 offen lds"]
        vme.issue(('wo', 1))
    iteration(A, 3, "T3", do_qk=False, do_sm=False, dma_k=False, dma_v=False, nxt_pv=False, nxt_qk=False, barrier=False,
              extra=spread(rest1 + wo_dma(2), 1, 30))
    ST.stamp()
    Lf = L_[1]
    OP = 64
    INV = [16, 17]
    for qb in range(2):
        A.e(f"v_mov_b32 v{INV[qb]}, v{Lf[qb]}")
        xlane(A, INV[qb], 18, "v_add_f32")
        A.e(f"v_rcp_f32 v{INV[qb]}, v{INV[qb]}")
    A.e("s_lshl_b32 s50, s46, 1")
    A.e("s_add_u32 s50, s50, s47")
    A.e("s_lshl_b32 s50, s50, 14")
    A.e(f"s_add_u32 s50, s50, {VBASE}")
    A.e("v_lshlrev_b32 v12, 4, v1")
    A.e("v_and_b32 v18, 15, v1")
    A.e("v_lshlrev_b32 v19, 9, v18")
    A.e("v_lshrrev_b32 v20, 5, v1")
    A.e("v_xor_b32 v20, v20, v18")
    A.e("v_lshl_add_u32 v19, v20, 4, v19")
    A.e("v_bfe_u32 v20, v1, 4, 1")
    A.e("v_lshl_add_u32 v19, v20, 3, v19")
    A.e("v_add_u32 v19, s50, v19")
    A.e("s_barrier")
    for db in range(16):
        A.e(f"v_xor_b32 v{24+(db & 3)}, {32*db}, v19")
        for qb in range(2):
            base = O0+(db*2+qb)*4
            for r in range(4):
                A.e(f"v_mul_f32 v{base+r}, v{base+r}, v{INV[qb]}")
            dst = 32 + 4*(db & 3) + 2*qb
            A.e(f"v_cvt_pk_bf16_f32 v{dst}, v{base}, v{base+1}")
            A.e(f"v_cvt_pk_bf16_f32 v{dst+1}, v{base+2}, v{base+3}")
            A.e(f"ds_write_b64 v{24+(db & 3)}, {v(dst,2)} offset:{qb*8192}")
    A.e("s_waitcnt lgkmcnt(0)")
    A.e("s_barrier")
    A.e("s_lshl_b32 s50, s46, 15")
    A.e(f"s_add_u32 s50, s50, {VBASE}")
    A.e("v_and_b32 v18, 31, v1")
    A.e("v_lshlrev_b32 v19, 9, v18")
    A.e("v_and_b32 v18, 15, v1")
    A.e("v_lshrrev_b32 v20, 5, v1")
    A.e("v_xor_b32 v20, v20, v18")
    A.e("v_lshl_add_u32 v19, v20, 4, v19")
    A.e("v_add_u32 v19, s50, v19")
    for ks in range(16):
        A.e(f"v_xor_b32 v{24+(ks & 3)}, {32*ks}, v19")
        for hd in range(2):
            A.e(f"ds_read_b128 {a(4*(16*hd+ks),4)}, v{24+(ks & 3)} offset:{hd*16384}")
    A.e("v_lshrrev_b32 v16, 5, v1")
    A.e("v_lshlrev_b32 v17, 10, v16")
    A.e("v_bfe_u32 v16, v1, 2, 2")
    A.e("v_lshl_add_u32 v17, v16, 7, v17")
    A.e("v_bfe_u32 v16, v1, 4, 1")
    A.e("v_lshl_add_u32 v17, v16, 5, v17")
    A.e("v_and_b32 v16, 3, v1")
    A.e("v_lshl_add_u32 v17, v16, 3, v17")
    A.e("v_bfe_u32 v16, v1, 3, 1")
    A.e("v_xor_b32 v18, s47, v16")
    A.e("v_lshl_add_u32 v2, v18, 6, v17")
    A.e("v_xor_b32 v18, 1, v18")
    A.e("v_lshl_add_u32 v3, v18, 6, v17")
    A.e(f"s_mul_i32 s50, s47, {3*2048}")
    A.e(f"s_mul_i32 s51, s47, {4*2048}")
    A.e("v_add_u32 v2, s50, v2")
    A.e("v_add_u32 v3, s51, v3")
    A.e(f"v_add_u32 v4, {WSLOT[2]}, v2")
    A.e(f"v_add_u32 v5, {WSLOT[2]}, v3")
    A.e(f"v_add_u32 v6, {WSLOT[3]}, v2")
    A.e(f"v_add_u32 v7, {WSLOT[3]}, v3")
    A.e("s_waitcnt lgkmcnt(0)")
    A.e("s_barrier")
    for t in wo_dma(3) + wo_dma(4): A.e(t)
    def wbase(slot, c):
        e = c & 1
        if slot in (0, 1): return (2+e, WSLOT[slot])
        if slot == 2: return (4+e, 0)
        return (6+e, WSLOT[slot]-WSLOT[3])
    ARG = AV
    ARG = 128
    def o_reads(t, p):
        if p >= 14:
            t, p = t+1, p-14
            if t >= 16: return []
        ksl, c = p // 7, p % 7
        b, off = wbase(t % 5, c)
        o = []
        for u in range(2):
            o.append((('o', t, p, u), f"ds_read_b64_tr_b16 {a(ARG+4*((14*t+p) % NRING)+2*u,2)}, v{b} offset:{off + ksl*14336 + (c >> 1)*2048 + u*512}"))
        return o
    lg = Lgkm(A)
    OL = OPT.get('ol', 4)
    A.e(vme.need({('wo', 0)}))
    A.e("s_barrier")
    for p in range(OL):
        for t_, txt in o_reads(0, p): A.e(txt); lg.issue(t_)
    ACC = O0
    for t in range(16):
        gaps = [[] for _ in range(14)]
        if t+1 < 16:
            w = vme.need({('wo', t+1)})
            gaps[0] += ([w] if w else []) + ["s_barrier"]
        if t >= 1 and t+4 < 16:
            d = wo_dma(t+4)
            if OPT.get('ostag', 0):
                for k in range(4):
                    lab = A.newlabel("OS")
                    gaps[1+3*k] += [f"s_cmp_lg_u32 s{S_W}, {k}", f"s_cbranch_scc1 {lab}"] + d + [("label", lab)]
            else:
                sp = spread(d, OPT.get('osp0', 1), OPT.get('osp1', 12))
                for g_, l_ in sp.items(): gaps[g_] += l_
        for p in range(14):
            if OPT.get('omw', 0):
                w2 = lg.need({('o', t, p+x, u) for x in range(2) for u in range(2)}) if p % 2 == 0 else None
            else:
                w2 = lg.need({('o', t, p, 0), ('o', t, p, 1)})
            if w2: A.e(w2)
            ksl, c = p // 7, p % 7
            acc = v(ACC+16*c, 16)
            first = (t == 0 and ksl == 0)
            if OPT.get('fakeo16'):
                for hh in range(2):
                    a4 = v(ACC+16*c+8*ksl+4*hh, 4)
                    A.e(m16(a4, a(ARG+4*((14*t+p) % NRING), 4), a(4*(2*t+hh), 4), "0" if t == 0 else a4))
            else:
                A.e(mfma(acc, a(ARG+4*((14*t+p) % NRING), 4), a(4*(2*t+ksl), 4), "0" if first else acc))
            for t_, txt in o_reads(t, p+OL): A.e(txt); lg.issue(t_)
            for txt in gaps[p]:
                if isinstance(txt, tuple): A.label(txt[1])
                else: A.e(txt)
    ST.stamp()
    A.e("s_lshl_b32 s50, s44, 6")
    A.e("s_add_u32 s50, s50, s45")
    A.e("s_mul_i32 s50, s50, 28672")
    A.e(f"s_mul_i32 s51, s47, {14*1024}")
    A.e("s_add_u32 s50, s50, s51")
    A.e(f"s_add_u32 s50, s50, {PART_OFF}")
    A.e("s_add_u32 s52, s60, s50")
    A.e("s_addc_u32 s53, s61, 0")
    srd(A, SRD_Y, "s52", "s53", 14*1024)
    A.e("s_nop 7")
    for fr in range(14):
        dst = OP + 4*(fr % 16)
        for r in range(4):
            A.e(f"v_cvt_pk_bf16_f32 v{dst+r}, v{ACC+8*fr+2*r}, v{ACC+8*fr+2*r+1}")
        if fr % 4 == 0:
            A.e(f"s_mov_b32 s50, {fr*1024}")
        A.e(f"buffer_store_dwordx4 {v(dst,4)}, v12, s[{SRD_Y}:{SRD_Y+3}], s50 offen offset:{(fr%4)*1024} {OPT.get('pstore', '')}")
    ST.finish("K1_END")
    A.label("K1_END")
    A.e("s_endpgm")
    if not OPT['no_sm']:
        for ph in range(4):
            rare_path(A, ph, f"M{ph}")
        for ph in range(4):
            rare_path(A, ph, f"F{ph}")
        rare_path(A, 0, "T0")
        rare_path(A, 1, "T1")
        rare_path(A, 2, "T2", do_qk=False)
    return name
```

```python
from asmlib import *
from layout import *
import k1
from k1 import (Lgkm, mfma, f2u, AQ, NRING, AK, AV, SRD_K, SRD_V, SRD_WQ, SRD_Y, SRD_M,
                S_W, S_KOFF, S_M0K, S_M0V, S_CNT, S_THR, THR_LOG2, OPT, distribute)

K1_LDS = 163840
SRD_WO = 16
KPIECE = 1056
KSLOT = 16*KPIECE
VBASE = 4*KSLOT
VSLOT = 16384
MODL = VBASE + 4*VSLOT
SPARE = MODL + 4096
WSLOT = [0, 28672, MODL, VBASE, VBASE+28672]
O0 = 128
S_ = [96, 112]
NEGM = 80
P_ = [64, 72]
T_ = 56
L_ = [[60, 61], [62, 63]]
VKR = [2, 3]
VVR = [4, 5, 6, 7]
VKD = [8, 9, 10, 11]
VVD = [12, 13, 14, 15]
LEAD = 6

def m16(d, A_, B_, C_):
    return f"v_mfma_f32_16x16x32_bf16 {d}, {A_}, {B_}, {C_}"

def vread(slot, db, u, ring):
    return f"ds_read_b64_tr_b16 {a(AV+4*ring+2*u,2)}, v{VVR[db & 3]} offset:{slot*VSLOT + u*8192 + (db >> 2)*256}"

def kread(slot, kb, ks, ring):
    return f"ds_read_b128 {a(AK+4*ring,4)}, v{VKR[(ks >> 1) & 1]} offset:{slot*KSLOT + kb*8448 + ks*64}"

def softmax_ops(Sr, Pw, Lold, Lnew):
    ops = []
    def info(j):
        kb, qb, hf = j >> 2, (j >> 1) & 1, j & 1
        return (kb*2+qb)*4 + 2*hf, qb*4 + 2*kb + hf, qb, (kb == 0 and hf == 0)
    def pairtail(j):
        t0, t1 = T_ + 2*(j & 1), T_ + 2*(j & 1) + 1
        si, pi, qb, first = info(j)
        src = Lold[qb] if first else Lnew[qb]
        return [(1, f"v_add_f32 v{Lnew[qb]}, v{src}, v{t0}"),
                (1, f"v_add_f32 v{Lnew[qb]}, v{Lnew[qb]}, v{t1}"),
                (1, f"v_cvt_pk_bf16_f32 v{Pw+pi}, v{t0}, v{t1}")]
    for j in range(8):
        t0, t1 = T_ + 2*(j & 1), T_ + 2*(j & 1) + 1
        si = info(j)[0]
        ops.append((2, f"v_exp_f32 v{t0}, v{Sr+si}"))
        ops.append((2, f"v_exp_f32 v{t1}, v{Sr+si+1}"))
        if j > 0: ops += pairtail(j-1)
    ops += pairtail(7)
    return ops

def reads_for_pos(ph, p, do_pv, do_qk, nxt_pv, nxt_qk):
    if p >= 32:
        ph2, p2, pv, qk = (ph+1) % 4, p-32, nxt_pv, nxt_qk
    else:
        ph2, p2, pv, qk = ph, p, do_pv, do_qk
    if p2 < 16:
        if not pv: return []
        return [((p2, u), vread(ph2, p2, u, p2 % NRING)) for u in range(2)]
    if not qk: return []
    n = p2-16
    return [((p2, 0), kread((ph2+2) % 4, n & 1, n >> 1, n % NRING))]

def iteration(A, ph, tag, do_qk=True, do_sm=True, dma_k=True, dma_v=True,
              nxt_pv=True, nxt_qk=True, vmwait=8, barrier=True, extra=None, first=False):
    Sw, Sr = S_[ph % 2], S_[(ph+1) % 2]
    Pr, Pw = P_[ph % 2], P_[(ph+1) % 2]
    Lold, Lnew = L_[ph % 2], L_[(ph+1) % 2]
    pend = []
    for p in range(LEAD):
        pend += [t for t, _ in reads_for_pos(ph, p, True, do_qk, True, True)]
    lg = Lgkm(A, pend)
    gaps = [[] for _ in range(32)]
    if barrier:
        gaps[OPT.get('bargap', 0)] += [f"s_waitcnt vmcnt({vmwait})"] + ([] if OPT.get('nobar') else ["s_barrier"])
    if OPT.get('no_dma'): dma_k = dma_v = False
    if dma_k:
        kp = OPT.get('kdma', [10, 11, 13, 15, 17])
        gaps[kp[0]].append(f"s_add_u32 m0, s{S_M0K}, {((ph+1) % 4)*KSLOT}")
        for n in range(4):
            gaps[kp[1+n]].append(f"buffer_load_dwordx4 v{VKD[n]}, s[{SRD_K}:{SRD_K+3}], s{S_KOFF} offen offset:{n*KPIECE} {OPT.get('kvmod', '')} lds")
    if dma_v:
        vp = OPT.get('vdma', [18, 19, 21, 23, 25])
        gaps[vp[0]].append(f"s_add_u32 m0, s{S_M0V}, {((ph+3) % 4)*VSLOT}")
        for n in range(4):
            gaps[vp[1+n]].append(f"buffer_load_dwordx4 v{VVD[n]}, s[{SRD_V}:{SRD_V+3}], s{S_KOFF} offen offset:{n*1024} {OPT.get('kvmod', '')} lds")
    gaps[31].append(f"s_add_u32 s{S_KOFF}, s{S_KOFF}, 16384")
    if extra:
        for g_, l_ in extra.items(): gaps[g_] += l_
    def cst(t):
        if t.startswith('v_exp'): return 2
        if t.startswith('buffer_load'): return OPT.get('dmacost', 3)
        return 1
    if do_sm:
        if OPT.get('level', 1):
            WM_ = OPT.get('wmerge', 2)
            fixed = []
            for p in range(32):
                f_ = len(reads_for_pos(ph, p+LEAD, True, do_qk, nxt_pv, nxt_qk)) + sum(cst(t) for t in gaps[p])
                if (p+1) % WM_ == 0: f_ += 1
                fixed.append(f_)
            ops = softmax_ops(Sr, Pw, Lold, Lnew)
            lo, hi = OPT.get('smlo', 3), 29
            total = sum(c for c, _ in ops) + sum(fixed[lo:hi+1])
            tgt = total / (hi-lo+1)
            g = lo; cum_t = 0.0; cum = 0.0
            load = [fixed[p] for p in range(32)]
            budget = 0.0
            i_ = 0
            for p in range(lo, hi+1):
                budget += tgt - fixed[p]
                while i_ < len(ops) and (budget >= ops[i_][0]*0.5 or p == hi):
                    gaps[p].append(ops[i_][1]); budget -= ops[i_][0]; i_ += 1
            assert i_ == len(ops)
        else:
            sm = distribute(softmax_ops(Sr, Pw, Lold, Lnew), OPT.get('smlo', 3), 29)
            for g in range(32): gaps[g] += sm[g]
        gaps[30].append(f"v_max_f32 v{T_}, v{Lnew[0]}, v{Lnew[1]}")
        gaps[31].append(f"v_cmp_lt_f32 vcc, s{S_THR}, v{T_}")
    for p in range(32):
        WM = OPT.get('wmerge', 2)
        if p % WM == 0:
            w = lg.need({(p+x, u) for x in range(WM) for u in range(2)})
            if w: A.e(w)
        F = []
        for t, txt in reads_for_pos(ph, p+LEAD, True, do_qk, nxt_pv, nxt_qk):
            F.append(txt)
            lg.issue((t[0] + (32 if p+LEAD >= 32 else 0), t[1]))
        F += gaps[p]
        M = []
        if p < 16:
            for qb in range(2):
                acc = v(O0+(p*2+qb)*4, 4)
                M.append(m16(acc, a(AV+4*(p % NRING), 4), v(Pr+4*qb, 4), "0" if first else acc))
        elif do_qk:
            n = p-16; ks, kb = n >> 1, n & 1
            for qb in range(2):
                d = v(Sw+(kb*2+qb)*4, 4)
                M.append(m16(d, a(AK+4*(n % NRING), 4), a(AQ+(qb*8+ks)*4, 4), v(NEGM+4*qb, 4) if ks == 0 else d))
        if len(M) == 2:
            def cst(t): return 2 if (t.startswith('v_exp') or t.startswith('buffer_load')) else 1
            tot = sum(cst(t) for t in F); acc_ = 0; h = 0
            for t in F:
                if acc_ + cst(t) > (tot+1)//2: break
                acc_ += cst(t); h += 1
            A.e(M[0])
            for txt in F[:h]: A.e(txt)
            A.e(M[1])
            for txt in F[h:]: A.e(txt)
        else:
            for txt in F: A.e(txt)
    if do_sm:
        A.e(f"s_cbranch_vccnz RARE_{tag}")
        A.label(f"CONT_{tag}")

def xlane(A, r, tmp, op):
    A.e(f"v_mov_b32 v{tmp}, v{r}")
    A.e("s_nop 1")
    A.e(f"v_permlane16_swap_b32 v{r}, v{tmp}")
    A.e("s_nop 1")
    A.e(f"{op} v{r}, v{r}, v{tmp}")
    A.e(f"v_mov_b32 v{tmp}, v{r}")
    A.e("s_nop 1")
    A.e(f"v_permlane32_swap_b32 v{r}, v{tmp}")
    A.e("s_nop 1")
    A.e(f"{op} v{r}, v{r}, v{tmp}")

def rare_path(A, ph, tag, do_qk=True):
    Sn, Sr = S_[ph % 2], S_[(ph+1) % 2]
    Pw = P_[(ph+1) % 2]
    Lold, Lnew = L_[ph % 2], L_[(ph+1) % 2]
    DL = [16, 17]; FF = [18, 19]; t1, t2, t3 = 20, 21, 22
    A.label(f"RARE_{tag}")
    A.e("s_nop 15")
    A.e("s_nop 15")
    for qb in range(2):
        regs = [Sr+(kb*2+qb)*4+r for kb in range(2) for r in range(4)]
        d = DL[qb]
        A.e(f"v_max3_f32 v{d}, v{regs[0]}, v{regs[1]}, v{regs[2]}")
        A.e(f"v_max3_f32 v{d}, v{d}, v{regs[3]}, v{regs[4]}")
        A.e(f"v_max3_f32 v{d}, v{d}, v{regs[5]}, v{regs[6]}")
        A.e(f"v_max_f32 v{d}, v{d}, v{regs[7]}")
        xlane(A, d, t1, "v_max_f32")
        A.e(f"v_mov_b32 v{t2}, v{Lold[qb]}")
        xlane(A, t2, t1, "v_add_f32")
        A.e(f"v_log_f32 v{t2}, v{t2}")
        A.e("s_nop 0")
        A.e(f"v_max_f32 v{d}, v{d}, v{t2}")
        if OPT['bias']:
            A.e(f"v_add_f32 v{d}, {f2u(float(OPT['bias'])):#x}, v{d}")
        A.e(f"v_max_f32 v{d}, 0, v{d}")
        A.e(f"v_mul_f32 v{FF[qb]}, -0.5, v{d}")
        A.e(f"v_exp_f32 v{FF[qb]}, v{FF[qb]}")
        A.e("s_nop 0")
    for rep in range(2):
        for db in range(16):
            for qb in range(2):
                for r in range(4):
                    x = O0+(db*2+qb)*4+r
                    A.e(f"v_mul_f32 v{x}, v{x}, v{FF[qb]}")
    for qb in range(2):
        A.e(f"v_mul_f32 v{Lold[qb]}, v{Lold[qb]}, v{FF[qb]}")
        A.e(f"v_mul_f32 v{Lold[qb]}, v{Lold[qb]}, v{FF[qb]}")
        for r in range(4):
            A.e(f"v_sub_f32 v{NEGM+4*qb+r}, v{NEGM+4*qb+r}, v{DL[qb]}")
        for kb in range(2):
            for r in range(4):
                if do_qk:
                    x = Sn+(kb*2+qb)*4+r
                    A.e(f"v_sub_f32 v{x}, v{x}, v{DL[qb]}")
                x = Sr+(kb*2+qb)*4+r
                A.e(f"v_sub_f32 v{x}, v{x}, v{DL[qb]}")
    for c, t in softmax_ops(Sr, Pw, Lold, Lnew):
        A.e(t)
    A.e("s_nop 1")
    A.e(f"s_branch CONT_{tag}")

class Vm:
    def __init__(self): self.q = []
    def issue(self, tag): self.q.append(tag)
    def need(self, tags):
        idx = -1
        for i, t in enumerate(self.q):
            if t in tags: idx = i
        if idx < 0: return None
        n = len(self.q) - 1 - idx
        self.q = self.q[idx+1:]
        assert n <= 63
        return f"s_waitcnt vmcnt({n})"

def gen_k1(A, dbg=None):
    name = "k1_attn_kernel"
    kernel_begin(A, name)
    ST = Stamps(A, dbg == "time", wg=9, wave_sgpr=S_W)
    A.e("s_cmp_ge_u32 s2, 256")
    A.e("s_cbranch_scc1 K1_END")
    ST.stamp()
    A.e("s_load_dwordx4 s[36:39], s[0:1], 8")
    A.e("s_load_dwordx4 s[40:43], s[0:1], 24")
    A.e("s_load_dwordx2 s[60:61], s[0:1], 96")
    A.e("v_and_b32 v1, 63, v0")
    A.e("v_lshrrev_b32 v14, 6, v0")
    A.e("s_nop 0")
    A.e(f"v_readfirstlane_b32 s{S_W}, v14")
    A.e("s_and_b32 s44, s2, 7")
    A.e("s_lshr_b32 s45, s2, 3")
    A.e("s_lshl_b32 s45, s45, 1")
    A.e(f"s_and_b32 s46, s{S_W}, 1")
    A.e("s_add_u32 s45, s45, s46")
    A.e(f"s_lshr_b32 s47, s{S_W}, 1")
    A.e("v_bfe_u32 v14, v1, 2, 1")
    A.e("v_bfe_u32 v15, v1, 3, 1")
    A.e("v_and_b32 v12, 3, v1")
    A.e("v_lshlrev_b32 v12, 4, v12")
    A.e("v_lshrrev_b32 v13, 4, v1")
    A.e("v_lshl_add_u32 v12, v13, 7, v12")
    for n in range(4):
        A.e(f"v_xor_b32 v13, {n & 1}, v14")
        A.e(f"v_lshl_add_u32 v13, v13, 6, v12")
        A.e(f"v_lshl_add_u32 v13, v15, 13, v13")
        A.e(f"v_add_u32 v{2+n}, {2*n*8192 - n*1024}, v13")
    def tr_bases(dst, swap, add, ta, tb, tc):
        A.e(f"v_lshrrev_b32 v{tb}, 5, v1")
        A.e(f"v_lshlrev_b32 v{ta}, 11, v{tb}")
        A.e(f"v_bfe_u32 v{tb}, v1, 3, 1")
        A.e(f"v_lshl_add_u32 v{ta}, v{tb}, 10, v{ta}")
        A.e(f"v_bfe_u32 v{tc}, v1, 2, 1")
        A.e(f"v_lshl_add_u32 v{ta}, v{tc}, 7, v{ta}")
        A.e(f"v_bfe_u32 v{tc}, v1, 4, 1")
        A.e(f"v_lshl_add_u32 v{ta}, v{tc}, 5, v{ta}")
        if swap:
            A.e(f"v_and_b32 v{tc}, 1, v1")
            A.e(f"v_lshl_add_u32 v{ta}, v{tc}, 4, v{ta}")
            A.e(f"v_bfe_u32 v{tc}, v1, 1, 1")
            A.e(f"v_lshl_add_u32 v{ta}, v{tc}, 3, v{ta}")
        else:
            A.e(f"v_and_b32 v{tc}, 3, v1")
            A.e(f"v_lshl_add_u32 v{ta}, v{tc}, 3, v{ta}")
        A.e(f"v_add_u32 v{ta}, {add}, v{ta}")
        A.e(f"v_lshl_add_u32 v{dst[0]}, v{tb}, 6, v{ta}")
        A.e(f"v_xor_b32 v{tb}, 1, v{tb}")
        A.e(f"v_lshl_add_u32 v{dst[1]}, v{tb}, 6, v{ta}")
    A.e("s_lshl_b32 s48, s47, 14")
    tr_bases([6, 7], True, "s48", 13, 14, 15)
    A.e("v_add_u32 v8, 0x10000, v6")
    A.e("v_add_u32 v9, 0x10000, v7")
    WQR = [[6, 7], [8, 9]]
    A.e("v_lshlrev_b32 v12, 4, v1")
    A.e("v_lshrrev_b32 v13, 5, v1")
    A.e("v_lshlrev_b32 v13, 4, v13")
    A.e(f"v_add_u32 v13, {MODL}, v13")
    A.e(f"s_lshl_b32 s49, s46, 17")
    A.e("s_lshl_b32 s50, s47, 9")
    A.e("s_add_u32 s49, s49, s50")
    A.e(f"s_lshl_b32 s48, s{S_W}, 13")
    A.e("s_waitcnt lgkmcnt(0)")
    A.e("s_lshl_b32 s50, s44, 20")
    A.e("s_add_u32 s36, s36, s50")
    A.e("s_addc_u32 s37, s37, 0")
    A.e("s_sub_u32 s52, s36, 128")
    A.e("s_subb_u32 s53, s37, 0")
    srd(A, SRD_K, "s52", "s53", 1048576+128)
    A.e("s_add_u32 s38, s38, s50")
    A.e("s_addc_u32 s39, s39, 0")
    A.e("s_sub_u32 s52, s38, 32768")
    A.e("s_subb_u32 s53, s39, 0")
    srd(A, SRD_V, "s52", "s53", 1048576+32768)
    A.e("s_lshl_b32 s50, s44, 10")
    A.e("s_add_u32 s40, s40, s50")
    A.e("s_addc_u32 s41, s41, 0")
    A.e(f"s_sub_u32 s51, {448*8192}, s50")
    srd(A, SRD_WQ, "s40", "s41", "s51")
    A.e("s_mul_i32 s50, s45, 28672")
    A.e(f"s_add_u32 s50, s50, {Y_OFF}")
    A.e("s_add_u32 s52, s60, s50")
    A.e("s_addc_u32 s53, s61, 0")
    srd(A, SRD_Y, "s52", "s53", 28672)
    srd(A, SRD_M, "s60", "s61", 3584)
    YR = 16
    BF = 40
    TG = 64
    TU = 96
    H1L = SPARE
    def yreg(s): return YR + 4*(s % 6)
    def breg(s, j): return BF + 8*(s & 1) + 4*j
    vm = Vm()
    A.e("s_lshl_b32 s50, s47, 10")
    A.e("v_add_u32 v14, s50, v12")
    A.e("s_lshl_b32 s51, s47, 6")
    A.e("v_add_u32 v13, s51, v13")
    A.e("s_mul_i32 s51, s46, 6144")
    A.e(f"s_add_u32 s51, s51, {H1L}")
    A.e("v_add_u32 v10, s51, v12")
    A.e("v_add_u32 v15, s50, v10")
    def y_load(s):
        vm.issue(('y', s))
        return [f"s_mov_b32 s50, {(s//2)*4096}",
                f"buffer_load_dwordx4 {v(yreg(s),4)}, v14, s[{SRD_Y}:{SRD_Y+3}], s50 offen offset:{(s%2)*2048}"]
    def wslot(s): return (s+2) % 4
    def wq_dma(s):
        out = []
        for grp in range(2):
            out.append(f"s_add_u32 m0, s48, {wslot(s)*32768 + grp*4096}")
            out.append(f"s_add_u32 s50, s49, {s*262144 + grp*65536}")
            for n in range(4):
                if OPT.get('q_vgpr') and s >= 3:
                    out.append(f"buffer_load_dwordx4 {a(128+4*((8*s+4*grp+n) % 24),4)}, v{2+n}, s[{SRD_WQ}:{SRD_WQ+3}], s50 offen offset:{n*1024}")
                else:
                    out.append(f"buffer_load_dwordx4 v{2+n}, s[{SRD_WQ}:{SRD_WQ+3}], s50 offen offset:{n*1024} lds")
                vm.issue(('wq', s))
        return out
    for f in range(2):
        for t in y_load(f): A.e(t)
    A.e(f"s_lshl_b32 s50, s{S_W}, 10")
    A.e(f"s_add_u32 m0, s50, {MODL}")
    A.e("s_nop 0")
    A.e(f"buffer_load_dwordx4 v12, s[{SRD_M}:{SRD_M+3}], s50 offen lds")
    vm.issue('mod')
    for t in wq_dma(0): A.e(t)
    for s_ in (1, 2):
        for t in y_load(s_+1): A.e(t)
        for t in wq_dma(s_): A.e(t)
    lg = Lgkm(A)
    def ln_ops(s):
        b = TG + 16*(s & 1)
        rd = [(('m', s, 0), f"ds_read_b128 {v(b,4)}, v13 offset:{1792+s*128}"),
              (('m', s, 1), f"ds_read_b128 {v(b+4,4)}, v13 offset:{1792+s*128+32}"),
              (('m', s, 2), f"ds_read_b128 {v(b+8,4)}, v13 offset:{s*128}"),
              (('m', s, 3), f"ds_read_b128 {v(b+12,4)}, v13 offset:{s*128+32}")]
        tu = TU + 8*(s & 1)
        va = []
        for d in range(4):
            r = yreg(s)+d
            va.append(f"v_lshlrev_b32 v{tu+2*d}, 16, v{r}")
            va.append(f"v_and_b32 v{tu+2*d+1}, 0xffff0000, v{r}")
        vb = []
        for d in range(4):
            vb.append(f"v_pk_fma_f32 {v(tu+2*d,2)}, {v(tu+2*d,2)}, {v(b+2*d,2)}, {v(b+8+2*d,2)}")
        for d in range(4):
            vb.append(f"v_cvt_pk_bf16_f32 v{yreg(s)+d}, v{tu+2*d}, v{tu+2*d+1}")
        wr = (('hw', s), f"ds_write_b128 v15, {v(yreg(s),4)} offset:{(s % 3)*2048}")
        return rd, va, vb, wr
    def b_reads(s):
        return [(('b', s, j), f"ds_read_b128 {v(breg(s, j),4)}, v10 offset:{(s % 3)*2048 + j*1024}") for j in range(2)]
    w = vm.need({('y', 0), ('y', 1), 'mod', ('wq', 0)})
    A.e(w)
    A.e("s_barrier")
    ST.stamp()
    for f in (0, 1):
        rd, va, vb, wr = ln_ops(f)
        for t, txt in rd: A.e(txt); lg.issue(t)
        for txt in va: A.e(txt)
        A.e(lg.need({('m', f, 3)}))
        for txt in vb: A.e(txt)
        A.e(wr[1]); lg.issue(wr[0])
    A.e("s_waitcnt lgkmcnt(0)")
    lg.q = []
    A.e("s_barrier")
    for t, txt in b_reads(0): A.e(txt); lg.issue(t)
    QL = OPT.get('ql', 4)
    def q_reads(s, p):
        if p >= 16:
            s, p = s+1, p-16
            if s >= 14: return []
        db, ks = p >> 1, p & 1
        sl = wslot(s)
        o = []
        for u in range(2):
            off = (sl & 1)*32768 + ks*8192 + u*4096 + (db >> 1)*256
            o.append((('q', s, p, u), f"ds_read_b64_tr_b16 {a(AV+4*(p % NRING)+2*u,2)}, v{WQR[sl >> 1][db & 1]} offset:{off}"))
        return o
    for p in range(QL):
        for t, txt in q_reads(0, p):
            A.e(txt); lg.issue(t)
    def k_dma(blk):
        out = [f"s_add_u32 m0, s{S_M0K}, {(blk % 4)*KSLOT}", f"s_mov_b32 s50, {blk*16384}"]
        for n in range(4):
            out.append(f"buffer_load_dwordx4 v{VKD2[n]}, s[{SRD_K}:{SRD_K+3}], s50 offen offset:{n*KPIECE} lds")
            vm.issue(('k', blk))
        return out
    def v_dma(blk):
        out = [f"s_add_u32 m0, s{S_M0V}, {(blk % 4)*VSLOT}", f"s_mov_b32 s50, {blk*16384+32768}"]
        for n in range(4):
            out.append(f"buffer_load_dwordx4 v{VVD2[n]}, s[{SRD_V}:{SRD_V+3}], s50 offen offset:{n*1024} lds")
            vm.issue(('v', blk))
        return out
    VKD2 = [112, 113, 114, 115]
    VVD2 = [116, 117, 118, 119]
    def kv_addr_setup():
        o = []
        e = o.append
        e("v_lshrrev_b32 v120, 5, v1")
        e("v_and_b32 v121, 31, v1")
        e("v_lshlrev_b32 v122, 3, v120")
        e("v_xor_b32 v121, v121, v122")
        e("v_lshlrev_b32 v121, 4, v121")
        e("v_lshl_add_u32 v121, v120, 9, v121")
        e(f"s_lshl_b32 s51, s{S_W}, 12")
        e("s_add_u32 s54, s51, 128")
        e(f"v_add_u32 v{VKD2[0]}, s54, v121")
        for n in range(1, 4):
            e(f"v_subrev_u32 v{VKD2[n]}, {32*n}, v{VKD2[0]}")
        e("v_bfe_u32 v120, v1, 3, 1")
        e("v_lshlrev_b32 v121, 9, v120")
        e("v_lshrrev_b32 v120, 4, v1")
        e("v_lshl_add_u32 v121, v120, 7, v121")
        e("v_add_u32 v121, s51, v121")
        e("v_and_b32 v120, 7, v1")
        for n in range(4):
            e(f"v_xor_b32 v122, {2*n}, v120")
            e(f"v_lshl_add_u32 v{VVD2[n]}, v122, 4, v121")
        e(f"s_add_u32 s{S_M0V}, s51, {VBASE}")
        e(f"s_mul_i32 s{S_M0K}, s{S_W}, {4*KPIECE}")
        return o
    for t in kv_addr_setup(): A.e(t)
    for s_ in range(14):
        gaps = [[] for _ in range(16)]
        needs = set()
        if s_+1 < 14: needs |= {('wq', s_+1)}
        if s_+2 < 14: needs |= {('y', s_+2)}
        w = vm.need(needs) if needs else None
        wl = lg.need({('hw', s_+1)}) if False else None
        gaps[0] += ([w] if w else []) + [('barrier', s_+1)]
        fill = []
        if s_+4 < 14: fill += y_load(s_+4)
        if s_+3 < 14: fill += wq_dma(s_+3)
        if s_ == 12:
            for blk in (0, 1, 2): fill += k_dma(blk)
        if s_ == 13:
            fill += k_dma(3) + v_dma(0)
        n = len(fill)
        if OPT.get('qstag', 0) and n:
            for k in range(4):
                lab = A.newlabel("QS")
                gaps[1+4*k] += [f"s_cmp_lg_u32 s{S_W}, {k}", f"s_cbranch_scc1 {lab}"] + fill + [("label", lab)]
        else:
            for i, t in enumerate(fill):
                gaps[1 + (i*14)//max(n, 1)].append(t)
        items = []
        if s_+1 < 14:
            for t, txt in b_reads(s_+1): items.append(('rd', t, txt))
        if s_+2 < 14:
            r0, a0, b0, wr = ln_ops(s_+2)
            for t, txt in r0: items.append(('rd', t, txt))
            for txt in a0: items.append(('v', None, txt))
            items.append(('need', s_+2, None))
            for txt in b0: items.append(('v', None, txt))
            items.append(('rd', wr[0], wr[1]))
        lgaps = [[] for _ in range(16)]
        for i, it in enumerate(items):
            lgaps[1 + (i*13)//max(len(items), 1)].append(it)
        for p in range(16):
            if OPT.get('q_mw', 0):
                w2 = lg.need({('q', s_, p, 0), ('q', s_, p, 1), ('q', s_, p+1, 0), ('q', s_, p+1, 1)}) if p % 2 == 0 else None
            else:
                w2 = lg.need({('q', s_, p, 0), ('q', s_, p, 1)} | ({('b', s_, p)} if p < 2 else set()))
            if w2: A.e(w2)
            db, ks = p >> 1, p & 1
            acc = v(O0+16*db, 16)
            first = (s_ == 0 and ks == 0)
            if OPT.get('fakeq16'):
                for hh in range(2):
                    a4 = v(O0+16*db+8*ks+4*hh, 4)
                    A.e(m16(a4, a(AV+4*(p % NRING), 4), v(yreg(2*s_+hh), 4), "0" if s_ == 0 else a4))
            else:
                A.e(mfma(acc, a(AV+4*(p % NRING), 4), v(breg(s_, ks), 4), "0" if first else acc))
            for t, txt in q_reads(s_, p+QL):
                A.e(txt); lg.issue(t)
            for txt in gaps[p]:
                if isinstance(txt, tuple) and txt[0] == 'label':
                    A.label(txt[1])
                elif isinstance(txt, tuple):
                    w4 = lg.need({('hw', txt[1])})
                    if w4: A.e(w4)
                    A.e("s_barrier")
                else:
                    A.e(txt)
            for kind, t, txt in lgaps[p]:
                if kind == 'rd':
                    A.e(txt); lg.issue(t)
                elif kind == 'v':
                    A.e(txt)
                else:
                    w3 = lg.need({('m', t, 3)})
                    if w3: A.e(w3)
    ST.stamp()
    A.e("s_barrier")
    for n in range(4): A.e(f"v_mov_b32 v{VKD[n]}, v{VKD2[n]}")
    for n in range(4): A.e(f"v_mov_b32 v{VVD[n]}, v{VVD2[n]}")
    A.e("v_bfe_u32 v16, v1, 1, 3")
    A.e(f"v_mul_u32_u24 v16, {KPIECE}, v16")
    A.e("v_and_b32 v17, 1, v1")
    A.e("v_lshl_add_u32 v16, v17, 9, v16")
    A.e("v_lshrrev_b32 v18, 4, v1")
    A.e("v_lshl_add_u32 v16, v18, 4, v16")
    A.e("v_lshlrev_b32 v17, 7, v17")
    A.e(f"v_add_u32 v{VKR[0]}, v16, v17")
    A.e(f"v_sub_u32 v{VKR[1]}, v16, v17")
    A.e("v_bfe_u32 v17, v1, 3, 1")
    A.e("v_lshl_add_u32 v19, v18, 1, v17")
    A.e("v_lshlrev_b32 v16, 10, v19")
    A.e("v_bfe_u32 v17, v1, 2, 1")
    A.e("v_lshl_add_u32 v16, v17, 7, v16")
    A.e("v_and_b32 v17, 3, v1")
    A.e("v_lshl_add_u32 v16, v17, 3, v16")
    A.e(f"v_add_u32 v16, {VBASE}, v16")
    A.e("v_and_b32 v19, 3, v19")
    for sx in range(4):
        A.e(f"v_xor_b32 v17, {sx}, v19")
        A.e(f"v_lshl_add_u32 v{VVR[sx]}, v17, 5, v16")
    A.e(f"s_add_u32 s50, s{S_W}, 1")
    A.e("s_lshl_b32 s50, s50, 14")
    A.e(f"s_add_u32 s50, s50, {VBASE}")
    A.e(f"s_cmp_eq_u32 s{S_W}, 3")
    A.e(f"s_cselect_b32 s50, {SPARE}, s50")
    A.e("v_and_b32 v16, 31, v1")
    A.e("v_lshlrev_b32 v17, 9, v16")
    A.e("v_and_b32 v16, 15, v1")
    A.e("v_lshrrev_b32 v18, 5, v1")
    A.e("v_xor_b32 v18, v18, v16")
    A.e("v_lshl_add_u32 v17, v18, 4, v17")
    A.e("v_add_u32 v20, s50, v17")
    A.e("v_lshlrev_b32 v17, 9, v16")
    A.e("v_lshrrev_b32 v18, 4, v1")
    A.e("v_xor_b32 v18, v18, v16")
    A.e("v_lshl_add_u32 v17, v18, 4, v17")
    A.e("v_add_u32 v21, s50, v17")
    for fr in range(16):
        base = O0 + 8*fr
        dst = 24 + 4*(fr & 3)
        for r in range(4):
            A.e(f"v_cvt_pk_bf16_f32 v{dst+r}, v{base+2*r}, v{base+2*r+1}")
        A.e(f"v_xor_b32 v{40+(fr & 3)}, {32*fr}, v20")
        A.e(f"ds_write_b128 v{40+(fr & 3)}, {v(dst,4)}")
    A.e("s_waitcnt lgkmcnt(0)")
    for ks in range(8):
        A.e(f"v_xor_b32 v{40+(ks & 3)}, {64*ks}, v21")
        for qb in range(2):
            A.e(f"ds_read_b128 {a(AQ+(qb*8+ks)*4,4)}, v{40+(ks & 3)} offset:{qb*8192}")
    A.e("s_waitcnt lgkmcnt(0)")
    A.e(vm.need({('k', 0), ('k', 1)}))
    A.e("s_barrier")
    VKD2[:] = VKD; VVD2[:] = VVD
    for t in v_dma(1): A.e(t)
    lg = Lgkm(A)
    seq = [(b, n) for b in range(2) for n in range(16)]
    KL = 4
    for i in range(KL):
        b, n = seq[i]
        A.e(kread(b, n & 1, n >> 1, i % NRING)); lg.issue(i)
    zero = [f"v_mov_b32 v{O0+r}, 0" for r in range(128)]
    for i, (b, n) in enumerate(seq):
        w = lg.need({i})
        if w: A.e(w)
        ks, kb = n >> 1, n & 1
        for qb in range(2):
            d = v(S_[b]+(kb*2+qb)*4, 4)
            A.e(m16(d, a(AK+4*(i % NRING), 4), a(AQ+(qb*8+ks)*4, 4), "0" if ks == 0 else d))
        if i+KL < 32:
            b2, n2 = seq[i+KL]
            A.e(kread(b2, n2 & 1, n2 >> 1, (i+KL) % NRING)); lg.issue(i+KL)
    A.e("s_barrier")
    for t in v_dma(2): A.e(t)
    for t in k_dma(4): A.e(t)
    A.e(f"s_mov_b32 s{S_KOFF}, {5*16384}")
    A.e(f"s_mov_b32 s{S_THR}, {f2u(2.0**(OPT.get('thr', THR_LOG2)-OPT['bias'])):#x}")
    A.e("s_nop 7")
    for qb in range(2):
        regs = [S_[b]+(kb*2+qb)*4+r for b in range(2) for kb in range(2) for r in range(4)]
        d = 16+qb
        A.e(f"v_max3_f32 v{d}, v{regs[0]}, v{regs[1]}, v{regs[2]}")
        for j in range(3, 15, 2):
            A.e(f"v_max3_f32 v{d}, v{d}, v{regs[j]}, v{regs[j+1]}")
        A.e(f"v_max_f32 v{d}, v{d}, v{regs[15]}")
        xlane(A, d, 18, "v_max_f32")
        if OPT['bias']:
            A.e(f"v_add_f32 v{d}, {f2u(float(OPT['bias'])):#x}, v{d}")
        for r in range(4):
            A.e(f"v_sub_f32 v{NEGM+4*qb+r}, 0, v{d}")
        for x in regs:
            A.e(f"v_sub_f32 v{x}, v{x}, v{d}")
        A.e(f"v_mov_b32 v{L_[1][qb]}, 0")
    for c, t in softmax_ops(S_[0], P_[0], L_[1], L_[0]):
        A.e(t)
    A.e("s_waitcnt vmcnt(8)")
    A.e("s_barrier")
    ST.stamp()
    if dbg == "time": A.e("s_waitcnt lgkmcnt(0)")
    for p in range(LEAD):
        for t, txt in reads_for_pos(0, p, True, True, True, True):
            A.e(txt)
    if OPT.get('pfkv', 1):
        A.e(f"s_cmp_lt_u32 s{S_W}, 2")
        A.e("s_cselect_b32 s96, s36, s38")
        A.e("s_cselect_b32 s97, s37, s39")
        A.e("s_and_b32 s97, s97, 0xffff")
        A.e("s_mov_b32 s98, 1048576")
        A.e("s_mov_b32 s99, 0x00020000")
        A.e("v_and_b32 v19, 7, v1")
        A.e("v_lshlrev_b32 v19, 7, v19")
        A.e("s_lshr_b32 s50, s2, 3")
        A.e("s_lshl_b32 s50, s50, 11")
        A.e("s_lshl_b32 s51, s46, 10")
        A.e("s_add_u32 s50, s50, s51")
        A.e("v_add_u32 v19, s50, v19")
    if OPT.get('pfmall', 1):
        A.e("s_load_dwordx4 s[52:55], s[0:1], 48")
        A.e("s_waitcnt lgkmcnt(0)")
        A.e("s_cmp_lt_u32 s46, 1")
        A.e("s_cselect_b32 s56, s52, s54")
        A.e("s_cselect_b32 s57, s53, s55")
        A.e("s_and_b32 s57, s57, 0xffff")
        A.e(f"s_mov_b32 s58, {448*3584}")
        A.e("s_mov_b32 s59, 0x00020000")
        A.e("s_mul_i32 s50, s2, 6272")
        A.e("v_lshlrev_b32 v20, 7, v1")
        A.e("v_min_u32 v20, 6144, v20")
        A.e(f"s_cmp_lt_u32 s{S_W}, 2")
        A.e("s_cbranch_scc0 K1_NOMALL")
        A.e("buffer_load_dword v21, v20, s[56:59], s50 offen")
        A.label("K1_NOMALL")
    iteration(A, 0, "F0", first=True)
    for ph in range(1, 4):
        iteration(A, ph, f"F{ph}")
    A.e(f"s_mov_b32 s{S_CNT}, 14")
    A.raw(".p2align 6")
    A.label("K1_LOOP")
    if OPT.get('pfkv', 1):
        A.e(f"s_add_u32 s50, s{S_KOFF}, {7*16384}")
        A.e("buffer_load_dword v22, v19, s[96:99], s50 offen")
    if OPT.get('pfwo', 1):
        A.e(f"s_cmp_lg_u32 s{S_CNT}, 4")
        A.e("s_cbranch_scc1 K1_NOPF")
        A.e(f"s_mul_i32 s50, s44, {512*896}")
        A.e("s_add_u32 s56, s42, s50")
        A.e("s_addc_u32 s57, s43, 0")
        A.e("s_and_b32 s57, s57, 0xffff")
        A.e(f"s_mov_b32 s58, {512*896}")
        A.e("s_mov_b32 s59, 0x00020000")
        A.e("s_lshr_b32 s50, s2, 3")
        A.e("s_mul_i32 s50, s50, 14336")
        A.e("v_lshlrev_b32 v26, 7, v0")
        A.e("v_min_u32 v26, 14208, v26")
        A.e("buffer_load_dword v27, v26, s[56:59], s50 offen")
        A.label("K1_NOPF")
    if OPT.get('pfw1', 0):
        A.e(f"s_cmp_lg_u32 s{S_CNT}, {OPT.get('pfw1')}")
        A.e("s_cbranch_scc1 K1_NOPF1")
        A.e("s_load_dwordx2 s[56:57], s[0:1], 48")
        A.e("s_waitcnt lgkmcnt(0)")
        A.e("s_and_b32 s57, s57, 0xffff")
        A.e(f"s_mov_b32 s58, {448*3584}")
        A.e("s_mov_b32 s59, 0x00020000")
        A.e("s_lshr_b32 s50, s2, 3")
        A.e("s_mul_i32 s50, s50, 50176")
        A.e("v_lshlrev_b32 v26, 7, v0")
        A.e("buffer_load_dword v27, v26, s[56:59], s50 offen")
        A.e("v_add_u32 v26, 32768, v26")
        A.e("v_min_u32 v26, 50048, v26")
        A.e("buffer_load_dword v28, v26, s[56:59], s50 offen")
        A.label("K1_NOPF1")
    for ph in range(4):
        iteration(A, ph, f"M{ph}")
    A.e(f"s_sub_u32 s{S_CNT}, s{S_CNT}, 1")
    A.e(f"s_cmp_lg_u32 s{S_CNT}, 0")
    A.e("s_cbranch_scc1 K1_LOOP")
    if dbg == "time":
        ST.stamp()
    A.e(f"s_mul_i32 s50, s44, {512*896}")
    A.e("s_add_u32 s42, s42, s50")
    A.e("s_addc_u32 s43, s43, 0")
    srd(A, SRD_WO, "s42", "s43", 512*896)
    GOFF = 34
    for n in range(7):
        A.e(f"s_mul_i32 s50, s{S_W}, 7")
        A.e(f"s_add_u32 s50, s50, {n}")
        A.e("s_cmp_ge_u32 s50, 14")
        A.e("s_cselect_b32 s51, 14, 0")
        A.e(f"s_cselect_b32 s52, {16*896}, 0")
        A.e("s_sub_u32 s50, s50, s51")
        A.e("s_and_b32 s51, s50, 1")
        A.e(f"s_mul_i32 s51, s51, {8*896}")
        A.e("s_lshr_b32 s50, s50, 1")
        A.e("s_lshl_b32 s50, s50, 7")
        A.e("s_add_u32 s50, s50, s51")
        A.e(f"s_add_u32 s{GOFF+n}, s50, s52")
    A.e(f"s_mul_i32 s41, s{S_W}, 7168")
    A.e("v_lshrrev_b32 v16, 3, v1")
    A.e("v_mul_u32_u24 v23, 896, v16")
    A.e("v_bfe_u32 v16, v1, 4, 1")
    A.e("v_bfe_u32 v17, v1, 2, 1")
    A.e("v_xor_b32 v16, v16, v17")
    A.e("v_lshl_add_u32 v23, v16, 6, v23")
    A.e("v_and_b32 v16, 3, v1")
    A.e("v_lshl_add_u32 v23, v16, 4, v23")
    vme = Vm()
    def wo_dma(t):
        out = []
        for n in range(7):
            out.append(f"s_add_u32 m0, s41, {WSLOT[t % 5] + n*1024}")
            out.append(f"s_add_u32 s50, s{GOFF+n}, {t*32*896}")
            if OPT.get('o_vgpr') and t >= 5:
                out.append(f"buffer_load_dwordx4 {a(160+4*((7*t+n) % 20),4)}, v23, s[{SRD_WO}:{SRD_WO+3}], s50 offen")
            else:
                out.append(f"buffer_load_dwordx4 v23, s[{SRD_WO}:{SRD_WO+3}], s50 offen lds")
            vme.issue(('wo', t))
        return out
    def spread(lst, lo, hi):
        d = {}
        trip = [lst[i:i+3] for i in range(0, len(lst), 3)]
        for i, tr3 in enumerate(trip):
            g = lo + (i*(hi-lo+1))//len(trip)
            d.setdefault(g, []).extend(tr3)
        return d
    iteration(A, 0, "T0", dma_k=False, dma_v=True, vmwait=8)
    iteration(A, 1, "T1", dma_k=False, dma_v=False, vmwait=4, nxt_qk=False)
    iteration(A, 2, "T2", do_qk=False, dma_k=False, dma_v=False, vmwait=0, nxt_qk=False,
              extra=spread(wo_dma(0) + wo_dma(1)[:12], 1, 30))
    vme.q = [('wo', 0)]*7 + [('wo', 1)]*4
    rest1 = []
    for n in range(4, 7):
        rest1 += [f"s_add_u32 m0, s41, {WSLOT[1] + n*1024}", f"s_add_u32 s50, s{GOFF+n}, {32*896}",
                  f"buffer_load_dwordx4 v23, s[{SRD_WO}:{SRD_WO+3}], s50 offen lds"]
        vme.issue(('wo', 1))
    iteration(A, 3, "T3", do_qk=False, do_sm=False, dma_k=False, dma_v=False, nxt_pv=False, nxt_qk=False, barrier=False,
              extra=spread(rest1 + wo_dma(2), 1, 30))
    ST.stamp()
    Lf = L_[1]
    OP = 64
    INV = [16, 17]
    for qb in range(2):
        A.e(f"v_mov_b32 v{INV[qb]}, v{Lf[qb]}")
        xlane(A, INV[qb], 18, "v_add_f32")
        A.e(f"v_rcp_f32 v{INV[qb]}, v{INV[qb]}")
    A.e("s_lshl_b32 s50, s46, 1")
    A.e("s_add_u32 s50, s50, s47")
    A.e("s_lshl_b32 s50, s50, 14")
    A.e(f"s_add_u32 s50, s50, {VBASE}")
    A.e("v_lshlrev_b32 v12, 4, v1")
    A.e("v_and_b32 v18, 15, v1")
    A.e("v_lshlrev_b32 v19, 9, v18")
    A.e("v_lshrrev_b32 v20, 5, v1")
    A.e("v_xor_b32 v20, v20, v18")
    A.e("v_lshl_add_u32 v19, v20, 4, v19")
    A.e("v_bfe_u32 v20, v1, 4, 1")
    A.e("v_lshl_add_u32 v19, v20, 3, v19")
    A.e("v_add_u32 v19, s50, v19")
    A.e("s_barrier")
    for db in range(16):
        A.e(f"v_xor_b32 v{24+(db & 3)}, {32*db}, v19")
        for qb in range(2):
            base = O0+(db*2+qb)*4
            for r in range(4):
                A.e(f"v_mul_f32 v{base+r}, v{base+r}, v{INV[qb]}")
            dst = 32 + 4*(db & 3) + 2*qb
            A.e(f"v_cvt_pk_bf16_f32 v{dst}, v{base}, v{base+1}")
            A.e(f"v_cvt_pk_bf16_f32 v{dst+1}, v{base+2}, v{base+3}")
            A.e(f"ds_write_b64 v{24+(db & 3)}, {v(dst,2)} offset:{qb*8192}")
    A.e("s_waitcnt lgkmcnt(0)")
    A.e("s_barrier")
    A.e("s_lshl_b32 s50, s46, 15")
    A.e(f"s_add_u32 s50, s50, {VBASE}")
    A.e("v_and_b32 v18, 31, v1")
    A.e("v_lshlrev_b32 v19, 9, v18")
    A.e("v_and_b32 v18, 15, v1")
    A.e("v_lshrrev_b32 v20, 5, v1")
    A.e("v_xor_b32 v20, v20, v18")
    A.e("v_lshl_add_u32 v19, v20, 4, v19")
    A.e("v_add_u32 v19, s50, v19")
    for ks in range(16):
        A.e(f"v_xor_b32 v{24+(ks & 3)}, {32*ks}, v19")
        for hd in range(2):
            A.e(f"ds_read_b128 {a(4*(16*hd+ks),4)}, v{24+(ks & 3)} offset:{hd*16384}")
    A.e("v_lshrrev_b32 v16, 5, v1")
    A.e("v_lshlrev_b32 v17, 10, v16")
    A.e("v_bfe_u32 v16, v1, 2, 2")
    A.e("v_lshl_add_u32 v17, v16, 7, v17")
    A.e("v_bfe_u32 v16, v1, 4, 1")
    A.e("v_lshl_add_u32 v17, v16, 5, v17")
    A.e("v_and_b32 v16, 3, v1")
    A.e("v_lshl_add_u32 v17, v16, 3, v17")
    A.e("v_bfe_u32 v16, v1, 3, 1")
    A.e("v_xor_b32 v18, s47, v16")
    A.e("v_lshl_add_u32 v2, v18, 6, v17")
    A.e("v_xor_b32 v18, 1, v18")
    A.e("v_lshl_add_u32 v3, v18, 6, v17")
    A.e(f"s_mul_i32 s50, s47, {3*2048}")
    A.e(f"s_mul_i32 s51, s47, {4*2048}")
    A.e("v_add_u32 v2, s50, v2")
    A.e("v_add_u32 v3, s51, v3")
    A.e(f"v_add_u32 v4, {WSLOT[2]}, v2")
    A.e(f"v_add_u32 v5, {WSLOT[2]}, v3")
    A.e(f"v_add_u32 v6, {WSLOT[3]}, v2")
    A.e(f"v_add_u32 v7, {WSLOT[3]}, v3")
    A.e("s_waitcnt lgkmcnt(0)")
    A.e("s_barrier")
    for t in wo_dma(3) + wo_dma(4): A.e(t)
    def wbase(slot, c):
        e = c & 1
        if slot in (0, 1): return (2+e, WSLOT[slot])
        if slot == 2: return (4+e, 0)
        return (6+e, WSLOT[slot]-WSLOT[3])
    ARG = AV
    ARG = 128
    def o_reads(t, p):
        if p >= 14:
            t, p = t+1, p-14
            if t >= 16: return []
        ksl, c = p // 7, p % 7
        b, off = wbase(t % 5, c)
        o = []
        for u in range(2):
            o.append((('o', t, p, u), f"ds_read_b64_tr_b16 {a(ARG+4*((14*t+p) % NRING)+2*u,2)}, v{b} offset:{off + ksl*14336 + (c >> 1)*2048 + u*512}"))
        return o
    lg = Lgkm(A)
    OL = OPT.get('ol', 4)
    A.e(vme.need({('wo', 0)}))
    A.e("s_barrier")
    for p in range(OL):
        for t_, txt in o_reads(0, p): A.e(txt); lg.issue(t_)
    ACC = O0
    for t in range(16):
        gaps = [[] for _ in range(14)]
        if t+1 < 16:
            w = vme.need({('wo', t+1)})
            gaps[0] += ([w] if w else []) + ["s_barrier"]
        if t >= 1 and t+4 < 16:
            d = wo_dma(t+4)
            if OPT.get('ostag', 0):
                for k in range(4):
                    lab = A.newlabel("OS")
                    gaps[1+3*k] += [f"s_cmp_lg_u32 s{S_W}, {k}", f"s_cbranch_scc1 {lab}"] + d + [("label", lab)]
            else:
                sp = spread(d, OPT.get('osp0', 1), OPT.get('osp1', 12))
                for g_, l_ in sp.items(): gaps[g_] += l_
        for p in range(14):
            if OPT.get('omw', 0):
                w2 = lg.need({('o', t, p+x, u) for x in range(2) for u in range(2)}) if p % 2 == 0 else None
            else:
                w2 = lg.need({('o', t, p, 0), ('o', t, p, 1)})
            if w2: A.e(w2)
            ksl, c = p // 7, p % 7
            acc = v(ACC+16*c, 16)
            first = (t == 0 and ksl == 0)
            if OPT.get('fakeo16'):
                for hh in range(2):
                    a4 = v(ACC+16*c+8*ksl+4*hh, 4)
                    A.e(m16(a4, a(ARG+4*((14*t+p) % NRING), 4), a(4*(2*t+hh), 4), "0" if t == 0 else a4))
            else:
                A.e(mfma(acc, a(ARG+4*((14*t+p) % NRING), 4), a(4*(2*t+ksl), 4), "0" if first else acc))
            for t_, txt in o_reads(t, p+OL): A.e(txt); lg.issue(t_)
            for txt in gaps[p]:
                if isinstance(txt, tuple): A.label(txt[1])
                else: A.e(txt)
    ST.stamp()
    A.e("s_lshl_b32 s50, s44, 6")
    A.e("s_add_u32 s50, s50, s45")
    A.e("s_mul_i32 s50, s50, 28672")
    A.e(f"s_mul_i32 s51, s47, {14*1024}")
    A.e("s_add_u32 s50, s50, s51")
    A.e(f"s_add_u32 s50, s50, {PART_OFF}")
    A.e("s_add_u32 s52, s60, s50")
    A.e("s_addc_u32 s53, s61, 0")
    srd(A, SRD_Y, "s52", "s53", 14*1024)
    A.e("s_nop 7")
    for fr in range(14):
        dst = OP + 4*(fr % 16)
        for r in range(4):
            A.e(f"v_cvt_pk_bf16_f32 v{dst+r}, v{ACC+8*fr+2*r}, v{ACC+8*fr+2*r+1}")
        if fr % 4 == 0:
            A.e(f"s_mov_b32 s50, {fr*1024}")
        A.e(f"buffer_store_dwordx4 {v(dst,4)}, v12, s[{SRD_Y}:{SRD_Y+3}], s50 offen offset:{(fr%4)*1024} {OPT.get('pstore', '')}")
    ST.finish("K1_END")
    A.label("K1_END")
    A.e("s_endpgm")
    if not OPT['no_sm']:
        for ph in range(4):
            rare_path(A, ph, f"M{ph}")
        for ph in range(4):
            rare_path(A, ph, f"F{ph}")
        rare_path(A, 0, "T0")
        rare_path(A, 1, "T1")
        rare_path(A, 2, "T2", do_qk=False)
    return name
```

```python
from asmlib import *
from layout import *
from k1 import Lgkm, mfma, f2u

DBG = False
GD = 8
NEW = False
PFW2 = True
HMOD = ''
OMOD = ''
K3_PRE = 4
def gen_gemm64(A, kind):
    if kind == 'k2':
        name, NK, WARG, BOFF, BBYTES, WROWS = "k2_oproj_kernel", 256, 32, OF_OFF, OF_BYTES, 4096
    else:
        name, NK, WARG, BOFF, BBYTES, WROWS = "k4_mlp2_kernel", 112, 56, HF_OFF, HF_BYTES, 1792
    P = kind.upper()
    NS = NK // 4
    RS = 896
    D = GD
    R = 16
    RB = 16
    ACC = 16
    BR = 128
    AR = 80
    XR = 96
    GA = 104
    kernel_begin(A, name)
    A.e("s_cmp_ge_u32 s2, 224")
    A.e(f"s_cbranch_scc1 {P}_END")
    ST = Stamps(A, DBG)
    ST.stamp()
    A.e(f"s_load_dwordx2 s[36:37], s[0:1], {WARG}")
    A.e("s_load_dwordx2 s[38:39], s[0:1], 96")
    A.e(f"s_load_dwordx2 s[40:41], s[0:1], {0 if kind == 'k2' else 80}")
    A.e("v_and_b32 v1, 63, v0")
    A.e("v_lshrrev_b32 v2, 6, v0")
    A.e("s_nop 0")
    A.e("v_readfirstlane_b32 s28, v2")
    if NEW:
        A.e("s_and_b32 s29, s2, 7")
        A.e("s_lshr_b32 s30, s2, 3")
        A.e("s_lshl_b32 s29, s29, 2")
        A.e("s_and_b32 s31, s30, 3")
        A.e("s_add_u32 s29, s29, s31")
        A.e("s_lshr_b32 s30, s30, 2")
    else:
        A.e("s_and_b32 s29, s2, 31")
        A.e("s_lshr_b32 s30, s2, 5")
    A.e("v_lshrrev_b32 v2, 3, v1")
    A.e(f"v_mul_u32_u24 v4, {RS}, v2")
    A.e("v_bfe_u32 v3, v1, 4, 1")
    A.e("v_bfe_u32 v2, v1, 2, 1")
    A.e("v_xor_b32 v3, v3, v2")
    A.e("v_lshl_add_u32 v4, v3, 6, v4")
    A.e("v_and_b32 v3, 3, v1")
    A.e("v_lshl_add_u32 v4, v3, 4, v4")
    A.e(f"v_add_u32 v5, {8*RS-1024}, v4")
    A.e("v_lshlrev_b32 v6, 4, v1")
    A.e("v_add_u32 v7, %d, v6" % (NK*1024))
    A.e("v_lshrrev_b32 v2, 5, v1")
    A.e("v_lshlrev_b32 v8, 9, v2")
    A.e("v_bfe_u32 v3, v1, 2, 2")
    A.e("v_lshl_add_u32 v8, v3, 7, v8")
    A.e("v_bfe_u32 v3, v1, 4, 1")
    A.e("v_lshl_add_u32 v8, v3, 5, v8")
    A.e("v_and_b32 v3, 3, v1")
    A.e("v_lshl_add_u32 v8, v3, 3, v8")
    A.e(f"s_mul_i32 s31, s28, {R*2048}")
    A.e("v_add_u32 v8, s31, v8")
    A.e("v_bfe_u32 v3, v1, 3, 1")
    A.e("v_xor_b32 v2, 1, v3")
    A.e("v_lshl_add_u32 v15, v2, 6, v8")
    A.e("v_lshl_add_u32 v8, v3, 6, v8")
    A.e("s_waitcnt lgkmcnt(0)")
    A.e("s_lshl_b32 s33, s30, 7")
    A.e("s_add_u32 s36, s36, s33")
    A.e("s_addc_u32 s37, s37, 0")
    A.e(f"s_sub_u32 s34, {WROWS*RS}, s33")
    srd(A, 8, "s36", "s37", "s34")
    A.e(f"s_mul_i32 s33, s29, {2*NK*1024}")
    A.e(f"s_mul_i32 s34, s28, {NS*1024}")
    A.e("s_add_u32 s33, s33, s34")
    A.e(f"s_add_u32 s33, s33, {BOFF}")
    A.e("s_add_u32 s42, s38, s33")
    A.e("s_addc_u32 s43, s39, 0")
    srd(A, 12, "s42", "s43", (NK+NS)*1024)
    A.e(f"s_mul_i32 s32, s28, {NS*16*RS}")
    def vm(st):
        o = [f"s_add_u32 m0, s31, {(st % R)*2048}",
             f"s_add_u32 s35, s32, {st*16*RS}",
             f"buffer_load_dwordx4 v4, s[8:11], s35 offen lds",
             f"buffer_load_dwordx4 v5, s[8:11], s35 offen offset:1024 lds",
             f"s_mov_b32 s44, {(st//4)*4096}",
             f"buffer_load_dwordx4 {v(BR+8*(st % RB),4)}, v6, s[12:15], s44 offen offset:{(st%4)*1024}",
             f"buffer_load_dwordx4 {v(BR+8*(st % RB)+4,4)}, v7, s[12:15], s44 offen offset:{(st%4)*1024}"]
        return o
    A.e("s_and_b32 s45, s28, 1")
    A.e("s_lshr_b32 s46, s28, 1")
    A.e("s_lshl_b32 s47, s29, 1")
    A.e("s_add_u32 s47, s47, s46")
    A.e("s_lshl_b32 s48, s30, 1")
    A.e("s_add_u32 s48, s48, s45")
    sec = 2 if kind == 'k2' else 5
    srd(A, 16, "s38", "s39", MOD_BYTES)
    A.e("v_lshrrev_b32 v2, 5, v1")
    A.e("v_lshlrev_b32 v9, 4, v2")
    A.e("s_lshl_b32 s49, s48, 7")
    A.e(f"s_add_u32 s49, s49, {sec*1792}")
    for aa in range(4):
        A.e(f"buffer_load_dwordx4 {v(GA+4*aa,4)}, v9, s[16:19], s49 offen offset:{32*aa}")
    if kind == 'k2':
        srd(A, 20, "s40", "s41", X_BYTES)
        A.e("v_and_b32 v3, 31, v1")
        A.e(f"v_mul_u32_u24 v10, 896, v3")
        A.e("v_lshl_add_u32 v10, v2, 3, v10")
        A.e(f"s_mul_i32 s50, s47, {32*896}")
        A.e("s_lshl_b32 s51, s48, 6")
        A.e("s_add_u32 s50, s50, s51")
        for aa in range(4):
            A.e(f"buffer_load_dwordx2 {v(XR+2*aa,2)}, v10, s[20:23], s50 offen offset:{16*aa}")
        npre = 8
    else:
        A.e(f"s_add_u32 s42, s38, {X1_OFF}")
        A.e("s_addc_u32 s43, s39, 0")
        srd(A, 20, "s42", "s43", X1_BYTES)
        A.e(f"s_mul_i32 s50, s47, {28*1024}")
        A.e("s_lshl_b32 s51, s48, 11")
        A.e("s_add_u32 s50, s50, s51")
        for hf in range(2):
            A.e(f"buffer_load_dwordx4 {v(XR+4*hf,4)}, v6, s[20:23], s50 offen offset:{1024*hf}")
        npre = 6
    for st in range(D):
        for t in vm(st): A.e(t)
    def tr(st):
        o = []
        for cb in range(2):
            for u in range(2):
                o.append(f"ds_read_b64_tr_b16 {v(AR+8*(st & 1)+4*cb+2*u,2)}, {'v15' if cb else 'v8'} offset:{(st % R)*2048+u*1024}")
        return o
    ST.stamp()
    A.e(f"s_waitcnt vmcnt({4*(D-1)})")
    ST.stamp()
    for t in tr(0): A.e(t)
    for st in range(NS):
        if st+1 < NS:
            issued = min(NS, st+D)
            A.e(f"s_waitcnt vmcnt({4*(issued-(st+2))})")
            for t in tr(st+1): A.e(t)
        vmo = vm(st+D) if st+D < NS else []
        A.e(f"s_waitcnt lgkmcnt({4 if st+1 < NS else 0})")
        k = 0
        for cb in range(2):
            for rb in range(2):
                acc = v(ACC+16*(2*cb+rb), 16)
                A.e(mfma(acc, v(AR+8*(st & 1)+4*cb, 4), v(BR+8*(st % RB)+4*rb, 4), "0" if st == 0 else acc))
                for t in vmo[2*k:2*k+2]: A.e(t)
                k += 1
    ST.stamp()
    A.e("s_nop 15")
    A.e("s_barrier")
    A.e("s_lshl_b32 s33, s28, 12")
    A.e("v_add_u32 v11, s33, v6")
    for b in range(4):
        ai = 2*(b & 1) + (b >> 1)
        for q4 in range(4):
            A.e(f"ds_write_b128 v11, {v(ACC+16*ai+4*q4,4)} offset:{b*16384+q4*1024}")
    A.e("s_waitcnt lgkmcnt(0)")
    A.e("s_barrier")
    A.e("s_lshl_b32 s33, s28, 14")
    A.e("v_add_u32 v11, s33, v6")
    for src in range(4):
        for q4 in range(4):
            A.e(f"ds_read_b128 {v(ACC+16*src+4*q4,4)}, v11 offset:{src*4096+q4*1024}")
    A.e("s_waitcnt lgkmcnt(0)")
    for r in range(16):
        A.e(f"v_add_f32 v{ACC+r}, v{ACC+r}, v{ACC+16+r}")
        A.e(f"v_add_f32 v{ACC+32+r}, v{ACC+32+r}, v{ACC+48+r}")
    for r in range(16):
        A.e(f"v_add_f32 v{ACC+r}, v{ACC+r}, v{ACC+32+r}")
    for d in range(8):
        A.e(f"v_lshlrev_b32 v{BR+2*d}, 16, v{XR+d}")
        A.e(f"v_and_b32 v{BR+2*d+1}, 0xffff0000, v{XR+d}")
    for r in range(16):
        A.e(f"v_fma_f32 v{ACC+r}, v{ACC+r}, v{GA+r}, v{BR+r}")
    for d in range(8):
        A.e(f"v_cvt_pk_bf16_f32 v{AR+d}, v{ACC+2*d}, v{ACC+2*d+1}")
    if kind == 'k2':
        A.e(f"s_add_u32 s42, s38, {X1_OFF}")
        A.e("s_addc_u32 s43, s39, 0")
        srd(A, 20, "s42", "s43", X1_BYTES)
        A.e(f"s_mul_i32 s50, s47, {28*1024}")
        A.e("s_lshl_b32 s51, s48, 11")
        A.e("s_add_u32 s50, s50, s51")
        for hf in range(2):
            A.e(f"buffer_store_dwordx4 {v(AR+4*hf,4)}, v6, s[20:23], s50 offen offset:{1024*hf}")
        for d in range(8):
            A.e(f"v_lshlrev_b32 v{BR+2*d}, 16, v{AR+d}")
            A.e(f"v_and_b32 v{BR+2*d+1}, 0xffff0000, v{AR+d}")
        A.e(f"v_add_f32 v12, v{BR}, v{BR+1}")
        for r in range(2, 16):
            A.e(f"v_add_f32 v12, v12, v{BR+r}")
        A.e("v_mov_b32 v13, v12")
        A.e("s_nop 1")
        A.e("v_permlane32_swap_b32 v12, v13")
        A.e("s_nop 1")
        A.e("v_add_f32 v12, v12, v13")
        A.e(f"v_mul_f32 v12, {f2u(1/32.):#x}, v12")
        for r in range(16):
            A.e(f"v_sub_f32 v{BR+r}, v{BR+r}, v12")
        A.e(f"v_mul_f32 v13, v{BR}, v{BR}")
        for r in range(1, 16):
            A.e(f"v_fmac_f32 v13, v{BR+r}, v{BR+r}")
        A.e("v_mov_b32 v14, v13")
        A.e("s_nop 1")
        A.e("v_permlane32_swap_b32 v13, v14")
        A.e("s_nop 1")
        A.e("v_add_f32 v13, v13, v14")
        A.e(f"s_add_u32 s42, s38, {ST_OFF}")
        A.e("s_addc_u32 s43, s39, 0")
        srd(A, 24, "s42", "s43", ST_BYTES)
        A.e("v_and_b32 v3, 31, v1")
        A.e("v_mul_u32_u24 v10, 112, v3")
        A.e("v_lshrrev_b32 v2, 5, v1")
        A.e("v_lshl_add_u32 v10, v2, 30, v10")
        A.e(f"s_mul_i32 s50, s47, {32*112}")
        A.e("s_lshl_b32 s51, s48, 3")
        A.e("s_add_u32 s50, s50, s51")
        A.e("buffer_store_dwordx2 v[12:13], v10, s[24:27], s50 offen")
    else:
        srd(A, 20, "s40", "s41", X_BYTES)
        A.e("v_and_b32 v3, 31, v1")
        A.e("v_lshrrev_b32 v2, 5, v1")
        A.e(f"v_mul_u32_u24 v10, 896, v3")
        A.e("v_lshl_add_u32 v10, v2, 3, v10")
        A.e(f"s_mul_i32 s50, s47, {32*896}")
        A.e("s_lshl_b32 s51, s48, 6")
        A.e("s_add_u32 s50, s50, s51")
        for aa in range(4):
            A.e(f"buffer_store_dwordx2 {v(AR+2*aa,2)}, v10, s[20:23], s50 offen offset:{16*aa} {OMOD}")
    ST.finish(f"{P}_END")
    A.label(f"{P}_END")
    A.e("s_endpgm")
    return name, 4*R*2048

def gen_k3(A):
    name = "k3_mlp1_kernel"
    H2 = 16
    ACC = 128
    AR = 192
    TG = 224
    MODL = 114688
    kernel_begin(A, name)
    A.e("s_cmp_ge_u32 s2, 224")
    A.e("s_cbranch_scc1 K3_END")
    ST = Stamps(A, DBG)
    ST.stamp()
    A.e("s_load_dwordx2 s[36:37], s[0:1], 48")
    A.e("s_load_dwordx2 s[38:39], s[0:1], 96")
    A.e("v_and_b32 v1, 63, v0")
    A.e("v_lshrrev_b32 v2, 6, v0")
    A.e("s_nop 0")
    A.e("v_readfirstlane_b32 s28, v2")
    if NEW:
        A.e("s_and_b32 s29, s2, 7")
        A.e("s_lshr_b32 s30, s2, 3")
        A.e("s_lshl_b32 s29, s29, 1")
        A.e("s_and_b32 s31, s30, 1")
        A.e("s_add_u32 s29, s29, s31")
        A.e("s_lshr_b32 s30, s30, 1")
    else:
        A.e("s_and_b32 s29, s2, 15")
        A.e("s_lshr_b32 s30, s2, 4")
    A.e("s_lshl_b32 s47, s29, 2")
    A.e("s_add_u32 s47, s47, s28")
    A.e("v_bfe_u32 v3, v1, 3, 2")
    A.e("v_mul_u32_u24 v4, 3584, v3")
    A.e("v_lshrrev_b32 v3, 5, v1")
    A.e("v_lshl_add_u32 v4, v3, 7, v4")
    A.e("v_bfe_u32 v3, v1, 4, 1")
    A.e("v_bfe_u32 v2, v1, 2, 1")
    A.e("v_xor_b32 v3, v3, v2")
    A.e("v_lshl_add_u32 v4, v3, 6, v4")
    A.e("v_and_b32 v3, 3, v1")
    A.e("v_lshl_add_u32 v4, v3, 4, v4")
    A.e("v_lshlrev_b32 v6, 4, v1")
    A.e("v_lshrrev_b32 v2, 5, v1")
    A.e("v_lshlrev_b32 v8, 10, v2")
    A.e("v_bfe_u32 v3, v1, 2, 2")
    A.e("v_lshl_add_u32 v8, v3, 7, v8")
    A.e("v_bfe_u32 v3, v1, 4, 1")
    A.e("v_lshl_add_u32 v8, v3, 5, v8")
    A.e("v_and_b32 v3, 3, v1")
    A.e("v_lshl_add_u32 v8, v3, 3, v8")
    A.e("v_bfe_u32 v3, v1, 3, 1")
    A.e("v_xor_b32 v5, 1, v3")
    A.e("v_lshl_add_u32 v7, v5, 6, v8")
    A.e("v_lshl_add_u32 v8, v3, 6, v8")
    A.e("v_add_u32 v9, 0x10000, v8")
    A.e("v_add_u32 v5, 0x10000, v7")
    A.e("s_waitcnt lgkmcnt(0)")
    A.e("s_lshl_b32 s33, s30, 8")
    A.e("s_add_u32 s36, s36, s33")
    A.e("s_addc_u32 s37, s37, 0")
    A.e(f"s_sub_u32 s34, {448*3584}, s33")
    srd(A, 8, "s36", "s37", "s34")
    A.e(f"s_mul_i32 s33, s47, {28*1024}")
    A.e(f"s_add_u32 s33, s33, {X1_OFF}")
    A.e("s_add_u32 s42, s38, s33")
    A.e("s_addc_u32 s43, s39, 0")
    srd(A, 12, "s42", "s43", 28*1024)
    A.e(f"s_add_u32 s42, s38, {ST_OFF}")
    A.e("s_addc_u32 s43, s39, 0")
    srd(A, 16, "s42", "s43", ST_BYTES)
    A.e(f"s_add_u32 s42, s38, {3*1792}")
    A.e("s_addc_u32 s43, s39, 0")
    srd(A, 20, "s42", "s43", 3584)
    A.e("v_and_b32 v3, 31, v1")
    A.e("v_mul_u32_u24 v10, 112, v3")
    A.e("v_mul_u32_u24 v11, 56, v2")
    A.e("v_add_u32 v10, v10, v11")
    A.e(f"s_mul_i32 s50, s47, {32*112}")
    for i in range(7):
        A.e(f"buffer_load_dwordx2 {v(ACC+2*i,2)}, v10, s[16:19], s50 offen offset:{8*i}")
    A.e("s_lshl_b32 s50, s28, 10")
    A.e(f"s_add_u32 m0, s50, {MODL}")
    A.e("s_nop 0")
    A.e("buffer_load_dwordx4 v6, s[20:23], s50 offen lds")
    for ks in range(28):
        if ks % 4 == 0:
            A.e(f"s_mov_b32 s50, {ks*1024}")
        A.e(f"buffer_load_dwordx4 {v(H2+4*ks,4)}, v6, s[12:15], s50 offen offset:{(ks%4)*1024}")
    A.e(f"s_lshl_b32 s51, s28, 10")
    A.e(f"s_mul_i32 s52, s28, {4*3584}")
    for j in range(28):
        A.e(f"s_add_u32 m0, s51, {j*4096}")
        A.e(f"s_add_u32 s50, s52, {j*16*3584}")
        A.e(f"buffer_load_dwordx4 v4, s[8:11], s50 offen lds")
    ST.stamp()
    A.e("s_waitcnt vmcnt(57)")
    ST.stamp()
    A.e(f"v_add_f32 v12, v{ACC}, v{ACC+2}")
    for i in range(2, 7):
        A.e(f"v_add_f32 v12, v12, v{ACC+2*i}")
    A.e("v_mov_b32 v13, v12")
    A.e("s_nop 1")
    A.e("v_permlane32_swap_b32 v12, v13")
    A.e("s_nop 1")
    A.e("v_add_f32 v12, v12, v13")
    A.e(f"v_mul_f32 v12, {f2u(1/14.):#x}, v12")
    A.e("v_mov_b32 v13, 0")
    for i in range(7):
        A.e(f"v_sub_f32 v14, v{ACC+2*i}, v12")
        A.e(f"v_mul_f32 v14, v14, v14")
        A.e(f"v_fma_f32 v14, v14, 4.0, 0")
        A.e(f"v_fma_f32 v13, v14, 4.0, v13")
        A.e(f"v_fma_f32 v13, v14, 4.0, v13")
        A.e(f"v_add_f32 v13, v13, v{ACC+2*i+1}")
    A.e("v_mov_b32 v14, v13")
    A.e("s_nop 1")
    A.e("v_permlane32_swap_b32 v13, v14")
    A.e("s_nop 1")
    A.e("v_add_f32 v13, v13, v14")
    A.e(f"v_mul_f32 v13, {f2u(1/448.):#x}, v13")
    A.e(f"v_add_f32 v13, {f2u(1e-5):#x}, v13")
    A.e("v_rsq_f32 v12+0, v13".replace("v12+0", "v14"))
    A.e("s_nop 0")
    A.e("v_mov_b32 v15, v14")
    A.e("v_mul_f32 v12, v12, v14")
    A.e("v_sub_f32 v12, 0, v12")
    A.e("v_mov_b32 v13, v12")
    A.e("s_waitcnt vmcnt(28)")
    A.e("s_barrier")
    ST.stamp()
    A.e("v_lshrrev_b32 v2, 5, v1")
    A.e("v_lshlrev_b32 v10, 4, v2")
    A.e(f"v_add_u32 v10, {MODL}, v10")
    def mod_reads(ks):
        b = TG + 16*(ks & 1)
        return [f"ds_read_b128 {v(b,4)}, v10 offset:{1792+ks*64}",
                f"ds_read_b128 {v(b+4,4)}, v10 offset:{1792+ks*64+32}",
                f"ds_read_b128 {v(b+8,4)}, v10 offset:{ks*64}",
                f"ds_read_b128 {v(b+12,4)}, v10 offset:{ks*64+32}"]
    for t in mod_reads(0): A.e(t)
    TU = AR
    for ks in range(28):
        if ks+1 < 28:
            for t in mod_reads(ks+1): A.e(t)
            A.e("s_waitcnt lgkmcnt(4)")
        else:
            A.e("s_waitcnt lgkmcnt(0)")
        b = TG + 16*(ks & 1)
        for d in range(4):
            r = H2+4*ks+d
            A.e(f"v_lshlrev_b32 v{TU+2*d}, 16, v{r}")
            A.e(f"v_and_b32 v{TU+2*d+1}, 0xffff0000, v{r}")
        for d in range(4):
            A.e(f"v_pk_fma_f32 {v(TU+2*d,2)}, {v(TU+2*d,2)}, v[14:15], v[12:13]")
        for d in range(4):
            A.e(f"v_pk_fma_f32 {v(TU+2*d,2)}, {v(TU+2*d,2)}, {v(b+2*d,2)}, {v(b+8+2*d,2)}")
        for d in range(4):
            A.e(f"v_cvt_pk_bf16_f32 v{H2+4*ks+d}, v{TU+2*d}, v{TU+2*d+1}")
    ST.stamp()
    A.e("s_waitcnt vmcnt(0)")
    A.e("s_barrier")
    ST.stamp()
    seq = [(ks, fb) for ks in range(28) for fb in range(4)]
    def rd(i):
        ks, fb = seq[i]
        off = ks*4096 + (fb >> 1)*512
        o = []
        for u in range(2):
            oo = off + u*2048
            base = (("v8", "v7") if oo < 65536 else ("v9", "v5"))[fb & 1]
            o.append(f"ds_read_b64_tr_b16 {v(AR+4*(i % 8)+2*u,2)}, {base} offset:{oo % 65536}")
        return o
    lg = Lgkm(A)
    L = 5
    for i in range(L):
        for t in rd(i): A.e(t); lg.issue(i)
    for i, (ks, fb) in enumerate(seq):
        w = lg.need({i})
        if w: A.e(w)
        acc = v(ACC+16*fb, 16)
        A.e(mfma(acc, v(AR+4*(i % 8), 4), v(H2+4*ks, 4), "0" if ks == 0 else acc))
        if i+L < len(seq):
            for t in rd(i+L): A.e(t); lg.issue(i+L)
    A.e("s_nop 15")
    ST.stamp()
    A.e(f"s_mul_i32 s33, s47, {112*1024}")
    A.e("s_lshl_b32 s34, s30, 13")
    A.e("s_add_u32 s33, s33, s34")
    A.e(f"s_add_u32 s33, s33, {HF_OFF}")
    A.e("s_add_u32 s42, s38, s33")
    A.e("s_addc_u32 s43, s39, 0")
    srd(A, 12, "s42", "s43", 8192)
    for fr in range(8):
        dst = H2 + 4*fr
        for r in range(4):
            A.e(f"v_cvt_pk_bf16_f32 v{dst+r}, v{ACC+8*fr+2*r}, v{ACC+8*fr+2*r+1}")
        for r in range(4):
            A.e(f"v_pk_max_i16 v{dst+r}, v{dst+r}, 0")
        if fr % 4 == 0:
            A.e(f"s_mov_b32 s50, {fr*1024}")
        A.e(f"buffer_store_dwordx4 {v(dst,4)}, v6, s[12:15], s50 offen offset:{(fr%4)*1024}")
    ST.finish("K3_END", 12)
    A.label("K3_END")
    A.e("s_endpgm")
    return name, MODL + 4096

def gen_k3n(A):
    name = "k3_mlp1_kernel"
    H2 = 16
    ACC = 128
    AR = 192
    kernel_begin(A, name)
    A.e("s_cmp_ge_u32 s2, 224")
    A.e("s_cbranch_scc1 K3_END")
    ST = Stamps(A, DBG)
    ST.stamp()
    A.e("s_load_dwordx2 s[40:41], s[0:1], 56")
    A.e("s_load_dwordx2 s[36:37], s[0:1], 48")
    A.e("s_load_dwordx2 s[38:39], s[0:1], 96")
    A.e("v_and_b32 v1, 63, v0")
    A.e("v_lshrrev_b32 v2, 6, v0")
    A.e("s_nop 0")
    A.e("v_readfirstlane_b32 s28, v2")
    A.e("s_and_b32 s29, s2, 7")
    A.e("s_lshr_b32 s30, s2, 3")
    A.e("s_lshl_b32 s29, s29, 1")
    A.e("s_and_b32 s31, s30, 1")
    A.e("s_add_u32 s29, s29, s31")
    A.e("s_lshr_b32 s30, s30, 1")
    A.e("s_lshl_b32 s47, s29, 2")
    A.e("s_add_u32 s47, s47, s28")
    A.e("v_bfe_u32 v3, v1, 3, 2")
    A.e("v_mul_u32_u24 v4, 3584, v3")
    A.e("v_lshrrev_b32 v3, 5, v1")
    A.e("v_lshl_add_u32 v4, v3, 7, v4")
    A.e("v_bfe_u32 v3, v1, 4, 1")
    A.e("v_bfe_u32 v2, v1, 2, 1")
    A.e("v_xor_b32 v3, v3, v2")
    A.e("v_lshl_add_u32 v4, v3, 6, v4")
    A.e("v_and_b32 v3, 3, v1")
    A.e("v_lshl_add_u32 v4, v3, 4, v4")
    A.e("v_lshlrev_b32 v6, 4, v1")
    A.e("v_lshrrev_b32 v2, 5, v1")
    A.e("v_lshlrev_b32 v8, 10, v2")
    A.e("v_bfe_u32 v3, v1, 2, 2")
    A.e("v_lshl_add_u32 v8, v3, 7, v8")
    A.e("v_bfe_u32 v3, v1, 4, 1")
    A.e("v_lshl_add_u32 v8, v3, 5, v8")
    A.e("v_and_b32 v3, 3, v1")
    A.e("v_lshl_add_u32 v8, v3, 3, v8")
    A.e("v_bfe_u32 v3, v1, 3, 1")
    A.e("v_xor_b32 v5, 1, v3")
    A.e("v_lshl_add_u32 v7, v5, 6, v8")
    A.e("v_lshl_add_u32 v8, v3, 6, v8")
    A.e("v_add_u32 v9, 0x10000, v8")
    A.e("v_add_u32 v5, 0x10000, v7")
    A.e("s_waitcnt lgkmcnt(0)")
    A.e("s_lshl_b32 s33, s30, 8")
    A.e("s_add_u32 s36, s36, s33")
    A.e("s_addc_u32 s37, s37, 0")
    A.e(f"s_sub_u32 s34, {448*3584}, s33")
    srd(A, 8, "s36", "s37", "s34")
    A.e(f"s_mul_i32 s33, s47, {28*1024}")
    A.e(f"s_add_u32 s33, s33, {H2_OFF}")
    A.e("s_add_u32 s42, s38, s33")
    A.e("s_addc_u32 s43, s39, 0")
    srd(A, 12, "s42", "s43", 28*1024)
    from k1b import Vm
    vm = Vm()
    A.e(f"s_lshl_b32 s51, s28, 10")
    A.e(f"s_mul_i32 s52, s28, {4*3584}")
    def chunk_loads(c):
        o = []
        for j in range(4*c, 4*c+4):
            o.append([f"s_add_u32 m0, s51, {j*4096}", f"s_add_u32 s50, s52, {j*16*3584}",
                      ("w", c, f"buffer_load_dwordx4 v4, s[8:11], s50 offen lds")])
        for j in range(4):
            o.append([f"s_mov_b32 s50, {c*4096}",
                      ("h", c, f"buffer_load_dwordx4 {v(H2+4*(4*c+j),4)}, v6, s[12:15], s50 offen offset:{j*1024}")])
        return o
    def emit_group(gr):
        for t in gr:
            if isinstance(t, tuple):
                A.e(t[2]); vm.issue((t[0], t[1]))
            else:
                A.e(t)
    NPRE = K3_PRE
    for c in range(NPRE):
        for gr in chunk_loads(c): emit_group(gr)
    ST.stamp()
    seq = [(ks, fb) for ks in range(28) for fb in range(4)]
    def rd(i):
        ks, fb = seq[i]
        off = ks*4096 + (fb >> 1)*512
        o = []
        for u in range(2):
            oo = off + u*2048
            base = (("v8", "v7") if oo < 65536 else ("v9", "v5"))[fb & 1]
            o.append(f"ds_read_b64_tr_b16 {v(AR+4*(i % 8)+2*u,2)}, {base} offset:{oo % 65536}")
        return o
    lg = Lgkm(A)
    L = 5
    A.e(vm.need({('w', 0), ('h', 0)}))
    A.e("s_barrier")
    ST.stamp()
    for i in range(L):
        for t in rd(i): A.e(t); lg.issue(i)
    pend = []
    for c in range(NPRE, 7): pend += chunk_loads(c)
    for i, (ks, fb) in enumerate(seq):
        w = lg.need({i})
        if w: A.e(w)
        acc = v(ACC+16*fb, 16)
        A.e(mfma(acc, v(AR+4*(i % 8), 4), v(H2+4*ks, 4), "0" if ks == 0 else acc))
        if i % 16 == 10 and i//16+1 < 7:
            c = i//16+1
            wv = vm.need({('w', c), ('h', c)})
            if wv: A.e(wv)
            A.e("s_barrier")
        if i+L < len(seq):
            for t in rd(i+L): A.e(t); lg.issue(i+L)
        if pend and i % 2 == 0:
            emit_group(pend.pop(0))
        if i == 60 and PFW2:
            srd(A, 16, "s40", "s41", 1792*896)
            A.e("s_lshr_b32 s33, s2, 3")
            A.e("s_mul_i32 s33, s33, 57344")
            A.e("v_lshlrev_b32 v10, 7, v0")
            A.e("buffer_load_dword v11, v10, s[16:19], s33 offen"); vm.issue('pf')
            A.e("v_add_u32 v10, 32768, v10")
            A.e("v_min_u32 v10, 57216, v10")
            A.e("buffer_load_dword v12, v10, s[16:19], s33 offen"); vm.issue('pf')
    assert not pend
    A.e("s_nop 15")
    ST.stamp()
    A.e(f"s_mul_i32 s33, s47, {112*1024}")
    A.e("s_lshl_b32 s34, s30, 13")
    A.e("s_add_u32 s33, s33, s34")
    A.e(f"s_add_u32 s33, s33, {HF_OFF}")
    A.e("s_add_u32 s42, s38, s33")
    A.e("s_addc_u32 s43, s39, 0")
    srd(A, 12, "s42", "s43", 8192)
    for fr in range(8):
        dst = H2 + 4*fr
        for r in range(4):
            A.e(f"v_cvt_pk_bf16_f32 v{dst+r}, v{ACC+8*fr+2*r}, v{ACC+8*fr+2*r+1}")
        for r in range(4):
            A.e(f"v_pk_max_i16 v{dst+r}, v{dst+r}, 0")
        if fr % 4 == 0:
            A.e(f"s_mov_b32 s50, {fr*1024}")
        A.e(f"buffer_store_dwordx4 {v(dst,4)}, v6, s[12:15], s50 offen offset:{(fr%4)*1024} {HMOD}")
    ST.finish("K3_END", 12)
    A.label("K3_END")
    A.e("s_endpgm")
    return name, 114688
```

```python
import sys
from asmlib import *
from layout import *
import k0, k1, k24, k1b, k2r, k1c, k3m, k1d
M16 = True
FUSE3 = False
MERGE = False

HEADER = open('adaLN_cond__gqa_block_cached__dense_activation_relu__prompt.s.ref').read().split("; Override launch")[0]

def build(dbg=None):
    launches = []; descs = []
    body = Asm()
    k24.NEW = True
    if MERGE:
        k2r.XDIRECT = True
        n = k1c.gen_k1(body, dbg); launches.append((n, 256, 256, k1b.K1_LDS)); descs.append(descriptor(n, 512, 100, 256))
    else:
        n = k0.gen_k0(body); launches.append((n, k0.K0_GRID, 448, 8192)); descs.append(descriptor(n, 112, 100, 112) if k0.KDBG is not None else descriptor(n, 96, 48, 96))
        n = (k1d if M16 else k1b).gen_k1(body, dbg); launches.append((n, 256, 256, k1b.K1_LDS)); descs.append(descriptor(n, 512, 100, 256))
    if FUSE3:
        n, lds = k3m.gen_k3m(body); launches.append((n, 256, 256, lds)); descs.append(descriptor(n, 512, 100, 256))
    else:
        n, lds = k2r.gen_k2r(body); launches.append((n, 256, 448, lds)); descs.append(descriptor(n, 104, 100, 104) if k2r.DBG else descriptor(n, 96, 48, 96))
        n, lds = k24.gen_k3n(body); launches.append((n, 224, 256, lds)); descs.append(descriptor(n, 256, 100, 256))
    n, lds = k24.gen_gemm64(body, 'k4'); launches.append((n, 224, 256, lds)); descs.append(descriptor(n, 256, 100, 256))
    out = HEADER
    for n, g, b, lds in launches:
        out += f"; @launch kernel={n} grid=({g},1,1) block=({b},1,1) lds={lds}\n"
    out += '.amdgcn_target "amdgcn-amd-amdhsa--gfx950"\n.text\n'
    out += body.text()
    out += 'CODE_END:\n    s_endpgm\n'
    out += '.section .rodata,"a"\n.p2align 6\n'
    out += "\n.p2align 6\n".join(descs)
    return out

if __name__ == "__main__":
    dbg = sys.argv[2] if len(sys.argv) > 2 and sys.argv[2] != "none" else None
    k1.OPT['bias'] = 91
    k1.OPT['thr'] = 151
    k1.OPT['order'] = 'grp'
    k1.OPT['wmerge'] = 4; k1d.LEAD = 7; k1.OPT['kdma'] = [1,2,6,10,14]; k1.OPT['vdma'] = [17,18,22,26,30]
    k1.OPT['pstore'] = 'sc1'
    k0.YSTORE = 'sc1'
    k2r.PF = None; k2r.PNT = 'nt'; k1.OPT['pfw1'] = 1
    k0.PFW = True; k0.K0_GRID = 368
    k1.OPT['pfkv'] = 0; k1.OPT['pfmall'] = 0
    for kv in sys.argv[3:]:
        k_, v_ = kv.split("=")
        if k_ == 'nopf':
            k0.PFW = False; k0.K0_GRID = 298; k2r.PF = None; k24.PFW2 = False; k1.OPT['pfwo'] = 0
            continue
        if k_ == 'fuse3':
            FUSE3 = True
            continue
        if k_ == 'kdbg':
            k0.KDBG = int(v_)
            continue
        if k_ == 'ystore':
            k0.YSTORE = v_
            continue
        if k_ == 'lead':
            k1.LEAD = int(v_); k1b.LEAD = int(v_); k1d.LEAD = int(v_)
            continue
        if k_ == 'm16':
            M16 = bool(int(v_))
            continue
        if k_ == 'k2pf':
            k2r.PF = None if v_ == 'none' else v_
            continue
        if k_ == 'pnt':
            k2r.PNT = v_
            continue
        if k_ == 'smod':
            k2r.SMOD = v_
            continue
        if k_ == 'hmod':
            k24.HMOD = v_
            continue
        if k_ == 'omod':
            k24.OMOD = v_
            continue
        if k_ == 'merge':
            MERGE = True
            continue
        if k_ == 'pfcode':
            k0.PFCODE = bool(int(v_))
            continue
        if k_ == 'k3pre':
            k24.K3_PRE = int(v_)
            continue
        if k_ == 'gd': k24.GD = int(v_); continue
        if k_ == 'dbg24': k24.DBG = True; k3m.DBG = True; k2r.DBG = True; continue
        if k_ == 'pf': k0.PREFETCH = True; k0.K0_GRID = 138; continue
        k1.OPT[k_] = eval(v_)
    open(sys.argv[1], "w").write(build(dbg))
```

```python
from asmlib import *
from layout import *
import k1
from k1 import (Lgkm, mfma, f2u, AQ, NRING, AK, AV, SRD_K, SRD_V, SRD_WQ, SRD_Y, SRD_M,
                S_W, S_KOFF, S_M0K, S_M0V, S_CNT, S_THR, THR_LOG2, OPT, distribute)

K1_LDS = 163840
SRD_WO = 16
KPIECE = 1056
KSLOT = 16*KPIECE
VBASE = 4*KSLOT
VSLOT = 16384
MODL = VBASE + 4*VSLOT
SPARE = MODL + 4096
WSLOT = [0, 28672, MODL, VBASE, VBASE+28672]
O0 = 128
S_ = [96, 112]
NEGM = 80
P_ = [64, 72]
T_ = 56
L_ = [[60, 61], [62, 63]]
VKR = [2, 3]
VVR = [4, 5, 6, 7]
VKD = [8, 9, 10, 11]
VVD = [12, 13, 14, 15]
LEAD = 6

def m16(d, A_, B_, C_):
    return f"v_mfma_f32_16x16x32_bf16 {d}, {A_}, {B_}, {C_}"

def vread(slot, db, u, ring):
    return f"ds_read_b64_tr_b16 {a(AV+4*ring+2*u,2)}, v{VVR[db & 3]} offset:{slot*VSLOT + u*8192 + (db >> 2)*256}"

def kread(slot, kb, ks, ring):
    return f"ds_read_b128 {a(AK+4*ring,4)}, v{VKR[(ks >> 1) & 1]} offset:{slot*KSLOT + kb*8448 + ks*64}"

def softmax_ops(Sr, Pw, Lold, Lnew):
    ops = []
    def info(j):
        kb, qb, hf = j >> 2, (j >> 1) & 1, j & 1
        return (kb*2+qb)*4 + 2*hf, qb*4 + 2*kb + hf, qb, (kb == 0 and hf == 0)
    def pairtail(j):
        t0, t1 = T_ + 2*(j & 1), T_ + 2*(j & 1) + 1
        si, pi, qb, first = info(j)
        src = Lold[qb] if first else Lnew[qb]
        return [(1, f"v_add_f32 v{Lnew[qb]}, v{src}, v{t0}"),
                (1, f"v_add_f32 v{Lnew[qb]}, v{Lnew[qb]}, v{t1}"),
                (1, f"v_cvt_pk_bf16_f32 v{Pw+pi}, v{t0}, v{t1}")]
    for j in range(8):
        t0, t1 = T_ + 2*(j & 1), T_ + 2*(j & 1) + 1
        si = info(j)[0]
        ops.append((2, f"v_exp_f32 v{t0}, v{Sr+si}"))
        ops.append((2, f"v_exp_f32 v{t1}, v{Sr+si+1}"))
        if j > 0: ops += pairtail(j-1)
    ops += pairtail(7)
    return ops

def reads_for_pos(ph, p, do_pv, do_qk, nxt_pv, nxt_qk):
    if p >= 32:
        ph2, p2, pv, qk = (ph+1) % 4, p-32, nxt_pv, nxt_qk
    else:
        ph2, p2, pv, qk = ph, p, do_pv, do_qk
    if p2 < 16:
        if not pv: return []
        return [((p2, u), vread(ph2, p2, u, p2 % NRING)) for u in range(2)]
    if not qk: return []
    n = p2-16
    return [((p2, 0), kread((ph2+2) % 4, n & 1, n >> 1, n % NRING))]

def iteration(A, ph, tag, do_qk=True, do_sm=True, dma_k=True, dma_v=True,
              nxt_pv=True, nxt_qk=True, vmwait=8, barrier=True, extra=None, first=False):
    Sw, Sr = S_[ph % 2], S_[(ph+1) % 2]
    Pr, Pw = P_[ph % 2], P_[(ph+1) % 2]
    Lold, Lnew = L_[ph % 2], L_[(ph+1) % 2]
    pend = []
    for p in range(LEAD):
        pend += [t for t, _ in reads_for_pos(ph, p, True, do_qk, True, True)]
    lg = Lgkm(A, pend)
    gaps = [[] for _ in range(32)]
    if barrier:
        gaps[OPT.get('bargap', 0)] += [f"s_waitcnt vmcnt({vmwait})"] + ([] if OPT.get('nobar') else ["s_barrier"])
    if OPT.get('no_dma'): dma_k = dma_v = False
    if dma_k:
        kp = OPT.get('kdma', [10, 11, 13, 15, 17])
        gaps[kp[0]].append(f"s_add_u32 m0, s{S_M0K}, {((ph+1) % 4)*KSLOT}")
        for n in range(4):
            gaps[kp[1+n]].append(f"buffer_load_dwordx4 v{VKD[n]}, s[{SRD_K}:{SRD_K+3}], s{S_KOFF} offen offset:{n*KPIECE} {OPT.get('kvmod', '')} lds")
    if dma_v:
        vp = OPT.get('vdma', [18, 19, 21, 23, 25])
        gaps[vp[0]].append(f"s_add_u32 m0, s{S_M0V}, {((ph+3) % 4)*VSLOT}")
        for n in range(4):
            gaps[vp[1+n]].append(f"buffer_load_dwordx4 v{VVD[n]}, s[{SRD_V}:{SRD_V+3}], s{S_KOFF} offen offset:{n*1024} {OPT.get('kvmod', '')} lds")
    gaps[31].append(f"s_add_u32 s{S_KOFF}, s{S_KOFF}, 16384")
    if extra:
        for g_, l_ in extra.items(): gaps[g_] += l_
    def cst(t):
        if t.startswith('v_exp'): return 2
        if t.startswith('buffer_load'): return OPT.get('dmacost', 3)
        return 1
    if do_sm:
        if OPT.get('level', 1):
            WM_ = OPT.get('wmerge', 2)
            fixed = []
            for p in range(32):
                f_ = len(reads_for_pos(ph, p+LEAD, True, do_qk, nxt_pv, nxt_qk)) + sum(cst(t) for t in gaps[p])
                if (p+1) % WM_ == 0: f_ += 1
                fixed.append(f_)
            ops = softmax_ops(Sr, Pw, Lold, Lnew)
            lo, hi = OPT.get('smlo', 3), 29
            total = sum(c for c, _ in ops) + sum(fixed[lo:hi+1])
            tgt = total / (hi-lo+1)
            g = lo; cum_t = 0.0; cum = 0.0
            load = [fixed[p] for p in range(32)]
            budget = 0.0
            i_ = 0
            for p in range(lo, hi+1):
                budget += tgt - fixed[p]
                while i_ < len(ops) and (budget >= ops[i_][0]*0.5 or p == hi):
                    gaps[p].append(ops[i_][1]); budget -= ops[i_][0]; i_ += 1
            assert i_ == len(ops)
        else:
            sm = distribute(softmax_ops(Sr, Pw, Lold, Lnew), OPT.get('smlo', 3), 29)
            for g in range(32): gaps[g] += sm[g]
        gaps[30].append(f"v_max_f32 v{T_}, v{Lnew[0]}, v{Lnew[1]}")
        gaps[31].append(f"v_cmp_lt_f32 vcc, s{S_THR}, v{T_}")
    for p in range(32):
        WM = OPT.get('wmerge', 2)
        if p % WM == 0:
            w = lg.need({(p+x, u) for x in range(WM) for u in range(2)})
            if w: A.e(w)
        F = []
        for t, txt in reads_for_pos(ph, p+LEAD, True, do_qk, nxt_pv, nxt_qk):
            F.append(txt)
            lg.issue((t[0] + (32 if p+LEAD >= 32 else 0), t[1]))
        F += gaps[p]
        M = []
        if p < 16:
            for qb in range(2):
                acc = v(O0+(p*2+qb)*4, 4)
                M.append(m16(acc, a(AV+4*(p % NRING), 4), v(Pr+4*qb, 4), "0" if first else acc))
        elif do_qk:
            n = p-16; ks, kb = n >> 1, n & 1
            for qb in range(2):
                d = v(Sw+(kb*2+qb)*4, 4)
                M.append(m16(d, a(AK+4*(n % NRING), 4), a(AQ+(qb*8+ks)*4, 4), v(NEGM+4*qb, 4) if ks == 0 else d))
        if len(M) == 2:
            def cst(t): return 2 if (t.startswith('v_exp') or t.startswith('buffer_load')) else 1
            tot = sum(cst(t) for t in F); acc_ = 0; h = 0
            for t in F:
                if acc_ + cst(t) > (tot+1)//2: break
                acc_ += cst(t); h += 1
            A.e(M[0])
            for txt in F[:h]: A.e(txt)
            A.e(M[1])
            for txt in F[h:]: A.e(txt)
        else:
            for txt in F: A.e(txt)
    if do_sm:
        A.e(f"s_cbranch_vccnz RARE_{tag}")
        A.label(f"CONT_{tag}")

def xlane(A, r, tmp, op):
    A.e(f"v_mov_b32 v{tmp}, v{r}")
    A.e("s_nop 1")
    A.e(f"v_permlane16_swap_b32 v{r}, v{tmp}")
    A.e("s_nop 1")
    A.e(f"{op} v{r}, v{r}, v{tmp}")
    A.e(f"v_mov_b32 v{tmp}, v{r}")
    A.e("s_nop 1")
    A.e(f"v_permlane32_swap_b32 v{r}, v{tmp}")
    A.e("s_nop 1")
    A.e(f"{op} v{r}, v{r}, v{tmp}")

def rare_path(A, ph, tag, do_qk=True):
    Sn, Sr = S_[ph % 2], S_[(ph+1) % 2]
    Pw = P_[(ph+1) % 2]
    Lold, Lnew = L_[ph % 2], L_[(ph+1) % 2]
    DL = [16, 17]; FF = [18, 19]; t1, t2, t3 = 20, 21, 22
    A.label(f"RARE_{tag}")
    A.e("s_nop 15")
    A.e("s_nop 15")
    for qb in range(2):
        regs = [Sr+(kb*2+qb)*4+r for kb in range(2) for r in range(4)]
        d = DL[qb]
        A.e(f"v_max3_f32 v{d}, v{regs[0]}, v{regs[1]}, v{regs[2]}")
        A.e(f"v_max3_f32 v{d}, v{d}, v{regs[3]}, v{regs[4]}")
        A.e(f"v_max3_f32 v{d}, v{d}, v{regs[5]}, v{regs[6]}")
        A.e(f"v_max_f32 v{d}, v{d}, v{regs[7]}")
        xlane(A, d, t1, "v_max_f32")
        A.e(f"v_mov_b32 v{t2}, v{Lold[qb]}")
        xlane(A, t2, t1, "v_add_f32")
        A.e(f"v_log_f32 v{t2}, v{t2}")
        A.e("s_nop 0")
        A.e(f"v_max_f32 v{d}, v{d}, v{t2}")
        if OPT['bias']:
            A.e(f"v_add_f32 v{d}, {f2u(float(OPT['bias'])):#x}, v{d}")
        A.e(f"v_max_f32 v{d}, 0, v{d}")
        A.e(f"v_mul_f32 v{FF[qb]}, -0.5, v{d}")
        A.e(f"v_exp_f32 v{FF[qb]}, v{FF[qb]}")
        A.e("s_nop 0")
    for rep in range(2):
        for db in range(16):
            for qb in range(2):
                for r in range(4):
                    x = O0+(db*2+qb)*4+r
                    A.e(f"v_mul_f32 v{x}, v{x}, v{FF[qb]}")
    for qb in range(2):
        A.e(f"v_mul_f32 v{Lold[qb]}, v{Lold[qb]}, v{FF[qb]}")
        A.e(f"v_mul_f32 v{Lold[qb]}, v{Lold[qb]}, v{FF[qb]}")
        for r in range(4):
            A.e(f"v_sub_f32 v{NEGM+4*qb+r}, v{NEGM+4*qb+r}, v{DL[qb]}")
        for kb in range(2):
            for r in range(4):
                if do_qk:
                    x = Sn+(kb*2+qb)*4+r
                    A.e(f"v_sub_f32 v{x}, v{x}, v{DL[qb]}")
                x = Sr+(kb*2+qb)*4+r
                A.e(f"v_sub_f32 v{x}, v{x}, v{DL[qb]}")
    for c, t in softmax_ops(Sr, Pw, Lold, Lnew):
        A.e(t)
    A.e("s_nop 1")
    A.e(f"s_branch CONT_{tag}")

class Vm:
    def __init__(self): self.q = []
    def issue(self, tag): self.q.append(tag)
    def need(self, tags):
        idx = -1
        for i, t in enumerate(self.q):
            if t in tags: idx = i
        if idx < 0: return None
        n = len(self.q) - 1 - idx
        self.q = self.q[idx+1:]
        assert n <= 63
        return f"s_waitcnt vmcnt({n})"

def gen_k1(A, dbg=None):
    name = "k1_attn_kernel"
    kernel_begin(A, name)
    ST = Stamps(A, dbg == "time", wg=9, wave_sgpr=S_W)
    A.e("s_cmp_ge_u32 s2, 256")
    A.e("s_cbranch_scc1 K1_END")
    ST.stamp()
    A.e("s_load_dwordx4 s[36:39], s[0:1], 8")
    A.e("s_load_dwordx4 s[40:43], s[0:1], 24")
    A.e("s_load_dwordx2 s[60:61], s[0:1], 96")
    A.e("v_and_b32 v1, 63, v0")
    A.e("v_lshrrev_b32 v14, 6, v0")
    A.e("s_nop 0")
    A.e(f"v_readfirstlane_b32 s{S_W}, v14")
    A.e("s_and_b32 s44, s2, 7")
    A.e("s_lshr_b32 s45, s2, 3")
    A.e("s_lshl_b32 s45, s45, 1")
    A.e(f"s_and_b32 s46, s{S_W}, 1")
    A.e("s_add_u32 s45, s45, s46")
    A.e(f"s_lshr_b32 s47, s{S_W}, 1")
    A.e("v_bfe_u32 v14, v1, 2, 1")
    A.e("v_bfe_u32 v15, v1, 3, 1")
    A.e("v_and_b32 v12, 3, v1")
    A.e("v_lshlrev_b32 v12, 4, v12")
    A.e("v_lshrrev_b32 v13, 4, v1")
    A.e("v_lshl_add_u32 v12, v13, 7, v12")
    for n in range(4):
        A.e(f"v_xor_b32 v13, {n & 1}, v14")
        A.e(f"v_lshl_add_u32 v13, v13, 6, v12")
        A.e(f"v_lshl_add_u32 v13, v15, 13, v13")
        A.e(f"v_add_u32 v{2+n}, {2*n*8192 - n*1024}, v13")
    def tr_bases(dst, swap, add, ta, tb, tc):
        A.e(f"v_lshrrev_b32 v{tb}, 5, v1")
        A.e(f"v_lshlrev_b32 v{ta}, 11, v{tb}")
        A.e(f"v_bfe_u32 v{tb}, v1, 3, 1")
        A.e(f"v_lshl_add_u32 v{ta}, v{tb}, 10, v{ta}")
        A.e(f"v_bfe_u32 v{tc}, v1, 2, 1")
        A.e(f"v_lshl_add_u32 v{ta}, v{tc}, 7, v{ta}")
        A.e(f"v_bfe_u32 v{tc}, v1, 4, 1")
        A.e(f"v_lshl_add_u32 v{ta}, v{tc}, 5, v{ta}")
        if swap:
            A.e(f"v_and_b32 v{tc}, 1, v1")
            A.e(f"v_lshl_add_u32 v{ta}, v{tc}, 4, v{ta}")
            A.e(f"v_bfe_u32 v{tc}, v1, 1, 1")
            A.e(f"v_lshl_add_u32 v{ta}, v{tc}, 3, v{ta}")
        else:
            A.e(f"v_and_b32 v{tc}, 3, v1")
            A.e(f"v_lshl_add_u32 v{ta}, v{tc}, 3, v{ta}")
        A.e(f"v_add_u32 v{ta}, {add}, v{ta}")
        A.e(f"v_lshl_add_u32 v{dst[0]}, v{tb}, 6, v{ta}")
        A.e(f"v_xor_b32 v{tb}, 1, v{tb}")
        A.e(f"v_lshl_add_u32 v{dst[1]}, v{tb}, 6, v{ta}")
    A.e("s_lshl_b32 s48, s47, 14")
    tr_bases([6, 7], True, "s48", 13, 14, 15)
    A.e("v_add_u32 v8, 0x10000, v6")
    A.e("v_add_u32 v9, 0x10000, v7")
    WQR = [[6, 7], [8, 9]]
    A.e("v_lshlrev_b32 v12, 4, v1")
    A.e("v_lshrrev_b32 v13, 5, v1")
    A.e("v_lshlrev_b32 v13, 4, v13")
    A.e(f"v_add_u32 v13, {MODL}, v13")
    A.e(f"s_lshl_b32 s49, s46, 17")
    A.e("s_lshl_b32 s50, s47, 9")
    A.e("s_add_u32 s49, s49, s50")
    A.e(f"s_lshl_b32 s48, s{S_W}, 13")
    A.e("s_waitcnt lgkmcnt(0)")
    A.e("s_lshl_b32 s50, s44, 20")
    A.e("s_add_u32 s36, s36, s50")
    A.e("s_addc_u32 s37, s37, 0")
    A.e("s_sub_u32 s52, s36, 128")
    A.e("s_subb_u32 s53, s37, 0")
    srd(A, SRD_K, "s52", "s53", 1048576+128)
    A.e("s_add_u32 s38, s38, s50")
    A.e("s_addc_u32 s39, s39, 0")
    A.e("s_sub_u32 s52, s38, 32768")
    A.e("s_subb_u32 s53, s39, 0")
    srd(A, SRD_V, "s52", "s53", 1048576+32768)
    A.e("s_lshl_b32 s50, s44, 10")
    A.e("s_add_u32 s40, s40, s50")
    A.e("s_addc_u32 s41, s41, 0")
    A.e(f"s_sub_u32 s51, {448*8192}, s50")
    srd(A, SRD_WQ, "s40", "s41", "s51")
    A.e("s_mul_i32 s50, s45, 28672")
    A.e(f"s_add_u32 s50, s50, {Y_OFF}")
    A.e("s_add_u32 s52, s60, s50")
    A.e("s_addc_u32 s53, s61, 0")
    srd(A, SRD_Y, "s52", "s53", 28672)
    srd(A, SRD_M, "s60", "s61", 3584)
    YR = 16
    BF = 40
    TG = 64
    TU = 96
    H1L = SPARE
    def yreg(s): return YR + 4*(s % 6)
    def breg(s, j): return BF + 8*(s & 1) + 4*j
    vm = Vm()
    A.e("s_lshl_b32 s50, s47, 10")
    A.e("v_add_u32 v14, s50, v12")
    A.e("s_lshl_b32 s51, s47, 6")
    A.e("v_add_u32 v13, s51, v13")
    A.e("s_mul_i32 s51, s46, 6144")
    A.e(f"s_add_u32 s51, s51, {H1L}")
    A.e("v_add_u32 v10, s51, v12")
    A.e("v_add_u32 v15, s50, v10")
    def y_load(s):
        vm.issue(('y', s))
        return [f"s_mov_b32 s50, {(s//2)*4096}",
                f"buffer_load_dwordx4 {v(yreg(s),4)}, v14, s[{SRD_Y}:{SRD_Y+3}], s50 offen offset:{(s%2)*2048}"]
    def wslot(s): return (s+2) % 4
    def wq_dma(s):
        out = []
        for grp in range(2):
            out.append(f"s_add_u32 m0, s48, {wslot(s)*32768 + grp*4096}")
            out.append(f"s_add_u32 s50, s49, {s*262144 + grp*65536}")
            for n in range(4):
                if OPT.get('q_vgpr') and s >= 3:
                    out.append(f"buffer_load_dwordx4 {a(128+4*((8*s+4*grp+n) % 24),4)}, v{2+n}, s[{SRD_WQ}:{SRD_WQ+3}], s50 offen offset:{n*1024}")
                else:
                    out.append(f"buffer_load_dwordx4 v{2+n}, s[{SRD_WQ}:{SRD_WQ+3}], s50 offen offset:{n*1024} lds")
                vm.issue(('wq', s))
        return out
    for f in range(2):
        for t in y_load(f): A.e(t)
    A.e(f"s_lshl_b32 s50, s{S_W}, 10")
    A.e(f"s_add_u32 m0, s50, {MODL}")
    A.e("s_nop 0")
    A.e(f"buffer_load_dwordx4 v12, s[{SRD_M}:{SRD_M+3}], s50 offen lds")
    vm.issue('mod')
    for t in wq_dma(0): A.e(t)
    for s_ in (1, 2):
        for t in y_load(s_+1): A.e(t)
        for t in wq_dma(s_): A.e(t)
    lg = Lgkm(A)
    def ln_ops(s):
        b = TG + 16*(s & 1)
        rd = [(('m', s, 0), f"ds_read_b128 {v(b,4)}, v13 offset:{1792+s*128}"),
              (('m', s, 1), f"ds_read_b128 {v(b+4,4)}, v13 offset:{1792+s*128+32}"),
              (('m', s, 2), f"ds_read_b128 {v(b+8,4)}, v13 offset:{s*128}"),
              (('m', s, 3), f"ds_read_b128 {v(b+12,4)}, v13 offset:{s*128+32}")]
        tu = TU + 8*(s & 1)
        va = []
        for d in range(4):
            r = yreg(s)+d
            va.append(f"v_lshlrev_b32 v{tu+2*d}, 16, v{r}")
            va.append(f"v_and_b32 v{tu+2*d+1}, 0xffff0000, v{r}")
        vb = []
        for d in range(4):
            vb.append(f"v_pk_fma_f32 {v(tu+2*d,2)}, {v(tu+2*d,2)}, {v(b+2*d,2)}, {v(b+8+2*d,2)}")
        for d in range(4):
            vb.append(f"v_cvt_pk_bf16_f32 v{yreg(s)+d}, v{tu+2*d}, v{tu+2*d+1}")
        wr = (('hw', s), f"ds_write_b128 v15, {v(yreg(s),4)} offset:{(s % 3)*2048}")
        return rd, va, vb, wr
    def b_reads(s):
        return [(('b', s, j), f"ds_read_b128 {v(breg(s, j),4)}, v10 offset:{(s % 3)*2048 + j*1024}") for j in range(2)]
    w = vm.need({('y', 0), ('y', 1), 'mod', ('wq', 0)})
    A.e(w)
    A.e("s_barrier")
    ST.stamp()
    for f in (0, 1):
        rd, va, vb, wr = ln_ops(f)
        for t, txt in rd: A.e(txt); lg.issue(t)
        for txt in va: A.e(txt)
        A.e(lg.need({('m', f, 3)}))
        for txt in vb: A.e(txt)
        A.e(wr[1]); lg.issue(wr[0])
    A.e("s_waitcnt lgkmcnt(0)")
    lg.q = []
    A.e("s_barrier")
    for t, txt in b_reads(0): A.e(txt); lg.issue(t)
    QL = OPT.get('ql', 4)
    def q_reads(s, p):
        if p >= 16:
            s, p = s+1, p-16
            if s >= 14: return []
        db, ks = p >> 1, p & 1
        sl = wslot(s)
        o = []
        for u in range(2):
            off = (sl & 1)*32768 + ks*8192 + u*4096 + (db >> 1)*256
            o.append((('q', s, p, u), f"ds_read_b64_tr_b16 {a(AV+4*(p % NRING)+2*u,2)}, v{WQR[sl >> 1][db & 1]} offset:{off}"))
        return o
    for p in range(QL):
        for t, txt in q_reads(0, p):
            A.e(txt); lg.issue(t)
    def k_dma(blk):
        out = [f"s_add_u32 m0, s{S_M0K}, {(blk % 4)*KSLOT}", f"s_mov_b32 s50, {blk*16384}"]
        for n in range(4):
            out.append(f"buffer_load_dwordx4 v{VKD2[n]}, s[{SRD_K}:{SRD_K+3}], s50 offen offset:{n*KPIECE} lds")
            vm.issue(('k', blk))
        return out
    def v_dma(blk):
        out = [f"s_add_u32 m0, s{S_M0V}, {(blk % 4)*VSLOT}", f"s_mov_b32 s50, {blk*16384+32768}"]
        for n in range(4):
            out.append(f"buffer_load_dwordx4 v{VVD2[n]}, s[{SRD_V}:{SRD_V+3}], s50 offen offset:{n*1024} lds")
            vm.issue(('v', blk))
        return out
    VKD2 = [112, 113, 114, 115]
    VVD2 = [116, 117, 118, 119]
    def kv_addr_setup():
        o = []
        e = o.append
        e("v_lshrrev_b32 v120, 5, v1")
        e("v_and_b32 v121, 31, v1")
        e("v_lshlrev_b32 v122, 3, v120")
        e("v_xor_b32 v121, v121, v122")
        e("v_lshlrev_b32 v121, 4, v121")
        e("v_lshl_add_u32 v121, v120, 9, v121")
        e(f"s_lshl_b32 s51, s{S_W}, 12")
        e("s_add_u32 s54, s51, 128")
        e(f"v_add_u32 v{VKD2[0]}, s54, v121")
        for n in range(1, 4):
            e(f"v_subrev_u32 v{VKD2[n]}, {32*n}, v{VKD2[0]}")
        e("v_bfe_u32 v120, v1, 3, 1")
        e("v_lshlrev_b32 v121, 9, v120")
        e("v_lshrrev_b32 v120, 4, v1")
        e("v_lshl_add_u32 v121, v120, 7, v121")
        e("v_add_u32 v121, s51, v121")
        e("v_and_b32 v120, 7, v1")
        for n in range(4):
            e(f"v_xor_b32 v122, {2*n}, v120")
            e(f"v_lshl_add_u32 v{VVD2[n]}, v122, 4, v121")
        e(f"s_add_u32 s{S_M0V}, s51, {VBASE}")
        e(f"s_mul_i32 s{S_M0K}, s{S_W}, {4*KPIECE}")
        return o
    for t in kv_addr_setup(): A.e(t)
    for s_ in range(14):
        gaps = [[] for _ in range(16)]
        needs = set()
        if s_+1 < 14: needs |= {('wq', s_+1)}
        if s_+2 < 14: needs |= {('y', s_+2)}
        w = vm.need(needs) if needs else None
        wl = lg.need({('hw', s_+1)}) if False else None
        gaps[0] += ([w] if w else []) + [('barrier', s_+1)]
        fill = []
        if s_+4 < 14: fill += y_load(s_+4)
        if s_+3 < 14: fill += wq_dma(s_+3)
        if s_ == 12:
            for blk in (0, 1, 2): fill += k_dma(blk)
        if s_ == 13:
            fill += k_dma(3) + v_dma(0)
        n = len(fill)
        if OPT.get('qstag', 0) and n:
            for k in range(4):
                lab = A.newlabel("QS")
                gaps[1+4*k] += [f"s_cmp_lg_u32 s{S_W}, {k}", f"s_cbranch_scc1 {lab}"] + fill + [("label", lab)]
        else:
            for i, t in enumerate(fill):
                gaps[1 + (i*14)//max(n, 1)].append(t)
        items = []
        if s_+1 < 14:
            for t, txt in b_reads(s_+1): items.append(('rd', t, txt))
        if s_+2 < 14:
            r0, a0, b0, wr = ln_ops(s_+2)
            for t, txt in r0: items.append(('rd', t, txt))
            for txt in a0: items.append(('v', None, txt))
            items.append(('need', s_+2, None))
            for txt in b0: items.append(('v', None, txt))
            items.append(('rd', wr[0], wr[1]))
        lgaps = [[] for _ in range(16)]
        for i, it in enumerate(items):
            lgaps[1 + (i*13)//max(len(items), 1)].append(it)
        for p in range(16):
            if OPT.get('q_mw', 0):
                w2 = lg.need({('q', s_, p, 0), ('q', s_, p, 1), ('q', s_, p+1, 0), ('q', s_, p+1, 1)}) if p % 2 == 0 else None
            else:
                w2 = lg.need({('q', s_, p, 0), ('q', s_, p, 1)} | ({('b', s_, p)} if p < 2 else set()))
            if w2: A.e(w2)
            db, ks = p >> 1, p & 1
            acc = v(O0+16*db, 16)
            first = (s_ == 0 and ks == 0)
            if OPT.get('fakeq16'):
                for hh in range(2):
                    a4 = v(O0+16*db+8*ks+4*hh, 4)
                    A.e(m16(a4, a(AV+4*(p % NRING), 4), v(yreg(2*s_+hh), 4), "0" if s_ == 0 else a4))
            else:
                A.e(mfma(acc, a(AV+4*(p % NRING), 4), v(breg(s_, ks), 4), "0" if first else acc))
            for t, txt in q_reads(s_, p+QL):
                A.e(txt); lg.issue(t)
            for txt in gaps[p]:
                if isinstance(txt, tuple) and txt[0] == 'label':
                    A.label(txt[1])
                elif isinstance(txt, tuple):
                    w4 = lg.need({('hw', txt[1])})
                    if w4: A.e(w4)
                    A.e("s_barrier")
                else:
                    A.e(txt)
            for kind, t, txt in lgaps[p]:
                if kind == 'rd':
                    A.e(txt); lg.issue(t)
                elif kind == 'v':
                    A.e(txt)
                else:
                    w3 = lg.need({('m', t, 3)})
                    if w3: A.e(w3)
    ST.stamp()
    A.e("s_barrier")
    for n in range(4): A.e(f"v_mov_b32 v{VKD[n]}, v{VKD2[n]}")
    for n in range(4): A.e(f"v_mov_b32 v{VVD[n]}, v{VVD2[n]}")
    A.e("v_bfe_u32 v16, v1, 1, 3")
    A.e(f"v_mul_u32_u24 v16, {KPIECE}, v16")
    A.e("v_and_b32 v17, 1, v1")
    A.e("v_lshl_add_u32 v16, v17, 9, v16")
    A.e("v_lshrrev_b32 v18, 4, v1")
    A.e("v_lshl_add_u32 v16, v18, 4, v16")
    A.e("v_lshlrev_b32 v17, 7, v17")
    A.e(f"v_add_u32 v{VKR[0]}, v16, v17")
    A.e(f"v_sub_u32 v{VKR[1]}, v16, v17")
    A.e("v_bfe_u32 v17, v1, 3, 1")
    A.e("v_lshl_add_u32 v19, v18, 1, v17")
    A.e("v_lshlrev_b32 v16, 10, v19")
    A.e("v_bfe_u32 v17, v1, 2, 1")
    A.e("v_lshl_add_u32 v16, v17, 7, v16")
    A.e("v_and_b32 v17, 3, v1")
    A.e("v_lshl_add_u32 v16, v17, 3, v16")
    A.e(f"v_add_u32 v16, {VBASE}, v16")
    A.e("v_and_b32 v19, 3, v19")
    for sx in range(4):
        A.e(f"v_xor_b32 v17, {sx}, v19")
        A.e(f"v_lshl_add_u32 v{VVR[sx]}, v17, 5, v16")
    A.e(f"s_add_u32 s50, s{S_W}, 1")
    A.e("s_lshl_b32 s50, s50, 14")
    A.e(f"s_add_u32 s50, s50, {VBASE}")
    A.e(f"s_cmp_eq_u32 s{S_W}, 3")
    A.e(f"s_cselect_b32 s50, {SPARE}, s50")
    A.e("v_and_b32 v16, 31, v1")
    A.e("v_lshlrev_b32 v17, 9, v16")
    A.e("v_and_b32 v16, 15, v1")
    A.e("v_lshrrev_b32 v18, 5, v1")
    A.e("v_xor_b32 v18, v18, v16")
    A.e("v_lshl_add_u32 v17, v18, 4, v17")
    A.e("v_add_u32 v20, s50, v17")
    A.e("v_lshlrev_b32 v17, 9, v16")
    A.e("v_lshrrev_b32 v18, 4, v1")
    A.e("v_xor_b32 v18, v18, v16")
    A.e("v_lshl_add_u32 v17, v18, 4, v17")
    A.e("v_add_u32 v21, s50, v17")
    for fr in range(16):
        base = O0 + 8*fr
        dst = 24 + 4*(fr & 3)
        for r in range(4):
            A.e(f"v_cvt_pk_bf16_f32 v{dst+r}, v{base+2*r}, v{base+2*r+1}")
        A.e(f"v_xor_b32 v{40+(fr & 3)}, {32*fr}, v20")
        A.e(f"ds_write_b128 v{40+(fr & 3)}, {v(dst,4)}")
    A.e("s_waitcnt lgkmcnt(0)")
    for ks in range(8):
        A.e(f"v_xor_b32 v{40+(ks & 3)}, {64*ks}, v21")
        for qb in range(2):
            A.e(f"ds_read_b128 {a(AQ+(qb*8+ks)*4,4)}, v{40+(ks & 3)} offset:{qb*8192}")
    A.e("s_waitcnt lgkmcnt(0)")
    A.e(vm.need({('k', 0), ('k', 1)}))
    A.e("s_barrier")
    VKD2[:] = VKD; VVD2[:] = VVD
    for t in v_dma(1): A.e(t)
    lg = Lgkm(A)
    seq = [(b, n) for b in range(2) for n in range(16)]
    KL = 4
    for i in range(KL):
        b, n = seq[i]
        A.e(kread(b, n & 1, n >> 1, i % NRING)); lg.issue(i)
    zero = [f"v_mov_b32 v{O0+r}, 0" for r in range(128)]
    for i, (b, n) in enumerate(seq):
        w = lg.need({i})
        if w: A.e(w)
        ks, kb = n >> 1, n & 1
        for qb in range(2):
            d = v(S_[b]+(kb*2+qb)*4, 4)
            A.e(m16(d, a(AK+4*(i % NRING), 4), a(AQ+(qb*8+ks)*4, 4), "0" if ks == 0 else d))
        if i+KL < 32:
            b2, n2 = seq[i+KL]
            A.e(kread(b2, n2 & 1, n2 >> 1, (i+KL) % NRING)); lg.issue(i+KL)
    A.e("s_barrier")
    for t in v_dma(2): A.e(t)
    for t in k_dma(4): A.e(t)
    A.e(f"s_mov_b32 s{S_KOFF}, {5*16384}")
    A.e(f"s_mov_b32 s{S_THR}, {f2u(2.0**(OPT.get('thr', THR_LOG2)-OPT['bias'])):#x}")
    A.e("s_nop 7")
    for qb in range(2):
        regs = [S_[b]+(kb*2+qb)*4+r for b in range(2) for kb in range(2) for r in range(4)]
        d = 16+qb
        A.e(f"v_max3_f32 v{d}, v{regs[0]}, v{regs[1]}, v{regs[2]}")
        for j in range(3, 15, 2):
            A.e(f"v_max3_f32 v{d}, v{d}, v{regs[j]}, v{regs[j+1]}")
        A.e(f"v_max_f32 v{d}, v{d}, v{regs[15]}")
        xlane(A, d, 18, "v_max_f32")
        if OPT['bias']:
            A.e(f"v_add_f32 v{d}, {f2u(float(OPT['bias'])):#x}, v{d}")
        for r in range(4):
            A.e(f"v_sub_f32 v{NEGM+4*qb+r}, 0, v{d}")
        for x in regs:
            A.e(f"v_sub_f32 v{x}, v{x}, v{d}")
        A.e(f"v_mov_b32 v{L_[1][qb]}, 0")
    for c, t in softmax_ops(S_[0], P_[0], L_[1], L_[0]):
        A.e(t)
    A.e("s_waitcnt vmcnt(8)")
    A.e("s_barrier")
    ST.stamp()
    if dbg == "time": A.e("s_waitcnt lgkmcnt(0)")
    for p in range(LEAD):
        for t, txt in reads_for_pos(0, p, True, True, True, True):
            A.e(txt)
    if OPT.get('pfkv', 1):
        A.e(f"s_cmp_lt_u32 s{S_W}, 2")
        A.e("s_cselect_b32 s96, s36, s38")
        A.e("s_cselect_b32 s97, s37, s39")
        A.e("s_and_b32 s97, s97, 0xffff")
        A.e("s_mov_b32 s98, 1048576")
        A.e("s_mov_b32 s99, 0x00020000")
        A.e("v_and_b32 v19, 7, v1")
        A.e("v_lshlrev_b32 v19, 7, v19")
        A.e("s_lshr_b32 s50, s2, 3")
        A.e("s_lshl_b32 s50, s50, 11")
        A.e("s_lshl_b32 s51, s46, 10")
        A.e("s_add_u32 s50, s50, s51")
        A.e("v_add_u32 v19, s50, v19")
    if OPT.get('pfmall', 1):
        A.e("s_load_dwordx4 s[52:55], s[0:1], 48")
        A.e("s_waitcnt lgkmcnt(0)")
        A.e("s_cmp_lt_u32 s46, 1")
        A.e("s_cselect_b32 s56, s52, s54")
        A.e("s_cselect_b32 s57, s53, s55")
        A.e("s_and_b32 s57, s57, 0xffff")
        A.e(f"s_mov_b32 s58, {448*3584}")
        A.e("s_mov_b32 s59, 0x00020000")
        A.e("s_mul_i32 s50, s2, 6272")
        A.e("v_lshlrev_b32 v20, 7, v1")
        A.e("v_min_u32 v20, 6144, v20")
        A.e(f"s_cmp_lt_u32 s{S_W}, 2")
        A.e("s_cbranch_scc0 K1_NOMALL")
        A.e("buffer_load_dword v21, v20, s[56:59], s50 offen")
        A.label("K1_NOMALL")
    iteration(A, 0, "F0", first=True)
    for ph in range(1, 4):
        iteration(A, ph, f"F{ph}")
    A.e(f"s_mov_b32 s{S_CNT}, 14")
    A.raw(".p2align 6")
    A.label("K1_LOOP")
    if OPT.get('pfkv', 1):
        A.e(f"s_add_u32 s50, s{S_KOFF}, {7*16384}")
        A.e("buffer_load_dword v22, v19, s[96:99], s50 offen")
    if OPT.get('pfwo', 1):
        A.e(f"s_cmp_lg_u32 s{S_CNT}, 4")
        A.e("s_cbranch_scc1 K1_NOPF")
        A.e(f"s_mul_i32 s50, s44, {512*896}")
        A.e("s_add_u32 s56, s42, s50")
        A.e("s_addc_u32 s57, s43, 0")
        A.e("s_and_b32 s57, s57, 0xffff")
        A.e(f"s_mov_b32 s58, {512*896}")
        A.e("s_mov_b32 s59, 0x00020000")
        A.e("s_lshr_b32 s50, s2, 3")
        A.e("s_mul_i32 s50, s50, 14336")
        A.e("v_lshlrev_b32 v26, 7, v0")
        A.e("v_min_u32 v26, 14208, v26")
        A.e("buffer_load_dword v27, v26, s[56:59], s50 offen")
        A.label("K1_NOPF")
    if OPT.get('pfw1', 0):
        A.e(f"s_cmp_lg_u32 s{S_CNT}, {OPT.get('pfw1')}")
        A.e("s_cbranch_scc1 K1_NOPF1")
        A.e("s_load_dwordx2 s[56:57], s[0:1], 48")
        A.e("s_waitcnt lgkmcnt(0)")
        A.e("s_and_b32 s57, s57, 0xffff")
        A.e(f"s_mov_b32 s58, {448*3584}")
        A.e("s_mov_b32 s59, 0x00020000")
        A.e("s_lshr_b32 s50, s2, 3")
        A.e("s_mul_i32 s50, s50, 50176")
        A.e("v_lshlrev_b32 v26, 7, v0")
        A.e("buffer_load_dword v27, v26, s[56:59], s50 offen")
        A.e("v_add_u32 v26, 32768, v26")
        A.e("v_min_u32 v26, 50048, v26")
        A.e("buffer_load_dword v28, v26, s[56:59], s50 offen")
        A.label("K1_NOPF1")
    for ph in range(4):
        iteration(A, ph, f"M{ph}")
    A.e(f"s_sub_u32 s{S_CNT}, s{S_CNT}, 1")
    A.e(f"s_cmp_lg_u32 s{S_CNT}, 0")
    A.e("s_cbranch_scc1 K1_LOOP")
    if dbg == "time":
        ST.stamp()
    A.e(f"s_mul_i32 s50, s44, {512*896}")
    A.e("s_add_u32 s42, s42, s50")
    A.e("s_addc_u32 s43, s43, 0")
    srd(A, SRD_WO, "s42", "s43", 512*896)
    GOFF = 34
    for n in range(7):
        A.e(f"s_mul_i32 s50, s{S_W}, 7")
        A.e(f"s_add_u32 s50, s50, {n}")
        A.e("s_cmp_ge_u32 s50, 14")
        A.e("s_cselect_b32 s51, 14, 0")
        A.e(f"s_cselect_b32 s52, {16*896}, 0")
        A.e("s_sub_u32 s50, s50, s51")
        A.e("s_and_b32 s51, s50, 1")
        A.e(f"s_mul_i32 s51, s51, {8*896}")
        A.e("s_lshr_b32 s50, s50, 1")
        A.e("s_lshl_b32 s50, s50, 7")
        A.e("s_add_u32 s50, s50, s51")
        A.e(f"s_add_u32 s{GOFF+n}, s50, s52")
    A.e(f"s_mul_i32 s41, s{S_W}, 7168")
    A.e("v_lshrrev_b32 v16, 3, v1")
    A.e("v_mul_u32_u24 v23, 896, v16")
    A.e("v_bfe_u32 v16, v1, 4, 1")
    A.e("v_bfe_u32 v17, v1, 2, 1")
    A.e("v_xor_b32 v16, v16, v17")
    A.e("v_lshl_add_u32 v23, v16, 6, v23")
    A.e("v_and_b32 v16, 3, v1")
    A.e("v_lshl_add_u32 v23, v16, 4, v23")
    vme = Vm()
    def wo_dma(t):
        out = []
        for n in range(7):
            out.append(f"s_add_u32 m0, s41, {WSLOT[t % 5] + n*1024}")
            out.append(f"s_add_u32 s50, s{GOFF+n}, {t*32*896}")
            if OPT.get('o_vgpr') and t >= 5:
                out.append(f"buffer_load_dwordx4 {a(160+4*((7*t+n) % 20),4)}, v23, s[{SRD_WO}:{SRD_WO+3}], s50 offen")
            else:
                out.append(f"buffer_load_dwordx4 v23, s[{SRD_WO}:{SRD_WO+3}], s50 offen lds")
            vme.issue(('wo', t))
        return out
    def spread(lst, lo, hi):
        d = {}
        trip = [lst[i:i+3] for i in range(0, len(lst), 3)]
        for i, tr3 in enumerate(trip):
            g = lo + (i*(hi-lo+1))//len(trip)
            d.setdefault(g, []).extend(tr3)
        return d
    iteration(A, 0, "T0", dma_k=False, dma_v=True, vmwait=8)
    iteration(A, 1, "T1", dma_k=False, dma_v=False, vmwait=4, nxt_qk=False)
    iteration(A, 2, "T2", do_qk=False, dma_k=False, dma_v=False, vmwait=0, nxt_qk=False,
              extra=spread(wo_dma(0) + wo_dma(1)[:12], 1, 30))
    vme.q = [('wo', 0)]*7 + [('wo', 1)]*4
    rest1 = []
    for n in range(4, 7):
        rest1 += [f"s_add_u32 m0, s41, {WSLOT[1] + n*1024}", f"s_add_u32 s50, s{GOFF+n}, {32*896}",
                  f"buffer_load_dwordx4 v23, s[{SRD_WO}:{SRD_WO+3}], s50 offen lds"]
        vme.issue(('wo', 1))
    iteration(A, 3, "T3", do_qk=False, do_sm=False, dma_k=False, dma_v=False, nxt_pv=False, nxt_qk=False, barrier=False,
              extra=spread(rest1 + wo_dma(2), 1, 30))
    ST.stamp()
    Lf = L_[1]
    OP = 64
    INV = [16, 17]
    for qb in range(2):
        A.e(f"v_mov_b32 v{INV[qb]}, v{Lf[qb]}")
        xlane(A, INV[qb], 18, "v_add_f32")
        A.e(f"v_rcp_f32 v{INV[qb]}, v{INV[qb]}")
    A.e("s_lshl_b32 s50, s46, 1")
    A.e("s_add_u32 s50, s50, s47")
    A.e("s_lshl_b32 s50, s50, 14")
    A.e(f"s_add_u32 s50, s50, {VBASE}")
    A.e("v_lshlrev_b32 v12, 4, v1")
    A.e("v_and_b32 v18, 15, v1")
    A.e("v_lshlrev_b32 v19, 9, v18")
    A.e("v_lshrrev_b32 v20, 5, v1")
    A.e("v_xor_b32 v20, v20, v18")
    A.e("v_lshl_add_u32 v19, v20, 4, v19")
    A.e("v_bfe_u32 v20, v1, 4, 1")
    A.e("v_lshl_add_u32 v19, v20, 3, v19")
    A.e("v_add_u32 v19, s50, v19")
    A.e("s_barrier")
    for db in range(16):
        A.e(f"v_xor_b32 v{24+(db & 3)}, {32*db}, v19")
        for qb in range(2):
            base = O0+(db*2+qb)*4
            for r in range(4):
                A.e(f"v_mul_f32 v{base+r}, v{base+r}, v{INV[qb]}")
            dst = 32 + 4*(db & 3) + 2*qb
            A.e(f"v_cvt_pk_bf16_f32 v{dst}, v{base}, v{base+1}")
            A.e(f"v_cvt_pk_bf16_f32 v{dst+1}, v{base+2}, v{base+3}")
            A.e(f"ds_write_b64 v{24+(db & 3)}, {v(dst,2)} offset:{qb*8192}")
    A.e("s_waitcnt lgkmcnt(0)")
    A.e("s_barrier")
    A.e("s_lshl_b32 s50, s46, 15")
    A.e(f"s_add_u32 s50, s50, {VBASE}")
    A.e("v_and_b32 v18, 31, v1")
    A.e("v_lshlrev_b32 v19, 9, v18")
    A.e("v_and_b32 v18, 15, v1")
    A.e("v_lshrrev_b32 v20, 5, v1")
    A.e("v_xor_b32 v20, v20, v18")
    A.e("v_lshl_add_u32 v19, v20, 4, v19")
    A.e("v_add_u32 v19, s50, v19")
    for ks in range(16):
        A.e(f"v_xor_b32 v{24+(ks & 3)}, {32*ks}, v19")
        for hd in range(2):
            A.e(f"ds_read_b128 {a(4*(16*hd+ks),4)}, v{24+(ks & 3)} offset:{hd*16384}")
    A.e("v_lshrrev_b32 v16, 5, v1")
    A.e("v_lshlrev_b32 v17, 10, v16")
    A.e("v_bfe_u32 v16, v1, 2, 2")
    A.e("v_lshl_add_u32 v17, v16, 7, v17")
    A.e("v_bfe_u32 v16, v1, 4, 1")
    A.e("v_lshl_add_u32 v17, v16, 5, v17")
    A.e("v_and_b32 v16, 3, v1")
    A.e("v_lshl_add_u32 v17, v16, 3, v17")
    A.e("v_bfe_u32 v16, v1, 3, 1")
    A.e("v_xor_b32 v18, s47, v16")
    A.e("v_lshl_add_u32 v2, v18, 6, v17")
    A.e("v_xor_b32 v18, 1, v18")
    A.e("v_lshl_add_u32 v3, v18, 6, v17")
    A.e(f"s_mul_i32 s50, s47, {3*2048}")
    A.e(f"s_mul_i32 s51, s47, {4*2048}")
    A.e("v_add_u32 v2, s50, v2")
    A.e("v_add_u32 v3, s51, v3")
    A.e(f"v_add_u32 v4, {WSLOT[2]}, v2")
    A.e(f"v_add_u32 v5, {WSLOT[2]}, v3")
    A.e(f"v_add_u32 v6, {WSLOT[3]}, v2")
    A.e(f"v_add_u32 v7, {WSLOT[3]}, v3")
    A.e("s_waitcnt lgkmcnt(0)")
    if not OPT.get('late34', 1):
        A.e("s_barrier")
        for t in wo_dma(3) + wo_dma(4): A.e(t)
    def wbase(slot, c):
        e = c & 1
        if slot in (0, 1): return (2+e, WSLOT[slot])
        if slot == 2: return (4+e, 0)
        return (6+e, WSLOT[slot]-WSLOT[3])
    ARG = AV
    ARG = 128
    def o_reads(t, p):
        if p >= 14:
            t, p = t+1, p-14
            if t >= 16: return []
        ksl, c = p // 7, p % 7
        b, off = wbase(t % 5, c)
        o = []
        for u in range(2):
            o.append((('o', t, p, u), f"ds_read_b64_tr_b16 {a(ARG+4*((14*t+p) % NRING)+2*u,2)}, v{b} offset:{off + ksl*14336 + (c >> 1)*2048 + u*512}"))
        return o
    lg = Lgkm(A)
    OL = OPT.get('ol', 4)
    A.e(vme.need({('wo', 0)}))
    A.e("s_barrier")
    for p in range(OL):
        for t_, txt in o_reads(0, p): A.e(txt); lg.issue(t_)
    ACC = O0
    for t in range(16):
        gaps = [[] for _ in range(14)]
        if t+1 < 16:
            w = vme.need({('wo', t+1)})
            gaps[0] += ([w] if w else []) + ["s_barrier"]
        if t == 0 and OPT.get('late34', 1):
            d = wo_dma(3) + wo_dma(4)
            sp = spread(d, 0, 13)
            for g_, l_ in sp.items(): gaps[g_] += l_
        if t >= 1 and t+4 < 16:
            d = wo_dma(t+4)
            if OPT.get('ostag', 0):
                for k in range(4):
                    lab = A.newlabel("OS")
                    gaps[1+3*k] += [f"s_cmp_lg_u32 s{S_W}, {k}", f"s_cbranch_scc1 {lab}"] + d + [("label", lab)]
            else:
                sp = spread(d, OPT.get('osp0', 1), OPT.get('osp1', 12))
                for g_, l_ in sp.items(): gaps[g_] += l_
        for p in range(14):
            if OPT.get('omw', 0):
                w2 = lg.need({('o', t, p+x, u) for x in range(2) for u in range(2)}) if p % 2 == 0 else None
            else:
                w2 = lg.need({('o', t, p, 0), ('o', t, p, 1)})
            if w2: A.e(w2)
            ksl, c = p // 7, p % 7
            acc = v(ACC+16*c, 16)
            first = (t == 0 and ksl == 0)
            if OPT.get('fakeo16'):
                for hh in range(2):
                    a4 = v(ACC+16*c+8*ksl+4*hh, 4)
                    A.e(m16(a4, a(ARG+4*((14*t+p) % NRING), 4), a(4*(2*t+hh), 4), "0" if t == 0 else a4))
            else:
                A.e(mfma(acc, a(ARG+4*((14*t+p) % NRING), 4), a(4*(2*t+ksl), 4), "0" if first else acc))
            for t_, txt in o_reads(t, p+OL): A.e(txt); lg.issue(t_)
            for txt in gaps[p]:
                if isinstance(txt, tuple): A.label(txt[1])
                else: A.e(txt)
    ST.stamp()
    A.e("s_lshl_b32 s50, s44, 6")
    A.e("s_add_u32 s50, s50, s45")
    A.e("s_mul_i32 s50, s50, 28672")
    A.e(f"s_mul_i32 s51, s47, {14*1024}")
    A.e("s_add_u32 s50, s50, s51")
    A.e(f"s_add_u32 s50, s50, {PART_OFF}")
    A.e("s_add_u32 s52, s60, s50")
    A.e("s_addc_u32 s53, s61, 0")
    srd(A, SRD_Y, "s52", "s53", 14*1024)
    A.e("s_nop 7")
    for fr in range(14):
        dst = OP + 4*(fr % 16)
        for r in range(4):
            A.e(f"v_cvt_pk_bf16_f32 v{dst+r}, v{ACC+8*fr+2*r}, v{ACC+8*fr+2*r+1}")
        if fr % 4 == 0:
            A.e(f"s_mov_b32 s50, {fr*1024}")
        A.e(f"buffer_store_dwordx4 {v(dst,4)}, v12, s[{SRD_Y}:{SRD_Y+3}], s50 offen offset:{(fr%4)*1024} {OPT.get('pstore', '')}")
    ST.finish("K1_END")
    A.label("K1_END")
    A.e("s_endpgm")
    if not OPT['no_sm']:
        for ph in range(4):
            rare_path(A, ph, f"M{ph}")
        for ph in range(4):
            rare_path(A, ph, f"F{ph}")
        rare_path(A, 0, "T0")
        rare_path(A, 1, "T1")
        rare_path(A, 2, "T2", do_qk=False)
    return name
```
